```python
import torch

def _softmax(x, axis=-1):
    return torch.softmax(x, dim=axis)
def _gelu(x):
    return torch.nn.functional.gelu(x, approximate="tanh")
def _silu(x):
    return torch.nn.functional.silu(x)
def _sigmoid(x):
    return torch.sigmoid(x)
def _layernorm(x, axis=-1, eps=1e-5):
    m = x.mean(dim=axis, keepdim=True)
    v = x.var(dim=axis, keepdim=True, unbiased=False)
    return (x - m) / torch.sqrt(v + eps)
def _scatter_add(tgt, idx, src, axis=0):
    return tgt.clone().index_add_(axis, idx, src)
def _segment_sum(src, seg, n):
    out = torch.zeros((n,) + src.shape[1:], dtype=src.dtype)
    return out.index_add_(0, seg, src)
def _pad(x, pw):
    flat = tuple(v for pair in reversed(pw) for v in pair)
    return torch.nn.functional.pad(x, flat)

kernel_name = 'interleave_layers__sliding_block__moe_arch_mod__prompt'

def setup_inputs():

    _w = (lambda a: (lambda t: t.to(torch.bfloat16) if t.is_floating_point() else t)(torch.as_tensor(a)))
    def _A_setup():
        B, S, D = 1, 2048, 640
        return {
            "x": _w((lambda *s: torch.randn(*s, dtype=torch.bfloat16) * 0.05)(B, S, D)),
            "wqkv": _w((lambda *s: torch.randn(*s, dtype=torch.bfloat16) * 0.05)(D, 3 * D)),
            "wo": _w((lambda *s: torch.randn(*s, dtype=torch.bfloat16) * 0.05)(D, D)),
        }
    _A_in = _A_setup()

    def _B_setup():
        B, S, D, F, C = 1, 2048, 640, 1536, 8
        return {
            "x": _w((lambda *s: torch.randn(*s, dtype=torch.bfloat16) * 0.05)(B, S, D)),
            "w_r": _w((lambda *s: torch.randn(*s, dtype=torch.bfloat16) * 0.05)(D)),
            "w_gate": _w((lambda *s: torch.randn(*s, dtype=torch.bfloat16) * 0.05)(D, F)),
            "w_up": _w((lambda *s: torch.randn(*s, dtype=torch.bfloat16) * 0.05)(D, F)),
            "w_down": _w((lambda *s: torch.randn(*s, dtype=torch.bfloat16) * 0.05)(F, D)),
        }
    _B_in = _B_setup()

    return {
        "A_x": _A_in["x"],
        "A_wqkv": _A_in["wqkv"],
        "A_wo": _A_in["wo"],
        "B_x": _B_in["x"],
        "B_w_r": _B_in["w_r"],
        "B_w_gate": _B_in["w_gate"],
        "B_w_up": _B_in["w_up"],
        "B_w_down": _B_in["w_down"],
    }

def reference(A_x, A_wqkv, A_wo, B_x, B_w_r, B_w_gate, B_w_up, B_w_down):
    def _A_ref(x, wqkv, wo):
        B, S, D = x.shape
        H = 32; Dh = D // H; W = 256
        qkv = (lambda x, *d: x.permute(*d))((x @ wqkv).reshape(B, S, 3, H, Dh), 2, 0, 3, 1, 4)
        q, k, v = qkv[0], qkv[1], qkv[2]
        scores = torch.einsum("bhqd,bhkd->bhqk", q, k) * (Dh ** -0.5)
        idx = torch.arange(S)
        mask = (idx[:, None] - idx[None, :] >= 0) & (idx[:, None] - idx[None, :] < W)
        scores = torch.where(mask[None, None], scores, -1e9)
        p = _softmax(scores, axis=-1)
        o = torch.einsum("bhqk,bhkd->bhqd", p, v)
        return (lambda x, *d: x.permute(*d))(o, 0, 2, 1, 3).reshape(B, S, D) @ wo

    def _B_ref(x, w_r, w_gate, w_up, w_down):
        B, S, D = x.shape
        C = 8
        r = x @ w_r
        idx = torch.argsort(-r, axis=-1)[:, :C]
        idx_e = (lambda x, n, axis: torch.repeat_interleave(x, n, dim=axis))(idx.reshape(B, C, 1), D, axis=2)
        x_sel = (lambda x, i, axis: torch.take_along_dim(x, i, dim=axis))(x, idx_e, axis=1)
        g = _silu(x_sel @ w_gate)
        u = x_sel @ w_up
        y = (g * u) @ w_down
        r_sel = _sigmoid((lambda x, i, axis: torch.take_along_dim(x, i, dim=axis))(r, idx, axis=1))
        y = y * r_sel.reshape(B, C, 1)
        b_off = (torch.arange(B) * S).reshape(B, 1)
        flat_idx = (idx + b_off).reshape(B * C)
        zero = (x * 0.0).reshape(B * S, D)
        upd = _scatter_add(zero, flat_idx, y.reshape(B * C, D), axis=0)
        return x + upd.reshape(B, S, D)

    x = A_x
    x = x + _A_ref(_layernorm(x, axis=-1), A_wqkv, A_wo)
    x = x + _B_ref(_layernorm(x, axis=-1), B_w_r, B_w_gate, B_w_up, B_w_down)
    x = x + _A_ref(_layernorm(x, axis=-1), A_wqkv, A_wo)
    x = x + _B_ref(_layernorm(x, axis=-1), B_w_r, B_w_gate, B_w_up, B_w_down)
    return x
```

```python
import re

REG_RE = re.compile(r'^(-?)(\|?)([vas])(\d+|\[(\d+):(\d+)\])\|?$')

def parse_reg(tok):
    t = tok.strip()
    t = re.sub(r'^(neg|abs)\((.*)\)$', r'\2', t)
    t = t.lstrip('-').strip('|')
    if t == 'vcc': return [('s', 106), ('s', 107)]
    if t == 'vcc_lo': return [('s', 106)]
    if t == 'vcc_hi': return [('s', 107)]
    if t == 'exec': return [('s', 126), ('s', 127)]
    if t == 'exec_lo': return [('s', 126)]
    if t == 'exec_hi': return [('s', 127)]
    if t == 'm0': return [('s', 124)]
    m = re.match(r'^([vas])(\d+)$', t)
    if m: return [(m.group(1), int(m.group(2)))]
    m = re.match(r'^([vas])\[(\d+):(\d+)\]$', t)
    if m: return [(m.group(1), i) for i in range(int(m.group(2)), int(m.group(3)) + 1)]
    return []

def split_ops(s):
    out, depth, cur = [], 0, ''
    for ch in s:
        if ch in '[(': depth += 1
        if ch in '])': depth -= 1
        if ch == ',' and depth == 0:
            out.append(cur.strip()); cur = ''
        else: cur += ch
    if cur.strip(): out.append(cur.strip())
    return out

TRANS = ('v_exp_', 'v_log_', 'v_rcp_', 'v_rsq_', 'v_sqrt_', 'v_sin_', 'v_cos_')

class Ins:
    def __init__(self, text):
        self.text = text
        t = text.split(';')[0].strip()
        parts = t.split(None, 1)
        self.mn = parts[0]
        rest = parts[1] if len(parts) > 1 else ''
        ops = split_ops(rest)
        self.mods = ''
        if ops:
            lp = ops[-1].split(None, 1)
            ops[-1] = lp[0]
            if len(lp) > 1: self.mods = lp[1]
        self.ops = ops
        mn = self.mn
        self.is_mfma = mn.startswith('v_mfma')
        self.is_valu = mn.startswith('v_') and not self.is_mfma
        self.is_trans = mn.startswith(TRANS)
        self.is_ds = mn.startswith('ds_')
        self.is_vmem = mn.startswith(('buffer_', 'global_', 'flat_'))
        self.is_salu = mn.startswith('s_')
        self.is_dpp = ('row_' in self.mods or 'quad_perm' in self.mods or 'wave_' in self.mods or 'row_' in text or 'quad_perm' in text)
        self.is_dot = mn.startswith('v_dot')
        R = [parse_reg(o) for o in ops]
        self.w, self.r = [], []
        self.srcc = []; self.srcab = []
        if self.is_mfma:
            self.w = R[0]; self.srcab = R[1] + R[2]; self.srcc = R[3]; self.r = self.srcab + self.srcc
            if '32x32' in mn: self.passes = 8
            elif '16x16' in mn: self.passes = 4
            elif '4x4' in mn: self.passes = 2
            else: raise ValueError(mn)
        elif self.is_valu:
            if mn.startswith(('v_permlane16_swap', 'v_permlane32_swap', 'v_swap')):
                self.w = R[0] + R[1]; self.r = R[0] + R[1]
            elif mn.startswith('v_cmpx'):
                self.w = R[0] + parse_reg('exec'); self.r = sum(R[1:], [])
            elif mn.startswith(('v_add_co', 'v_sub_co', 'v_subrev_co', 'v_addc_co', 'v_subb_co', 'v_div_scale', 'v_mad_u64')):
                self.w = R[0] + R[1]; self.r = sum(R[2:], [])
            elif mn == 'v_nop':
                pass
            else:
                self.w = R[0]; self.r = sum(R[1:], [])
                if mn.startswith(('v_fmac', 'v_dot2c', 'v_pk_fmac', 'v_writelane')) or self.is_dpp or 'dst_unused' in text or 'op_sel' in text and mn.startswith('v_cvt'):
                    self.r = self.r + R[0]
                if mn.startswith('v_cndmask') and len(ops) == 3: self.r += parse_reg('vcc')
                if mn.startswith('v_div_fmas'): self.r += parse_reg('vcc')
        elif self.is_ds:
            if mn.startswith(('ds_read', 'ds_bpermute', 'ds_permute', 'ds_swizzle')) or '_rtn' in mn:
                self.w = R[0]; self.r = sum(R[1:], [])
            else: self.r = sum(R, [])
        elif self.is_vmem:
            lds = ' lds' in (' ' + self.mods) or 'load_lds' in mn
            self.lds = lds
            if 'load' in mn and not lds:
                self.w = R[0]; self.r = sum(R[1:], [])
            elif 'atomic' in mn and 'sc0' in self.mods:
                self.w = R[0]; self.r = sum(R, [])
            else: self.r = sum(R, [])
            if lds: self.r = self.r + parse_reg('m0')
        elif self.is_salu:
            if mn.startswith(('s_cmp', 's_cbranch', 's_branch', 's_waitcnt', 's_barrier', 's_nop', 's_endpgm', 's_setprio', 's_sleep', 's_bitcmp')):
                self.r = sum(R, [])
            else:
                self.w = R[0] if R else []; self.r = sum(R[1:], [])
                if 'saveexec' in mn: self.w = self.w + parse_reg('exec')
        self.wide_store = self.is_vmem and ('store' in mn) and ('x3' in mn or 'x4' in mn)
        if self.wide_store:
            self.sdata = R[0] if mn.startswith('buffer') else R[1]

    def states(self):
        if self.mn == 's_nop': return int(self.ops[0], 0) + 1
        return 1

BIG = 1000
MFMA_D_VALU = {2: 5, 4: 8, 8: 12, 16: 20}
MFMA_D_AB = {2: 5, 4: 8, 8: 12, 16: 20}
MFMA_D_COVL = {2: 4, 4: 6, 8: 10, 16: 18}
MFMA_C_WAR = {2: 1, 4: 3, 8: 7, 16: 15}

def need(ins, st):
    n = 0
    def req(key, dist):
        nonlocal n
        if key in st:
            age = st[key][0]
            if age < dist: n = max(n, dist - age)
    vr = [x for x in ins.r if x[0] in 'va']; vw = [x for x in ins.w if x[0] in 'va']
    sr = [x for x in ins.r if x[0] == 's']
    if ins.is_mfma:
        for x in vr: req(('valu_w', x), 2)
        for x in ins.srcab:
            if ('mfma_w', x) in st: req(('mfma_w', x), MFMA_D_AB[st[('mfma_w', x)][1][0]])
        for x in ins.srcc:
            if ('mfma_w', x) in st:
                p, dreg = st[('mfma_w', x)][1]
                if dreg == tuple(ins.srcc) and p == ins.passes:
                    if p == 2: req(('mfma_w', x), 2)
                else: req(('mfma_w', x), MFMA_D_COVL[p])
        for x in vw:
            if ('mfma_w', x) in st and x not in ins.srcc:
                p, dreg = st[('mfma_w', x)][1]
                req(('mfma_w', x), MFMA_D_COVL[p])
        req(('valu_w', ('s', 126)), 4)
        for x in vr: req(('dot_w', x), 3)
    else:
        if ins.is_valu or ins.is_vmem or ins.is_ds:
            for x in vr + vw:
                if ('mfma_w', x) in st: req(('mfma_w', x), MFMA_D_VALU[st[('mfma_w', x)][1][0]])
        if ins.is_valu:
            for x in vw:
                if ('mfma_c', x) in st: req(('mfma_c', x), MFMA_C_WAR[st[('mfma_c', x)][1]])
                req(('store_d', x), 2)
            if not ins.is_trans:
                for x in vr: req(('trans_w', x), 1)
            for x in sr: req(('valu_w', x), 2)
            if ins.is_dpp:
                for x in vr: req(('valu_w', x), 2)
                req(('valu_w', ('s', 126)), 5)
            if ins.mn.startswith('v_permlane'):
                for x in vr: req(('valu_w', x), 2)
                req(('valu_w', ('s', 126)), 4)
            if ins.mn.startswith(('v_readlane', 'v_readfirstlane', 'v_writelane')):
                for x in vr: req(('valu_w', x), 1)
                for x in sr: req(('valu_w', x), 4)
                req(('valu_w', ('s', 126)), 4)
            if ins.mn.startswith('v_div_fmas'): req(('valu_w', ('s', 106)), 4)
            for x in vr + vw:
                if ('dot_w', x) in st and not (ins.is_dot and st[('dot_w', x)][1] == ins.mn and x in vw):
                    req(('dot_w', x), 3)
            for x in vr: req(('opsel_w', x), 1)
        if ins.is_vmem or ins.is_ds:
            for x in vw: req(('store_d', x), 1)
            for x in vr: req(('trans_w', x), 1)
        if ins.is_vmem:
            for x in sr: req(('valu_w', x), 5)
            if getattr(ins, 'lds', False): req(('salu_w', ('s', 124)), 1)
        if ins.is_salu:
            for x in sr: req(('valu_w', x), 1)
    return n

def update(ins, st):
    k = ins.states()
    for key in list(st):
        a, info = st[key]
        a += k
        if a > 24: del st[key]
        else: st[key] = (a, info)
    if ins.is_mfma:
        for x in ins.w:
            st[('mfma_w', x)] = (0, (ins.passes, tuple(ins.w)))
            st.pop(('valu_w', x), None)
        for x in ins.srcc: st[('mfma_c', x)] = (0, ins.passes)
    elif ins.is_valu:
        for x in ins.w:
            st[('valu_w', x)] = (0, None)
            if ins.is_trans: st[('trans_w', x)] = (0, None)
            else: st.pop(('trans_w', x), None)
            if ins.is_dot: st[('dot_w', x)] = (0, ins.mn)
            if 'op_sel' in ins.text or 'dst_sel' in ins.text: st[('opsel_w', x)] = (0, None)
    elif ins.is_salu:
        for x in ins.w:
            st[('salu_w', x)] = (0, None)
            st.pop(('valu_w', x), None)
    if ins.wide_store:
        for x in ins.sdata: st[('store_d', x)] = (0, None)

def merge(a, b):
    out = dict(a)
    for k, v in b.items():
        if k not in out or v[0] < out[k][0]: out[k] = v
    return out

def insert_nops(lines):
    snaps = {}
    for it in range(3):
        out = []; st = {}; dead = False
        newsnaps = {k: dict(v) for k, v in snaps.items()}
        for ln in lines:
            s = ln.strip()
            if not s or s.startswith((';', '.', '//')):
                out.append(ln); continue
            if s.endswith(':') and ' ' not in s:
                lab = s[:-1]
                if dead: st = {}
                st = merge(st, newsnaps.get(lab, {}))
                dead = False
                out.append(ln); continue
            ins = Ins(s)
            n = need(ins, st)
            while n > 0:
                k = min(n, 16)
                nop = Ins(f's_nop {k-1}')
                out.append(f'    s_nop {k-1}')
                update(nop, st); n -= k
            out.append(ln)
            update(ins, st)
            if ins.mn.startswith(('s_cbranch', 's_branch', 's_call')):
                lab = ins.ops[-1]
                newsnaps[lab] = merge(newsnaps.get(lab, {}), st)
                if ins.mn == 's_branch': dead = True
            if ins.mn in ('s_endpgm', 's_setpc_b64'): dead = True
        snaps = newsnaps
    return out

class Asm:
    def __init__(self): self.L = []
    def __call__(self, s):
        for ln in s.split('\n'):
            ln = ln.strip()
            if ln: self.L.append('    ' + ln)
    def label(self, l): self.L.append(l + ':')
    def raw(self, s): self.L.append(s)
    def c(self, s): self.L.append('    ; ' + s)

def vr(b, n=1): return f'v{b}' if n == 1 else f'v[{b}:{b+n-1}]'
def sr(b, n=1): return f's{b}' if n == 1 else f's[{b}:{b+n-1}]'
```

```python
import sys, struct, math, os
sys.path.insert(0, os.path.dirname(os.path.abspath(__file__)))
from asmlib import *

S, D, H, DH, F = 2048, 640, 32, 20, 1536
KA_X, KA_WQKV, KA_WO, KA_BX, KA_WR, KA_WG, KA_WU, KA_WD, KA_OUT, KA_DBG, KA_WS = [8 * i for i in range(11)]
WS_QKV = 0
WS_O = 0xA00000
WS_X1 = 0xD00000
WS_X2 = 0x1000000
WS_ST = 0x1600000
NREP = 2
WS_Y = WS_ST + 3 * 2048 * 4
ZERO_BYTES = 3 * 2048 * 4 + NREP * 8 * 640 * 4
assert ZERO_BYTES == 65536

def f2u(x): return struct.unpack('<I', struct.pack('<f', x))[0]
def hx(x): return hex(x & 0xFFFFFFFF)
QSCALE = f2u(DH ** -0.5 * math.log2(math.e))
ONES2 = 0x3F803F80
NEGBIG = f2u(-1e30)

kernels = []

def srd(a, d, base, size):
    a(f's_mov_b32 s{d}, s{base}')
    a(f's_mov_b32 s{d+1}, s{base+1}')
    a(f's_mov_b32 s{d+2}, {hx(size)}')
    a(f's_mov_b32 s{d+3}, 0x20000')

def add64(a, d, s, off):
    o = off if isinstance(off, str) else hx(off)
    a(f's_add_u32 s{d}, s{s}, {o}')
    a(f's_addc_u32 s{d+1}, s{s+1}, 0')

def rbf16(a, d, s):
    a(f'v_cvt_pk_bf16_f32 v{d}, v{s}, v{s}')
    a(f'v_and_b32 v{d}, 0xffff0000, v{d}')

def ln_scalars(a, s1, s2, m, rs, t):
    inv = hx(f2u(1.0 / D))
    a(f'v_mul_f32 v{m}, {inv}, v{s1}')
    a(f'v_mul_f32 v{t}, {inv}, v{s2}')
    a(f'v_fma_f32 v{t}, -v{m}, v{m}, v{t}')
    a(f'v_max_f32 v{t}, 0, v{t}')
    rbf16(a, t, t)
    a(f'v_add_f32 v{t}, {hx(f2u(1e-5))}, v{t}')
    rbf16(a, t, t)
    a(f'v_sqrt_f32 v{t}, v{t}')
    rbf16(a, t, t)
    a(f'v_rcp_f32 v{rs}, v{t}')
    rbf16(a, m, m)

def kernel_start(a, label):
    a.raw('.p2align 8')
    a.raw(f'.globl {label}')
    a.raw(f'.type {label},@function')
    a.label(label)

def gen_qkv(a):
    SLOT = 32768; NSLOT = 5
    IMG = 0; MR = 65536; CS = 65536 + 1024
    kernel_start(a, 'qkv2_kernel')
    a(f's_load_dwordx2 s[4:5], s[0:1], {KA_WS}')
    a(f's_load_dwordx2 s[6:7], s[0:1], {KA_WQKV}')
    a(f's_load_dwordx2 s[8:9], s[0:1], {KA_WS}')
    a(f's_mov_b32 s3, {hx(WS_X2)}')
    a('s_branch Lqkv_common')
    kernel_start(a, 'qkv1_kernel')
    a(f's_load_dwordx2 s[4:5], s[0:1], {KA_X}')
    a(f's_load_dwordx2 s[6:7], s[0:1], {KA_WQKV}')
    a(f's_load_dwordx2 s[8:9], s[0:1], {KA_WS}')
    a('s_mov_b32 s3, 0')
    a.label('Lqkv_common')
    a('s_cmp_ge_u32 s2, 256')
    a('s_cbranch_scc1 Lqkv_end')
    a('v_lshrrev_b32 v1, 6, v0')
    a('v_and_b32 v0, 63, v0')
    a('v_readfirstlane_b32 s10, v1')
    a('s_and_b32 s11, s2, 7')
    a('s_lshr_b32 s12, s2, 3')
    a('s_lshr_b32 s13, s11, 1')
    a('s_lshl_b32 s13, s13, 2')
    a('s_and_b32 s14, s12, 3')
    a('s_add_u32 s13, s13, s14')
    a('s_and_b32 s14, s11, 1')
    a('s_lshl_b32 s14, s14, 3')
    a('s_lshr_b32 s15, s12, 2')
    a('s_add_u32 s14, s14, s15')
    a('s_mul_i32 s15, s13, 163840')
    a('s_add_u32 s3, s3, s15')
    a('s_mul_i32 s15, s14, 589824')
    a('s_mul_i32 s16, s13, 6144')
    a('s_add_u32 s15, s15, s16')
    a('s_waitcnt lgkmcnt(0)')
    add64(a, 4, 4, 's3')
    add64(a, 8, 8, 's15')
    srd(a, 20, 4, 163840)
    srd(a, 24, 6, D * 3 * D * 2)
    srd(a, 28, 8, 5 * 98304 + 6144)
    a(f's_mov_b32 s40, {SLOT}')
    a('s_cmp_ge_u32 s10, 4')
    a('s_cbranch_scc1 Lqkv_loader')

    ACC = 16
    CSA = 80
    BUF = 96
    AX = 2
    AW = 6
    ONE = 8
    IA = 128
    SC = 136
    CSR = 144
    MRR = 176
    T = 180
    a('s_and_b32 s16, s10, 1')
    a('s_lshr_b32 s17, s10, 1')
    a('v_and_b32 v12, 31, v0')
    a('v_lshrrev_b32 v13, 5, v0')
    a('v_bfe_u32 v14, v0, 1, 3')
    a('v_xor_b32 v14, v14, v13')
    a('v_lshlrev_b32 v14, 4, v14')
    a('v_lshl_add_u32 v14, v12, 7, v14')
    a('s_lshl_b32 s18, s17, 13')
    a(f'v_add_u32 v{AX}, s18, v14')
    for s in range(1, 4): a(f'v_xor_b32 v{AX+s}, {32*s}, v{AX}')
    a('v_bfe_u32 v14, v0, 2, 2')
    a('s_lshl_b32 s18, s16, 1')
    a('v_xor_b32 v15, s18, v14')
    a('v_lshlrev_b32 v15, 6, v15')
    a('v_lshl_add_u32 v15, v14, 8, v15')
    a('v_lshl_add_u32 v15, v13, 11, v15')
    a('v_bfe_u32 v14, v0, 4, 1')
    a('v_lshl_add_u32 v15, v14, 5, v15')
    a('v_and_b32 v14, 3, v0')
    a('v_lshl_add_u32 v15, v14, 3, v15')
    a(f'v_add_u32 v{AW}, 0x4000, v15')
    a(f'v_xor_b32 v{AW+1}, 64, v{AW}')
    for i in range(4): a(f'v_mov_b32 v{ONE+i}, {hx(ONES2)}')
    for i in range(80): a(f'v_mov_b32 v{ACC+i}, 0')
    a('s_lshl_b32 s18, s16, 4')
    a('v_add_u32 v14, s18, v13')
    a('s_lshl_b32 s18, s17, 6')
    a('v_add_u32 v15, s18, v12')
    a('v_mul_u32_u24 v15, 48, v15')
    a('s_mul_i32 s19, s14, 6')
    a('s_sub_i32 s19, 32, s19')
    a(f's_mov_b32 s32, {6144-40}')
    a(f'v_mov_b32 v{T+2}, {hx(QSCALE)}')
    for i in range(8):
        a(f'v_add_u32 v{T}, {2*i}, v14')
        a(f'v_mul_u32_u24 v{T+1}, 205, v{T}')
        a(f'v_lshrrev_b32 v{T+1}, 10, v{T+1}')
        a(f'v_lshl_add_u32 v{T}, v{T}, 3, v15')
        a(f'v_mad_u32_u24 v{IA+i}, v{T+1}, s32, v{T}')
        a(f'v_cmp_gt_i32 vcc, s19, v{T+1}')
        a(f'v_cndmask_b32 v{SC+i}, 1.0, v{T+2}, vcc')

    def reads(b, s):
        base = BUF + 16 * b
        for tt in range(2):
            a(f'ds_read_b128 {vr(base+4*tt,4)}, v{AX+s} offset:{4096*tt}')
        for ct in range(2):
            for j in range(2):
                a(f'ds_read_b64_tr_b16 {vr(base+8+4*ct+2*j,2)}, v{AW+ct} offset:{(16*s+4*j)*256}')
    def mfmas(b, wt):
        base = BUF + 16 * b
        for ct in range(2):
            for tt in range(2):
                acc = vr(ACC + (ct * 2 + tt) * 16, 16)
                a(f'v_mfma_f32_32x32x16_bf16 {acc}, {vr(base+8+4*ct,4)}, {vr(base+4*tt,4)}, {acc}')
        a(f'v_mfma_f32_32x32x16_bf16 {vr(CSA,16)}, {vr(base+8,4)}, {vr(ONE,4)}, {vr(CSA,16)}')
    a('s_lshl_b32 s18, s17, 6')
    a(f'v_xor_b32 v{AW}, s18, v{AW}')
    a(f'v_xor_b32 v{AW+1}, s18, v{AW+1}')
    a('s_mov_b32 s33, 0')
    a('s_mov_b32 s34, 0')
    a('s_barrier')
    reads(0, 0)
    a.label('Lqkv_cloop')
    reads(1, 1); a('s_waitcnt lgkmcnt(6)'); mfmas(0, 0)
    reads(0, 2); a('s_waitcnt lgkmcnt(6)'); mfmas(1, 0)
    reads(1, 3); a('s_waitcnt lgkmcnt(6)')
    a('s_add_u32 s34, s34, 1')
    a('s_cmp_eq_u32 s34, 5')
    a(f's_cselect_b32 s35, {hx(-4*SLOT)}, s40')
    a('s_cselect_b32 s34, 0, s34')
    mfmas(0, 0)
    for i in range(6): a(f'v_add_u32 v{AX+i}, s35, v{AX+i}')
    a('s_add_u32 s33, s33, 1')
    a('s_cmp_eq_u32 s33, 10')
    a('s_waitcnt lgkmcnt(0)')
    a('s_cbranch_scc1 Lqkv_cdone')
    a('s_barrier')
    reads(0, 0)
    mfmas(1, 0)
    a('s_branch Lqkv_cloop')
    a.label('Lqkv_cdone')
    mfmas(1, 0)
    a('s_lshl_b32 s18, s16, 8')
    a('s_lshl_b32 s19, s17, 7')
    a('s_add_u32 s18, s18, s19')
    a(f's_add_u32 s18, s18, {CS}')
    a(f'v_lshl_add_u32 v{T}, v13, 4, s18')
    a('s_mov_b32 exec_lo, 1')
    a('s_mov_b32 exec_hi, 1')
    for j in range(4): a(f'ds_write_b128 v{T}, {vr(CSA+4*j,4)} offset:{32*j}')
    a('s_mov_b64 exec, -1')
    a(f'v_xor_b32 v{T+1}, 128, v{T}')
    a('s_lshl_b32 s18, s17, 9')
    a(f's_add_u32 s18, s18, {MR}')
    a(f'v_lshl_add_u32 v{T+2}, v12, 3, s18')
    a('s_waitcnt lgkmcnt(0)')
    a('s_barrier')
    for tt in range(2): a(f'ds_read_b64 {vr(MRR+2*tt,2)}, v{T+2} offset:{256*tt}')
    for j in range(4): a(f'ds_read_b128 {vr(CSR+16+4*j,4)}, v{T+1} offset:{32*j}')
    a('s_cmp_eq_u32 s17, 0')
    a('s_cbranch_scc1 Lqkv_noswap')
    for i in range(4):
        a(f'v_swap_b32 v{IA+i}, v{IA+4+i}')
        a(f'v_swap_b32 v{SC+i}, v{SC+4+i}')
    a.label('Lqkv_noswap')
    a('s_waitcnt lgkmcnt(0)')
    for ct in range(2):
        cs = CSA if ct == 0 else CSR + 16
        for j in range(4):
            for tt in range(2):
                acc = ACC + (ct * 2 + tt) * 16 + 4 * j
                tm = T + 4 + 2 * tt
                a(f'v_mul_f32 v{tm}, v{MRR+2*tt+1}, v{SC+4*ct+j}')
                for p in range(2):
                    a(f'v_pk_fma_f32 {vr(acc+2*p,2)}, {vr(cs+4*j+2*p,2)}, {vr(MRR+2*tt,2)}, {vr(acc+2*p,2)} op_sel_hi:[1,0,1] neg_lo:[0,1,0] neg_hi:[0,1,0]')
                for p in range(2):
                    a(f'v_pk_mul_f32 {vr(acc+2*p,2)}, {vr(acc+2*p,2)}, {vr(tm,2)} op_sel_hi:[1,0]')
                a(f'v_cvt_pk_bf16_f32 v{acc}, v{acc}, v{acc+1}')
                a(f'v_cvt_pk_bf16_f32 v{acc+1}, v{acc+2}, v{acc+3}')
                a(f'ds_write_b64 v{IA+4*ct+j}, {vr(acc,2)} offset:{32*48*tt}')
    a('s_branch Lqkv_store')

    a.label('Lqkv_loader')
    VA = 2; VW = 6; RA = 10; S1 = 14; S2 = 15; DT = 16; U = 32
    a('s_sub_u32 s16, s10, 4')
    a('v_lshrrev_b32 v40, 3, v0')
    a('v_lshrrev_b32 v41, 4, v0')
    a('v_and_b32 v42, 7, v0')
    a('v_xor_b32 v42, v42, v41')
    a('s_lshl_b32 s17, s16, 5')
    a('v_add_u32 v40, s17, v40')
    a('v_mul_u32_u24 v40, 1280, v40')
    a(f'v_lshl_add_u32 v{VA}, v42, 4, v40')
    a('v_xor_b32 v42, 4, v42')
    a(f'v_lshl_add_u32 v{VA+1}, v42, 4, v40')
    a(f'v_add_u32 v{VA+1}, {10240-1024}, v{VA+1}')
    a(f'v_add_u32 v{VA+2}, {2*(10240-1024)}, v{VA}')
    a(f'v_add_u32 v{VA+3}, {2*(10240-1024)}, v{VA+1}')
    a('v_and_b32 v42, 15, v0')
    a('v_lshlrev_b32 v43, 2, v41')
    a('v_xor_b32 v42, v42, v43')
    a('s_lshl_b32 s17, s16, 4')
    a('v_add_u32 v40, s17, v41')
    a('v_mul_u32_u24 v40, 3840, v40')
    a('v_lshl_add_u32 v40, v42, 4, v40')
    a('s_mul_i32 s17, s14, 240')
    a(f'v_add_u32 v{VW}, s17, v40')
    for i in range(1, 4): a(f'v_add_u32 v{VW+i}, {i*(4*3840-1024)}, v{VW}')
    a('s_lshl_b32 s17, s16, 12')
    a('s_mov_b32 s36, 0')
    a('s_mov_b32 s37, 0')
    a('s_mov_b32 s38, s17')
    def issue():
        a('s_mov_b32 m0, s38')
        for i in range(4): a(f'buffer_load_dwordx4 v{VA+i}, s[20:23], s36 offen offset:{1024*i} lds')
        a('s_add_u32 m0, s38, 0x4000')
        for i in range(4): a(f'buffer_load_dwordx4 v{VW+i}, s[24:27], s37 offen offset:{1024*i} lds')
        a('s_add_u32 s36, s36, 128')
        a(f's_add_u32 s37, s37, {64*3840}')
        a(f's_add_u32 s38, s38, {SLOT}')
    a.label('Lqkv_lpro')
    issue()
    a('s_cmp_lt_u32 s36, 512')
    a('s_cbranch_scc1 Lqkv_lpro')
    a('v_bfe_u32 v40, v0, 2, 2')
    a('v_lshlrev_b32 v40, 4, v40')
    a('v_lshl_add_u32 v40, v0, 6, v40')
    a(f'v_add_u32 v{RA}, s17, v40')
    for i in range(1, 4): a(f'v_xor_b32 v{RA+i}, {16*i}, v{RA}')
    a(f'v_mov_b32 v{S1}, 0')
    a(f'v_mov_b32 v{S2}, 0')
    a(f'v_mov_b32 v{S1+30}, 0')
    a(f'v_mov_b32 v{S2+30}, 0')
    a('s_mov_b32 s33, 0')
    a('s_mov_b32 s34, 0')
    a.label('Lqkv_lloop')
    a('s_cmp_lt_u32 s33, 7')
    a('s_cbranch_scc1 Lqkv_w24')
    a('s_cmp_eq_u32 s33, 7')
    a('s_cbranch_scc1 Lqkv_w16')
    a('s_cmp_eq_u32 s33, 8')
    a('s_cbranch_scc1 Lqkv_w8')
    a('s_waitcnt vmcnt(0)')
    a.label('Lqkv_w8')
    a('s_waitcnt vmcnt(8)')
    a.label('Lqkv_w16')
    a('s_waitcnt vmcnt(16)')
    a.label('Lqkv_w24')
    a('s_waitcnt vmcnt(24)')
    a('s_barrier')
    for i in range(4): a(f'ds_read_b128 {vr(DT+4*i,4)}, v{RA+i}')
    a('s_cmp_gt_u32 s33, 5')
    a('s_cbranch_scc1 Lqkv_noissue')
    issue()
    a(f's_cmp_ge_u32 s38, {NSLOT*SLOT}')
    a('s_cselect_b32 s38, s17, s38')
    a.label('Lqkv_noissue')
    a('s_add_u32 s34, s34, 1')
    a('s_cmp_eq_u32 s34, 5')
    a(f's_cselect_b32 s35, {hx(-4*SLOT)}, s40')
    a('s_cselect_b32 s34, 0, s34')
    a('s_waitcnt lgkmcnt(0)')
    for i in range(4): a(f'v_add_u32 v{RA+i}, s35, v{RA+i}')
    for i in range(16):
        u = U + 2 * (i % 4)
        a(f'v_lshlrev_b32 v{u}, 16, v{DT+i}')
        a(f'v_and_b32 v{u+1}, 0xffff0000, v{DT+i}')
        a(f'v_add_f32 v{S1}, v{S1}, v{u}')
        a(f'v_fmac_f32 v{S2}, v{u}, v{u}')
        a(f'v_add_f32 v{S1+30}, v{S1+30}, v{u+1}')
        a(f'v_fmac_f32 v{S2+30}, v{u+1}, v{u+1}')
    a('s_add_u32 s33, s33, 1')
    a('s_cmp_lt_u32 s33, 10')
    a('s_cbranch_scc1 Lqkv_lloop')
    a(f'v_add_f32 v{S1}, v{S1}, v{S1+30}')
    a(f'v_add_f32 v{S2}, v{S2}, v{S2+30}')
    a(f'v_add_f32_dpp v{S1}, v{S1}, v{S1} quad_perm:[1,0,3,2] row_mask:0xf bank_mask:0xf')
    a(f'v_add_f32_dpp v{S2}, v{S2}, v{S2} quad_perm:[1,0,3,2] row_mask:0xf bank_mask:0xf')
    ln_scalars(a, S1, S2, 20, 21, 22)
    a('v_lshrrev_b32 v40, 1, v0')
    a('s_lshl_b32 s18, s16, 8')
    a(f's_add_u32 s18, s18, {MR}')
    a('v_lshl_add_u32 v40, v40, 3, s18')
    a('ds_write_b64 v40, v[20:21]')
    a('s_and_b32 s18, s16, 1')
    a('s_lshl_b32 s18, s18, 6')
    a('v_add_u32 v40, s18, v0')
    a('v_mul_u32_u24 v40, 48, v40')
    a('s_lshr_b32 s18, s16, 1')
    a('s_mul_i32 s19, s18, 6144')
    a('v_add_u32 v40, s19, v40')
    a('s_mul_i32 s19, s14, 6')
    a('s_add_u32 s19, s19, s18')
    for n in range(3):
        a(f's_sub_u32 s39, s19, {32-2*n}')
        a('s_cmp_lt_u32 s39, 32')
        a(f's_cselect_b32 s39, 0, {hx(ONES2)}')
        a('v_mov_b32 v42, s39')
        a('v_mov_b32 v43, s39')
        a(f'ds_write_b64 v40, v[42:43] offset:{40 + 2*6144*n}')
    a('s_waitcnt lgkmcnt(0)')
    a('s_barrier')

    a.label('Lqkv_store')
    a('s_waitcnt lgkmcnt(0)')
    a('s_barrier')
    a('v_lshlrev_b32 v1, 4, v0')
    a('s_lshl_b32 s18, s10, 10')
    a('v_add_u32 v2, s18, v1')
    for n in range(5): a(f'ds_read_b128 {vr(16+4*n,4)}, v2 offset:{8192*n}')
    for n in range(5):
        a(f's_add_u32 s18, s10, {8*n}')
        a('s_mul_i32 s19, s18, 43')
        a('s_lshr_b32 s19, s19, 8')
        a(f's_mul_i32 s19, s19, {98304-6144}')
        a('s_lshl_b32 s18, s18, 10')
        a('s_add_u32 s18, s18, s19')
        a(f's_waitcnt lgkmcnt({4-n})')
        a(f'buffer_store_dwordx4 {vr(16+4*n,4)}, v1, s[28:31], s18 offen')
    a.label('Lqkv_end')
    a('s_endpgm')
    kernels.append(('qkv1_kernel', 192, 48)); kernels.append(('qkv2_kernel', 192, 48))

def gen_att(a):
    VB = 24576
    Q = 2; KA = 8; KB = 9; VA = 10; MX = 12
    ME = 16; MD = 32; SB = 48; KF = 96; NM = 150; OA = 166; P = 182; VF = 190; T = 206
    kernel_start(a, 'att_kernel')
    a(f's_load_dwordx2 s[4:5], s[0:1], {KA_WS}')
    a('s_cmp_ge_u32 s2, 256')
    a('s_cbranch_scc1 Latt_end')
    a('v_lshrrev_b32 v1, 6, v0')
    a('v_and_b32 v0, 63, v0')
    a('v_readfirstlane_b32 s10, v1')
    a('s_and_b32 s11, s2, 7')
    a('s_lshr_b32 s12, s2, 3')
    a('s_lshr_b32 s13, s12, 3')
    a('s_lshl2_add_u32 s13, s11, s13')
    a('s_and_b32 s14, s12, 7')
    a('s_mul_i32 s15, s13, 98304')
    a('s_mul_i32 s16, s14, 12288')
    a('s_add_u32 s15, s15, s16')
    a('s_mul_i32 s17, s10, 3072')
    a(f's_add_u32 s18, s15, {32*98304 - 12288}')
    a('s_add_u32 s18, s18, s17')
    a(f's_add_u32 s19, s18, {32*98304}')
    a('s_mul_i32 s24, s10, 1536')
    a('s_add_u32 s25, s15, s24')
    a('v_lshlrev_b32 v1, 4, v0')
    a('v_and_b32 v14, 31, v0')
    a('v_lshrrev_b32 v15, 5, v0')
    a('v_mul_u32_u24 v11, 48, v14')
    a(f'v_lshl_add_u32 v{KA}, v15, 4, v11')
    a(f'v_lshl_add_u32 v{KB}, v15, 3, v11')
    a('s_waitcnt lgkmcnt(0)')
    srd(a, 20, 4, 96 * 98304)
    a(f'buffer_load_dwordx4 {vr(Q,4)}, v{KA}, s[20:23], s25 offen')
    a(f'buffer_load_dwordx2 {vr(Q+4,2)}, v{KB}, s[20:23], s25 offen offset:32')
    a('s_lshr_b32 s26, s10, 2')
    a('s_or_b32 s26, s26, s14')
    a('s_cmp_eq_u32 s26, 0')
    a('s_cbranch_scc1 Latt_fill')
    a('s_mov_b32 m0, s17')
    for i in range(3): a(f'buffer_load_dwordx4 v1, s[20:23], s18 offen offset:{1024*i} lds')
    a(f's_add_u32 m0, s17, {VB}')
    for i in range(3): a(f'buffer_load_dwordx4 v1, s[20:23], s19 offen offset:{1024*i} lds')
    a('s_branch Latt_go')
    a.label('Latt_fill')
    a('v_mul_u32_u24 v11, 48, v0')
    a('v_add_u32 v11, s17, v11')
    for i in range(4): a(f'v_mov_b32 v{SB+i}, 0')
    for i in range(2): a(f'ds_write_b128 v11, {vr(SB,4)} offset:{16*i}')
    for i in range(3): a(f'ds_write_b128 v11, {vr(SB,4)} offset:{VB+16*i}')
    for i in range(4): a(f'v_mov_b32 v{SB+4+i}, {hx(NEGBIG>>16) if i == 2 else 0}')
    a(f'ds_write_b128 v11, {vr(SB+4,4)} offset:32')
    a.label('Latt_go')
    add64(a, 6, 4, WS_ST)
    srd(a, 28, 6, ZERO_BYTES)
    a('s_cmp_lg_u32 s10, 0')
    a('s_cbranch_scc1 Latt_nozero')
    a('s_lshl_b32 s26, s2, 8')
    a('v_lshlrev_b32 v11, 2, v0')
    a('v_mov_b32 v12, 0')
    a('buffer_store_dword v12, v11, s[28:31], s26 offen sc0 sc1')
    a.label('Latt_nozero')
    a(f'v_add_u32 v{KA}, s24, v{KA}')
    a(f'v_add_u32 v{KB}, s24, v{KB}')
    a('v_and_b32 v11, 3, v0')
    a('v_add_u32 v12, 4, v11')
    a('v_min_u32 v12, 5, v12')
    a('v_and_b32 v13, 16, v0')
    a('v_cmp_eq_u32 vcc, 0, v13')
    a('v_cndmask_b32 v11, v12, v11, vcc')
    a('v_bfe_u32 v12, v0, 2, 2')
    a('v_lshl_add_u32 v12, v15, 2, v12')
    a('v_mul_u32_u24 v12, 48, v12')
    a('v_lshl_add_u32 v12, v11, 3, v12')
    a(f's_add_u32 s26, s24, {VB}')
    a(f'v_add_u32 v{VA}, s26, v12')
    a('v_lshlrev_b32 v11, 2, v15')
    a('v_sub_u32 v11, v14, v11')
    a(f'v_mov_b32 v12, {hx(NEGBIG)}')
    for v in range(16):
        kk = 8 * (v // 4) + v % 4
        a(f'v_cmp_le_i32 vcc, {kk}, v11')
        a(f'v_cndmask_b32 v{MD+v}, v12, 0, vcc')
        a(f'v_cndmask_b32 v{ME+v}, 0, v12, vcc')
    add64(a, 6, 4, WS_O)
    srd(a, 32, 6, 16 * 2048 * 80)
    a('s_lshr_b32 s26, s13, 1')
    a('s_mul_i32 s26, s26, 163840')
    a('s_and_b32 s27, s13, 1')
    a('s_mul_i32 s27, s27, 40')
    a('s_add_u32 s26, s26, s27')
    a('s_lshl_b32 s27, s14, 3')
    a('s_add_u32 s27, s27, s10')
    a('s_mul_i32 s27, s27, 2560')
    a('s_add_u32 s26, s26, s27')
    a('v_mul_u32_u24 v11, 80, v14')
    a(f'v_lshl_add_u32 v{T}, v15, 3, v11')
    a(f'v_mov_b32 v{MX}, {hx(NEGBIG)}')
    a(f'v_mov_b32 v{MX+1}, {hx(NEGBIG)}')
    a('s_waitcnt vmcnt(0) lgkmcnt(0)')
    a('s_barrier')
    def kread(t):
        a(f'ds_read_b128 {vr(KF+6*t,4)}, v{KA} offset:{1536*t}')
        a(f'ds_read_b64 {vr(KF+6*t+4,2)}, v{KB} offset:{1536*t+32}')
    def vread(t):
        for i in range(2):
            for j in range(2):
                a(f'ds_read_b64_tr_b16 {vr(VF+8*(t%2)+4*i+2*j,2)}, v{VA} offset:{1536*t+(16*i+8*j)*48}')
    def m1(t, sb, c): a(f'v_mfma_f32_32x32x16_bf16 {vr(sb,16)}, {vr(KF+6*t,4)}, {vr(Q,4)}, {c}')
    def m2(t, sb): a(f'v_mfma_f32_32x32x8_bf16 {vr(sb,16)}, {vr(KF+6*t+4,2)}, {vr(Q+4,2)}, {vr(sb,16)}')
    def mx(sb, half):
        for i in range(4):
            r = sb + 8 * half + 2 * i
            a(f'v_max3_f32 v{MX+i%2}, v{r}, v{r+1}, v{MX+i%2}')
    for t in range(6): kread(t)
    for t in range(11):
        if t < 9:
            if t + 6 < 9: kread(t + 6)
            issued = min(9, t + 7)
            a(f's_waitcnt lgkmcnt({2*(issued-t-1)})')
            c = vr(ME, 16) if t == 0 else vr(MD, 16) if t == 8 else '0'
            m1(t, SB + 16 * (t % 3), c)
        if t >= 2: mx(SB + 16 * ((t - 2) % 3), 0)
        if t < 9: m2(t, SB + 16 * (t % 3))
        if t >= 2: mx(SB + 16 * ((t - 2) % 3), 1)
    vread(0)
    a(f'v_max_f32 v{MX}, v{MX}, v{MX+1}')
    a(f'v_mov_b32 v{MX+1}, v{MX}')
    a(f'v_permlane32_swap_b32 v{MX}, v{MX+1}')
    a(f'v_max_f32 v{MX}, v{MX}, v{MX+1}')
    for v in range(16): a(f'v_sub_f32 v{ME+v}, v{ME+v}, v{MX}')
    m1(0, SB, vr(ME, 16)); m2(0, SB)
    for v in range(16): a(f'v_sub_f32 v{NM+v}, 0, v{MX}')
    for v in range(16): a(f'v_sub_f32 v{MD+v}, v{MD+v}, v{MX}')
    def pv(t, i, first):
        c = '0' if first else vr(OA, 16)
        a(f'v_mfma_f32_32x32x16_bf16 {vr(OA,16)}, {vr(VF+8*(t%2)+4*i,4)}, {vr(P+4*i,4)}, {c}')
    for t in range(9):
        sb = SB + 16 * (t % 2); sn = SB + 16 * ((t + 1) % 2)
        if t + 1 < 9: m1(t + 1, sn, vr(MD, 16) if t + 1 == 8 else vr(NM, 16))
        for i in range(8): a(f'v_exp_f32 v{sb+i}, v{sb+i}')
        if t + 1 < 9: m2(t + 1, sn)
        if t + 1 < 9: vread(t + 1)
        for i in range(4): a(f'v_cvt_pk_bf16_f32 v{P+i}, v{sb+2*i}, v{sb+2*i+1}')
        for i in range(8, 12): a(f'v_exp_f32 v{sb+i}, v{sb+i}')
        a(f's_waitcnt lgkmcnt({4 if t + 1 < 9 else 0})')
        pv(t, 0, t == 0)
        for i in range(12, 16): a(f'v_exp_f32 v{sb+i}, v{sb+i}')
        for i in range(4, 8): a(f'v_cvt_pk_bf16_f32 v{P+i}, v{sb+2*i}, v{sb+2*i+1}')
        pv(t, 1, False)
    a(f'v_rcp_f32 v{T+1}, v{OA+12}')
    for v in range(12): a(f'v_mul_f32 v{OA+v}, v{OA+v}, v{T+1}')
    for v in range(6): a(f'v_cvt_pk_bf16_f32 v{P+v}, v{OA+2*v}, v{OA+2*v+1}')
    a(f'buffer_store_dwordx2 {vr(P,2)}, v{T}, s[32:35], s26 offen')
    a(f'buffer_store_dwordx2 {vr(P+2,2)}, v{T}, s[32:35], s26 offen offset:16')
    a('s_mov_b32 exec_hi, 0')
    a(f'buffer_store_dwordx2 {vr(P+4,2)}, v{T}, s[32:35], s26 offen offset:32')
    a.label('Latt_end')
    a('s_endpgm')
    kernels.append(('att_kernel', 208, 48))

def gen_op(a):
    VD = 2
    VO = 7
    RA = 12
    XO = 14
    WO = 15
    AF = 16
    ACC = 96
    WF = 116
    XR = 156
    WR = 166
    T = 176
    kernel_start(a, 'op2_kernel')
    a(f's_load_dwordx2 s[4:5], s[0:1], {KA_WS}')
    a(f's_mov_b32 s3, {hx(WS_X2)}')
    a('s_branch Lop_common')
    kernel_start(a, 'op1_kernel')
    a(f's_load_dwordx2 s[4:5], s[0:1], {KA_X}')
    a('s_mov_b32 s3, 0')
    a.label('Lop_common')
    a(f's_load_dwordx2 s[6:7], s[0:1], {KA_WO}')
    a(f's_load_dwordx2 s[8:9], s[0:1], {KA_WS}')
    a(f's_load_dwordx2 s[44:45], s[0:1], {KA_WR}')
    a('s_cmp_ge_u32 s2, 256')
    a('s_cbranch_scc1 Lop_end')
    a('v_lshrrev_b32 v1, 6, v0')
    a('v_and_b32 v0, 63, v0')
    a('v_readfirstlane_b32 s10, v1')
    a('s_and_b32 s11, s2, 7')
    a('s_lshr_b32 s12, s2, 3')
    a('s_lshr_b32 s13, s11, 1')
    a('s_lshl_b32 s13, s13, 3')
    a('s_and_b32 s14, s12, 7')
    a('s_add_u32 s13, s13, s14')
    a('s_and_b32 s14, s11, 1')
    a('s_lshl_b32 s14, s14, 2')
    a('s_lshr_b32 s15, s12, 3')
    a('s_add_u32 s14, s14, s15')
    a('s_mul_i32 s15, s14, 160')
    a('s_lshl2_add_u32 s16, s13, s10')
    for i in range(5):
        a(f'v_add_u32 v{T}, {64*i}, v0')
        a(f'v_mul_u32_u24 v{T+1}, 6554, v{T}')
        a(f'v_lshrrev_b32 v{T+1}, 16, v{T+1}')
        a(f'v_mul_u32_u24 v{T+2}, 10, v{T+1}')
        a(f'v_sub_u32 v{T}, v{T}, v{T+2}')
        a(f'v_and_b32 v{T+2}, 12, v{T+1}')
        a(f'v_and_b32 v{T+3}, 3, v{T+1}')
        a(f'v_lshl_or_b32 v{T+2}, v{T+2}, 1, v{T+3}')
        a(f'v_lshrrev_b32 v{T+1}, 4, v{T+1}')
        a(f'v_lshl_or_b32 v{T+2}, v{T+1}, 2, v{T+2}')
        a(f'v_mul_u32_u24 v{T+2}, 1280, v{T+2}')
        a(f'v_lshl_add_u32 v{T}, v{T}, 4, v{T+2}')
        a(f'v_add_u32 v{VD+i}, s15, v{T}')
    a(f'v_and_b32 v{T+4}, 15, v0')
    a(f'v_lshrrev_b32 v{T+5}, 4, v0')
    a(f'v_mul_u32_u24 v{T+6}, 80, v{T+4}')
    a(f's_mov_b32 s17, {163840-80}')
    for s in range(5):
        a(f'v_add_u32 v{T}, {4*s}, v{T+5}')
        a(f'v_mul_u32_u24 v{T+1}, 205, v{T}')
        a(f'v_lshrrev_b32 v{T+1}, 10, v{T+1}')
        a(f'v_lshl_add_u32 v{T}, v{T}, 4, v{T+6}')
        a(f'v_mad_u32_u24 v{VO+s}, v{T+1}, s17, v{T}')
    a(f'v_mul_u32_u24 v{XO}, 1280, v{T+4}')
    a(f'v_lshlrev_b32 v{WO}, 3, v{T+5}')
    a(f'v_add_u32 v{XO}, v{XO}, v{WO}')
    a('s_waitcnt lgkmcnt(0)')
    add64(a, 4, 4, 's3')
    srd(a, 20, 4, S * D * 2)
    srd(a, 24, 6, D * D * 2)
    add64(a, 6, 8, WS_O)
    srd(a, 28, 6, 16 * 2048 * 80)
    add64(a, 6, 8, WS_X1)
    srd(a, 32, 6, S * D * 2)
    add64(a, 6, 8, WS_ST)
    srd(a, 36, 6, 3 * 2048 * 4)
    srd(a, 40, 44, D * 2)
    a('s_mul_i32 s18, s10, 40960')
    a('s_mul_i32 s19, s10, 5120')
    a('s_mul_i32 s46, s16, 1280')
    for c in range(5):
        for i in range(5):
            a(f's_add_u32 m0, s19, {c*20480 + i*1024}')
            a(f'buffer_load_dwordx4 v{VD+i}, s[24:27], s18 offen lds')
        if c < 4: a(f's_add_u32 s18, s18, {4*40960}')
        for k in range(4):
            s = 4 * c + k
            if s % 5 == 0 and s > 0: a(f's_add_u32 s46, s46, {4*163840}')
            a(f'buffer_load_dwordx4 {vr(AF+4*s,4)}, v{VO+s%5}, s[28:31], s46 offen')
    a('s_mul_i32 s47, s16, 20480')
    a('s_add_u32 s47, s47, s15')
    for t in range(5): a(f'buffer_load_dwordx2 {vr(XR+2*t,2)}, v{XO}, s[20:23], s47 offen offset:{32*t}')
    for t in range(5): a(f'buffer_load_dwordx2 {vr(WR+2*t,2)}, v{WO}, s[40:43], s15 offen offset:{32*t}')
    a(f'v_lshrrev_b32 v{T}, 2, v0')
    a(f'v_mul_u32_u24 v{T}, 160, v{T}')
    a(f'v_and_b32 v{T+1}, 3, v0')
    a(f'v_lshl_add_u32 v{RA}, v{T+1}, 3, v{T}')
    a(f'v_add_u32 v{RA+1}, {10*5120}, v{RA}')
    def wread(s):
        for t in range(5):
            for j in range(2):
                a(f'ds_read_b64_tr_b16 {vr(WF+20*(s%2)+4*t+2*j,2)}, v{RA+s//10} offset:{(s%10)*5120+j*2560+t*32}')
    def mm(s):
        for t in range(5):
            c = '0' if s == 0 else vr(ACC + 4 * t, 4)
            a(f'v_mfma_f32_16x16x32_bf16 {vr(ACC+4*t,4)}, {vr(WF+20*(s%2)+4*t,4)}, {vr(AF+4*s,4)}, {c}')
    for s in range(21):
        if s < 20:
            if s % 4 == 0:
                a(f's_waitcnt vmcnt({9*(4-s//4)+10})')
                a('s_barrier')
            wread(s)
        if s > 0:
            a(f's_waitcnt lgkmcnt({10 if s < 20 else 0})')
            mm(s - 1)
    a('s_waitcnt vmcnt(0)')
    S1, S2, S3 = T + 8, T + 9, T + 10
    for t in range(5):
        acc = ACC + 4 * t
        a(f'v_cvt_pk_bf16_f32 v{T}, v{acc}, v{acc+1}')
        a(f'v_cvt_pk_bf16_f32 v{T+1}, v{acc+2}, v{acc+3}')
        for p in range(2):
            a(f'v_lshlrev_b32 v{acc+2*p}, 16, v{T+p}')
            a(f'v_and_b32 v{acc+2*p+1}, 0xffff0000, v{T+p}')
            a(f'v_lshlrev_b32 v{T+2}, 16, v{XR+2*t+p}')
            a(f'v_and_b32 v{T+3}, 0xffff0000, v{XR+2*t+p}')
            a(f'v_add_f32 v{acc+2*p}, v{acc+2*p}, v{T+2}')
            a(f'v_add_f32 v{acc+2*p+1}, v{acc+2*p+1}, v{T+3}')
            a(f'v_cvt_pk_bf16_f32 v{XR+2*t+p}, v{acc+2*p}, v{acc+2*p+1}')
        a(f'buffer_store_dwordx2 {vr(XR+2*t,2)}, v{XO}, s[32:35], s47 offen offset:{32*t}')
    first = True
    for t in range(5):
        for p in range(2):
            a(f'v_lshlrev_b32 v{T}, 16, v{XR+2*t+p}')
            a(f'v_and_b32 v{T+1}, 0xffff0000, v{XR+2*t+p}')
            a(f'v_lshlrev_b32 v{T+2}, 16, v{WR+2*t+p}')
            a(f'v_and_b32 v{T+3}, 0xffff0000, v{WR+2*t+p}')
            if first:
                a(f'v_add_f32 v{S1}, v{T}, v{T+1}')
                a(f'v_mul_f32 v{S2}, v{T}, v{T}')
                a(f'v_mul_f32 v{S3}, v{T}, v{T+2}')
                first = False
            else:
                a(f'v_add_f32 v{S1}, v{S1}, v{T}')
                a(f'v_fmac_f32 v{S2}, v{T}, v{T}')
                a(f'v_fmac_f32 v{S3}, v{T}, v{T+2}')
                a(f'v_add_f32 v{S1}, v{S1}, v{T+1}')
            a(f'v_fmac_f32 v{S2}, v{T+1}, v{T+1}')
            a(f'v_fmac_f32 v{S3}, v{T+1}, v{T+3}')
    for sv in (S1, S2, S3):
        a(f'v_mov_b32 v{sv+3}, v{sv}')
    for sv in (S1, S2, S3):
        a(f'v_permlane16_swap_b32 v{sv}, v{sv+3}')
    for sv in (S1, S2, S3):
        a(f'v_add_f32 v{sv}, v{sv}, v{sv+3}')
        a(f'v_mov_b32 v{sv+3}, v{sv}')
    for sv in (S1, S2, S3):
        a(f'v_permlane32_swap_b32 v{sv}, v{sv+3}')
    for sv in (S1, S2, S3):
        a(f'v_add_f32 v{sv}, v{sv}, v{sv+3}')
    a(f'v_cmp_eq_u32 vcc, 1, v{T+5}')
    a(f'v_cndmask_b32 v{S1}, v{S1}, v{S2}, vcc')
    a(f'v_cmp_eq_u32 vcc, 2, v{T+5}')
    a(f'v_cndmask_b32 v{S1}, v{S1}, v{S3}, vcc')
    a(f'v_lshlrev_b32 v{T}, 13, v{T+5}')
    a(f'v_lshl_add_u32 v{T}, v{T+4}, 2, v{T}')
    a('s_lshl_b32 s18, s16, 6')
    a('s_mov_b32 exec_hi, 0xffff')
    a(f'buffer_atomic_add_f32 v{S1}, v{T}, s[36:39], s18 offen')
    a.label('Lop_end')
    a('s_endpgm')
    kernels.append(('op1_kernel', 192, 56)); kernels.append(('op2_kernel', 192, 56))

NFW = 96
def xn_pair(a, lo, hi, M, t):
    a(f'v_pk_add_f32 {vr(t+2,2)}, {vr(lo,2)}, {vr(M,2)} op_sel_hi:[1,0] neg_lo:[0,1] neg_hi:[0,1]')
    a(f'v_cvt_pk_bf16_f32 v{t}, v{t+2}, v{t+3}')
    a(f'v_lshlrev_b32 v{t+2}, 16, v{t}')
    a(f'v_and_b32 v{t+3}, 0xffff0000, v{t}')
    a(f'v_pk_mul_f32 {vr(t+2,2)}, {vr(t+2,2)}, {vr(M,2)} op_sel:[0,1] op_sel_hi:[1,1]')
    a(f'v_cvt_pk_bf16_f32 v{t}, v{t+2}, v{t+3}')

def gen_ffn(a):
    L_MR = 0
    L_LIST = L_MR + 16384
    L_Z2 = L_LIST + 8192
    L_GU = L_Z2 + 64
    L_CNT = L_Z2 + 32
    L_GM = L_GU + 2048
    L_SEL = L_GM + 32
    L_H = L_SEL + 32
    L_FLAG = L_H + 1024
    global FFN_LDS
    L_W = (L_FLAG + 64 + 1023) // 1024 * 1024
    FFN_LDS = L_W + 61440
    ST = 16
    MR = 40
    KEY = 56
    T = 64
    XD = 80
    kernel_start(a, 'ffn2_kernel')
    a(f's_load_dwordx2 s[4:5], s[0:1], {KA_OUT}')
    a('s_mov_b32 s3, 0')
    a('s_branch Lffn_common')
    kernel_start(a, 'ffn1_kernel')
    a(f's_load_dwordx2 s[4:5], s[0:1], {KA_WS}')
    a(f's_mov_b32 s3, {hx(WS_X2)}')
    a.label('Lffn_common')
    a(f's_load_dwordx8 s[52:59], s[0:1], {KA_WR}')
    a(f's_load_dwordx4 s[60:63], s[0:1], {KA_DBG}')
    a(f's_cmp_ge_u32 s2, {NFW+128}')
    a('s_cbranch_scc1 Lffn_end')
    a('v_mov_b32 v1, v0')
    a('v_lshrrev_b32 v2, 6, v0')
    a('v_and_b32 v0, 63, v0')
    a('v_readfirstlane_b32 s10, v2')
    a('v_lshlrev_b32 v2, 5, v1')
    a('v_mul_u32_u24 v3, 20, v0')
    a('s_waitcnt lgkmcnt(0)')
    add64(a, 4, 4, 's3')
    srd(a, 20, 4, S * D * 2)
    add64(a, 6, 62, WS_ST)
    srd(a, 24, 6, ZERO_BYTES)
    add64(a, 6, 62, WS_X1)
    srd(a, 28, 6, S * D * 2)
    srd(a, 32, 52, D * 2)
    srd(a, 36, 54, D * F * 2)
    srd(a, 40, 56, D * F * 2)
    srd(a, 44, 58, D * F * 2)
    srd(a, 48, 60, 256)
    for k in range(3):
        a(f's_mov_b32 s11, {8192*k}')
        for i in range(2): a(f'buffer_load_dwordx4 {vr(ST+8*k+4*i,4)}, v2, s[24:27], s11 offen offset:{16*i}')
    a(f'buffer_load_dwordx4 {vr(T,4)}, v3, s[32:35], 0 offen')
    a(f'buffer_load_dword v{T+4}, v3, s[32:35], 0 offen offset:16')
    a(f's_cmp_ge_u32 s2, {NFW}')
    a('s_cbranch_scc1 Lffn_eload')
    a('v_lshrrev_b32 v4, 1, v0')
    a('v_mul_u32_u24 v4, 3072, v4')
    a('v_and_b32 v5, 1, v0')
    a('v_lshl_add_u32 v4, v5, 4, v4')
    a(f's_mul_i32 s11, s10, {160*3072}')
    a('s_lshl_b32 s12, s2, 5')
    a('s_add_u32 s11, s11, s12')
    a('s_mul_i32 s13, s10, 15360')
    a(f's_add_u32 s13, s13, {L_W}')
    for i in range(5):
        a(f's_add_u32 m0, s13, {1024*i}')
        a('buffer_load_dwordx4 v4, s[36:39], s11 offen lds')
        a(f's_add_u32 m0, s13, {5120+1024*i}')
        a('buffer_load_dwordx4 v4, s[40:43], s11 offen lds')
        if i < 4: a(f's_add_u32 s11, s11, {32*3072}')
    a('s_mul_i32 s11, s2, 20480')
    a('s_mul_i32 s12, s10, 320')
    a('s_add_u32 s11, s11, s12')
    for i in range(5):
        a(f'v_add_u32 v5, {64*i}, v0')
        a('v_mul_u32_u24 v6, 3277, v5')
        a('v_lshrrev_b32 v6, 16, v6')
        a('v_mul_u32_u24 v6, 960, v6')
        a('v_lshl_add_u32 v5, v5, 4, v6')
        a(f's_add_u32 m0, s13, {10240+1024*i}')
        a('buffer_load_dwordx4 v5, s[44:47], s11 offen lds')
    a('s_waitcnt vmcnt(15)')
    a('s_branch Lffn_keys')
    a.label('Lffn_eload')
    a(f's_sub_u32 s11, s2, {NFW}')
    a('s_lshl_b32 s14, s11, 4')
    a('s_mul_i32 s11, s11, 20480')
    a('v_lshrrev_b32 v4, 4, v1')
    a('v_mul_u32_u24 v5, 1280, v4')
    a('v_and_b32 v6, 15, v1')
    a('v_lshl_add_u32 v5, v6, 4, v5')
    for i in range(5): a(f'buffer_load_dwordx4 {vr(XD+4*i,4)}, v5, s[28:31], s11 offen offset:{256*i}')
    a('s_waitcnt vmcnt(5)')
    a.label('Lffn_keys')
    for i in range(4): a(f'v_mov_b32 v{T+8+i}, 0')
    for i in range(2): a(f'ds_write_b128 v2, {vr(T+8,4)} offset:{L_LIST+16*i}')
    a('v_lshlrev_b32 v7, 4, v1')
    a(f'v_cmp_gt_u32 vcc, {2048+64}, v7')
    a('s_and_saveexec_b64 s[16:17], vcc')
    a(f'ds_write_b128 v7, {vr(T+8,4)} offset:{L_Z2}')
    a('s_mov_b64 exec, s[16:17]')
    for i in range(5):
        a(f'v_lshlrev_b32 v{T+8}, 16, v{T+i}')
        a(f'v_and_b32 v{T+9}, 0xffff0000, v{T+i}')
        if i == 0: a(f'v_add_f32 v{T+10}, v{T+8}, v{T+9}')
        else:
            a(f'v_add_f32 v{T+10}, v{T+10}, v{T+8}')
            a(f'v_add_f32 v{T+10}, v{T+10}, v{T+9}')
    for r in (8, 4, 2, 1):
        a(f'v_add_f32_dpp v{T+10}, v{T+10}, v{T+10} row_ror:{r} row_mask:0xf bank_mask:0xf')
    a(f'v_mov_b32 v{T+11}, v{T+10}')
    a(f'v_permlane16_swap_b32 v{T+10}, v{T+11}')
    a(f'v_add_f32 v{T+10}, v{T+10}, v{T+11}')
    a(f'v_mov_b32 v{T+11}, v{T+10}')
    a(f'v_permlane32_swap_b32 v{T+10}, v{T+11}')
    a(f'v_add_f32 v{T+10}, v{T+10}, v{T+11}')
    a('v_lshlrev_b32 v8, 3, v1')
    a('v_sub_u32 v8, 2047, v8')
    a('s_mov_b32 s15, 0xfffff800')
    for j in range(8):
        ln_scalars(a, ST + j, ST + 8 + j, MR + 2 * j, MR + 2 * j + 1, T + (j % 2))
        k = KEY + j
        a(f'v_fma_f32 v{k}, -v{MR+2*j}, v{T+10}, v{ST+16+j}')
        a(f'v_mul_f32 v{k}, v{k}, v{MR+2*j+1}')
        a(f'v_ashrrev_i32 v{T+2}, 31, v{k}')
        a(f'v_or_b32 v{T+2}, 0x80000000, v{T+2}')
        a(f'v_xor_b32 v{k}, v{k}, v{T+2}')
        a(f'v_subrev_u32 v{T+3}, {j}, v8')
        a(f'v_and_or_b32 v{k}, v{k}, s15, v{T+3}')
    a('v_lshlrev_b32 v7, 6, v1')
    for i in range(4): a(f'ds_write_b128 v7, {vr(MR+4*i,4)} offset:{L_MR+16*i}')
    a(f'v_max3_u32 v{T}, v{KEY}, v{KEY+1}, v{KEY+2}')
    a(f'v_max3_u32 v{T+1}, v{KEY+3}, v{KEY+4}, v{KEY+5}')
    a(f'v_max3_u32 v{T}, v{T}, v{KEY+6}, v{KEY+7}')
    a(f'v_max_u32 v{T}, v{T}, v{T+1}')
    for r in (8, 4, 2, 1):
        a(f'v_max_u32_dpp v{T}, v{T}, v{T} row_ror:{r} row_mask:0xf bank_mask:0xf')
    a(f'v_mov_b32 v{T+1}, v{T}')
    a(f'v_permlane16_swap_b32 v{T}, v{T+1}')
    a(f'v_max_u32 v{T}, v{T}, v{T+1}')
    a('v_lshrrev_b32 v7, 5, v1')
    a('v_lshlrev_b32 v7, 2, v7')
    a(f'ds_write_b32 v7, v{T} offset:{L_GM}')
    a('s_waitcnt lgkmcnt(0)')
    a('s_barrier')
    a('v_mov_b32 v9, 0')
    a(f'ds_read_b128 {vr(T,4)}, v9 offset:{L_GM}')
    a(f'ds_read_b128 {vr(T+4,4)}, v9 offset:{L_GM+16}')
    a('s_waitcnt lgkmcnt(0)')
    a(f'v_min3_u32 v{T}, v{T}, v{T+1}, v{T+2}')
    a(f'v_min3_u32 v{T+3}, v{T+3}, v{T+4}, v{T+5}')
    a(f'v_min3_u32 v{T}, v{T}, v{T+6}, v{T+7}')
    a(f'v_min_u32 v{T}, v{T}, v{T+3}')
    for j in range(8): a(f'v_cmp_ge_u32 s[{64+2*j}:{65+2*j}], v{KEY+j}, v{T}')
    for j in range(8): a(f's_bcnt1_i32_b64 s{80+j}, s[{64+2*j}:{65+2*j}]')
    a('s_mov_b32 s88, 0')
    for j in range(8): a(f's_add_u32 s{89+j}, s{88+j}, s{80+j}')
    a(f'v_mov_b32 v{T+1}, s96')
    a('s_mov_b64 exec, 1')
    a(f'ds_add_rtn_u32 v{T+2}, v9, v{T+1} offset:{L_CNT}')
    a('s_waitcnt lgkmcnt(0)')
    a(f'v_readfirstlane_b32 s97, v{T+2}')
    for j in range(8):
        a(f's_mov_b64 exec, s[{64+2*j}:{65+2*j}]')
        a(f's_add_u32 s98, s97, s{88+j}')
        a(f'v_mbcnt_lo_u32_b32 v{T+1}, s{64+2*j}, 0')
        a(f'v_mbcnt_hi_u32_b32 v{T+1}, s{65+2*j}, v{T+1}')
        a(f'v_add_lshl_u32 v{T+1}, v{T+1}, s98, 2')
        a(f'ds_write_b32 v{T+1}, v{KEY+j} offset:{L_LIST}')
    a('s_mov_b64 exec, -1')
    a('s_waitcnt lgkmcnt(0)')
    a('s_barrier')
    a(f'ds_read_b32 v{T}, v9 offset:{L_CNT}')
    a('v_lshlrev_b32 v7, 2, v1')
    a('s_lshl_b32 s12, s10, 6')
    a('s_waitcnt lgkmcnt(0)')
    a(f'v_readfirstlane_b32 s96, v{T}')
    a.label('Lffn_rank_outer')
    a('s_cmp_ge_u32 s12, s96')
    a('s_cbranch_scc1 Lffn_rank_done')
    a(f'ds_read_b32 v{T+8}, v7 offset:{L_LIST}')
    a(f'v_mov_b32 v{T+9}, 0')
    a(f'v_mov_b32 v{T+10}, 0')
    a('s_mov_b32 s97, 0')
    a.label('Lffn_rank_inner')
    a(f'ds_read_b128 {vr(T,4)}, v{T+10} offset:{L_LIST}')
    a(f'ds_read_b128 {vr(T+4,4)}, v{T+10} offset:{L_LIST+16}')
    a(f'v_add_u32 v{T+10}, 32, v{T+10}')
    a('s_waitcnt lgkmcnt(0)')
    for i in range(8): a(f'v_cmp_gt_u32 s[{64+2*i}:{65+2*i}], v{T+i}, v{T+8}')
    for i in range(8): a(f'v_addc_co_u32 v{T+9}, vcc, 0, v{T+9}, s[{64+2*i}:{65+2*i}]')
    a('s_add_u32 s97, s97, 8')
    a('s_cmp_lt_u32 s97, s96')
    a('s_cbranch_scc1 Lffn_rank_inner')
    a(f'v_cmp_gt_u32 vcc, 8, v{T+9}')
    a(f'v_lshlrev_b32 v{T+9}, 2, v{T+9}')
    a('s_and_saveexec_b64 s[16:17], vcc')
    a(f'ds_write_b32 v{T+9}, v{T+8} offset:{L_SEL}')
    a('s_mov_b64 exec, s[16:17]')
    a('v_add_u32 v7, 1024, v7')
    a('s_add_u32 s12, s12, 256')
    a('s_branch Lffn_rank_outer')
    a.label('Lffn_rank_done')
    a('s_waitcnt lgkmcnt(0)')
    a('s_barrier')
    a(f's_cmp_ge_u32 s2, {NFW}')
    a('s_cbranch_scc1 Lffn_elem')

    XF = 16
    WFg = 40; WFu = 60
    G = 80; U = 84
    a('v_and_b32 v10, 7, v0')
    a('v_lshlrev_b32 v7, 2, v10')
    a(f'ds_read_b32 v11, v7 offset:{L_SEL}')
    for i in range(20): a(f'v_mov_b32 v{XF+i}, {hx(ONES2)}')
    a('v_lshrrev_b32 v13, 4, v0')
    a('s_mul_i32 s11, s10, 320')
    a('s_waitcnt lgkmcnt(0)')
    a('v_and_b32 v12, 2047, v11')
    a('v_sub_u32 v12, 2047, v12')
    a('v_mul_u32_u24 v7, 1280, v12')
    a('v_lshl_add_u32 v7, v13, 4, v7')
    a('s_mov_b32 exec_lo, 0x00ff00ff')
    a('s_mov_b32 exec_hi, 0x00ff00ff')
    for s in range(5): a(f'buffer_load_dwordx4 {vr(XF+4*s,4)}, v7, s[28:31], s11 offen offset:{64*s}')
    a('s_mov_b64 exec, -1')
    a('v_lshlrev_b32 v7, 3, v12')
    a(f'ds_read_b64 v[14:15], v7 offset:{L_MR}')
    a('v_bfe_u32 v7, v0, 2, 2')
    a('v_lshl_add_u32 v7, v13, 3, v7')
    a('v_lshlrev_b32 v7, 5, v7')
    a('v_and_b32 v8, 3, v0')
    a('v_lshl_add_u32 v7, v8, 3, v7')
    a('v_add_u32 v7, s13, v7')
    a('s_waitcnt vmcnt(5)')
    for s in range(5):
        for j in range(2):
            a(f'ds_read_b64_tr_b16 {vr(WFg+4*s+2*j,2)}, v7 offset:{(32*s+4*j)*32}')
            a(f'ds_read_b64_tr_b16 {vr(WFu+4*s+2*j,2)}, v7 offset:{5120+(32*s+4*j)*32}')
    WD = 88
    a('v_bfe_u32 v7, v0, 2, 2')
    a('v_lshrrev_b32 v9, 5, v0')
    a('v_lshl_add_u32 v7, v9, 3, v7')
    a('v_mul_u32_u24 v7, 320, v7')
    a('v_lshl_add_u32 v7, v8, 3, v7')
    a('v_bfe_u32 v8, v0, 4, 1')
    a('v_lshl_add_u32 v7, v8, 5, v7')
    a('v_add_u32 v7, s13, v7')
    a('s_waitcnt vmcnt(0) lgkmcnt(0)')
    for t in range(5):
        for j in range(2):
            a(f'ds_read_b64_tr_b16 {vr(WD+4*t+2*j,2)}, v7 offset:{10240+j*4*320+t*64}')
    for s in range(5):
        a(f'v_mfma_f32_16x16x32_bf16 {vr(G,4)}, {vr(WFg+4*s,4)}, {vr(XF+4*s,4)}, {"0" if s == 0 else vr(G,4)}')
        a(f'v_mfma_f32_16x16x32_bf16 {vr(U,4)}, {vr(WFu+4*s,4)}, {vr(XF+4*s,4)}, {"0" if s == 0 else vr(U,4)}')
    a('v_and_b32 v7, 15, v0')
    a('v_lshlrev_b32 v7, 6, v7')
    a('v_lshl_add_u32 v7, v13, 4, v7')
    for i in range(8):
        a(f'v_mov_b32_dpp v{XF+i}, v{G+i} row_newbcast:8 row_mask:0xf bank_mask:0xf')
    for i in range(8):
        a(f'v_fma_f32 v{G+i}, -v14, v{XF+i}, v{G+i}')
    for i in range(8):
        a(f'ds_add_f32 v7, v{G+i} offset:{L_GU + (i//4)*1024 + (i%4)*4}')
    a('s_waitcnt lgkmcnt(0)')
    a('s_barrier')
    a('v_lshrrev_b32 v8, 3, v0')
    a('v_lshlrev_b32 v7, 6, v10')
    a('v_lshl_add_u32 v7, v8, 3, v7')
    a(f'ds_read_b64 {vr(G,2)}, v7 offset:{L_GU}')
    a(f'ds_read_b64 {vr(U,2)}, v7 offset:{L_GU+1024}')
    a('s_lshl_b32 s12, s10, 8')
    a('v_lshlrev_b32 v7, 5, v10')
    a('v_lshl_add_u32 v8, v8, 2, v7')
    a('v_add_u32 v8, s12, v8')
    a('v_lshl_add_u32 v7, v9, 4, v7')
    a('v_add_u32 v7, s12, v7')
    a('s_waitcnt lgkmcnt(0)')
    a(f'v_pk_mul_f32 {vr(G,2)}, {vr(G,2)}, v[14:15] op_sel:[0,1] op_sel_hi:[1,1]')
    a(f'v_pk_mul_f32 {vr(U,2)}, {vr(U,2)}, v[14:15] op_sel:[0,1] op_sel_hi:[1,1]')
    a(f'v_cvt_pk_bf16_f32 v{G+2}, v{G}, v{G+1}')
    a(f'v_cvt_pk_bf16_f32 v{U+2}, v{U}, v{U+1}')
    a(f'v_lshlrev_b32 v{G}, 16, v{G+2}')
    a(f'v_and_b32 v{G+1}, 0xffff0000, v{G+2}')
    a(f'v_lshlrev_b32 v{U}, 16, v{U+2}')
    a(f'v_and_b32 v{U+1}, 0xffff0000, v{U+2}')
    nl2e = hx(f2u(-math.log2(math.e)))
    for i in range(2): a(f'v_mul_f32 v{G+2+i}, {nl2e}, v{G+i}')
    for i in range(2): a(f'v_exp_f32 v{G+2+i}, v{G+2+i}')
    for i in range(2): a(f'v_add_f32 v{G+2+i}, 1.0, v{G+2+i}')
    for i in range(2): a(f'v_rcp_f32 v{G+2+i}, v{G+2+i}')
    for i in range(2): a(f'v_mul_f32 v{G+i}, v{G+i}, v{G+2+i}')
    a(f'v_cvt_pk_bf16_f32 v{G+2}, v{G}, v{G+1}')
    a(f'v_lshlrev_b32 v{G}, 16, v{G+2}')
    a(f'v_and_b32 v{G+1}, 0xffff0000, v{G+2}')
    for i in range(2): a(f'v_mul_f32 v{G+i}, v{G+i}, v{U+i}')
    a(f'v_cvt_pk_bf16_f32 v{G+2}, v{G}, v{G+1}')
    a(f'ds_write_b32 v8, v{G+2} offset:{L_H}')
    a('s_waitcnt lgkmcnt(0)')
    a(f'ds_read_b128 {vr(G,4)}, v7 offset:{L_H}')
    a('v_and_b32 v7, 31, v0')
    a('v_lshlrev_b32 v7, 2, v7')
    a('v_mul_u32_u24 v8, 10240, v9')
    a('v_add_u32 v7, v7, v8')
    a(f's_and_b32 s11, s2, {NREP-1}')
    a('s_mul_i32 s11, s11, 20480')
    a('s_mul_i32 s12, s10, 640')
    a('s_add_u32 s11, s11, s12')
    a(f's_add_u32 s11, s11, {3*2048*4}')
    a('s_add_u32 s12, s11, 5120')
    a('s_waitcnt lgkmcnt(0)')
    YA = 112
    for t in range(5):
        a(f'v_mfma_f32_32x32x16_bf16 {vr(YA+16*t,16)}, {vr(G,4)}, {vr(WD+4*t,4)}, 0')
    for t in range(5):
        for v in range(4):
            a(f'buffer_atomic_add_f32 v{YA+16*t+v}, v7, s[24:27], s{11+v//2} offen offset:{(v%2)*2560+128*t}')
    a('s_waitcnt vmcnt(0)')
    a('s_barrier')
    a('v_mov_b32 v9, 0')
    a('s_cmp_lg_u32 s10, 0')
    a('s_cbranch_scc1 Lffn_wait')
    a('v_mov_b32 v8, 1')
    a('s_mov_b64 exec, 1')
    a('buffer_atomic_add v8, v9, s[48:51], 0 offen sc0')
    a('s_waitcnt vmcnt(0)')
    a(f'ds_write_b32 v9, v8 offset:{L_FLAG}')
    a('s_mov_b64 exec, -1')
    a('s_waitcnt lgkmcnt(0)')
    a.label('Lffn_wait')
    a('s_barrier')
    a(f'ds_read_b32 v8, v9 offset:{L_FLAG}')
    a('v_lshrrev_b32 v10, 5, v1')
    a('v_lshlrev_b32 v7, 2, v10')
    a(f'ds_read_b32 v11, v7 offset:{L_SEL}')
    a('s_waitcnt lgkmcnt(0)')
    a('v_readfirstlane_b32 s11, v8')
    a(f's_cmp_lg_u32 s11, {NFW-1}')
    a('s_cbranch_scc1 Lffn_end')
    Y0 = 16; Y1 = 36; X = 56; M = 14
    a('v_and_b32 v12, 2047, v11')
    a('v_sub_u32 v12, 2047, v12')
    a('v_and_b32 v13, 31, v1')
    a('v_mul_u32_u24 v7, 2560, v10')
    a('v_mul_u32_u24 v8, 80, v13')
    a('v_add_u32 v7, v7, v8')
    a(f's_mov_b32 s11, {3*2048*4}')
    a(f's_mov_b32 s12, {3*2048*4+20480}')
    for i in range(5): a(f'buffer_load_dwordx4 {vr(Y0+4*i,4)}, v7, s[24:27], s11 offen offset:{16*i} sc0 sc1')
    for i in range(5): a(f'buffer_load_dwordx4 {vr(Y1+4*i,4)}, v7, s[24:27], s12 offen offset:{16*i} sc0 sc1')
    a('v_mul_u32_u24 v5, 1280, v12')
    a('v_mul_u32_u24 v8, 40, v13')
    a('v_add_u32 v5, v5, v8')
    a(f'buffer_load_dwordx4 {vr(X,4)}, v5, s[28:31], 0 offen')
    a(f'buffer_load_dwordx4 {vr(X+4,4)}, v5, s[28:31], 0 offen offset:16')
    a(f'buffer_load_dwordx2 {vr(X+8,2)}, v5, s[28:31], 0 offen offset:32')
    a('v_lshlrev_b32 v7, 3, v12')
    a(f'ds_read_b64 {vr(M,2)}, v7 offset:{L_MR}')
    a('v_and_b32 v11, 0xfffff800, v11')
    a('v_ashrrev_i32 v8, 31, v11')
    a('v_not_b32 v8, v8')
    a('v_or_b32 v8, 0x80000000, v8')
    a('v_xor_b32 v11, v11, v8')
    rbf16(a, 11, 11)
    a(f'v_mul_f32 v11, {nl2e}, v11')
    a('v_exp_f32 v11, v11')
    a('v_add_f32 v11, 1.0, v11')
    a('v_rcp_f32 v11, v11')
    rbf16(a, 10, 11)
    a('s_waitcnt vmcnt(0) lgkmcnt(0)')
    TT = 68
    for i in range(10):
        y = Y0 + 2 * i
        a(f'v_pk_add_f32 {vr(y,2)}, {vr(y,2)}, {vr(Y1+2*i,2)}')
        a(f'v_cvt_pk_bf16_f32 v{TT+1}, v{y}, v{y+1}')
        a(f'v_lshlrev_b32 v{y}, 16, v{TT+1}')
        a(f'v_and_b32 v{y+1}, 0xffff0000, v{TT+1}')
        a(f'v_pk_mul_f32 {vr(y,2)}, {vr(y,2)}, v[10:11] op_sel_hi:[1,0]')
        a(f'v_cvt_pk_bf16_f32 v{TT+1}, v{y}, v{y+1}')
        a(f'v_lshlrev_b32 v{y}, 16, v{TT+1}')
        a(f'v_and_b32 v{y+1}, 0xffff0000, v{TT+1}')
        a(f'v_lshlrev_b32 v{TT+4}, 16, v{X+i}')
        a(f'v_and_b32 v{TT+5}, 0xffff0000, v{X+i}')
        xn_pair(a, TT + 4, TT + 5, M, TT)
        a(f'v_lshlrev_b32 v{TT+2}, 16, v{TT}')
        a(f'v_and_b32 v{TT+3}, 0xffff0000, v{TT}')
        a(f'v_pk_add_f32 {vr(y,2)}, {vr(y,2)}, {vr(TT+2,2)}')
        a(f'v_cvt_pk_bf16_f32 v{TT+1}, v{y}, v{y+1}')
        a(f'v_lshlrev_b32 v{y}, 16, v{TT+1}')
        a(f'v_and_b32 v{y+1}, 0xffff0000, v{TT+1}')
        a(f'v_pk_add_f32 {vr(y,2)}, {vr(y,2)}, {vr(TT+4,2)}')
        a(f'v_cvt_pk_bf16_f32 v{X+i}, v{y}, v{y+1}')
    a(f'buffer_store_dwordx4 {vr(X,4)}, v5, s[20:23], 0 offen')
    a(f'buffer_store_dwordx4 {vr(X+4,4)}, v5, s[20:23], 0 offen offset:16')
    a(f'buffer_store_dwordx2 {vr(X+8,2)}, v5, s[20:23], 0 offen offset:32')
    a('s_endpgm')

    a.label('Lffn_elem')
    a('v_add_u32 v4, s14, v4')
    a('v_lshlrev_b32 v7, 3, v4')
    a(f'ds_read_b64 {vr(M,2)}, v7 offset:{L_MR}')
    a('v_mov_b32 v9, 0')
    a(f'ds_read_b128 {vr(T,4)}, v9 offset:{L_SEL}')
    a(f'ds_read_b128 {vr(T+4,4)}, v9 offset:{L_SEL+16}')
    a('v_sub_u32 v4, 2047, v4')
    a('s_waitcnt vmcnt(0) lgkmcnt(0)')
    for i in range(8):
        a(f'v_and_b32 v{T+i}, 2047, v{T+i}')
        a(f'v_cmp_ne_u32 vcc, v{T+i}, v4')
        a('s_and_b64 exec, exec, vcc')
    a('s_cbranch_execz Lffn_end')
    for i in range(20):
        a(f'v_lshlrev_b32 v{TT+4}, 16, v{XD+i}')
        a(f'v_and_b32 v{TT+5}, 0xffff0000, v{XD+i}')
        xn_pair(a, TT + 4, TT + 5, M, TT)
        a(f'v_lshlrev_b32 v{TT+2}, 16, v{TT}')
        a(f'v_and_b32 v{TT+3}, 0xffff0000, v{TT}')
        a(f'v_pk_add_f32 {vr(TT+2,2)}, {vr(TT+2,2)}, {vr(TT+4,2)}')
        a(f'v_cvt_pk_bf16_f32 v{XD+i}, v{TT+2}, v{TT+3}')
        if i % 4 == 3: a(f'buffer_store_dwordx4 {vr(XD+i-3,4)}, v5, s[20:23], s11 offen offset:{256*(i//4)}')
    a.label('Lffn_end')
    a('s_endpgm')
    kernels.append(('ffn1_kernel', 192, 100)); kernels.append(('ffn2_kernel', 192, 100))
    LAUNCH['ffn1_kernel'] = LAUNCH['ffn2_kernel'] = (NFW + 128, 256, FFN_LDS)

LAUNCH = {
    'op1_kernel': (256, 256, 102400), 'op2_kernel': (256, 256, 102400),
    'att_kernel': (256, 512, 49152),
    'qkv1_kernel': (256, 512, 163840), 'qkv2_kernel': (256, 512, 163840),
}

def emit(order, gens, path):
    a = Asm()
    for g in gens: g(a)
    body = insert_nops(a.L)
    out = []
    for k in order:
        g, b, lds = LAUNCH[k]
        out.append(f'; @launch kernel={k} grid=({g},1,1) block=({b},1,1) lds={lds}')
    out.append('.amdgcn_target "amdgcn-amd-amdhsa--gfx950"')
    out.append('.text')
    out += body
    out.append('.section .rodata,"a"')
    for (k, v, s) in kernels:
        out.append('.p2align 6')
        out.append(f'.amdhsa_kernel {k}')
        out.append(f'  .amdhsa_next_free_vgpr {v}')
        out.append(f'  .amdhsa_next_free_sgpr {s}')
        out.append(f'  .amdhsa_accum_offset {(v+3)//4*4}')
        out.append('  .amdhsa_group_segment_fixed_size 0')
        out.append('  .amdhsa_kernarg_size 88')
        out.append('  .amdhsa_user_sgpr_count 2')
        out.append('  .amdhsa_user_sgpr_kernarg_segment_ptr 1')
        out.append('  .amdhsa_system_sgpr_workgroup_id_x 1')
        out.append('.end_amdhsa_kernel')
    open(path, 'w').write('\n'.join(out) + '\n')

if __name__ == '__main__':
    path = sys.argv[1] if len(sys.argv) > 1 else 'interleave_layers__sliding_block__moe_arch_mod__prompt.s'
    emit(['qkv1_kernel', 'att_kernel', 'op1_kernel', 'ffn1_kernel', 'qkv2_kernel', 'att_kernel', 'op2_kernel', 'ffn2_kernel'], [gen_qkv, gen_att, gen_op, gen_ffn], path)
```

```python
import sys, struct, math, os
sys.path.insert(0, os.path.dirname(os.path.abspath(__file__)))
from asmlib import *

S, D, H, DH, F = 2048, 640, 32, 20, 1536
KA_X, KA_WQKV, KA_WO, KA_BX, KA_WR, KA_WG, KA_WU, KA_WD, KA_OUT, KA_DBG, KA_WS = [8 * i for i in range(11)]
PLANE = 2048 * 16
WS_QKV = 0
WS_O = WS_QKV + 240 * PLANE
WS_X1 = WS_O + 80 * PLANE
WS_X2 = WS_X1 + S * D * 2
WS_PWO = WS_X2 + S * D * 2
WS_PG = WS_PWO + D * D * 2
WS_PD = WS_PG + 2 * D * F * 2
WS_ST = WS_PD + D * F * 2
WS_H = WS_ST + 3 * 2048 * 4
WS_MR = WS_H + 24576
WS_EP = WS_MR + 32768
WS_END = WS_EP + 2048
EPK = 0x9E3779B9
WS_PROF = 0x2000000
WS_SIZE = 0x4000000
assert WS_END <= WS_PROF

def f2u(x): return struct.unpack('<I', struct.pack('<f', x))[0]
def hx(x): return hex(x & 0xFFFFFFFF)
QSCALE = f2u(DH ** -0.5 * math.log2(math.e))
ONES2 = 0x3F803F80
NEGBIG = f2u(-1e30)
NL2E = hx(f2u(-math.log2(math.e)))

kernels = []
LAUNCH = {}
PROF = bool(os.environ.get('PROF'))
PV = 160
def stamp(a, i):
    if not PROF: return
    a('s_memrealtime s[100:101]')
    a('s_waitcnt lgkmcnt(0)')
    a(f'v_writelane_b32 v{a.pv}, s100, {i}')
def cstamp(a, i):
    if not PROF: return
    a('s_memtime s[100:101]')
    a('s_waitcnt lgkmcnt(0)')
    a(f'v_writelane_b32 v{a.pv}, s100, {i}')
def endpgm(a):
    if not PROF:
        a('s_endpgm'); return
    a('s_mov_b64 exec, -1')
    stamp(a, 14)
    a('s_waitcnt vmcnt(0)')
    stamp(a, 15)
    a(f'v_mov_b32 v2, v{a.pv}')
    a('s_branch Lprof_end')
def gen_prof(a):
    if not PROF: return
    a.label('Lprof_end')
    a(f's_load_dwordx4 s[4:7], s[0:1], {KA_DBG}')
    a('s_waitcnt lgkmcnt(0)')
    a('s_lshr_b32 s4, s4, 9')
    a('s_and_b32 s4, s4, 15')
    a('s_lshl_b32 s4, s4, 9')
    a('s_add_u32 s4, s4, s2')
    a('s_lshl_b32 s4, s4, 4')
    a('s_add_u32 s4, s4, s10')
    a('s_lshl_b32 s4, s4, 6')
    add64(a, 6, 6, WS_PROF)
    a('s_mov_b32 s12, s6'); a('s_mov_b32 s13, s7')
    a(f's_mov_b32 s14, {16 * 512 * 16 * 64}'); a('s_mov_b32 s15, 0x20000')
    a('v_mbcnt_lo_u32_b32 v1, -1, 0')
    a('v_lshlrev_b32 v1, 2, v1')
    a('s_mov_b64 exec, 0xffff')
    a('buffer_store_dword v2, v1, s[12:15], s4 offen')
    a('s_endpgm')

def ksrd(a, d, ka, size):
    a(f's_load_dwordx2 s[{d}:{d+1}], s[0:1], {ka}')
    a(f's_mov_b32 s{d+2}, {hx(size)}')
    a(f's_mov_b32 s{d+3}, 0x20000')

def add64(a, d, s, off):
    o = off if isinstance(off, str) else hx(off)
    a(f's_add_u32 s{d}, s{s}, {o}')
    a(f's_addc_u32 s{d+1}, s{s+1}, 0')

def rbf16(a, d, s):
    a(f'v_cvt_pk_bf16_f32 v{d}, v{s}, v{s}')
    a(f'v_and_b32 v{d}, 0xffff0000, v{d}')

def unpack(a, lo, src):
    a(f'v_lshlrev_b32 v{lo}, 16, v{src}')
    a(f'v_and_b32 v{lo+1}, 0xffff0000, v{src}')

def ln_scalars(a, s1, s2, m, rs, t):
    inv = hx(f2u(1.0 / D))
    a(f'v_mul_f32 v{m}, {inv}, v{s1}')
    a(f'v_mul_f32 v{t}, {inv}, v{s2}')
    a(f'v_fma_f32 v{t}, -v{m}, v{m}, v{t}')
    a(f'v_max_f32 v{t}, 0, v{t}')
    rbf16(a, t, t)
    a(f'v_add_f32 v{t}, {hx(f2u(1e-5))}, v{t}')
    rbf16(a, t, t)
    a(f'v_sqrt_f32 v{t}, v{t}')
    rbf16(a, t, t)
    a(f'v_rcp_f32 v{rs}, v{t}')
    rbf16(a, m, m)

def kernel_start(a, label):
    a.raw('.p2align 8')
    a.raw(f'.globl {label}')
    a.raw(f'.type {label},@function')
    a.label(label)
    if PROF:
        a(f'v_mov_b32 v{a.pv}, 0')
        stamp(a, 0)

def reg_kernel(label, grid, block, lds, vgpr, sgpr):
    kernels.append((label, vgpr, 102 if PROF else sgpr))
    LAUNCH[label] = (grid, block, lds)

def wave_lane(a):
    a('v_lshrrev_b32 v1, 6, v0')
    a('v_and_b32 v0, 63, v0')
    a('v_readfirstlane_b32 s10, v1')

def mod_small(a, s, n, times):
    for _ in range(times):
        a(f's_sub_u32 s99, s{s}, {n}')
        a(f's_cmp_ge_u32 s{s}, {n}')
        a(f's_cselect_b32 s{s}, s99, s{s}')
```

```python
from common import *
def gen_att(a):
    a.pv = 175
    PS = 8192 + 64
    Q = 2; KA = 8; KB = 9; VA = 10; MX = 12
    ME = 16; MD = 32; SB = 48; KF = 80; NM = 96; OA = 112; P = 128; VF = 136; T = 152; PK = 160
    kernel_start(a, 'att2_kernel')
    a('s_mov_b32 s3, 0')
    a('s_branch Latt_common')
    kernel_start(a, 'att1_kernel')
    a('s_mov_b32 s3, 1')
    a.label('Latt_common')
    ksrd(a, 20, KA_WS, WS_SIZE)
    ksrd(a, 36, KA_WG, D * F * 2)
    ksrd(a, 40, KA_WU, D * F * 2)
    ksrd(a, 44, KA_WD, D * F * 2)
    a('s_cmp_ge_u32 s2, 256')
    a('s_cbranch_scc1 Latt_end')
    wave_lane(a)
    a('s_and_b32 s11, s2, 7')
    a('s_lshr_b32 s12, s2, 3')
    a('s_lshr_b32 s13, s12, 3')
    a('s_lshl2_add_u32 s13, s11, s13')
    a('s_and_b32 s14, s12, 7')
    a('s_lshr_b32 s15, s13, 1')
    a('s_mul_i32 s15, s15, 5')
    a('s_and_b32 s16, s13, 1')
    a('s_mul_i32 s17, s16, 3')
    a('s_add_u32 s17, s17, s15')
    a('s_lshl_b32 s17, s17, 15')
    a('s_add_u32 s18, s15, 2')
    a('s_lshl_b32 s18, s18, 15')
    a('s_lshl2_add_u32 s19, s14, s10')
    a('s_sub_u32 s24, s19, 4')
    a('s_cmp_lt_u32 s19, 4')
    a('s_cselect_b32 s19, s19, s24')
    a('s_cselect_b32 s30, 1, 0')
    a('s_lshl_b32 s19, s19, 10')
    a(f's_add_u32 s19, s19, {80*PLANE}')
    a('s_add_u32 s24, s17, s19')
    a('s_add_u32 s25, s18, s19')
    a('s_lshl3_add_u32 s26, s14, s10')
    a('s_lshl_b32 s26, s26, 9')
    a('s_add_u32 s27, s17, s26')
    a('s_lshl3_add_u32 s28, s16, s18')
    a('s_add_u32 s28, s28, s26')
    a('s_lshl_b32 s29, s10, 10')
    a('v_lshlrev_b32 v1, 4, v0')
    a('v_and_b32 v14, 31, v0')
    a('v_lshrrev_b32 v15, 5, v0')
    a('v_lshlrev_b32 v11, 4, v14')
    a(f'v_lshl_add_u32 v{T}, v15, 15, v11')
    for i in range(2, 6): a(f'v_mov_b32 v{T+i}, 0')
    a(f'v_mov_b32 v{Q+4}, {hx(ONES2)}')
    a(f'v_mov_b32 v{Q+5}, {hx(ONES2)}')
    a('s_waitcnt lgkmcnt(0)')
    stamp(a, 1)
    for kv in range(2):
        for pl in range(3):
            a(f's_add_u32 m0, s29, {(3*kv+pl)*PS}')
            src = 's25' if pl == 2 else 's24'
            off = kv * 80 * PLANE + (PLANE if pl == 1 else 0)
            if off:
                a(f's_add_u32 s31, {src}, {off}'); src = 's31'
            a(f'buffer_load_dwordx4 v1, s[20:23], {src} offen lds')
        if kv == 0:
            a(f'buffer_load_dwordx4 {vr(Q,4)}, v{T}, s[20:23], s27 offen')
            a('s_mov_b32 exec_hi, 0')
            a(f'buffer_load_dwordx2 {vr(Q+4,2)}, v11, s[20:23], s28 offen')
            a('s_mov_b32 exec_hi, -1')
    a('s_cmp_eq_u32 s30, 1')
    a(f's_cselect_b32 s31, {hx(NEGBIG >> 16)}, 0')
    a(f'v_mov_b32 v{SB}, s31')
    a(f'v_mov_b32 v{SB+1}, 0')
    a(f'v_mov_b32 v{SB+2}, {hx(ONES2)}')
    a(f'v_mov_b32 v{SB+3}, {hx(ONES2)}')
    a('v_add_u32 v12, s29, v1')
    a(f'ds_write_b128 v12, {vr(SB,4)} offset:{6*PS}')
    a('s_lshl3_add_u32 s32, s2, s10')
    a('s_cmp_lt_u32 s32, 1920')
    a('s_cselect_b32 s3, s3, 0')
    a('s_cmp_eq_u32 s3, 0')
    a('s_cbranch_scc1 Latt_nopack')
    a('s_mul_i32 s33, s32, 2731')
    a('s_lshr_b32 s33, s33, 16')
    a('s_mul_i32 s34, s33, 24')
    a('s_sub_u32 s34, s32, s34')
    a(f's_mul_i32 s35, s33, {8*3072}')
    a('s_lshl_b32 s48, s34, 7')
    a('s_add_u32 s35, s35, s48')
    a('v_lshrrev_b32 v12, 3, v0')
    a('v_and_b32 v13, 7, v0')
    a(f'v_mul_u32_u24 v{T+4}, 3072, v12')
    a(f'v_lshl_add_u32 v{T+4}, v13, 4, v{T+4}')
    a('s_mul_i32 s49, s32, 6554')
    a('s_lshr_b32 s49, s49, 16')
    a('s_mul_i32 s50, s49, 10')
    a('s_sub_u32 s50, s32, s50')
    a(f's_mul_i32 s53, s49, {8*1280}')
    a('s_lshl_b32 s48, s50, 7')
    a('s_add_u32 s53, s53, s48')
    a(f'v_mul_u32_u24 v{T+5}, 1280, v12')
    a(f'v_lshl_add_u32 v{T+5}, v13, 4, v{T+5}')
    a(f'v_lshrrev_b32 v{T+1}, 2, v12')
    a(f'v_lshlrev_b32 v{T+1}, 9, v{T+1}')
    a('v_and_b32 v12, 3, v12')
    a(f'v_lshl_add_u32 v{T+1}, v12, 5, v{T+1}')
    a('v_and_b32 v12, 1, v13')
    a(f'v_lshl_add_u32 v{T+1}, v12, 4, v{T+1}')
    a('v_lshrrev_b32 v13, 1, v13')
    a('s_mov_b32 s48, 40960')
    a(f'v_mad_u32_u24 v{T+2}, v13, s48, v{T+1}')
    a('s_mov_b32 s48, 49152')
    a(f'v_mad_u32_u24 v{T+3}, v13, s48, v{T+1}')
    for (blk, cb, sz, base, dst) in ((33, 34, 40960, WS_PG, 34), (49, 50, 49152, WS_PD, 50)):
        a(f's_mul_i32 s{dst}, s{cb}, {4*sz}')
        a(f's_and_b32 s48, s{blk}, 3')
        a('s_lshl_b32 s48, s48, 7')
        a(f's_add_u32 s{dst}, s{dst}, s48')
        a(f's_lshr_b32 s48, s{blk}, 2')
        a('s_lshl_b32 s48, s48, 10')
        a(f's_add_u32 s{dst}, s{dst}, s48')
        a(f's_add_u32 s{dst}, s{dst}, {hx(base)}')
    a('s_add_u32 s33, s34, 20480')
    a.label('Latt_nopack')
    a('s_cmp_lg_u32 s10, 0')
    a('s_cbranch_scc1 Latt_nozero')
    a('s_cmp_ge_u32 s2, 192')
    a('s_cbranch_scc1 Latt_nozero')
    a('s_cmp_ge_u32 s2, 96')
    a('s_cselect_b32 s48, -1, 0')
    a('v_mov_b32 v12, s48')
    a('s_lshl_b32 s48, s2, 8')
    a(f's_add_u32 s48, s48, {hx(WS_ST)}')
    a('v_lshlrev_b32 v13, 2, v0')
    a('buffer_store_dword v12, v13, s[20:23], s48 offen sc1')
    a.label('Latt_nozero')
    a('s_lshl_b32 s48, s10, 9')
    a(f'v_mul_u32_u24 v12, {PS}, v15')
    a(f'v_add3_u32 v{KA}, v12, v11, s48')
    a('s_lshl3_add_u32 s51, s16, s48')
    a(f's_add_u32 s51, s51, {2*PS}')
    a(f's_add_u32 s52, s48, {6*PS}')
    a(f'v_mov_b32 v12, s51')
    a(f'v_mov_b32 v13, s52')
    a('v_cmp_eq_u32 vcc, 0, v15')
    a('v_cndmask_b32 v12, v13, v12, vcc')
    a(f'v_add_u32 v{KB}, v12, v11')
    a('v_and_b32 v12, 1, v0')
    a('v_lshlrev_b32 v12, 3, v12')
    a('v_bfe_u32 v13, v0, 1, 1')
    a(f'v_mul_u32_u24 v13, {PS}, v13')
    a(f'v_add3_u32 v12, v12, v13, s48')
    a(f'v_add_u32 v12, {3*PS}, v12')
    a(f's_add_u32 s51, s51, {3*PS}')
    a('s_add_u32 s52, s52, 8')
    a(f'v_mov_b32 v13, s51')
    a(f'v_mov_b32 v{VA}, s52')
    a(f'v_and_b32 v{VA+1}, 3, v0')
    a(f'v_cmp_eq_u32 vcc, 0, v{VA+1}')
    a(f'v_cndmask_b32 v13, v{VA}, v13, vcc')
    a(f'v_and_b32 v{VA+1}, 16, v0')
    a(f'v_cmp_eq_u32 vcc, 0, v{VA+1}')
    a('v_cndmask_b32 v12, v13, v12, vcc')
    a('v_bfe_u32 v13, v0, 2, 2')
    a('v_lshl_add_u32 v13, v15, 2, v13')
    a(f'v_lshl_add_u32 v{VA}, v13, 4, v12')
    a('v_lshlrev_b32 v12, 2, v15')
    a('v_sub_u32 v12, v14, v12')
    a(f'v_mov_b32 v13, {hx(NEGBIG)}')
    for v in range(16):
        kk = 8 * (v // 4) + v % 4
        sp = 54 + 2 * (v % 4)
        a(f'v_cmp_le_i32 s[{sp}:{sp+1}], {kk}, v12')
        if v % 4 == 3:
            for u in range(v - 3, v + 1):
                sp = 54 + 2 * (u % 4)
                a(f'v_cndmask_b32 v{MD+u}, v13, 0, s[{sp}:{sp+1}]')
                a(f'v_cndmask_b32 v{ME+u}, 0, v13, s[{sp}:{sp+1}]')
    a(f's_add_u32 s27, s27, {hx(WS_O)}')
    a(f's_add_u32 s28, s28, {hx(WS_O)}')
    a('v_lshlrev_b32 v11, 4, v14')
    a(f'v_mov_b32 v{T+7}, {hx(f2u(2.0**100))}')
    a('s_mov_b32 s62, 0')
    stamp(a, 2)
    a('s_waitcnt vmcnt(0) lgkmcnt(0)')
    stamp(a, 3)
    a('s_barrier')
    stamp(a, 4)
    cstamp(a, 12)
    def kread(t, b):
        a(f'ds_read_b128 {vr(KF+8*b,4)}, v{KA} offset:{512*t}')
        a(f'ds_read_b64 {vr(KF+8*b+4,2)}, v{KB} offset:{512*t}')
    def vread(t, b):
        for i in range(2):
            for j in range(2):
                a(f'ds_read_b64_tr_b16 {vr(VF+8*b+4*i+2*j,2)}, v{VA} offset:{512*t+(16*i+8*j)*16}')
    def m1(b, sb, c): a(f'v_mfma_f32_32x32x16_bf16 {vr(sb,16)}, {vr(KF+8*b,4)}, {vr(Q,4)}, {c}')
    def m2(b, sb): a(f'v_mfma_f32_32x32x8_bf16 {vr(sb,16)}, {vr(KF+8*b+4,2)}, {vr(Q+4,2)}, {vr(sb,16)}')
    def mxall(sb, first):
        for i in range(8):
            r = sb + 2 * i
            if first and i < 2: a(f'v_max_f32 v{MX+i}, v{r}, v{r+1}')
            else: a(f'v_max3_f32 v{MX+i%2}, v{r}, v{r+1}, v{MX+i%2}')
    order = [8, 0, 1, 2, 3, 4, 5, 6, 7]
    kread(8, 0); kread(0, 1); vread(8, 0)
    a('s_cmp_eq_u32 s3, 0')
    a('s_cbranch_scc1 Latt_nopack1')
    a(f'buffer_load_dwordx4 {vr(PK,4)}, v{T+4}, s[36:39], s35 offen')
    a(f'buffer_load_dwordx4 {vr(PK+4,4)}, v{T+4}, s[40:43], s35 offen')
    a(f'buffer_load_dwordx4 {vr(PK+8,4)}, v{T+5}, s[44:47], s53 offen')
    a.label('Latt_nopack1')
    a('s_waitcnt lgkmcnt(6)')
    m1(0, SB, vr(MD, 16)); m2(0, SB)
    mxall(SB, True)
    a.label('Latt_havemax')
    a(f'v_max_f32 v{MX}, v{MX}, v{MX+1}')
    a(f'v_mov_b32 v{MX+1}, v{MX}')
    a(f'v_permlane32_swap_b32 v{MX}, v{MX+1}')
    a(f'v_max_f32 v{MX}, v{MX}, v{MX+1}')
    for v in range(16): a(f'v_sub_f32 v{ME+v}, v{ME+v}, v{MX}')
    for v in range(16): a(f'v_sub_f32 v{SB+v}, v{SB+v}, v{MX}')
    stamp(a, 5)
    def pv(b, i, first):
        c = '0' if first else vr(OA, 16)
        a(f'v_mfma_f32_32x32x16_bf16 {vr(OA,16)}, {vr(VF+8*b+4*i,4)}, {vr(P+4*i,4)}, {c}')
    for n in range(9):
        sb = SB + 16 * (n % 2); sn = SB + 16 * ((n + 1) % 2)
        nx = n + 1 < 9
        for i in range(2): a(f'v_exp_f32 v{sb+i}, v{sb+i}')
        if n > 0: pv((n - 1) % 2, 1, False)
        if nx: vread(order[n + 1], (n + 1) % 2)
        for i in range(2, 5): a(f'v_exp_f32 v{sb+i}, v{sb+i}')
        if nx:
            a('s_waitcnt lgkmcnt(4)')
            m1((n + 1) % 2, sn, vr(ME, 16) if n == 0 else vr(NM, 16))
        else: a('s_waitcnt lgkmcnt(0)')
        if n + 2 < 9: kread(order[n + 2], n % 2)
        for i in range(5, 8): a(f'v_exp_f32 v{sb+i}, v{sb+i}')
        for i in range(4): a(f'v_cvt_pk_bf16_f32 v{P+i}, v{sb+2*i}, v{sb+2*i+1}')
        if nx: m2((n + 1) % 2, sn)
        for i in range(8, 12): a(f'v_exp_f32 v{sb+i}, v{sb+i}')
        pv(n % 2, 0, n == 0)
        if n == 0:
            for v in range(16): a(f'v_sub_f32 v{NM+v}, 0, v{MX}')
        if n == 7:
            a('s_cmp_eq_u32 s3, 0')
            a('s_cbranch_scc1 Latt_nopack2')
            a('s_waitcnt vmcnt(0)')
            a(f'buffer_store_dwordx4 {vr(PK,4)}, v{T+2}, s[20:23], s34 offen sc1')
            a(f'buffer_store_dwordx4 {vr(PK+4,4)}, v{T+2}, s[20:23], s33 offen sc1')
            a(f'buffer_store_dwordx4 {vr(PK+8,4)}, v{T+3}, s[20:23], s50 offen sc1')
            a.label('Latt_nopack2')
        for i in range(12, 16): a(f'v_exp_f32 v{sb+i}, v{sb+i}')
        for i in range(4, 8): a(f'v_cvt_pk_bf16_f32 v{P+i}, v{sb+2*i}, v{sb+2*i+1}')
    pv(0, 1, False)
    stamp(a, 6)
    cstamp(a, 13)
    a(f'v_add_f32 v{T+1}, |v{OA}|, v{OA+12}')
    a(f'v_add_f32 v{T+6}, |v{OA+1}|, |v{OA+2}|')
    for v in range(3, 12): a(f'v_add_f32 v{T+1+5*(v%2)}, |v{OA+v}|, v{T+1+5*(v%2)}')
    a(f'v_add_f32 v{T+1}, v{T+1}, v{T+6}')
    a(f'v_cmp_nlt_f32 vcc, v{T+1}, v{T+7}')
    a('s_cmp_eq_u32 s62, 1')
    a('s_cbranch_scc1 Latt_out')
    a('s_cbranch_vccnz Latt_exact')
    a.label('Latt_out')
    a(f'v_rcp_f32 v{T+1}, v{OA+12}')
    for v in range(12): a(f'v_mul_f32 v{OA+v}, v{OA+v}, v{T+1}')
    for v in range(6): a(f'v_cvt_pk_bf16_f32 v{P+v}, v{OA+2*v}, v{OA+2*v+1}')
    a(f'v_permlane32_swap_b32 v{P}, v{P+2}')
    a(f'v_permlane32_swap_b32 v{P+1}, v{P+3}')
    a(f'buffer_store_dwordx4 {vr(P,4)}, v{T}, s[20:23], s27 offen sc1')
    a('s_mov_b32 exec_hi, 0')
    a(f'buffer_store_dwordx2 {vr(P+4,2)}, v11, s[20:23], s28 offen sc1')
    endpgm(a)
    a.label('Latt_exact')
    a('s_mov_b32 s62, 1')
    a('s_mov_b32 s3, 0')
    for v in range(16): a(f'v_add_f32 v{ME+v}, v{ME+v}, v{MX}')
    for n, t in enumerate([0, 1, 2, 3, 4, 5, 6, 7, 8]):
        kread(t, 0)
        a('s_waitcnt lgkmcnt(0)')
        m1(0, SB, vr(ME, 16) if t == 0 else vr(MD, 16) if t == 8 else '0'); m2(0, SB)
        mxall(SB, n == 0)
    kread(0, 1); vread(8, 0)
    a('s_branch Latt_havemax')
    a.label('Latt_end')
    a('s_endpgm')
    for k in ('att1_kernel', 'att2_kernel'): reg_kernel(k, 256, 512, 7 * PS, 176, 64)
```

```python
from common import *
NGU, NDN, NEL = 96, 40, 64
def xn_pair(a, lo, M, t):
    a(f'v_pk_add_f32 {vr(t+2,2)}, {vr(lo,2)}, {vr(M,2)} op_sel_hi:[1,0] neg_lo:[0,1] neg_hi:[0,1]')
    a(f'v_cvt_pk_bf16_f32 v{t}, v{t+2}, v{t+3}')
    unpack(a, t + 2, t)
    a(f'v_pk_mul_f32 {vr(t+2,2)}, {vr(t+2,2)}, {vr(M,2)} op_sel:[0,1] op_sel_hi:[1,1]')
    a(f'v_cvt_pk_bf16_f32 v{t}, v{t+2}, v{t+3}')

def gen_ffn(a):
    a.pv = 127
    L_LIST = 0
    L_CNT = 8192 + 128
    L_GM = L_CNT + 64
    L_SEL = L_GM + 64
    L_RED = L_SEL + 128
    L_W = (L_RED + 8192 + 1023) // 1024 * 1024
    LDS = L_W + 49152
    ST = 16; KEY = 40; T = 48; XD = 84
    kernel_start(a, 'ffn2_kernel')
    ksrd(a, 20, KA_OUT, S * D * 2)
    a('s_mov_b32 s3, 0')
    a('s_branch Lffn_common')
    kernel_start(a, 'ffn1_kernel')
    ksrd(a, 20, KA_WS, WS_SIZE)
    a(f's_mov_b32 s3, {hx(WS_X2)}')
    a.label('Lffn_common')
    ksrd(a, 24, KA_WS, WS_SIZE)
    ksrd(a, 32, KA_WR, D * 2)
    a(f's_cmp_ge_u32 s2, {NGU+NDN+NEL}')
    a('s_cbranch_scc1 Lffn_end')
    a('v_mov_b32 v15, v0')
    wave_lane(a)
    a('v_lshlrev_b32 v2, 5, v15')
    a('v_mul_u32_u24 v3, 20, v0')
    a('v_lshlrev_b32 v1, 4, v0')
    a('v_mov_b32 v5, 0')
    a(f's_mov_b32 s28, {hx(WS_ST)}')
    a(f's_mov_b32 s29, {hx(WS_ST+8192)}')
    a(f's_mov_b32 s30, {hx(WS_ST+16384)}')
    for i in range(4): a(f'v_mov_b32 v{T+8+i}, 0')
    for i in range(2): a(f'ds_write_b128 v2, {vr(T+8,4)} offset:{L_LIST+16*i}')
    a('s_mov_b64 exec, 0xfff')
    a(f'ds_write_b128 v1, {vr(T+8,4)} offset:8192')
    a('s_mov_b64 exec, -1')
    a('s_waitcnt lgkmcnt(0)')
    stamp(a, 1)
    for k in range(3):
        for i in range(2): a(f'buffer_load_dwordx4 {vr(ST+8*k+4*i,4)}, v2, s[24:27], s{28+k} offen offset:{16*i}')
    a(f'buffer_load_dwordx4 {vr(T,4)}, v3, s[32:35], 0 offen')
    a(f'buffer_load_dword v{T+4}, v3, s[32:35], 0 offen offset:16')
    a(f's_cmp_ge_u32 s2, {NGU+NDN}')
    a('s_cbranch_scc1 Lffn_eload')
    a(f's_cmp_ge_u32 s2, {NGU}')
    a('s_cbranch_scc1 Lffn_dload')
    a('s_mul_i32 s11, s2, 40960')
    a('s_mul_i32 s12, s10, 5120')
    a('s_add_u32 s11, s11, s12')
    a(f's_add_u32 s11, s11, {hx(WS_PG)}')
    a('s_mul_i32 s13, s10, 10240')
    a(f's_add_u32 s13, s13, {L_W}')
    for m in range(2):
        a(f's_add_u32 m0, s13, {5120*m}')
        for i in range(4): a(f'buffer_load_dwordx4 v1, s[24:27], s11 offen offset:{1024*i} lds')
        a(f's_add_u32 m0, s13, {5120*m+4096}')
        a('s_add_u32 s12, s11, 4096')
        a('buffer_load_dwordx4 v1, s[24:27], s12 offen lds')
        if m == 0: a('s_add_u32 s11, s11, 20480')
    a('s_waitcnt vmcnt(10)')
    a('s_branch Lffn_keys')
    a.label('Lffn_dload')
    a(f's_sub_u32 s14, s2, {NGU}')
    a('s_mul_i32 s11, s14, 49152')
    a('s_mul_i32 s13, s10, 12288')
    a('s_add_u32 s11, s11, s13')
    a(f's_add_u32 s11, s11, {hx(WS_PD)}')
    a(f's_add_u32 s13, s13, {L_W}')
    for m in range(3):
        a(f's_add_u32 m0, s13, {4096*m}')
        for i in range(4): a(f'buffer_load_dwordx4 v1, s[24:27], s11 offen offset:{1024*i} lds')
        if m < 2: a('s_add_u32 s11, s11, 4096')
    a('s_waitcnt vmcnt(12)')
    a('s_branch Lffn_keys')
    a.label('Lffn_eload')
    a(f's_sub_u32 s11, s2, {NGU+NDN}')
    a('s_and_b32 s14, s11, 3')
    a('s_lshl_b32 s14, s14, 9')
    a('s_lshr_b32 s12, s11, 2')
    a('s_lshl4_add_u32 s14, s12, s14')
    a('s_mul_i32 s11, s11, 40960')
    a(f's_add_u32 s12, s11, {hx(WS_X1)}')
    a('v_lshrrev_b32 v4, 4, v15')
    a('v_mul_u32_u24 v5, 1280, v4')
    a('v_and_b32 v6, 15, v15')
    a('v_lshl_add_u32 v5, v6, 4, v5')
    a('v_add_u32 v4, s14, v4')
    a('v_lshlrev_b32 v6, 2, v4')
    for h in range(2):
        for k in range(2): a(f'buffer_load_dword v{10+2*h+k}, v6, s[24:27], s{28+k} offen offset:{1024*h}')
    for h in range(2):
        for i in range(5): a(f'buffer_load_dwordx4 {vr(XD+20*h+4*i,4)}, v5, s[24:27], s12 offen offset:{256*i}')
        if h == 0: a('s_add_u32 s12, s12, 20480')
    a('s_waitcnt vmcnt(14)')
    a.label('Lffn_keys')
    stamp(a, 2)
    inv = hx(f2u(1.0 / D))
    for i in range(5): unpack(a, T + 8 + 2 * i, T + i)
    for j in range(8): a(f'v_mul_f32 v{ST+j}, {inv}, v{ST+j}')
    a(f'v_pk_add_f32 {vr(T+8,2)}, {vr(T+8,2)}, {vr(T+10,2)}')
    a(f'v_pk_add_f32 {vr(T+12,2)}, {vr(T+12,2)}, {vr(T+14,2)}')
    a(f'v_pk_add_f32 {vr(T+8,2)}, {vr(T+8,2)}, {vr(T+16,2)}')
    a(f'v_mov_b32 v{T+2}, {hx(f2u(1e-5))}')
    a(f'v_pk_add_f32 {vr(T+8,2)}, {vr(T+8,2)}, {vr(T+12,2)}')
    a(f's_mov_b32 s15, {inv}')
    a(f'v_add_f32 v{T}, v{T+8}, v{T+9}')
    rows = [f'v_fma_f32 v{ST+8+j}, v{ST+8+j}, s15, v{T+2}' for j in range(8)]
    rows += [f'v_fma_f32 v{ST+8+j}, -v{ST+j}, v{ST+j}, v{ST+8+j}' for j in range(8)]
    rows += [f'v_max_f32 v{ST+8+j}, v{T+2}, v{ST+8+j}' for j in range(8)]
    red = [[f'v_add_f32_dpp v{T}, v{T}, v{T} row_ror:{r} row_mask:0xf bank_mask:0xf'] for r in (8, 4, 2, 1)]
    red += [[f'v_mov_b32 v{T+1}, v{T}'], [f'v_permlane16_swap_b32 v{T}, v{T+1}', f'v_add_f32 v{T}, v{T}, v{T+1}', f'v_mov_b32 v{T+1}, v{T}'],
            [f'v_permlane32_swap_b32 v{T}, v{T+1}', f'v_add_f32 v{T}, v{T}, v{T+1}']]
    for i, x in enumerate(rows):
        a(x)
        if i % 3 == 2 and red:
            for y in red.pop(0): a(y)
    assert not red
    for j in range(8): a(f'v_rsq_f32 v{ST+8+j}, v{ST+8+j}')
    for j in range(8): a(f'v_fma_f32 v{KEY+j}, -v{ST+j}, v{T}, v{ST+16+j}')
    a('v_lshlrev_b32 v8, 3, v15')
    a('v_sub_u32 v8, 2047, v8')
    a('s_mov_b32 s15, 0xfffff800')
    for j in range(8): a(f'v_mul_f32 v{KEY+j}, v{KEY+j}, v{ST+8+j}')
    for j in range(8): a(f'v_ashrrev_i32 v{ST+j}, 31, v{KEY+j}')
    for j in range(8): a(f'v_subrev_u32 v{ST+8+j}, {j}, v8')
    for j in range(8): a(f'v_or_b32 v{ST+j}, 0x80000000, v{ST+j}')
    for j in range(8): a(f'v_xor_b32 v{KEY+j}, v{KEY+j}, v{ST+j}')
    for j in range(8): a(f'v_and_or_b32 v{KEY+j}, v{KEY+j}, s15, v{ST+8+j}')
    a(f'v_max3_u32 v{T}, v{KEY}, v{KEY+1}, v{KEY+2}')
    a(f'v_max3_u32 v{T+1}, v{KEY+3}, v{KEY+4}, v{KEY+5}')
    a(f'v_max3_u32 v{T}, v{T}, v{KEY+6}, v{KEY+7}')
    a('v_lshrrev_b32 v7, 5, v15')
    a(f'v_max_u32 v{T}, v{T}, v{T+1}')
    a('v_lshlrev_b32 v7, 2, v7')
    a('v_mov_b32 v9, 0')
    for r in (8, 4, 2, 1):
        a(f'v_max_u32_dpp v{T}, v{T}, v{T} row_ror:{r} row_mask:0xf bank_mask:0xf')
    a(f'v_mov_b32 v{T+1}, v{T}')
    a(f'v_permlane16_swap_b32 v{T}, v{T+1}')
    a(f'v_max_u32 v{T}, v{T}, v{T+1}')
    a(f'ds_write_b32 v7, v{T} offset:{L_GM}')
    a('s_waitcnt lgkmcnt(0)')
    a('s_barrier')
    stamp(a, 3)
    a(f'ds_read_b128 {vr(T,4)}, v9 offset:{L_GM}')
    a(f'ds_read_b128 {vr(T+4,4)}, v9 offset:{L_GM+16}')
    a('s_waitcnt lgkmcnt(0)')
    a(f'v_min3_u32 v{T}, v{T}, v{T+1}, v{T+2}')
    a(f'v_min3_u32 v{T+3}, v{T+3}, v{T+4}, v{T+5}')
    a(f'v_min3_u32 v{T}, v{T}, v{T+6}, v{T+7}')
    a(f'v_min_u32 v{T}, v{T}, v{T+3}')
    for j in range(8): a(f'v_cmp_ge_u32 s[{64+2*j}:{65+2*j}], v{KEY+j}, v{T}')
    for j in range(8): a(f's_bcnt1_i32_b64 s{80+j}, s[{64+2*j}:{65+2*j}]')
    a('s_mov_b32 s88, 0')
    for j in range(8): a(f's_add_u32 s{89+j}, s{88+j}, s{80+j}')
    a(f'v_mov_b32 v{T+1}, s96')
    a('s_mov_b64 exec, 1')
    a(f'ds_add_rtn_u32 v{T+2}, v9, v{T+1} offset:{L_CNT}')
    a('s_mov_b64 exec, -1')
    for j in range(8):
        a(f'v_mbcnt_lo_u32_b32 v{ST+j}, s{64+2*j}, 0')
        a(f'v_mbcnt_hi_u32_b32 v{ST+j}, s{65+2*j}, v{ST+j}')
        a(f'v_add_lshl_u32 v{ST+j}, v{ST+j}, s{88+j}, 2')
    a('s_waitcnt lgkmcnt(0)')
    a(f'v_readfirstlane_b32 s97, v{T+2}')
    a('s_lshl_b32 s97, s97, 2')
    for j in range(8):
        a(f's_mov_b64 exec, s[{64+2*j}:{65+2*j}]')
        a(f'v_add_u32 v{ST+j}, s97, v{ST+j}')
        a(f'ds_write_b32 v{ST+j}, v{KEY+j} offset:{L_LIST}')
    a('s_mov_b64 exec, -1')
    a('v_lshlrev_b32 v7, 2, v0')
    a('s_lshl_b32 s17, s10, 5')
    a(f's_add_u32 s17, s17, {L_SEL}')
    a('s_mov_b32 s12, 0')
    a('s_waitcnt lgkmcnt(0)')
    a('s_barrier')
    stamp(a, 4)
    C = 48
    a(f'ds_read_b32 v14, v9 offset:{L_CNT}')
    a.label('Lffn_rank_outer')
    a(f'ds_read_b32 v{ST}, v7 offset:{L_LIST}')
    a(f'v_mov_b32 v{ST+1}, 0')
    a(f'v_mov_b32 v{ST+2}, 0')
    a(f'v_mov_b32 v{ST+3}, 0')
    a('s_mov_b32 s97, 0')
    a.label('Lffn_rank_inner')
    for i in range(8): a(f'ds_read_b128 {vr(C+4*i,4)}, v{ST+2} offset:{L_LIST+16*i}')
    a(f'v_add_u32 v{ST+2}, 128, v{ST+2}')
    for q in range(4):
        a(f's_waitcnt lgkmcnt({6-2*q})')
        for i in range(8): a(f'v_cmp_gt_u32 s[{64+2*i}:{65+2*i}], v{C+8*q+i}, v{ST}')
        for i in range(8): a(f'v_addc_co_u32 v{ST+1+2*(i%2)}, vcc, 0, v{ST+1+2*(i%2)}, s[{64+2*i}:{65+2*i}]')
    a('v_readfirstlane_b32 s96, v14')
    a('s_add_u32 s97, s97, 32')
    a('s_cmp_lt_u32 s97, s96')
    a('s_cbranch_scc1 Lffn_rank_inner')
    a(f'v_add_u32 v{ST+1}, v{ST+1}, v{ST+3}')
    a(f'v_cmp_gt_u32 vcc, 8, v{ST+1}')
    a(f'v_lshl_add_u32 v{ST+1}, v{ST+1}, 2, s17')
    a('s_and_saveexec_b64 s[18:19], vcc')
    a(f'ds_write_b32 v{ST+1}, v{ST}')
    a('s_mov_b64 exec, s[18:19]')
    a('v_add_u32 v7, 256, v7')
    a('s_add_u32 s12, s12, 64')
    a('s_cmp_lt_u32 s12, s96')
    a('s_cbranch_scc1 Lffn_rank_outer')
    a(f's_cmp_ge_u32 s2, {NGU+NDN}')
    a('s_cbranch_scc1 Lffn_elem')
    a('v_and_b32 v10, 7, v0')
    a('v_lshl_add_u32 v7, v10, 2, s17')
    a('ds_read_b32 v11, v7')
    a('v_lshrrev_b32 v13, 4, v0')
    a('v_lshl_add_u32 v6, v0, 3, s13')
    a(f's_cmp_ge_u32 s2, {NGU}')
    a('s_cbranch_scc1 Lffn_down')

    XF = 16; WFg = 40; WFu = 60; G = 80; U = 84; M = 4
    for i in range(20): a(f'v_mov_b32 v{XF+i}, {hx(ONES2)}')
    a('s_mul_i32 s11, s10, 320')
    a(f's_add_u32 s11, s11, {hx(WS_X1)}')
    a('s_waitcnt lgkmcnt(0)')
    stamp(a, 5)
    a('v_and_b32 v8, 2047, v11')
    a('v_sub_u32 v8, 2047, v8')
    a('v_bfe_u32 v12, v8, 4, 4')
    a('v_lshlrev_b32 v12, 7, v12')
    a('v_and_or_b32 v12, v8, 15, v12')
    a('v_lshrrev_b32 v9, 8, v8')
    a('v_lshl_add_u32 v12, v9, 4, v12')
    a('v_mul_u32_u24 v7, 1280, v12')
    a('v_lshl_add_u32 v7, v13, 4, v7')
    a('v_lshlrev_b32 v8, 2, v8')
    a('buffer_load_dword v2, v8, s[24:27], s28 offen')
    a('buffer_load_dword v3, v8, s[24:27], s29 offen')
    a('s_mov_b32 exec_lo, 0x00ff00ff')
    a('s_mov_b32 exec_hi, 0x00ff00ff')
    for s in range(5): a(f'buffer_load_dwordx4 {vr(XF+4*s,4)}, v7, s[24:27], s11 offen offset:{64*s}')
    a('s_mov_b64 exec, -1')
    a('s_waitcnt vmcnt(7)')
    for s in range(5):
        for j in range(2):
            a(f'ds_read_b64_tr_b16 {vr(WFg+4*s+2*j,2)}, v6 offset:{1024*s+512*j}')
            a(f'ds_read_b64_tr_b16 {vr(WFu+4*s+2*j,2)}, v6 offset:{5120+1024*s+512*j}')
    a('v_and_b32 v7, 15, v0')
    a('v_lshlrev_b32 v7, 6, v7')
    a('v_lshl_add_u32 v7, v13, 4, v7')
    a('s_lshl_b32 s12, s10, 11')
    a('v_add_u32 v7, s12, v7')
    a('v_lshrrev_b32 v9, 3, v0')
    a('v_lshlrev_b32 v8, 6, v10')
    a('v_lshl_add_u32 v8, v9, 3, v8')
    a('s_waitcnt vmcnt(5)')
    ln_scalars(a, 2, 3, M, M + 1, 14)
    a('s_waitcnt vmcnt(0) lgkmcnt(0)')
    stamp(a, 6)
    for s in range(5):
        a(f'v_mfma_f32_16x16x32_bf16 {vr(G,4)}, {vr(WFg+4*s,4)}, {vr(XF+4*s,4)}, {"0" if s == 0 else vr(G,4)}')
        a(f'v_mfma_f32_16x16x32_bf16 {vr(U,4)}, {vr(WFu+4*s,4)}, {vr(XF+4*s,4)}, {"0" if s == 0 else vr(U,4)}')
    for i in range(8): a(f'v_mov_b32_dpp v{WFg+i}, v{G+i} row_newbcast:8 row_mask:0xf bank_mask:0xf')
    for i in range(8): a(f'v_fma_f32 v{G+i}, -v{M}, v{WFg+i}, v{G+i}')
    a(f'ds_write_b128 v7, {vr(G,4)} offset:{L_RED}')
    a(f'ds_write_b128 v7, {vr(U,4)} offset:{L_RED+1024}')
    a('s_waitcnt lgkmcnt(0)')
    a('s_barrier')
    stamp(a, 7)
    a('s_cmp_lg_u32 s10, 0')
    a('s_cbranch_scc1 Lffn_fin')
    for w in range(4):
        for m in range(2): a(f'ds_read_b64 {vr(XF+8*m+2*w,2)}, v8 offset:{L_RED+2048*w+1024*m}')
    a('v_lshrrev_b32 v7, 2, v9')
    a('v_lshlrev_b32 v7, 7, v7')
    a('v_lshl_add_u32 v7, v10, 4, v7')
    a('v_and_b32 v9, 3, v9')
    a('v_lshl_add_u32 v7, v9, 2, v7')
    a('s_lshl_b32 s11, s2, 8')
    a(f's_add_u32 s11, s11, {hx(WS_H)}')
    a('s_waitcnt lgkmcnt(0)')
    for m in range(2):
        a(f'v_pk_add_f32 {vr(XF+8*m,2)}, {vr(XF+8*m,2)}, {vr(XF+8*m+2,2)}')
        a(f'v_pk_add_f32 {vr(XF+8*m+4,2)}, {vr(XF+8*m+4,2)}, {vr(XF+8*m+6,2)}')
    for m, d in ((0, G), (1, U)): a(f'v_pk_add_f32 {vr(d,2)}, {vr(XF+8*m,2)}, {vr(XF+8*m+4,2)}')
    for d in (G, U): a(f'v_pk_mul_f32 {vr(d,2)}, {vr(d,2)}, {vr(M,2)} op_sel:[0,1] op_sel_hi:[1,1]')
    for d in (G, U): a(f'v_cvt_pk_bf16_f32 v{d+2}, v{d}, v{d+1}')
    for d in (G, U): unpack(a, d, d + 2)
    for i in range(2): a(f'v_mul_f32 v{G+2+i}, {NL2E}, v{G+i}')
    for i in range(2): a(f'v_exp_f32 v{G+2+i}, v{G+2+i}')
    for i in range(2): a(f'v_add_f32 v{G+2+i}, 1.0, v{G+2+i}')
    for i in range(2): a(f'v_rcp_f32 v{G+2+i}, v{G+2+i}')
    for i in range(2): a(f'v_mul_f32 v{G+i}, v{G+i}, v{G+2+i}')
    a(f'v_cvt_pk_bf16_f32 v{G+2}, v{G}, v{G+1}')
    unpack(a, G, G + 2)
    for i in range(2): a(f'v_mul_f32 v{G+i}, v{G+i}, v{U+i}')
    a(f'v_cvt_pk_bf16_f32 v{G+2}, v{G}, v{G+1}')
    a(f'v_min_u32 v{G+2}, -2, v{G+2}')
    a(f'buffer_store_dword v{G+2}, v7, s[24:27], s11 offen sc0 sc1')
    endpgm(a)

    a.label('Lffn_down')
    WD = 16; HF = 64; Y = 112; X = 120; TT = 8
    a('s_lshl_b32 s11, s14, 5')
    a('s_add_u32 s16, s11, s3')
    a(f's_add_u32 s11, s11, {hx(WS_X1)}')
    a('s_waitcnt lgkmcnt(0)')
    stamp(a, 5)
    a('v_and_b32 v8, 2047, v11')
    a('v_sub_u32 v8, 2047, v8')
    a('v_bfe_u32 v12, v8, 4, 4')
    a('v_lshlrev_b32 v12, 7, v12')
    a('v_and_or_b32 v12, v8, 15, v12')
    a('v_lshrrev_b32 v9, 8, v8')
    a('v_lshl_add_u32 v12, v9, 4, v12')
    a('v_mul_u32_u24 v14, 1280, v12')
    a('v_lshl_add_u32 v14, v13, 3, v14')
    a('v_lshlrev_b32 v8, 2, v8')
    a('buffer_load_dword v2, v8, s[24:27], s28 offen')
    a('buffer_load_dword v3, v8, s[24:27], s29 offen')
    a(f'buffer_load_dwordx2 {vr(X,2)}, v14, s[24:27], s11 offen')
    a('s_waitcnt vmcnt(3)')
    for s in range(12):
        for j in range(2): a(f'ds_read_b64_tr_b16 {vr(WD+4*s+2*j,2)}, v6 offset:{1024*s+512*j}')
    a('v_lshlrev_b32 v7, 7, v13')
    a('v_lshl_add_u32 v7, v10, 4, v7')
    a('s_mul_i32 s11, s10, 6144')
    a(f's_add_u32 s11, s11, {hx(WS_H)}')
    a('s_add_u32 s12, s11, 4096')
    a('v_and_b32 v11, 0xfffff800, v11')
    a('v_ashrrev_i32 v8, 31, v11')
    a('v_not_b32 v8, v8')
    a('v_or_b32 v8, 0x80000000, v8')
    a('v_xor_b32 v11, v11, v8')
    rbf16(a, 11, 11)
    a(f'v_mul_f32 v11, {NL2E}, v11')
    a('v_exp_f32 v11, v11')
    a('v_add_f32 v11, 1.0, v11')
    a('v_rcp_f32 v11, v11')
    rbf16(a, 124, 11)
    a('s_waitcnt vmcnt(0)')
    ln_scalars(a, 2, 3, M, M + 1, 6)
    for i in range(2):
        unpack(a, Y + 4 + 2 * i, X + i)
        xn_pair(a, Y + 4 + 2 * i, M, TT)
        a(f'v_mov_b32 v{X+2+i}, v{TT}')
    a('s_mov_b32 s15, 0')
    a.label('Lffn_poll')
    for s in range(12):
        a(f'buffer_load_dwordx4 {vr(HF+4*s,4)}, v7, s[24:27], s{11+s//8} offen offset:{(512*s)%4096} sc0 sc1')
    a('s_add_u32 s15, s15, 1')
    for s in range(12):
        a(f's_waitcnt vmcnt({11-s})')
        r = HF + 4 * s
        if s == 0: a(f'v_max_u32 v8, v{r}, v{r+1}')
        else: a(f'v_max3_u32 v8, v{r}, v{r+1}, v8')
        a(f'v_max3_u32 v8, v{r+2}, v{r+3}, v8')
    a('v_cmp_eq_u32 vcc, -1, v8')
    a('s_cmp_gt_u32 s15, 0x40000')
    a('s_cbranch_scc1 Lffn_go')
    a('s_cbranch_vccnz Lffn_poll')
    a.label('Lffn_go')
    a('s_waitcnt lgkmcnt(0)')
    stamp(a, 6)
    for s in range(12):
        a(f'v_mfma_f32_16x16x32_bf16 {vr(Y,4)}, {vr(WD+4*s,4)}, {vr(HF+4*s,4)}, {"0" if s == 0 else vr(Y,4)}')
    a('s_lshl_b32 s12, s10, 10')
    a('v_add_u32 v7, s12, v1')
    a(f'ds_write_b128 v7, {vr(Y,4)} offset:{L_RED}')
    a('s_waitcnt lgkmcnt(0)')
    a('s_barrier')
    stamp(a, 7)
    a('s_cmp_lg_u32 s10, 0')
    a('s_cbranch_scc1 Lffn_fin')
    for w in range(1, 4): a(f'ds_read_b128 {vr(WD+4*w,4)}, v1 offset:{L_RED+1024*w}')
    a('s_waitcnt lgkmcnt(0)')
    for i in range(2):
        y = Y + 2 * i
        a(f'v_pk_add_f32 {vr(y,2)}, {vr(y,2)}, {vr(WD+4+2*i,2)}')
        a(f'v_pk_add_f32 {vr(WD+8+2*i,2)}, {vr(WD+8+2*i,2)}, {vr(WD+12+2*i,2)}')
        a(f'v_pk_add_f32 {vr(y,2)}, {vr(y,2)}, {vr(WD+8+2*i,2)}')
        a(f'v_cvt_pk_bf16_f32 v{TT}, v{y}, v{y+1}')
        unpack(a, y, TT)
        a(f'v_pk_mul_f32 {vr(y,2)}, {vr(y,2)}, v[124:125] op_sel_hi:[1,0]')
        a(f'v_cvt_pk_bf16_f32 v{TT}, v{y}, v{y+1}')
        unpack(a, y, TT)
        unpack(a, TT + 2, X + 2 + i)
        a(f'v_pk_add_f32 {vr(y,2)}, {vr(y,2)}, {vr(TT+2,2)}')
        a(f'v_cvt_pk_bf16_f32 v{TT}, v{y}, v{y+1}')
        unpack(a, y, TT)
        a(f'v_pk_add_f32 {vr(y,2)}, {vr(y,2)}, {vr(Y+4+2*i,2)}')
        a(f'v_cvt_pk_bf16_f32 v{X+i}, v{y}, v{y+1}')
    a('s_mov_b32 exec_lo, 0x00ff00ff')
    a('s_mov_b32 exec_hi, 0x00ff00ff')
    a(f'buffer_store_dwordx2 {vr(X,2)}, v14, s[20:23], s16 offen sc1')
    endpgm(a)

    a.label('Lffn_elem')
    a('v_mov_b32 v9, s17')
    a(f'ds_read_b128 {vr(ST,4)}, v9')
    a(f'ds_read_b128 {vr(ST+4,4)}, v9 offset:16')
    a('s_add_u32 s11, s11, s3')
    a('v_sub_u32 v4, 2047, v4')
    a('s_waitcnt vmcnt(0) lgkmcnt(0)')
    stamp(a, 5)
    for i in range(8): a(f'v_and_b32 v{ST+i}, 2047, v{ST+i}')
    a('s_mov_b32 s12, 0')
    a.label('Lffn_eloop')
    ln_scalars(a, 10, 11, 2, 3, 6)
    for i in range(8):
        a(f'v_cmp_ne_u32 vcc, v{ST+i}, v4')
        a('s_and_b64 exec, exec, vcc')
    a('s_cbranch_execz Lffn_eskip')
    for i in range(0, 20, 2):
        tt = [48, 56]
        for k in range(2): unpack(a, tt[k] + 4, XD + i + k)
        for k in range(2): a(f'v_pk_add_f32 {vr(tt[k]+2,2)}, {vr(tt[k]+4,2)}, v[2:3] op_sel_hi:[1,0] neg_lo:[0,1] neg_hi:[0,1]')
        for k in range(2): a(f'v_cvt_pk_bf16_f32 v{tt[k]}, v{tt[k]+2}, v{tt[k]+3}')
        for k in range(2): unpack(a, tt[k] + 2, tt[k])
        for k in range(2): a(f'v_pk_mul_f32 {vr(tt[k]+2,2)}, {vr(tt[k]+2,2)}, v[2:3] op_sel:[0,1] op_sel_hi:[1,1]')
        for k in range(2): a(f'v_cvt_pk_bf16_f32 v{tt[k]}, v{tt[k]+2}, v{tt[k]+3}')
        for k in range(2): unpack(a, tt[k] + 2, tt[k])
        for k in range(2): a(f'v_pk_add_f32 {vr(tt[k]+2,2)}, {vr(tt[k]+2,2)}, {vr(tt[k]+4,2)}')
        for k in range(2): a(f'v_cvt_pk_bf16_f32 v{64+i+k}, v{tt[k]+2}, v{tt[k]+3}')
        if i % 4 == 2: a(f'buffer_store_dwordx4 {vr(64+i-2,4)}, v5, s[20:23], s11 offen offset:{256*(i//4)} sc1')
    a.label('Lffn_eskip')
    a('s_mov_b64 exec, -1')
    a('s_cmp_lg_u32 s12, 0')
    a('s_cbranch_scc1 Lffn_fin')
    a('s_mov_b32 s12, 1')
    a('s_add_u32 s11, s11, 20480')
    a('v_subrev_u32 v4, 256, v4')
    a('v_mov_b32 v10, v12')
    a('v_mov_b32 v11, v13')
    for i in range(20): a(f'v_mov_b32 v{XD+i}, v{XD+20+i}')
    a('s_branch Lffn_eloop')
    a.label('Lffn_fin')
    endpgm(a)
    a.label('Lffn_end')
    a('s_endpgm')
    for k in ('ffn1_kernel', 'ffn2_kernel'): reg_kernel(k, NGU + NDN + NEL, 256, LDS, 128, 100)
```

```python
from common import *
XO_ = os.environ.get('XO', '')
def gen_op(a):
    sc = '' if 'P' in XO_ else ' sc1'
    a.pv = 191
    RA = 12; XO = 14; WO = 15
    AF = 16; ACC = 96; WF = 116; XR = 156; WR = 166; T = 176
    kernel_start(a, 'op2_kernel')
    ksrd(a, 20, KA_WS, WS_SIZE)
    a(f's_mov_b32 s3, {hx(WS_X2)}')
    a('s_branch Lop_common')
    kernel_start(a, 'op1_kernel')
    ksrd(a, 20, KA_X, S * D * 2)
    a('s_mov_b32 s3, 0')
    a.label('Lop_common')
    ksrd(a, 24, KA_WS, WS_SIZE)
    ksrd(a, 40, KA_WR, D * 2)
    a('s_cmp_ge_u32 s2, 256')
    a('s_cbranch_scc1 Lop_end')
    wave_lane(a)
    a('s_and_b32 s11, s2, 7')
    a('s_lshr_b32 s12, s2, 3')
    a('s_lshr_b32 s13, s11, 1')
    a('s_and_b32 s17, s12, 7')
    a('s_lshl3_add_u32 s13, s13, s17')
    a('s_and_b32 s14, s11, 1')
    a('s_lshr_b32 s18, s12, 3')
    a('s_lshl2_add_u32 s14, s14, s18')
    a('s_add_u32 s17, s17, s18')
    mod_small(a, 17, 5, 2)
    a('s_mul_i32 s15, s14, 160')
    a('s_lshl2_add_u32 s16, s13, s10')
    a('s_mul_i32 s19, s10, 5120')
    a('s_mul_i32 s28, s14, 102400')
    a('s_add_u32 s28, s28, s19')
    a(f's_add_u32 s28, s28, {hx(WS_PWO)}')
    a('s_lshl_b32 s29, s16, 8')
    a(f's_add_u32 s29, s29, {hx(WS_O)}')
    a('s_mul_i32 s30, s17, 20480')
    a('s_add_u32 s30, s30, s28')
    a('s_lshl_b32 s31, s17, 19')
    a('s_add_u32 s31, s31, s29')
    a('v_lshlrev_b32 v1, 4, v0')
    a(f'v_and_b32 v{T+4}, 15, v0')
    a(f'v_lshrrev_b32 v{T+5}, 4, v0')
    a(f'v_lshlrev_b32 v2, 15, v{T+5}')
    a(f'v_lshl_add_u32 v2, v{T+4}, 4, v2')
    a(f'v_lshlrev_b32 v{WO}, 4, v{T+5}')
    a(f'v_lshlrev_b32 v4, 3, v{T+5}')
    a(f'v_mul_u32_u24 v3, 1280, v{T+4}')
    a(f'v_add_u32 v{XO}, v3, v{WO}')
    a('v_add_u32 v3, v3, v4')
    a(f'v_mul_u32_u24 v{RA}, 40, v0')
    a(f'v_add_u32 v{RA+1}, {10*5120}, v{RA}')
    a('s_mul_i32 s47, s16, 20480')
    a('s_add_u32 s47, s47, s15')
    a('s_add_u32 s46, s47, s3')
    a(f's_add_u32 s47, s47, {hx(WS_X1)}')
    def loads(p):
        L = []
        for i in range(5):
            if i == 0: pre = [f's_add_u32 m0, s19, {p*20480}']
            elif i == 4: pre = [f's_add_u32 m0, s19, {p*20480+4096}', 's_add_u32 s32, s30, 4096']
            else: pre = []
            L.append(pre + [f'buffer_load_dwordx4 v1, s[24:27], {"s32" if i == 4 else "s30"} offen offset:{(1024*i)%4096} lds'])
        A = []
        for k in range(4):
            A.append([f'buffer_load_dwordx4 {vr(AF+4*(4*p+k),4)}, v2, s[24:27], s31 offen', f's_add_u32 s31, s31, {4*PLANE}'])
        seq = [L[0], A[0], L[1], A[1], L[2], A[2], L[3], A[3], L[4]]
        seq[-1] = seq[-1] + ['s_add_u32 s30, s30, 20480', 's_add_u32 s17, s17, 1', 's_cmp_eq_u32 s17, 5',
                             's_cselect_b32 s30, s28, s30', 's_cselect_b32 s31, s29, s31']
        return seq
    def xloads():
        L = []
        for (r, vo, vo2, srd_, so) in ((XR, XO, 3, 's[20:23]', 's46'), (WR, WO, 4, 's[40:43]', 's15')):
            L.append([f'buffer_load_dwordx4 {vr(r,4)}, v{vo}, {srd_}, {so} offen'])
            L.append([f'buffer_load_dwordx4 {vr(r+4,4)}, v{vo}, {srd_}, {so} offen offset:64'])
            L.append([f'buffer_load_dwordx2 {vr(r+8,2)}, v{vo2}, {srd_}, {so} offen offset:128'])
        return L
    a('s_waitcnt lgkmcnt(0)')
    stamp(a, 1)
    for p in range(2):
        for g in loads(p):
            for x in g: a(x)
    stamp(a, 2)
    def wread(s, t):
        for j in range(2):
            a(f'ds_read_b64_tr_b16 {vr(WF+20*(s%2)+4*t+2*j,2)}, v{RA+s//10} offset:{(s%10)*5120+j*2560+t*8}')
    def mm(s, t):
        c = '0' if s == 0 else vr(ACC + 4 * t, 4)
        a(f'v_mfma_f32_16x16x32_bf16 {vr(ACC+4*t,4)}, {vr(WF+20*(s%2)+4*t,4)}, {vr(AF+4*s,4)}, {c}')
    pend = []
    for s in range(21):
        if s < 20 and s % 4 == 0:
            p = s // 4
            for g in pend:
                for x in g: a(x)
            a(f's_waitcnt vmcnt({9 if p < 4 else 6})')
            a('s_barrier')
            stamp(a, 3 + p)
            pend = loads(p + 2) if p < 3 else xloads() if p == 3 else []
        for t in range(5):
            if s > 0:
                a(f's_waitcnt lgkmcnt({8 if s < 20 else 8 - 2*t})')
                mm(s - 1, t)
            if s < 20: wread(s, t)
            if pend and t % 2 == 0:
                for x in pend.pop(0): a(x)
    stamp(a, 8)
    a('s_waitcnt vmcnt(0)')
    S1, S2, S3 = T + 8, T + 9, T + 10
    for i in range(10):
        acc = ACC + 2 * i
        a(f'v_cvt_pk_bf16_f32 v{T}, v{acc}, v{acc+1}')
        unpack(a, acc, T)
        unpack(a, T + 2, XR + i)
        a(f'v_pk_add_f32 {vr(acc,2)}, {vr(acc,2)}, {vr(T+2,2)}')
        a(f'v_cvt_pk_bf16_f32 v{XR+i}, v{acc}, v{acc+1}')
        if i == 3: a(f'buffer_store_dwordx4 {vr(XR,4)}, v{XO}, s[24:27], s47 offen{sc}')
        if i == 7: a(f'buffer_store_dwordx4 {vr(XR+4,4)}, v{XO}, s[24:27], s47 offen offset:64{sc}')
        if i == 9: a(f'buffer_store_dwordx2 {vr(XR+8,2)}, v3, s[24:27], s47 offen offset:128{sc}')
    A1, A2, A3 = ACC, ACC + 2, ACC + 4
    for i in range(10):
        unpack(a, T, XR + i)
        unpack(a, T + 2, WR + i)
        if i == 0:
            a(f'v_pk_mul_f32 {vr(A2,2)}, {vr(T,2)}, {vr(T,2)}')
            a(f'v_pk_mul_f32 {vr(A3,2)}, {vr(T,2)}, {vr(T+2,2)}')
            a(f'v_mov_b32 v{A1}, v{T}')
            a(f'v_mov_b32 v{A1+1}, v{T+1}')
        else:
            a(f'v_pk_fma_f32 {vr(A2,2)}, {vr(T,2)}, {vr(T,2)}, {vr(A2,2)}')
            a(f'v_pk_fma_f32 {vr(A3,2)}, {vr(T,2)}, {vr(T+2,2)}, {vr(A3,2)}')
            a(f'v_pk_add_f32 {vr(A1,2)}, {vr(A1,2)}, {vr(T,2)}')
    for sv, aa in ((S1, A1), (S2, A2), (S3, A3)):
        a(f'v_add_f32 v{sv}, v{aa}, v{aa+1}')
        a(f'v_add_f32 v{sv+3}, v{aa}, v{aa+1}')
    for sv in (S1, S2, S3): a(f'v_permlane16_swap_b32 v{sv}, v{sv+3}')
    for sv in (S1, S2, S3):
        a(f'v_add_f32 v{sv}, v{sv}, v{sv+3}')
        a(f'v_mov_b32 v{sv+3}, v{sv}')
    for sv in (S1, S2, S3): a(f'v_permlane32_swap_b32 v{sv}, v{sv+3}')
    for sv in (S1, S2, S3): a(f'v_add_f32 v{sv}, v{sv}, v{sv+3}')
    a(f'v_cmp_eq_u32 vcc, 1, v{T+5}')
    a(f'v_cndmask_b32 v{S1}, v{S1}, v{S2}, vcc')
    a(f'v_cmp_eq_u32 vcc, 2, v{T+5}')
    a(f'v_cndmask_b32 v{S1}, v{S1}, v{S3}, vcc')
    a(f'v_lshlrev_b32 v{T}, 13, v{T+5}')
    a(f'v_lshl_add_u32 v{T}, v{T+4}, 2, v{T}')
    a('s_and_b32 s18, s16, 7')
    a('s_lshl_b32 s18, s18, 10')
    a('s_lshr_b32 s19, s16, 3')
    a('s_lshl_b32 s19, s19, 6')
    a('s_add_u32 s18, s18, s19')
    a(f's_add_u32 s18, s18, {hx(WS_ST)}')
    a('s_mov_b32 exec_hi, 0xffff')
    a(f'buffer_atomic_add_f32 v{S1}, v{T}, s[24:27], s18 offen')
    endpgm(a)
    a.label('Lop_end')
    a('s_endpgm')
    for k in ('op1_kernel', 'op2_kernel'): reg_kernel(k, 256, 256, 102400, 192, 100)
```

```python
from common import *
X = os.environ.get('XQ', '')
M16 = True
def gen_qkv(a):
    a.pv = 167
    SLOT = 32768; NSLOT = 3
    MR = NSLOT * SLOT; CS = MR + 1024; PUB = CS + 512
    kernel_start(a, 'qkv2_kernel')
    ksrd(a, 20, KA_WS, WS_SIZE)
    a(f's_mov_b32 s3, {hx(WS_X2)}')
    a('s_branch Lqkv_common')
    kernel_start(a, 'qkv1_kernel')
    ksrd(a, 20, KA_X, S * D * 2)
    a('s_mov_b32 s3, 0')
    a.label('Lqkv_common')
    ksrd(a, 24, KA_WQKV, D * 3 * D * 2)
    ksrd(a, 28, KA_WS, WS_SIZE)
    a('s_cmp_ge_u32 s2, 256')
    a('s_cbranch_scc1 Lqkv_end')
    wave_lane(a)
    a('s_and_b32 s11, s2, 7')
    a('s_lshr_b32 s12, s2, 3')
    a('s_lshr_b32 s13, s11, 1')
    a('s_and_b32 s15, s12, 3')
    a('s_lshl2_add_u32 s13, s13, s15')
    a('s_and_b32 s14, s11, 1')
    a('s_lshr_b32 s16, s12, 2')
    a('s_lshl3_add_u32 s14, s14, s16')
    a(f's_mov_b32 s40, {SLOT}')
    a('s_cmp_lt_u32 s10, 4')
    a('s_cbranch_scc1 Lqkv_comp')
    a('s_cmp_eq_u32 s10, 8')
    a('s_cbranch_scc1 Lqkv_help')
    a('s_cmp_eq_u32 s14, 15')
    a('s_cbranch_scc1 Lqkv_pack')

    VA = 2; VW = 6
    a('s_mul_i32 s15, s15, 3')
    a('s_add_u32 s15, s15, s16')
    a('s_add_u32 s15, s15, s11')
    mod_small(a, 15, 10, 2)
    a('s_sub_u32 s16, s10, 4')
    a('v_lshrrev_b32 v10, 3, v0')
    a('v_lshrrev_b32 v11, 4, v0')
    a('v_and_b32 v12, 7, v0')
    a('v_xor_b32 v12, v12, v11')
    a('s_lshl_b32 s17, s16, 5')
    a('v_add_u32 v10, s17, v10')
    a('v_mul_u32_u24 v10, 1280, v10')
    a(f'v_lshl_add_u32 v{VA}, v12, 4, v10')
    a('v_xor_b32 v12, 4, v12')
    a(f'v_lshl_add_u32 v{VA+1}, v12, 4, v10')
    a(f'v_add_u32 v{VA+1}, {10240-1024}, v{VA+1}')
    a(f'v_add_u32 v{VA+2}, {2*(10240-1024)}, v{VA}')
    a(f'v_add_u32 v{VA+3}, {2*(10240-1024)}, v{VA+1}')
    a('v_and_b32 v12, 15, v0')
    a(f'v_lshlrev_b32 v13, {1 if M16 else 2}, v11')
    a('v_xor_b32 v12, v12, v13')
    a('s_lshl_b32 s17, s16, 4')
    a('v_add_u32 v10, s17, v11')
    a('v_mul_u32_u24 v10, 3840, v10')
    a('v_lshl_add_u32 v10, v12, 4, v10')
    a('s_lshl_b32 s17, s14, 8')
    a(f'v_add_u32 v{VW}, s17, v10')
    for i in range(1, 4): a(f'v_add_u32 v{VW+i}, {i*(4*3840-1024)}, v{VW}')
    if M16:
        for i in (2, 3): a(f'v_xor_b32 v{VW+i}, 128, v{VW+i}')
    a('s_mul_i32 s18, s13, 163840')
    a('s_add_u32 s18, s18, s3')
    a('s_lshl_b32 s36, s15, 7')
    a('s_add_u32 s36, s36, s18')
    a(f's_mul_i32 s37, s15, {64*3840}')
    a('s_lshl_b32 s17, s16, 12')
    a('s_mov_b32 s38, s17')
    a('s_mov_b32 s33, -2')
    a('s_waitcnt lgkmcnt(0)')
    stamp(a, 1)
    a('s_branch Lqkv_issue')
    a.label('Lqkv_lloop')
    a('s_waitcnt vmcnt(8)')
    a('s_barrier')
    a.label('Lqkv_issue')
    a('s_mov_b32 m0, s38')
    if 'D' not in X:
      for i in range(4): a(f'buffer_load_dwordx4 v{VA+i}, s[20:23], s36 offen offset:{1024*i} lds')
    a('s_add_u32 m0, s38, 0x4000')
    if 'D' not in X:
      for i in range(4): a(f'buffer_load_dwordx4 v{VW+i}, s[24:27], s37 offen offset:{1024*i} lds')
    a('s_add_u32 s36, s36, 128')
    a(f's_add_u32 s37, s37, {64*3840}')
    a(f's_cmp_eq_u32 s37, {640*3840}')
    a('s_cselect_b32 s36, s18, s36')
    a('s_cselect_b32 s37, 0, s37')
    a(f's_add_u32 s38, s38, {SLOT}')
    a(f's_cmp_ge_u32 s38, {NSLOT*SLOT}')
    a('s_cselect_b32 s38, s17, s38')
    a('s_add_u32 s33, s33, 1')
    a('s_cmp_eq_u32 s33, -1')
    a('s_cbranch_scc1 Lqkv_issue')
    a('s_cmp_lt_u32 s33, 8')
    a('s_cbranch_scc1 Lqkv_lloop')
    a('s_waitcnt vmcnt(8)')
    a('s_barrier')
    a('s_waitcnt vmcnt(0)')
    a('s_barrier')
    endpgm(a)

    a.label('Lqkv_help')
    if 'I' not in X:
        a('s_lshl_b32 s17, s12, 10')
        a('s_cmp_ge_u32 s17, Lcode_end-Lcode_start-1024')
        a('s_cbranch_scc1 Lqkv_nopf')
        a('s_getpc_b64 s[48:49]')
        a.label('Lqkv_pc')
        a('s_sub_u32 s48, s48, Lqkv_pc-Lcode_start')
        a('s_subb_u32 s49, s49, 0')
        a('v_lshl_add_u32 v2, v0, 4, s17')
        a('global_load_dwordx4 v[4:7], v2, s[48:49]')
        a.label('Lqkv_nopf')
    a('v_lshlrev_b32 v1, 4, v0')
    a('s_lshl_b32 s18, s13, 11')
    a(f's_add_u32 s18, s18, {hx(WS_MR)}')
    a('s_lshl_b32 s19, s13, 7')
    a(f's_add_u32 s19, s19, {hx(WS_EP)}')
    a('v_mov_b32 v9, 0')
    a(f'v_lshlrev_b32 v3, 3, v0')
    a(f'v_add_u32 v3, {MR}, v3')
    a(f'v_mov_b32 v8, {PUB}')
    a('s_waitcnt lgkmcnt(0)')
    a('s_cmp_eq_u32 s14, 15')
    a('s_cbranch_scc1 Lqkv_fin')
    a('s_barrier')
    a('ds_read_b64 v[10:11], v8')
    for i in range(7): a('s_barrier')
    a('s_mov_b32 s33, 0')
    a('s_cmp_lt_u32 s14, 5')
    a(f's_cselect_b32 s17, {hx(QSCALE)}, 1.0')
    for i in range(2): a(f'buffer_load_dwordx4 {vr(12+4*i,4)}, v1, s[28:31], s18 offen offset:{1024*i} sc0 sc1')
    a('s_barrier')
    a('s_barrier')
    a.label('Lqkv_hpoll')
    a('s_waitcnt vmcnt(0) lgkmcnt(0)')
    a('v_xor_b32 v14, v14, v10')
    a('v_xor_b32 v15, v15, v11')
    a('v_xor_b32 v18, v18, v10')
    a('v_xor_b32 v19, v19, v11')
    a('v_or3_b32 v14, v14, v15, v18')
    a('v_or_b32 v14, v14, v19')
    a('v_cmp_ne_u32 vcc, 0, v14')
    a('s_cbranch_vccz Lqkv_hgo')
    a('s_add_u32 s33, s33, 1')
    a('s_cmp_gt_u32 s33, 0x40000')
    a('s_cbranch_scc1 Lqkv_hgo')
    for i in range(2): a(f'buffer_load_dwordx4 {vr(12+4*i,4)}, v1, s[28:31], s18 offen offset:{1024*i} sc0 sc1')
    a('s_branch Lqkv_hpoll')
    a.label('Lqkv_hgo')
    a('v_mul_f32 v13, s17, v13')
    a('v_mul_f32 v17, s17, v17')
    a('ds_write_b64 v3, v[12:13]')
    a('ds_write_b64 v3, v[16:17] offset:512')
    a('s_waitcnt lgkmcnt(0)')
    a('s_barrier')
    a('s_cmp_lg_u32 s14, 0')
    a('s_cbranch_scc1 Lqkv_fin')
    a('s_mov_b64 exec, 1')
    a('buffer_store_dword v10, v9, s[28:31], s19 offen sc0 sc1')
    a.label('Lqkv_fin')
    endpgm(a)

    comp16(a, SLOT, NSLOT, MR, CS, PUB)

    a.label('Lqkv_pack')
    a('s_cmp_lg_u32 s3, 0')
    a('s_cbranch_scc1 Lqkv_end')
    a('s_waitcnt lgkmcnt(0)')
    ksrd(a, 24, KA_WO, D * D * 2)
    a('s_sub_u32 s15, s10, 4')
    a('s_mul_i32 s15, s15, 800')
    a('v_add_u32 v1, s15, v0')
    a('s_mul_i32 s16, s13, 51200')
    a('s_mul_i32 s17, s13, 40')
    a('s_mov_b32 s18, 102400')
    a(f's_mov_b32 s19, {hx(WS_PWO)}')
    a('v_lshlrev_b32 v3, 4, v1')
    a('s_waitcnt lgkmcnt(0)')
    for n in range(13):
        if n == 12: a('s_mov_b32 exec_hi, 0')
        a(f'buffer_load_dwordx4 {vr(20+4*n,4)}, v3, s[24:27], s16 offen offset:{(1024*n)%4096}')
        if n % 4 == 3: a('s_add_u32 s16, s16, 4096')
    a('s_mov_b32 exec_hi, -1')
    a('s_barrier')
    for n in range(13):
        a(f'v_add_u32 v2, {64*n}, v1')
        a('v_mul_u32_u24 v4, 3277, v2')
        a('v_lshrrev_b32 v4, 18, v4')
        a('v_mul_u32_u24 v5, 80, v4')
        a('v_sub_u32 v5, v2, v5')
        a('v_mul_u32_u24 v6, 205, v5')
        a('v_lshrrev_b32 v6, 11, v6')
        a('v_mul_u32_u24 v7, 10, v6')
        a('v_sub_u32 v5, v5, v7')
        a('v_add_u32 v4, s17, v4')
        a('v_and_b32 v7, 0xffffffe3, v4')
        a('v_bfe_u32 v8, v4, 3, 2')
        a('v_lshl_or_b32 v7, v8, 2, v7')
        a('v_bfe_u32 v8, v4, 2, 1')
        a('v_lshl_or_b32 v7, v8, 4, v7')
        a('v_mul_u32_u24 v7, 160, v7')
        a('v_mad_u32_u24 v7, v6, s18, v7')
        a('v_and_b32 v8, 3, v5')
        a('v_mul_u32_u24 v8, 40, v8')
        a('v_lshrrev_b32 v9, 2, v5')
        a('v_lshl_add_u32 v9, v9, 4, v8')
        a('v_add_u32 v8, v8, v9')
        a('v_cmp_gt_u32 vcc, 8, v5')
        a('v_cndmask_b32 v8, v8, v9, vcc')
        a('v_add_u32 v10, v7, v8')
        a('v_cndmask_b32 v8, 40, 8, vcc')
        a('v_add_u32 v11, v10, v8')
        if n == 0: a('s_waitcnt vmcnt(0)')
        if n == 12: a('s_mov_b32 exec_hi, 0')
        a(f'buffer_store_dwordx2 {vr(20+4*n,2)}, v10, s[28:31], s19 offen')
        a(f'buffer_store_dwordx2 {vr(22+4*n,2)}, v11, s[28:31], s19 offen')
    endpgm(a)
    a.label('Lqkv_end')
    a('s_endpgm')
    for k in ('qkv1_kernel', 'qkv2_kernel'): reg_kernel(k, 256, 576, NSLOT * SLOT + 2048, 168, 100)

def comp16(a, SLOT, NSLOT, MR, CS, PUB):
    a.label('Lqkv_comp')
    a('s_lshl4_add_u32 s16, s13, s14')
    a('s_lshl2_add_u32 s16, s16, s10')
    a('s_lshl_b32 s43, s16, 5')
    a(f's_add_u32 s43, s43, {hx(WS_MR)}')
    a('s_mul_i32 s16, s16, 2560')
    a('s_add_u32 s16, s16, s3')
    a('v_lshrrev_b32 v2, 5, v0')
    a('v_mul_u32_u24 v3, 1280, v2')
    a('v_and_b32 v4, 31, v0')
    a('v_lshl_add_u32 v5, v4, 4, v3')
    a('v_lshl_add_u32 v6, v4, 3, v3')
    a('s_waitcnt lgkmcnt(0)')
    a('buffer_load_dwordx4 v[100:103], v5, s[20:23], s16 offen')
    a('buffer_load_dwordx4 v[104:107], v5, s[20:23], s16 offen offset:512')
    a('buffer_load_dwordx2 v[108:109], v6, s[20:23], s16 offen offset:1024')
    a('s_lshl_b32 s16, s13, 7')
    a(f's_add_u32 s16, s16, {hx(WS_EP)}')
    a('v_mov_b32 v123, 0')
    a('buffer_load_dword v120, v123, s[28:31], s16 offen')
    a('v_lshlrev_b32 v122, 4, v2')
    ACC = 16; CSA = 80; BUF = 88; AX = 2; AW = 4; ONE = 8
    CSR = 88; MRR = 96; T = 104
    a('s_and_b32 s16, s10, 1')
    a('s_lshr_b32 s17, s10, 1')
    a('v_and_b32 v12, 15, v0')
    a('v_lshrrev_b32 v13, 4, v0')
    a('v_bfe_u32 v14, v0, 1, 3')
    a('v_xor_b32 v14, v14, v13')
    a('v_lshlrev_b32 v14, 4, v14')
    a('v_lshl_add_u32 v14, v12, 7, v14')
    a('s_lshl_b32 s18, s17, 13')
    a(f'v_add_u32 v{AX}, s18, v14')
    a(f'v_xor_b32 v{AX+1}, 64, v{AX}')
    a('v_bfe_u32 v14, v0, 2, 3')
    a('s_lshl1_add_u32 s18, s16, s17')
    a('s_lshl_b32 s19, s18, 1')
    a('v_xor_b32 v15, s19, v14')
    a('v_lshlrev_b32 v15, 5, v15')
    a('v_bfe_u32 v14, v0, 2, 2')
    a('v_lshl_add_u32 v15, v14, 8, v15')
    a('v_lshl_add_u32 v15, v13, 11, v15')
    a('v_and_b32 v14, 3, v0')
    a('v_lshl_add_u32 v15, v14, 3, v15')
    a(f'v_add_u32 v{AW}, 0x4000, v15')
    for c in range(1, 4): a(f'v_xor_b32 v{AW+c}, {32*c}, v{AW}')
    for i in range(4): a(f'v_mov_b32 v{ONE+i}, {hx(ONES2)}')
    for i in range(72): a(f'v_mov_b32 v{ACC+i}, 0')
    a('s_lshl_b32 s19, s14, 2')
    a('s_add_u32 s19, s19, s18')
    a('s_lshl_b32 s19, s19, 17')
    a('s_lshl1_add_u32 s41, s13, s17')
    a('s_lshl_b32 s41, s41, 10')
    a('s_add_u32 s41, s41, s19')
    a('s_xor_b32 s42, s41, 0x20000')
    def rd(b, s):
        base = BUF + 32 * b
        xs = [f'ds_read_b128 {vr(base+4*tt,4)}, v{AX+s} offset:{2048*tt}' for tt in range(4)]
        ws = [[f'ds_read_b64_tr_b16 {vr(base+16+4*ct+2*j,2)}, v{AW+ct} offset:{(32*s+4*j)*256}' for j in range(2)] for ct in range(4)]
        return ws[0] + xs + ws[1] + ws[2] + ws[3]
    def mf(b):
        base = BUF + 32 * b
        L = []
        for ct in range(4):
            wneed = 2 if ct == 0 else 6 + 2 * ct
            if ct < 2 and 'C' not in X:
                L.append((f'v_mfma_f32_16x16x32_bf16 {vr(CSA+4*ct,4)}, {vr(base+16+4*ct,4)}, {vr(ONE,4)}, {vr(CSA+4*ct,4)}', wneed))
            for tt in range(4):
                acc = vr(ACC + (ct * 4 + tt) * 4, 4)
                L.append((f'v_mfma_f32_16x16x32_bf16 {acc}, {vr(base+16+4*ct,4)}, {vr(base+4*tt,4)}, {acc}', max(wneed, 3 + tt)))
        return L
    def kstep(b, R, start, extra={}, full=False):
        M = mf(b); R = list(R); issued = 0; have = 0
        if full:
            a('s_waitcnt lgkmcnt(0)'); have = 12
        for i, (m, need) in enumerate(M):
            if need > have:
                a(f's_waitcnt lgkmcnt({min(15, 12 - need + issued)})'); have = need
            a(m)
            for x in extra.get(i, []): a(x)
            if i >= start and R:
                a(R.pop(0)); issued += 1
        assert not R
    a('s_mov_b32 s33, 0')
    a('s_mov_b32 s34, 0')
    for i in range(10):
        if i in (0, 4, 8): a(f's_waitcnt vmcnt({3-i//4})')
        u = 110 + 2 * (i % 2)
        unpack(a, u, 100 + i)
        if i == 0:
            a(f'v_pk_mul_f32 v[116:117], {vr(u,2)}, {vr(u,2)}')
            a(f'v_pk_add_f32 v[114:115], {vr(u,2)}, 0')
        else:
            a(f'v_pk_fma_f32 v[116:117], {vr(u,2)}, {vr(u,2)}, v[116:117]')
            a(f'v_pk_add_f32 v[114:115], {vr(u,2)}, v[114:115]')
    a('v_add_f32 v114, v114, v115')
    a('v_add_f32 v116, v116, v117')
    for r in (8, 4, 2, 1):
        for v in (114, 116): a(f'v_add_f32_dpp v{v}, v{v}, v{v} row_ror:{r} row_mask:0xf bank_mask:0xf')
    for v in (114, 116): a(f'v_mov_b32 v{v+1}, v{v}')
    for v in (114, 116): a(f'v_permlane16_swap_b32 v{v}, v{v+1}')
    for v in (114, 116): a(f'v_add_f32 v{v}, v{v}, v{v+1}')
    ln_scalars(a, 114, 116, 118, 119, 110)
    a('s_waitcnt vmcnt(0)')
    a(f'v_add_u32 v120, {hx(EPK)}, v120')
    a('v_not_b32 v121, v120')
    a('s_mov_b32 exec_lo, 1')
    a('s_mov_b32 exec_hi, 1')
    a('buffer_store_dwordx4 v[118:121], v122, s[28:31], s43 offen sc0 sc1')
    a(f'v_mov_b32 v123, {PUB}')
    a('ds_write_b64 v123, v[120:121]')
    a('s_mov_b64 exec, -1')
    a('s_waitcnt lgkmcnt(0)')
    stamp(a, 2)
    a('s_barrier')
    a('s_cmp_eq_u32 s14, 15')
    a('s_cbranch_scc1 Lqkv_fin')
    stamp(a, 3)
    cstamp(a, 12)
    for x in rd(0, 0): a(x)
    a.label('Lqkv_cloop')
    ex = {0: ['s_add_u32 s34, s34, 1'], 1: [f's_cmp_eq_u32 s34, {NSLOT}'], 2: [f's_cselect_b32 s35, {hx(-(NSLOT-1)*SLOT)}, s40'], 3: ['s_cselect_b32 s34, 0, s34'],
          4: ['s_add_u32 s33, s33, 1'], 5: ['s_cmp_eq_u32 s33, 10']}
    for i in range(3): ex[12 + i] = [f'v_add_u32 v{AX+2*i}, s35, v{AX+2*i}', f'v_add_u32 v{AX+2*i+1}, s35, v{AX+2*i+1}']
    kstep(0, rd(1, 1), 0, extra=ex)
    a('s_cbranch_scc1 Lqkv_cdone')
    kstep(1, rd(0, 0), 2, extra={1: ['s_barrier']}, full=True)
    a('s_branch Lqkv_cloop')
    a.label('Lqkv_cdone')
    stamp(a, 4)
    cstamp(a, 13)
    a('s_waitcnt lgkmcnt(0)')
    for m, _ in mf(1): a(m)
    a('s_lshl_b32 s18, s18, 7')
    a(f's_add_u32 s18, s18, {CS}')
    a(f'v_lshl_add_u32 v{AX}, v13, 4, s18')
    a('s_mov_b32 exec_lo, 0x10001')
    a('s_mov_b32 exec_hi, 0x10001')
    for c in range(2): a(f'ds_write_b128 v{AX}, {vr(CSA+4*c,4)} offset:{64*c}')
    a('s_mov_b64 exec, -1')
    a(f'v_xor_b32 v{AX+1}, 128, v{AX}')
    a('s_lshl_b32 s18, s17, 9')
    a(f's_add_u32 s18, s18, {MR}')
    a(f'v_lshl_add_u32 v{AX+2}, v12, 3, s18')
    a('v_and_b32 v1, 31, v0')
    a('v_lshlrev_b32 v1, 4, v1')
    a('v_lshrrev_b32 v14, 5, v0')
    a('v_lshl_add_u32 v1, v14, 15, v1')
    a('s_waitcnt lgkmcnt(0)')
    a('s_barrier')
    stamp(a, 5)
    for tt in range(4): a(f'ds_read_b64 {vr(MRR+2*tt,2)}, v{AX+2} offset:{128*tt}')
    for c in range(2): a(f'ds_read_b128 {vr(CSR+4*c,4)}, v{AX+1} offset:{64*c}')
    a('s_waitcnt lgkmcnt(2)')
    n = 0
    for ct in range(4):
        cs = CSA + 4 * ct
        if ct == 2: a('s_waitcnt lgkmcnt(0)')
        for tp in range(2):
            R = T + 4 * (n % 4); n += 1
            for k in range(2):
                tt = 2 * tp + k
                acc = ACC + (ct * 4 + tt) * 4
                for p in range(2):
                    a(f'v_pk_fma_f32 {vr(acc+2*p,2)}, {vr(cs+2*p,2)}, {vr(MRR+2*tt,2)}, {vr(acc+2*p,2)} op_sel_hi:[1,0,1] neg_lo:[0,1,0] neg_hi:[0,1,0]')
                for p in range(2):
                    a(f'v_pk_mul_f32 {vr(acc+2*p,2)}, {vr(acc+2*p,2)}, {vr(MRR+2*tt,2)} op_sel:[0,1] op_sel_hi:[1,1]')
                a(f'v_cvt_pk_bf16_f32 v{R+2*k}, v{acc}, v{acc+1}')
                a(f'v_cvt_pk_bf16_f32 v{R+2*k+1}, v{acc+2}, v{acc+3}')
            a(f'v_permlane16_swap_b32 v{R}, v{R+2}')
            a(f'v_permlane16_swap_b32 v{R+1}, v{R+3}')
            a(f'buffer_store_dwordx4 {vr(R,4)}, v1, s[28:31], s{41+ct//2} offen offset:{512*tp} sc1')
        if ct % 2 == 0: a(f's_add_u32 s{41+ct//2}, s{41+ct//2}, {2*PLANE}')
    endpgm(a)
```

```python
from common import *
import common
from k_qkv import gen_qkv
from k_att import gen_att
from k_op import gen_op
from k_ffn import gen_ffn, NGU, NDN, NEL

def emit(order, gens, path):
    a = Asm()
    a.raw('.p2align 8'); a.label('Lcode_start')
    for g in gens: g(a)
    gen_prof(a)
    a.label('Lcode_end')
    a('s_endpgm')
    body = insert_nops(a.L)
    out = []
    for k in order:
        g, b, lds = LAUNCH[k]
        out.append(f'; @launch kernel={k} grid=({g},1,1) block=({b},1,1) lds={lds}')
    out.append('.amdgcn_target "amdgcn-amd-amdhsa--gfx950"')
    out.append('.text')
    out += body
    out.append('.section .rodata,"a"')
    for (k, v, s) in kernels:
        out.append('.p2align 6')
        out.append(f'.amdhsa_kernel {k}')
        out.append(f'  .amdhsa_next_free_vgpr {v}')
        out.append(f'  .amdhsa_next_free_sgpr {s}')
        out.append(f'  .amdhsa_accum_offset {(v+3)//4*4}')
        out.append('  .amdhsa_group_segment_fixed_size 0')
        out.append('  .amdhsa_kernarg_size 88')
        out.append('  .amdhsa_user_sgpr_count 2')
        out.append('  .amdhsa_user_sgpr_kernarg_segment_ptr 1')
        out.append('  .amdhsa_system_sgpr_workgroup_id_x 1')
        out.append('.end_amdhsa_kernel')
    open(path, 'w').write('\n'.join(out) + '\n')

if __name__ == '__main__':
    path = sys.argv[1] if len(sys.argv) > 1 else 'interleave_layers__sliding_block__moe_arch_mod__prompt.s'
    emit(['qkv1_kernel', 'att1_kernel', 'op1_kernel', 'ffn1_kernel', 'qkv2_kernel', 'att2_kernel', 'op2_kernel', 'ffn2_kernel'],
         [gen_qkv, gen_att, gen_op, gen_ffn], path)
```

```python
import sys, struct, math, os
sys.path.insert(0, os.path.dirname(os.path.abspath(__file__)))
from asmlib import *

S, D, H, DH, F = 2048, 640, 32, 20, 1536
KA_X, KA_WQKV, KA_WO, KA_BX, KA_WR, KA_WG, KA_WU, KA_WD, KA_OUT, KA_DBG, KA_WS = [8 * i for i in range(11)]
PLANE = 2048 * 16
WS_QKV = 0
WS_O = WS_QKV + 240 * PLANE
WS_X1 = WS_O + 80 * PLANE
WS_X2 = WS_X1 + S * D * 2
WS_PWO = WS_X2 + S * D * 2
WS_PD = WS_PWO + D * D * 2
WS_CTL = WS_PD + 42 * 49152
WS_ST = WS_CTL
WS_FL = WS_ST + 24576
WS_H = WS_FL + 8192
WS_XS = WS_H + 24576
WS_SEL = WS_XS + 10240
CTL_SZ = 67 * 1024
WS_MR = WS_CTL + 2 * CTL_SZ
WS_CS = WS_MR + 32768
WS_ACK = WS_CS + 2 * 1920 * 8
WS_EP = WS_ACK + 2048
WS_END = WS_EP + 128
EPK = 0x9E3779B9
WS_PROF = 0x2000000
WS_SIZE = 0x4000000
assert WS_END <= WS_PROF

def f2u(x): return struct.unpack('<I', struct.pack('<f', x))[0]
def hx(x): return hex(x & 0xFFFFFFFF)
QSCALE = f2u(DH ** -0.5 * math.log2(math.e))
ONES2 = 0x3F803F80
NEGBIG = f2u(-1e30)
NL2E = hx(f2u(-math.log2(math.e)))

kernels = []
LAUNCH = {}
PROF = bool(os.environ.get('PROF'))
PV = 160
def stamp(a, i):
    if not PROF: return
    a('s_memrealtime s[100:101]')
    a('s_waitcnt lgkmcnt(0)')
    a(f'v_writelane_b32 v{a.pv}, s100, {i}')
def cstamp(a, i):
    if not PROF: return
    a('s_memtime s[100:101]')
    a('s_waitcnt lgkmcnt(0)')
    a(f'v_writelane_b32 v{a.pv}, s100, {i}')
def lstamp(a, sreg):
    if not PROF: return
    a('s_memrealtime s[100:101]')
    a('s_memtime s[98:99]')
    a(f's_add_u32 m0, s{sreg}, 16')
    a('s_waitcnt lgkmcnt(0)')
    a(f'v_writelane_b32 v{a.pv}, s100, m0')
    a(f's_add_u32 m0, s{sreg}, 32')
    a('s_nop 0')
    a(f'v_writelane_b32 v{a.pv}, s98, m0')
def endpgm(a):
    if not PROF:
        a('s_endpgm'); return
    a('s_mov_b64 exec, -1')
    stamp(a, 14)
    a('s_waitcnt vmcnt(0)')
    stamp(a, 15)
    a(f'v_mov_b32 v2, v{a.pv}')
    a('s_branch Lprof_end')
def gen_prof(a):
    if not PROF: return
    a.label('Lprof_end')
    a(f's_load_dwordx4 s[4:7], s[0:1], {KA_DBG}')
    a('s_waitcnt lgkmcnt(0)')
    a('s_lshr_b32 s4, s4, 9')
    a('s_and_b32 s4, s4, 15')
    a('s_lshl_b32 s4, s4, 9')
    a('s_add_u32 s4, s4, s2')
    a('s_lshl_b32 s4, s4, 4')
    a('s_add_u32 s4, s4, s10')
    a('s_lshl_b32 s4, s4, 8')
    add64(a, 6, 6, WS_PROF)
    a('s_mov_b32 s12, s6'); a('s_mov_b32 s13, s7')
    a(f's_mov_b32 s14, {16 * 512 * 16 * 256}'); a('s_mov_b32 s15, 0x20000')
    a('v_mbcnt_lo_u32_b32 v1, -1, 0')
    a('v_mbcnt_hi_u32_b32 v1, -1, v1')
    a('v_lshlrev_b32 v1, 2, v1')
    a('buffer_store_dword v2, v1, s[12:15], s4 offen')
    a('s_endpgm')

def ksrd(a, d, ka, size):
    a(f's_load_dwordx2 s[{d}:{d+1}], s[0:1], {ka}')
    a(f's_mov_b32 s{d+2}, {hx(size)}')
    a(f's_mov_b32 s{d+3}, 0x20000')

def add64(a, d, s, off):
    o = off if isinstance(off, str) else hx(off)
    a(f's_add_u32 s{d}, s{s}, {o}')
    a(f's_addc_u32 s{d+1}, s{s+1}, 0')

def rbf16(a, d, s):
    a(f'v_cvt_pk_bf16_f32 v{d}, v{s}, v{s}')
    a(f'v_and_b32 v{d}, 0xffff0000, v{d}')

def unpack(a, lo, src):
    a(f'v_lshlrev_b32 v{lo}, 16, v{src}')
    a(f'v_and_b32 v{lo+1}, 0xffff0000, v{src}')

def ln_scalars(a, s1, s2, m, rs, t):
    inv = hx(f2u(1.0 / D))
    a(f'v_mul_f32 v{m}, {inv}, v{s1}')
    a(f'v_mul_f32 v{t}, {inv}, v{s2}')
    a(f'v_fma_f32 v{t}, -v{m}, v{m}, v{t}')
    a(f'v_max_f32 v{t}, 0, v{t}')
    rbf16(a, t, t)
    a(f'v_add_f32 v{t}, {hx(f2u(1e-5))}, v{t}')
    rbf16(a, t, t)
    a(f'v_sqrt_f32 v{t}, v{t}')
    rbf16(a, t, t)
    a(f'v_rcp_f32 v{rs}, v{t}')
    rbf16(a, m, m)

def kernel_start(a, label):
    a.raw('.p2align 8')
    a.raw(f'.globl {label}')
    a.raw(f'.type {label},@function')
    a.label(label)
    if PROF:
        a(f'v_mov_b32 v{a.pv}, 0')
        stamp(a, 0)

def reg_kernel(label, grid, block, lds, vgpr, sgpr):
    kernels.append((label, vgpr, 102 if PROF else sgpr))
    LAUNCH[label] = (grid, block, lds)

def wave_lane(a):
    a('v_lshrrev_b32 v1, 6, v0')
    a('v_and_b32 v0, 63, v0')
    a('v_readfirstlane_b32 s10, v1')

def mod_small(a, s, n, times):
    for _ in range(times):
        a(f's_sub_u32 s99, s{s}, {n}')
        a(f's_cmp_ge_u32 s{s}, {n}')
        a(f's_cselect_b32 s{s}, s99, s{s}')
```

```python
from common import *
XA = os.environ.get('XA', '')
def gen_ao(a):
    a.pv = 167
    PS = 8192 + 64
    Q = 2; KA = 8; KB = 9; VA = 10; MX = 12
    ME = 16; MD = 32; SB = 48; KF = 80; NM = 96; OA = 112; P = 128; VF = 136; T = 152; PK = 160
    WOB = 7 * PS
    kernel_start(a, 'ao2_kernel')
    ksrd(a, 64, KA_WS, WS_SIZE)
    a(f's_mov_b32 s3, {hx(WS_X1)}')
    a(f's_mov_b32 s63, {CTL_SZ}')
    a(f's_mov_b32 s96, {hx(WS_O)}')
    a('s_branch Lao_common')
    kernel_start(a, 'ao1_kernel')
    ksrd(a, 64, KA_X, S * D * 2)
    a('s_mov_b32 s3, 0')
    a('s_mov_b32 s63, 0')
    a(f's_mov_b32 s96, {hx(WS_O)}')
    a.label('Lao_common')
    ksrd(a, 20, KA_WS, WS_SIZE)
    ksrd(a, 68, KA_WR, D * 2)
    ksrd(a, 36, KA_WG, D * F * 2)
    ksrd(a, 40, KA_WU, D * F * 2)
    a('s_cmp_ge_u32 s2, 256')
    a('s_cbranch_scc1 Latt_end')
    wave_lane(a)
    a('s_and_b32 s11, s2, 7')
    a('s_lshr_b32 s12, s2, 3')
    a('s_lshr_b32 s72, s11, 1')
    a('s_and_b32 s73, s12, 7')
    a('s_lshl3_add_u32 s72, s72, s73')
    a('s_and_b32 s74, s11, 1')
    a('s_lshr_b32 s75, s12, 3')
    a('s_lshl2_add_u32 s74, s74, s75')
    a('s_add_u32 s73, s73, s75')
    mod_small(a, 73, 5, 2)
    a('s_cmp_eq_u32 s10, 8')
    a('s_cbranch_scc1 Lao_loader')
    a('s_lshr_b32 s13, s12, 3')
    a('s_lshl2_add_u32 s13, s11, s13')
    a('s_and_b32 s14, s12, 7')
    a('s_lshr_b32 s15, s13, 1')
    a('s_mul_i32 s15, s15, 5')
    a('s_and_b32 s16, s13, 1')
    a('s_mul_i32 s17, s16, 3')
    a('s_add_u32 s17, s17, s15')
    a('s_lshl_b32 s17, s17, 15')
    a('s_add_u32 s18, s15, 2')
    a('s_lshl_b32 s18, s18, 15')
    a('s_lshl2_add_u32 s19, s14, s10')
    a('s_sub_u32 s24, s19, 4')
    a('s_cmp_lt_u32 s19, 4')
    a('s_cselect_b32 s19, s19, s24')
    a('s_cselect_b32 s30, 1, 0')
    a('s_lshl_b32 s19, s19, 10')
    a(f's_add_u32 s19, s19, {80*PLANE}')
    a('s_add_u32 s24, s17, s19')
    a('s_add_u32 s25, s18, s19')
    a('s_lshl3_add_u32 s26, s14, s10')
    a('s_lshl_b32 s26, s26, 9')
    a('s_add_u32 s27, s17, s26')
    a('s_lshl3_add_u32 s28, s16, s18')
    a('s_add_u32 s28, s28, s26')
    a('s_lshl_b32 s29, s10, 10')
    a('v_lshlrev_b32 v1, 4, v0')
    a('v_and_b32 v14, 31, v0')
    a('v_lshrrev_b32 v15, 5, v0')
    a('v_lshlrev_b32 v11, 4, v14')
    a(f'v_lshl_add_u32 v{T}, v15, 15, v11')
    a(f'v_mov_b32 v{Q+4}, {hx(ONES2)}')
    a(f'v_mov_b32 v{Q+5}, {hx(ONES2)}')
    a('s_waitcnt lgkmcnt(0)')
    stamp(a, 1)
    for kv in range(2):
        for pl in range(3):
            a(f's_add_u32 m0, s29, {(3*kv+pl)*PS}')
            src = 's25' if pl == 2 else 's24'
            off = kv * 80 * PLANE + (PLANE if pl == 1 else 0)
            if off:
                a(f's_add_u32 s31, {src}, {off}'); src = 's31'
            a(f'buffer_load_dwordx4 v1, s[20:23], {src} offen lds')
        if kv == 0:
            a(f'buffer_load_dwordx4 {vr(Q,4)}, v{T}, s[20:23], s27 offen')
            a('s_mov_b32 exec_hi, 0')
            a(f'buffer_load_dwordx2 {vr(Q+4,2)}, v11, s[20:23], s28 offen')
            a('s_mov_b32 exec_hi, -1')
    a('s_cmp_eq_u32 s30, 1')
    a(f's_cselect_b32 s31, {hx(NEGBIG >> 16)}, 0')
    a(f'v_mov_b32 v{SB}, s31')
    a(f'v_mov_b32 v{SB+1}, 0')
    a(f'v_mov_b32 v{SB+2}, {hx(ONES2)}')
    a(f'v_mov_b32 v{SB+3}, {hx(ONES2)}')
    a('v_add_u32 v12, s29, v1')
    a(f'ds_write_b128 v12, {vr(SB,4)} offset:{6*PS}')
    a('s_lshl_b32 s48, s10, 9')
    a(f'v_mul_u32_u24 v12, {PS}, v15')
    a(f'v_add3_u32 v{KA}, v12, v11, s48')
    a('s_lshl3_add_u32 s51, s16, s48')
    a(f's_add_u32 s51, s51, {2*PS}')
    a(f's_add_u32 s52, s48, {6*PS}')
    a(f'v_mov_b32 v12, s51')
    a(f'v_mov_b32 v13, s52')
    a('v_cmp_eq_u32 vcc, 0, v15')
    a('v_cndmask_b32 v12, v13, v12, vcc')
    a(f'v_add_u32 v{KB}, v12, v11')
    a('v_and_b32 v12, 1, v0')
    a('v_lshlrev_b32 v12, 3, v12')
    a('v_bfe_u32 v13, v0, 1, 1')
    a(f'v_mul_u32_u24 v13, {PS}, v13')
    a(f'v_add3_u32 v12, v12, v13, s48')
    a(f'v_add_u32 v12, {3*PS}, v12')
    a(f's_add_u32 s51, s51, {3*PS}')
    a('s_add_u32 s52, s52, 8')
    a(f'v_mov_b32 v13, s51')
    a(f'v_mov_b32 v{VA}, s52')
    a(f'v_and_b32 v{VA+1}, 3, v0')
    a(f'v_cmp_eq_u32 vcc, 0, v{VA+1}')
    a(f'v_cndmask_b32 v13, v{VA}, v13, vcc')
    a(f'v_and_b32 v{VA+1}, 16, v0')
    a(f'v_cmp_eq_u32 vcc, 0, v{VA+1}')
    a('v_cndmask_b32 v12, v13, v12, vcc')
    a('v_bfe_u32 v13, v0, 2, 2')
    a('v_lshl_add_u32 v13, v15, 2, v13')
    a(f'v_lshl_add_u32 v{VA}, v13, 4, v12')
    def masks():
        a('v_lshlrev_b32 v12, 2, v15')
        a('v_sub_u32 v12, v14, v12')
        a(f'v_mov_b32 v13, {hx(NEGBIG)}')
        for v in range(16):
            kk = 8 * (v // 4) + v % 4
            sp = 54 + 2 * (v % 4)
            a(f'v_cmp_le_i32 s[{sp}:{sp+1}], {kk}, v12')
            if v % 4 == 3:
                for u in range(v - 3, v + 1):
                    sp = 54 + 2 * (u % 4)
                    a(f'v_cndmask_b32 v{MD+u}, v13, 0, s[{sp}:{sp+1}]')
                    a(f'v_cndmask_b32 v{ME+u}, 0, v13, s[{sp}:{sp+1}]')
    masks()
    a('s_add_u32 s27, s27, s96')
    a('s_add_u32 s28, s28, s96')
    a('v_lshlrev_b32 v11, 4, v14')
    a(f'v_mov_b32 v{T+7}, {hx(f2u(2.0**100))}')
    a('s_mov_b32 s62, 0')
    stamp(a, 2)
    a('s_waitcnt vmcnt(0) lgkmcnt(0)')
    stamp(a, 3)
    a('s_barrier')
    stamp(a, 4)
    cstamp(a, 12)
    def kread(t, b):
        a(f'ds_read_b128 {vr(KF+8*b,4)}, v{KA} offset:{512*t}')
        a(f'ds_read_b64 {vr(KF+8*b+4,2)}, v{KB} offset:{512*t}')
    def vread(t, b):
        for i in range(2):
            for j in range(2):
                a(f'ds_read_b64_tr_b16 {vr(VF+8*b+4*i+2*j,2)}, v{VA} offset:{512*t+(16*i+8*j)*16}')
    def m1(b, sb, c): a(f'v_mfma_f32_32x32x16_bf16 {vr(sb,16)}, {vr(KF+8*b,4)}, {vr(Q,4)}, {c}')
    def m2(b, sb): a(f'v_mfma_f32_32x32x8_bf16 {vr(sb,16)}, {vr(KF+8*b+4,2)}, {vr(Q+4,2)}, {vr(sb,16)}')
    def mxall(sb, first):
        for i in range(8):
            r = sb + 2 * i
            if first and i < 2: a(f'v_max_f32 v{MX+i}, v{r}, v{r+1}')
            else: a(f'v_max3_f32 v{MX+i%2}, v{r}, v{r+1}, v{MX+i%2}')
    XR = 16; WR = 22; U = 28; XF = 28+12-4
    def early():
        a('s_and_b32 s75, s10, 3')
        a('s_lshr_b32 s76, s10, 2')
        a('s_lshl2_add_u32 s77, s72, s75')
        a('s_lshl1_add_u32 s79, s74, s76')
        a('s_lshl_b32 s79, s79, 6')
        a('s_lshl_b32 s80, s74, 5')
        a('s_add_u32 s80, s80, 1024')
        a(f'v_and_b32 v{U}, 15, v0')
        a(f'v_lshrrev_b32 v{U+1}, 4, v0')
        a(f'v_lshl_add_u32 v{U+2}, v{U+1}, 4, s79')
        a(f'v_lshl_add_u32 v{U+3}, v{U+1}, 3, s80')
        a(f'v_mul_u32_u24 v161, 1280, v{U}')
        a(f'v_add_u32 v160, v161, v{U+2}')
        a(f'v_add_u32 v161, v161, v{U+3}')
        a(f'v_lshlrev_b32 v{U+6}, 4, v{U}')
        a('s_mul_i32 s92, s77, 20480')
        a('s_add_u32 s93, s92, s3')
        a(f's_add_u32 s94, s92, {hx(WS_X2)}')
        a(f's_add_u32 s92, s92, {hx(WS_X1)}')
        a('s_lshl_b32 s95, s77, 8')
        a(f's_add_u32 s95, s95, {hx(WS_MR)}')
        a(f'buffer_load_dwordx4 {vr(U+8,4)}, v{U+6}, s[20:23], s95 offen')
        a(f'buffer_load_dwordx4 {vr(XR,4)}, v160, s[64:67], s93 offen')
        a(f'buffer_load_dwordx2 {vr(XR+4,2)}, v161, s[64:67], s93 offen')
        a(f'v_cmp_eq_u32 vcc, 0, v{U}')
        a(f'v_mov_b32 v162, {hx(ONES2)}')
        for i in range(6): a(f'v_cndmask_b32 v{WR+i}, 0, v162, vcc')
        a('s_mov_b32 exec_lo, 0x01000100')
        a('s_mov_b32 exec_hi, 0x01000100')
        a(f'buffer_load_dwordx4 {vr(WR,4)}, v{U+2}, s[68:71], 0 offen')
        a(f'buffer_load_dwordx2 {vr(WR+4,2)}, v{U+3}, s[68:71], 0 offen')
        a('s_mov_b64 exec, -1')
    order = [8, 0, 1, 2, 3, 4, 5, 6, 7]
    kread(8, 0); kread(0, 1); vread(8, 0)
    a('s_waitcnt lgkmcnt(6)')
    m1(0, SB, vr(MD, 16)); m2(0, SB)
    mxall(SB, True)
    a.label('Latt_havemax')
    a(f'v_max_f32 v{MX}, v{MX}, v{MX+1}')
    a(f'v_mov_b32 v{MX+1}, v{MX}')
    a(f'v_permlane32_swap_b32 v{MX}, v{MX+1}')
    a(f'v_max_f32 v{MX}, v{MX}, v{MX+1}')
    for v in range(16): a(f'v_sub_f32 v{ME+v}, v{ME+v}, v{MX}')
    for v in range(16): a(f'v_sub_f32 v{SB+v}, v{SB+v}, v{MX}')
    stamp(a, 5)
    def pv(b, i, first):
        c = '0' if first else vr(OA, 16)
        a(f'v_mfma_f32_32x32x16_bf16 {vr(OA,16)}, {vr(VF+8*b+4*i,4)}, {vr(P+4*i,4)}, {c}')
    for n in range(9):
        sb = SB + 16 * (n % 2); sn = SB + 16 * ((n + 1) % 2)
        nx = n + 1 < 9
        for i in range(2): a(f'v_exp_f32 v{sb+i}, v{sb+i}')
        if n > 0: pv((n - 1) % 2, 1, False)
        if nx: vread(order[n + 1], (n + 1) % 2)
        for i in range(2, 5): a(f'v_exp_f32 v{sb+i}, v{sb+i}')
        if nx:
            a('s_waitcnt lgkmcnt(4)')
            m1((n + 1) % 2, sn, vr(ME, 16) if n == 0 else vr(NM, 16))
        else: a('s_waitcnt lgkmcnt(0)')
        if n + 2 < 9: kread(order[n + 2], n % 2)
        for i in range(5, 8): a(f'v_exp_f32 v{sb+i}, v{sb+i}')
        for i in range(4): a(f'v_cvt_pk_bf16_f32 v{P+i}, v{sb+2*i}, v{sb+2*i+1}')
        if nx: m2((n + 1) % 2, sn)
        for i in range(8, 12): a(f'v_exp_f32 v{sb+i}, v{sb+i}')
        pv(n % 2, 0, n == 0)
        if n == 4: early()
        if n == 0:
            for v in range(16): a(f'v_sub_f32 v{NM+v}, 0, v{MX}')
        for i in range(12, 16): a(f'v_exp_f32 v{sb+i}, v{sb+i}')
        for i in range(4, 8): a(f'v_cvt_pk_bf16_f32 v{P+i}, v{sb+2*i}, v{sb+2*i+1}')
    pv(0, 1, False)
    stamp(a, 6)
    cstamp(a, 13)
    a(f'v_add_f32 v{T+1}, |v{OA}|, v{OA+12}')
    a(f'v_add_f32 v{T+6}, |v{OA+1}|, |v{OA+2}|')
    for v in range(3, 12): a(f'v_add_f32 v{T+1+5*(v%2)}, |v{OA+v}|, v{T+1+5*(v%2)}')
    a(f'v_add_f32 v{T+1}, v{T+1}, v{T+6}')
    a(f'v_cmp_nlt_f32 vcc, v{T+1}, v{T+7}')
    a('s_cmp_eq_u32 s62, 1')
    a('s_cbranch_scc1 Latt_out')
    a('s_cbranch_vccnz Latt_exact')
    a.label('Latt_out')
    a(f'v_rcp_f32 v{T+1}, v{OA+12}')
    for v in range(12): a(f'v_mul_f32 v{OA+v}, v{OA+v}, v{T+1}')
    for v in range(6): a(f'v_cvt_pk_bf16_f32 v{P+v}, v{OA+2*v}, v{OA+2*v+1}')
    for v in range(6): a(f'v_min_u32 v{P+v}, -2, v{P+v}')
    a(f'v_permlane32_swap_b32 v{P}, v{P+2}')
    a(f'v_permlane32_swap_b32 v{P+1}, v{P+3}')
    a(f'buffer_store_dwordx4 {vr(P,4)}, v{T}, s[20:23], s27 offen sc1')
    a('s_mov_b32 exec_hi, 0')
    a(f'buffer_store_dwordx2 {vr(P+4,2)}, v11, s[20:23], s28 offen sc1')
    a('s_mov_b32 exec_hi, -1')
    stamp(a, 7)
    RA = 12; AF = 48; WF = 100; NB = 3
    AC = lambda t: 28 + 4 * t if t < 2 else 88 + 4 * (t - 2)
    OP_RED = 0
    a('s_lshl_b32 s80, s77, 8')
    a('s_lshl_b32 s81, s76, 18')
    a('s_add_u32 s80, s80, s81')
    a('s_add_u32 s80, s80, s96')
    for p in range(5):
        a(f's_lshl_b32 s{87+p}, s73, 19')
        a(f's_add_u32 s{87+p}, s{87+p}, s80')
        if p < 4:
            a('s_add_u32 s73, s73, 1')
            a('s_cmp_eq_u32 s73, 5')
            a('s_cselect_b32 s73, 0, s73')
    a(f'v_mul_u32_u24 v{RA}, 40, v0')
    a('s_mul_i32 s36, s76, 10240')
    a(f's_add_u32 s36, s36, {WOB}')
    a('s_lshl4_add_u32 s37, s76, s36')
    a('s_xor_b32 s38, s76, 1')
    a('s_lshl4_add_u32 s38, s38, s36')
    a(f'v_add_u32 v{RA+2}, s38, v{RA}')
    a(f'v_add_u32 v4, s36, v{RA}')
    a(f'v_add_u32 v{RA}, s37, v{RA}')
    a(f'v_add_u32 v{RA+1}, {3*20480}, v{RA}')
    a(f'v_add_u32 v{RA+3}, {3*20480}, v{RA+2}')
    a(f'v_add_u32 v5, {3*20480}, v4')
    a(f'v_lshlrev_b32 v2, 15, v{U+1}')
    a(f'v_add_u32 v2, v2, v{U+6}')
    a(f'v_add_u32 v7, {4*PLANE}, v2')
    a(f'v_and_b32 v3, 3, v0')
    for i in range(1, 4): a(f'v_cmp_eq_u32 s[{50+2*i}:{51+2*i}], {i}, v3')
    a(f'v_lshlrev_b32 v8, 13, v{U+1}')
    a(f'v_lshl_add_u32 v8, v{U}, 2, v8')
    a(f'v_lshlrev_b32 v9, 2, v{U}')
    a('s_and_b32 s18, s77, 7')
    a('s_lshl_b32 s18, s18, 10')
    a('s_lshr_b32 s39, s77, 3')
    a('s_lshl_b32 s39, s39, 6')
    a('s_add_u32 s18, s18, s39')
    a('s_add_u32 s18, s18, s63')
    a(f's_add_u32 s18, s18, {hx(WS_ST)}')
    a('s_add_u32 s39, s18, 8192')
    a('s_waitcnt vmcnt(2)')
    stamp(a, 8)
    MM = vr(U + 8, 2)
    a('s_cmp_eq_u32 s3, 0')
    a('s_cbranch_scc1 Lop_res')
    for i in range(0, 6, 2):
        tt = [88, 94]
        for k in range(2): unpack(a, tt[k] + 4, XR + i + k)
        for k in range(2): a(f'v_pk_add_f32 {vr(tt[k]+2,2)}, {vr(tt[k]+4,2)}, {MM} op_sel_hi:[1,0] neg_lo:[0,1] neg_hi:[0,1]')
        for k in range(2): a(f'v_cvt_pk_bf16_f32 v{tt[k]}, v{tt[k]+2}, v{tt[k]+3}')
        for k in range(2): unpack(a, tt[k] + 2, tt[k])
        for k in range(2): a(f'v_pk_mul_f32 {vr(tt[k]+2,2)}, {vr(tt[k]+2,2)}, {MM} op_sel:[0,1] op_sel_hi:[1,1]')
        for k in range(2): a(f'v_cvt_pk_bf16_f32 v{tt[k]}, v{tt[k]+2}, v{tt[k]+3}')
        for k in range(2): unpack(a, tt[k] + 2, tt[k])
        for k in range(2): a(f'v_pk_add_f32 {vr(tt[k]+2,2)}, {vr(tt[k]+2,2)}, {vr(tt[k]+4,2)}')
        for k in range(2): a(f'v_cvt_pk_bf16_f32 v{XR+i+k}, v{tt[k]+2}, v{tt[k]+3}')
    a(f'v_cmp_ne_u32 vcc, 0, v{U+10}')
    a('s_and_saveexec_b64 s[48:49], vcc')
    a('s_cbranch_execz Lop_res2')
    a(f'buffer_load_dwordx4 {vr(XR,4)}, v160, s[20:23], s94 offen')
    a(f'buffer_load_dwordx2 {vr(XR+4,2)}, v161, s[20:23], s94 offen')
    a('s_waitcnt vmcnt(0)')
    a.label('Lop_res2')
    a('s_mov_b64 exec, s[48:49]')
    a.label('Lop_res')
    for i in range(6): unpack(a, XF + 2 * i, XR + i)
    a('s_barrier')
    stamp(a, 9)
    WB = lambda s: WF + 20 * (s % NB)
    def wread(s, t):
        p, k = s // 2, s % 2
        reg = (RA if t < 2 else RA + 2 if t < 4 else 4) + (1 if p >= 3 else 0)
        off = (p % 3) * 20480 + k * 5120 + (8 * (t % 2) if t < 4 else 32)
        for j in range(2):
            a(f'ds_read_b64_tr_b16 {vr(WB(s)+4*t+2*j,2)}, v{reg} offset:{off+j*2560}')
    def mm(s, t):
        c = '0' if s == 0 else vr(AC(t), 4)
        a(f'v_mfma_f32_16x16x32_bf16 {vr(AC(t),4)}, {vr(WB(s)+4*t,4)}, {vr(AF+4*s,4)}, {c}')
    a('s_mov_b32 s43, 0')
    aload = lambda s, sc: f'buffer_load_dwordx4 {vr(AF+4*s,4)}, v{7 if s % 2 else 2}, s[20:23], s{87+s//2} offen {sc}'
    for s in range(10): a(aload(s, 'sc1'))
    for s in range(NB):
        for t in range(5): wread(s, t)
    for s in range(10):
        r = AF + 4 * s
        a(f's_waitcnt vmcnt({9-s})')
        a(f'v_max3_u32 v6, v{r}, v{r+1}, v{r+2}')
        a(f'v_max_u32 v6, v6, v{r+3}')
        a('v_cmp_eq_u32 vcc, -1, v6')
        a(f's_cbranch_vccnz Lop_retry{s+1}')
        a.label(f'Lop_ok{s+1}')
        if s == 0: stamp(a, 10)
        a(f's_waitcnt lgkmcnt({min(15, 10 * (min(s + NB - 1, 9) - s))})')
        for t in range(5):
            mm(s, t)
            if s + NB < 10 and t > 0: wread(s + NB, t - 1)
        if s + NB < 10: wread(s + NB, 4)
    stamp(a, 11)
    a('s_mul_i32 s36, s10, 3072')
    a('v_add_u32 v12, s36, v1')
    a('s_xor_b32 s36, s10, 4')
    a('s_mul_i32 s36, s36, 3072')
    a('v_add_u32 v13, s36, v1')
    for t in range(3): a(f'ds_write_b128 v12, {vr(AC(2+t),4)} offset:{OP_RED+1024*t}')
    a('s_waitcnt lgkmcnt(0)')
    a('s_barrier')
    for t in range(3): a(f'ds_read_b128 {vr(WF+4*t,4)}, v13 offset:{OP_RED+1024*t}')
    a('s_cmp_eq_u32 s76, 0')
    def fin(idx):
        acc = lambda i: AC(0) + 2 * i if i < 4 else AC(4) + 2 * (i - 4)
        for i in idx: a(f'v_pk_add_f32 {vr(acc(i),2)}, {vr(acc(i),2)}, {vr(WF+2*i,2)}')
        for i in idx: a(f'v_cvt_pk_bf16_f32 v{XR+i}, v{acc(i)}, v{acc(i)+1}')
        for i in idx: unpack(a, acc(i), XR + i)
        for i in idx: a(f'v_pk_add_f32 {vr(acc(i),2)}, {vr(acc(i),2)}, {vr(XF+2*i,2)}')
        for i in idx: a(f'v_cvt_pk_bf16_f32 v{XR+i}, v{acc(i)}, v{acc(i)+1}')
    a('s_waitcnt lgkmcnt(1)')
    fin(range(4))
    a(f'buffer_store_dwordx4 {vr(XR,4)}, v160, s[20:23], s92 offen sc1')
    D1, D2 = AF, AF + 4
    a(f'v_mfma_f32_16x16x32_bf16 {vr(D1,4)}, {vr(WR,4)}, {vr(XR,4)}, 0')
    a(f'v_mfma_f32_16x16x32_bf16 {vr(D2,4)}, {vr(XR,4)}, {vr(XR,4)}, 0')
    a('s_cbranch_scc0 Lop_notail')
    a('s_waitcnt lgkmcnt(0)')
    fin((4, 5))
    a(f'buffer_store_dwordx2 {vr(XR+4,2)}, v161, s[20:23], s92 offen sc1')
    a(f'v_mfma_f32_16x16x16_bf16 {vr(D1,4)}, {vr(WR+4,2)}, {vr(XR+4,2)}, {vr(D1,4)}')
    a(f'v_mfma_f32_16x16x16_bf16 {vr(D2,4)}, {vr(XR+4,2)}, {vr(XR+4,2)}, {vr(D2,4)}')
    a.label('Lop_notail')
    a('s_mov_b32 exec_lo, 0xffff')
    a('s_mov_b32 exec_hi, 0xffff')
    a(f'buffer_atomic_add_f32 v{D1}, v8, s[20:23], s18 offen')
    a('s_mov_b32 exec_lo, 0x00f0000f')
    a('s_mov_b32 exec_hi, 0xf0000f00')
    for i in range(1, 4): a(f'v_cndmask_b32 v{D2}, v{D2}, v{D2+i}, s[{50+2*i}:{51+2*i}]')
    a(f'buffer_atomic_add_f32 v{D2}, v9, s[20:23], s39 offen')
    endpgm(a)
    for s in range(1, 11):
        a.label(f'Lop_retry{s}')
        a('s_call_b64 s[44:45], Lop_refresh')
        a(f's_branch Lop_ok{s}')
    a.label('Lop_refresh')
    a('s_mov_b32 s46, 0')
    a('s_waitcnt vmcnt(0)')
    for s in range(10):
        r = AF + 4 * s
        a(f'v_max3_u32 v6, v{r}, v{r+1}, v{r+2}')
        a(f'v_max_u32 v6, v6, v{r+3}')
        a('v_cmp_eq_u32 vcc, -1, v6')
        a(f's_cbranch_vccz Lop_rf{s}')
        a(aload(s, os.environ.get('RSC', 'sc0 sc1')))
        a('s_mov_b32 s46, 1')
        a.label(f'Lop_rf{s}')
    a('s_add_u32 s43, s43, 1')
    a('s_cmp_gt_u32 s43, 0x40000')
    a('s_cselect_b32 s46, 0, s46')
    a('s_cmp_eq_u32 s46, 1')
    a('s_cbranch_scc1 Lop_refresh')
    a('s_waitcnt vmcnt(0)')
    a('s_setpc_b64 s[44:45]')
    a.label('Lao_loader')
    a('v_lshlrev_b32 v1, 4, v0')
    a('s_mul_i32 s79, s74, 102400')
    a(f's_add_u32 s79, s79, {hx(WS_PWO)}')
    a('s_mul_i32 s80, s73, 20480')
    a('s_add_u32 s80, s80, s79')
    a('s_add_u32 s81, s79, 102400')
    a(f's_mov_b32 s82, {WOB}')
    a('s_waitcnt lgkmcnt(0)')
    a('s_barrier')
    a.label('Lao_lloop')
    a('s_mov_b32 m0, s82')
    for i in range(4): a(f'buffer_load_dwordx4 v1, s[20:23], s80 offen offset:{1024*i} lds')
    a('s_add_u32 s80, s80, 4096')
    a('s_cmp_eq_u32 s80, s81')
    a('s_cselect_b32 s80, s79, s80')
    a('s_add_u32 s82, s82, 4096')
    a('s_waitcnt vmcnt(48)')
    a(f's_cmp_lt_u32 s82, {WOB+102400}')
    a('s_cbranch_scc1 Lao_lloop')
    stamp(a, 1)
    a('s_waitcnt vmcnt(0)')
    a('v_mul_u32_u24 v2, 3072, v0')
    a('v_lshlrev_b32 v3, 7, v0')
    a('s_mul_i32 s83, s12, 3')
    a('s_add_u32 s84, s83, 3')
    a.label('Lao_pf')
    a('s_cmp_ge_u32 s83, 60')
    a('s_cbranch_scc1 Lao_pfd')
    a('s_cmp_ge_u32 s83, 30')
    a('s_cselect_b32 s36, s40, s36')
    a('s_cselect_b32 s37, s41, s37')
    a('s_cselect_b32 s33, 30, 0')
    a('s_sub_u32 s32, s83, s33')
    a('s_mul_i32 s33, s32, 26')
    a('s_lshr_b32 s33, s33, 8')
    a('s_mul_i32 s34, s33, 10')
    a('s_sub_u32 s32, s32, s34')
    a(f's_mul_i32 s32, s32, {64*3072}')
    a('s_lshl3_add_u32 s33, s33, s11')
    a('s_lshl_b32 s33, s33, 7')
    a('s_add_u32 s32, s32, s33')
    a('buffer_load_dword v4, v2, s[36:39], s32 offen')
    a('s_branch Lao_pfn')
    a.label('Lao_pfd')
    a('s_sub_u32 s32, s83, 60')
    a('s_cmp_ge_u32 s32, 18')
    a('s_cselect_b32 s33, 8, 0')
    a('s_cselect_b32 s34, 18, 0')
    a('s_sub_u32 s32, s32, s34')
    a('s_add_u32 s33, s33, s11')
    a('s_min_u32 s33, s33, 13')
    a('s_mul_i32 s33, s33, 147456')
    a('s_lshl_b32 s32, s32, 13')
    a('s_add_u32 s32, s32, s33')
    a(f's_add_u32 s32, s32, {hx(WS_PD)}')
    a('buffer_load_dword v4, v3, s[20:23], s32 offen')
    a.label('Lao_pfn')
    a('s_add_u32 s83, s83, 1')
    a('s_cmp_lt_u32 s83, s84')
    a('s_cbranch_scc1 Lao_pf')
    a('s_barrier')
    a('s_lshl_b32 s16, s12, 10')
    a('s_cmp_ge_u32 s16, Lcode_end-Lcode_start-1024')
    a('s_cbranch_scc1 Lao_nopf')
    a('s_getpc_b64 s[56:57]')
    a.label('Lao_pc')
    a('s_sub_u32 s56, s56, Lao_pc-Lcode_start')
    a('s_subb_u32 s57, s57, 0')
    a('v_add_u32 v2, s16, v1')
    a('global_load_dwordx4 v[4:7], v2, s[56:57]')
    a.label('Lao_nopf')
    endpgm(a)
    a.label('Latt_exact')
    a('s_mov_b32 s62, 1')
    a('s_waitcnt vmcnt(0)')
    masks()
    for n, t in enumerate([0, 1, 2, 3, 4, 5, 6, 7, 8]):
        kread(t, 0)
        a('s_waitcnt lgkmcnt(0)')
        m1(0, SB, vr(ME, 16) if t == 0 else vr(MD, 16) if t == 8 else '0'); m2(0, SB)
        mxall(SB, n == 0)
    kread(0, 1); vread(8, 0)
    a('s_branch Latt_havemax')
    a.label('Latt_end')
    a('s_endpgm')
    for k in ('ao1_kernel', 'ao2_kernel'): reg_kernel(k, 256, 576, WOB + 102400, 168, 100)
```

```python
from common import *
def xn_pair(a, lo, M, t):
    a(f'v_pk_add_f32 {vr(t+2,2)}, {vr(lo,2)}, {vr(M,2)} op_sel_hi:[1,0] neg_lo:[0,1] neg_hi:[0,1]')
    a(f'v_cvt_pk_bf16_f32 v{t}, v{t+2}, v{t+3}')
    unpack(a, t + 2, t)
    a(f'v_pk_mul_f32 {vr(t+2,2)}, {vr(t+2,2)}, {vr(M,2)} op_sel:[0,1] op_sel_hi:[1,1]')
    a(f'v_cvt_pk_bf16_f32 v{t}, v{t+2}, v{t+3}')

L_LIST = 0
L_SEL = 12288 + 128
L_CNT = 12288
L_GM = L_CNT + 64
L_RED = 0
L_W = 13312
FS_LDS = L_W + 147456
L_FX = L_W + 81920

def gen_ffn(a):
    a.pv = 199
    kernel_start(a, 'ffn2_kernel')
    ksrd(a, 20, KA_OUT, S * D * 2)
    ksrd(a, 24, KA_WQKV, D * 3 * D * 2)
    ksrd(a, 28, KA_WS, WS_SIZE)
    a('s_cmp_ge_u32 s2, 128')
    a('s_cbranch_scc1 Lfs_end')
    wave_lane(a)
    a('s_mov_b32 s13, s2')
    a('s_mov_b32 s52, 0')
    a('s_mov_b32 s53, 0')
    a(f's_mov_b32 s51, {CTL_SZ}')
    reg_kernel('ffn2_kernel', 128, 512, FS_LDS, 200, 100)
    ST = 16; KEY = 28; T = 32
    a.label('Lfs')
    ksrd(a, 32, KA_WR, D * 2)
    ksrd(a, 36, KA_WG, D * F * 2)
    ksrd(a, 40, KA_WU, D * F * 2)
    a('s_lshl_b32 s11, s10, 6')
    a('v_add_u32 v15, s11, v0')
    a('v_lshlrev_b32 v2, 4, v15')
    a('v_mul_u32_u24 v3, 20, v0')
    a('v_lshlrev_b32 v1, 4, v0')
    a(f's_add_u32 s44, s51, {hx(WS_ST)}')
    a(f's_add_u32 s45, s51, {hx(WS_ST+8192)}')
    a(f's_add_u32 s46, s51, {hx(WS_ST+16384)}')
    for i in range(4): a(f'v_mov_b32 v{T+8+i}, 0')
    a('v_mov_b32 v9, 0')
    a(f'ds_write_b128 v2, {vr(T+8,4)} offset:{L_LIST}')
    a(f'ds_write_b32 v9, v9 offset:{L_CNT}')
    a('s_cmp_ge_u32 s13, 48')
    a('s_cselect_b32 s54, 1, 0')
    a('s_cmp_ge_u32 s13, 62')
    a('s_cselect_b32 s54, 2, s54')
    a('v_lshrrev_b32 v4, 4, v0')
    a('v_bfe_u32 v5, v0, 2, 2')
    a('v_lshl_add_u32 v4, v4, 3, v5')
    a('s_and_b32 s11, s10, 1')
    a('s_lshl_b32 s11, s11, 2')
    a('v_add_u32 v4, s11, v4')
    a('v_mul_u32_u24 v4, 3072, v4')
    a('v_and_b32 v5, 3, v0')
    a('v_lshl_add_u32 v4, v5, 4, v4')
    a('s_lshr_b32 s11, s10, 1')
    a(f's_mul_i32 s11, s11, {32*3072}')
    a('s_and_b32 s62, s13, 7')
    a('s_lshr_b32 s12, s13, 4')
    a('s_lshl3_add_u32 s62, s12, s62')
    a('s_bfe_u32 s12, s13, 0x10003')
    a('s_lshl1_add_u32 s62, s62, s12')
    a('s_lshl_b32 s12, s62, 6')
    a('s_add_u32 s55, s11, s12')
    a('s_and_b32 s63, s13, 1')
    a('s_mul_i32 s63, s63, 20')
    a('s_lshr_b32 s12, s13, 1')
    a('s_add_u32 s63, s63, s12')
    a('s_lshl_b32 s56, s10, 10')
    a(f's_add_u32 s56, s56, {L_W}')
    a('s_sub_u32 s14, s13, 48')
    a(f's_mul_i32 s57, s14, {3*49152}')
    a('s_mul_i32 s12, s10, 6144')
    a('s_add_u32 s57, s57, s12')
    a(f's_add_u32 s57, s57, {hx(WS_PD)}')
    a('s_mul_i32 s58, s10, 18432')
    a(f's_add_u32 s58, s58, {L_W}')
    a('s_waitcnt lgkmcnt(0)')
    stamp(a, 1)
    for k in range(3): a(f'buffer_load_dwordx4 {vr(ST+4*k,4)}, v2, s[28:31], s{44+k} offen')
    a(f'buffer_load_dwordx4 {vr(T,4)}, v3, s[32:35], 0 offen')
    a(f'buffer_load_dword v{T+4}, v3, s[32:35], 0 offen offset:16')
    def pace(tag, gu, dn, wait):
        a('s_cmp_eq_u32 s54, 1')
        a(f's_cbranch_scc1 Lfs_pd{tag}')
        a('s_cmp_eq_u32 s54, 2')
        a(f's_cbranch_scc1 Lfs_pn{tag}')
        for n in gu:
            a(f's_add_u32 m0, s56, {8192*n}')
            a('buffer_load_dwordx4 v4, s[36:39], s55 offen lds')
            a(f's_add_u32 m0, s56, {8192*n+40960}')
            a('buffer_load_dwordx4 v4, s[40:43], s55 offen lds')
            a(f's_add_u32 s55, s55, {128*3072}')
        if wait: a(f's_waitcnt vmcnt({2*len(gu)})')
        a(f's_branch Lfs_px{tag}')
        a.label(f'Lfs_pd{tag}')
        for t in dn:
            for hh in range(2):
                a(f's_add_u32 m0, s58, {6144*t+3072*hh}')
                a(f's_add_u32 s12, s57, {49152*t+3072*hh}')
                for i in range(3): a(f'buffer_load_dwordx4 v1, s[28:31], s12 offen offset:{1024*i} lds')
        if wait:
            a(f's_waitcnt vmcnt({6*len(dn)})')
            a(f's_branch Lfs_px{tag}')
        a.label(f'Lfs_pn{tag}')
        if wait: a('s_waitcnt vmcnt(0)')
        a.label(f'Lfs_px{tag}')
    PC = {'a': ([0], [1, 2], [3, 4]), 'b': ([0, 1, 2, 3, 4], [], []), 'c': ([0, 1, 2], [3, 4], []), 'd': ([0, 1], [2, 3], [4])}[os.environ.get('PACE', 'a')]
    pace(0, PC[0], [0], True)
    stamp(a, 2)
    inv = hx(f2u(1.0 / D))
    for i in range(5): unpack(a, T + 8 + 2 * i, T + i)
    for j in range(4): a(f'v_mul_f32 v{ST+j}, {inv}, v{ST+j}')
    a(f'v_pk_add_f32 {vr(T+8,2)}, {vr(T+8,2)}, {vr(T+10,2)}')
    a(f'v_pk_add_f32 {vr(T+12,2)}, {vr(T+12,2)}, {vr(T+14,2)}')
    a(f'v_pk_add_f32 {vr(T+8,2)}, {vr(T+8,2)}, {vr(T+16,2)}')
    a(f'v_mov_b32 v{T+2}, {hx(f2u(1e-5))}')
    a(f'v_pk_add_f32 {vr(T+8,2)}, {vr(T+8,2)}, {vr(T+12,2)}')
    a(f's_mov_b32 s15, {inv}')
    a(f'v_add_f32 v{T}, v{T+8}, v{T+9}')
    rows = [f'v_fma_f32 v{ST+4+j}, v{ST+4+j}, s15, v{T+2}' for j in range(4)]
    rows += [f'v_fma_f32 v{ST+4+j}, -v{ST+j}, v{ST+j}, v{ST+4+j}' for j in range(4)]
    rows += [f'v_max_f32 v{ST+4+j}, v{T+2}, v{ST+4+j}' for j in range(4)]
    rows += [f'v_rsq_f32 v{ST+4+j}, v{ST+4+j}' for j in range(4)]
    red = [[f'v_add_f32_dpp v{T}, v{T}, v{T} row_ror:{r} row_mask:0xf bank_mask:0xf'] for r in (8, 4, 2, 1)]
    red += [[f'v_mov_b32 v{T+1}, v{T}'], [f'v_permlane16_swap_b32 v{T}, v{T+1}', f'v_add_f32 v{T}, v{T}, v{T+1}', f'v_mov_b32 v{T+1}, v{T}'],
            [f'v_permlane32_swap_b32 v{T}, v{T+1}', f'v_add_f32 v{T}, v{T}, v{T+1}']]
    for i, x in enumerate(rows):
        a(x)
        if i % 2 == 1 and red:
            for y in red.pop(0): a(y)
    assert not red
    for j in range(4): a(f'v_fma_f32 v{KEY+j}, -v{ST+j}, v{T}, v{ST+8+j}')
    a('v_lshlrev_b32 v8, 2, v15')
    a('v_sub_u32 v8, 2047, v8')
    a('s_mov_b32 s15, 0xfffff800')
    for j in range(4): a(f'v_mul_f32 v{KEY+j}, v{KEY+j}, v{ST+4+j}')
    for j in range(4): a(f'v_ashrrev_i32 v{ST+j}, 31, v{KEY+j}')
    for j in range(4): a(f'v_subrev_u32 v{ST+4+j}, {j}, v8')
    for j in range(4): a(f'v_or_b32 v{ST+j}, 0x80000000, v{ST+j}')
    for j in range(4): a(f'v_xor_b32 v{KEY+j}, v{KEY+j}, v{ST+j}')
    for j in range(4): a(f'v_and_or_b32 v{KEY+j}, v{KEY+j}, s15, v{ST+4+j}')
    a(f'v_max3_u32 v{T}, v{KEY}, v{KEY+1}, v{KEY+2}')
    a('s_lshl_b32 s11, s10, 2')
    a(f'v_max_u32 v{T}, v{T}, v{KEY+3}')
    a('v_mov_b32 v7, s11')
    for r in (8, 4, 2, 1):
        a(f'v_max_u32_dpp v{T}, v{T}, v{T} row_ror:{r} row_mask:0xf bank_mask:0xf')
    for op in ('v_permlane16_swap_b32', 'v_permlane32_swap_b32'):
        a(f'v_mov_b32 v{T+1}, v{T}')
        a(f'{op} v{T}, v{T+1}')
        a(f'v_max_u32 v{T}, v{T}, v{T+1}')
    a(f'ds_write_b32 v7, v{T} offset:{L_GM}')
    pace(1, PC[1], [1], False)
    a('s_waitcnt lgkmcnt(0)')
    a('s_barrier')
    stamp(a, 3)
    a(f'ds_read_b128 {vr(T,4)}, v9 offset:{L_GM}')
    a(f'ds_read_b128 {vr(T+4,4)}, v9 offset:{L_GM+16}')
    a('s_waitcnt lgkmcnt(0)')
    a(f'v_min3_u32 v{T}, v{T}, v{T+1}, v{T+2}')
    a(f'v_min3_u32 v{T+3}, v{T+3}, v{T+4}, v{T+5}')
    a(f'v_min3_u32 v{T}, v{T}, v{T+6}, v{T+7}')
    a(f'v_min_u32 v{T}, v{T}, v{T+3}')
    for j in range(4): a(f'v_cmp_ge_u32 s[{64+2*j}:{65+2*j}], v{KEY+j}, v{T}')
    for j in range(4): a(f's_bcnt1_i32_b64 s{80+j}, s[{64+2*j}:{65+2*j}]')
    a('s_mov_b32 s88, 0')
    for j in range(4): a(f's_add_u32 s{89+j}, s{88+j}, s{80+j}')
    a(f'v_mov_b32 v{T+1}, s92')
    a('s_mov_b64 exec, 1')
    a(f'ds_add_rtn_u32 v{T+2}, v9, v{T+1} offset:{L_CNT}')
    a('s_mov_b64 exec, -1')
    for j in range(4):
        a(f'v_mbcnt_lo_u32_b32 v{ST+j}, s{64+2*j}, 0')
        a(f'v_mbcnt_hi_u32_b32 v{ST+j}, s{65+2*j}, v{ST+j}')
        a(f'v_add_lshl_u32 v{ST+j}, v{ST+j}, s{88+j}, 2')
    a('s_waitcnt lgkmcnt(0)')
    a(f'v_readfirstlane_b32 s97, v{T+2}')
    a('s_lshl_b32 s97, s97, 2')
    for j in range(4):
        a(f's_mov_b64 exec, s[{64+2*j}:{65+2*j}]')
        a(f'v_add_u32 v{ST+j}, s97, v{ST+j}')
        a(f'ds_write_b32 v{ST+j}, v{KEY+j} offset:{L_LIST}')
    a('s_mov_b64 exec, -1')
    a('v_lshlrev_b32 v7, 2, v0')
    a('s_lshl_b32 s17, s10, 5')
    a(f's_add_u32 s17, s17, {L_SEL}')
    pace(2, PC[2], [2], False)
    a('s_mov_b32 s12, 0')
    a('s_waitcnt lgkmcnt(0)')
    a('s_barrier')
    stamp(a, 4)
    C = 32
    a(f'ds_read_b32 v14, v9 offset:{L_CNT}')
    a.label('Lfs_rank_outer')
    a(f'ds_read_b32 v{ST}, v7 offset:{L_LIST}')
    a(f'v_mov_b32 v{ST+1}, 0')
    a(f'v_mov_b32 v{ST+2}, 0')
    a(f'v_mov_b32 v{ST+3}, 0')
    a('s_mov_b32 s97, 0')
    a.label('Lfs_rank_inner')
    for i in range(8): a(f'ds_read_b128 {vr(C+4*i,4)}, v{ST+2} offset:{L_LIST+16*i}')
    a(f'v_add_u32 v{ST+2}, 128, v{ST+2}')
    for q in range(4):
        a(f's_waitcnt lgkmcnt({6-2*q})')
        for i in range(8): a(f'v_cmp_gt_u32 s[{64+2*i}:{65+2*i}], v{C+8*q+i}, v{ST}')
        for i in range(8): a(f'v_addc_co_u32 v{ST+1+2*(i%2)}, vcc, 0, v{ST+1+2*(i%2)}, s[{64+2*i}:{65+2*i}]')
    a('v_readfirstlane_b32 s96, v14')
    a('s_add_u32 s97, s97, 32')
    a('s_cmp_lt_u32 s97, s96')
    a('s_cbranch_scc1 Lfs_rank_inner')
    a(f'v_add_u32 v{ST+1}, v{ST+1}, v{ST+3}')
    a(f'v_cmp_gt_u32 vcc, 8, v{ST+1}')
    a(f'v_lshl_add_u32 v{ST+1}, v{ST+1}, 2, s17')
    a('s_and_saveexec_b64 s[18:19], vcc')
    a(f'ds_write_b32 v{ST+1}, v{ST}')
    a('s_mov_b64 exec, s[18:19]')
    a('v_add_u32 v7, 256, v7')
    a('s_add_u32 s12, s12, 64')
    a('s_cmp_lt_u32 s12, s96')
    a('s_cbranch_scc1 Lfs_rank_outer')
    a('v_and_b32 v10, 7, v0')
    a('v_lshl_add_u32 v7, v10, 2, s17')
    a('ds_read_b32 v11, v7')
    a('v_lshrrev_b32 v13, 4, v0')
    a('s_and_b32 s59, s10, 3')
    a('s_lshr_b32 s60, s10, 2')
    a('s_waitcnt lgkmcnt(0)')
    stamp(a, 5)
    a('v_and_b32 v8, 2047, v11')
    a('v_sub_u32 v8, 2047, v8')
    a('v_bfe_u32 v12, v8, 4, 4')
    a('v_lshlrev_b32 v12, 7, v12')
    a('v_and_or_b32 v12, v8, 15, v12')
    a('v_lshrrev_b32 v9, 8, v8')
    a('v_lshl_add_u32 v12, v9, 4, v12')
    a('v_lshlrev_b32 v8, 2, v8')
    a('s_cmp_eq_u32 s54, 1')
    a('s_cbranch_scc1 Lfs_down')
    a('s_cmp_eq_u32 s54, 2')
    a('s_cbranch_scc1 Lfs_none')

    XF = 16; WFg = 40; WFu = 60; G = 80; U = 84; M = 4
    a('v_mul_u32_u24 v7, 1280, v12')
    a('v_lshl_add_u32 v7, v13, 4, v7')
    a('s_mul_i32 s11, s59, 320')
    a(f's_add_u32 s11, s11, {hx(WS_X1)}')
    a('buffer_load_dword v2, v8, s[28:31], s44 offen')
    a('buffer_load_dword v3, v8, s[28:31], s45 offen')
    a('s_mov_b32 exec_lo, 0x00ff00ff')
    a('s_mov_b32 exec_hi, 0x00ff00ff')
    for s in range(5): a(f'buffer_load_dwordx4 {vr(XF+4*s,4)}, v7, s[28:31], s11 offen offset:{64*s}')
    a('s_not_b64 exec, exec')
    for i in range(20): a(f'v_mov_b32 v{XF+i}, {hx(ONES2)}')
    a('s_mov_b64 exec, -1')
    a('v_lshrrev_b32 v6, 2, v0')
    a('v_lshlrev_b32 v6, 6, v6')
    a('v_and_b32 v7, 3, v0')
    a('v_lshl_add_u32 v6, v7, 3, v6')
    a('s_mul_i32 s11, s59, 10240')
    a('s_lshl_b32 s12, s60, 5')
    a('s_add_u32 s11, s11, s12')
    a(f's_add_u32 s11, s11, {L_W}')
    a('v_add_u32 v6, s11, v6')
    a('s_waitcnt vmcnt(7)')
    a('s_barrier')
    for s in range(5):
        for j in range(2):
            a(f'ds_read_b64_tr_b16 {vr(WFg+4*s+2*j,2)}, v6 offset:{2048*s+1024*j}')
            a(f'ds_read_b64_tr_b16 {vr(WFu+4*s+2*j,2)}, v6 offset:{40960+2048*s+1024*j}')
    a('v_lshlrev_b32 v7, 6, v10')
    a('v_lshrrev_b32 v9, 3, v0')
    a('v_lshl_add_u32 v8, v9, 3, v7')
    a('s_lshl_b32 s12, s60, 12')
    a('v_add_u32 v8, s12, v8')
    a('v_lshl_add_u32 v7, v13, 4, v7')
    a('s_lshl_b32 s12, s10, 10')
    a('v_add_u32 v7, s12, v7')
    a('s_waitcnt vmcnt(5)')
    ln_scalars(a, 2, 3, M, M + 1, 14)
    a('s_waitcnt vmcnt(0) lgkmcnt(0)')
    stamp(a, 6)
    for s in range(5):
        a(f'v_mfma_f32_16x16x32_bf16 {vr(G,4)}, {vr(WFg+4*s,4)}, {vr(XF+4*s,4)}, {"0" if s == 0 else vr(G,4)}')
        a(f'v_mfma_f32_16x16x32_bf16 {vr(U,4)}, {vr(WFu+4*s,4)}, {vr(XF+4*s,4)}, {"0" if s == 0 else vr(U,4)}')
    for i in range(8): a(f'v_mov_b32_dpp v{WFg+i}, v{G+i} row_newbcast:8 row_mask:0xf bank_mask:0xf')
    for i in range(8): a(f'v_fma_f32 v{G+i}, -v{M}, v{WFg+i}, v{G+i}')
    a('s_mov_b32 exec_lo, 0x00ff00ff')
    a('s_mov_b32 exec_hi, 0x00ff00ff')
    a(f'ds_write_b128 v7, {vr(G,4)} offset:{L_RED}')
    a(f'ds_write_b128 v7, {vr(U,4)} offset:{L_RED+512}')
    a('s_mov_b64 exec, -1')
    a('s_waitcnt lgkmcnt(0)')
    a('s_barrier')
    stamp(a, 7)
    a('s_cmp_lg_u32 s59, 0')
    a('s_cbranch_scc1 Lfs_gu2')
    for w in range(4):
        for m in range(2): a(f'ds_read_b64 {vr(XF+8*m+2*w,2)}, v8 offset:{L_RED+1024*w+512*m}')
    a('v_lshrrev_b32 v7, 2, v9')
    a('v_lshlrev_b32 v7, 7, v7')
    a('v_lshl_add_u32 v7, v10, 4, v7')
    a('v_and_b32 v9, 3, v9')
    a('v_lshl_add_u32 v7, v9, 2, v7')
    a('s_lshl1_add_u32 s11, s62, s60')
    a('s_lshl_b32 s11, s11, 8')
    a(f's_add_u32 s11, s11, {hx(WS_H)}')
    a('s_add_u32 s11, s11, s51')
    a('s_waitcnt lgkmcnt(0)')
    for m in range(2):
        a(f'v_pk_add_f32 {vr(XF+8*m,2)}, {vr(XF+8*m,2)}, {vr(XF+8*m+2,2)}')
        a(f'v_pk_add_f32 {vr(XF+8*m+4,2)}, {vr(XF+8*m+4,2)}, {vr(XF+8*m+6,2)}')
    for m, d in ((0, G), (1, U)): a(f'v_pk_add_f32 {vr(d,2)}, {vr(XF+8*m,2)}, {vr(XF+8*m+4,2)}')
    for d in (G, U): a(f'v_pk_mul_f32 {vr(d,2)}, {vr(d,2)}, {vr(M,2)} op_sel:[0,1] op_sel_hi:[1,1]')
    for d in (G, U): a(f'v_cvt_pk_bf16_f32 v{d+2}, v{d}, v{d+1}')
    for d in (G, U): unpack(a, d, d + 2)
    for i in range(2): a(f'v_mul_f32 v{G+2+i}, {NL2E}, v{G+i}')
    for i in range(2): a(f'v_exp_f32 v{G+2+i}, v{G+2+i}')
    for i in range(2): a(f'v_add_f32 v{G+2+i}, 1.0, v{G+2+i}')
    for i in range(2): a(f'v_rcp_f32 v{G+2+i}, v{G+2+i}')
    for i in range(2): a(f'v_mul_f32 v{G+i}, v{G+i}, v{G+2+i}')
    a(f'v_cvt_pk_bf16_f32 v{G+2}, v{G}, v{G+1}')
    unpack(a, G, G + 2)
    for i in range(2): a(f'v_mul_f32 v{G+i}, v{G+i}, v{U+i}')
    a(f'v_cvt_pk_bf16_f32 v{G+2}, v{G}, v{G+1}')
    a(f'v_min_u32 v{G+2}, -2, v{G+2}')
    a(f'buffer_store_dword v{G+2}, v7, s[28:31], s11 offen sc0 sc1')
    a.label('Lfs_gu2')
    stamp(a, 8)
    a('s_cmp_eq_u32 s53, 0')
    a('s_cbranch_scc1 Lfs_fin')
    a('s_cmp_lt_u32 s13, 40')
    a('s_cbranch_scc1 Lfs_fix')
    a('s_branch Lfs_fin')

    a.label('Lfs_down')
    WD = 16; HF = 88; Y = 112; X = 128; TT = 132; SG = 136; XN = 138
    a('s_min_u32 s61, s10, 2')
    a('s_mul_i32 s11, s14, 3')
    a('s_add_u32 s61, s61, s11')
    a('s_lshl_b32 s11, s61, 5')
    a('s_add_u32 s16, s11, s52')
    a(f's_add_u32 s11, s11, {hx(WS_X1)}')
    a('v_mul_u32_u24 v14, 1280, v12')
    a('v_lshl_add_u32 v14, v13, 3, v14')
    a('buffer_load_dword v2, v8, s[28:31], s44 offen')
    a('buffer_load_dword v3, v8, s[28:31], s45 offen')
    a(f'buffer_load_dwordx2 {vr(X,2)}, v14, s[28:31], s11 offen')
    a('v_lshl_add_u32 v6, v0, 3, s58')
    a('s_barrier')
    a('v_and_b32 v8, 0xfffff800, v11')
    a('v_ashrrev_i32 v9, 31, v8')
    a('v_not_b32 v9, v9')
    a('v_or_b32 v9, 0x80000000, v9')
    a('v_xor_b32 v8, v8, v9')
    rbf16(a, 8, 8)
    a(f'v_mul_f32 v8, {NL2E}, v8')
    a('v_exp_f32 v8, v8')
    a('v_add_f32 v8, 1.0, v8')
    a('v_rcp_f32 v8, v8')
    rbf16(a, SG, 8)
    a('s_waitcnt vmcnt(3)')
    for t in range(3):
        for s in range(6):
            for j in range(2): a(f'ds_read_b64_tr_b16 {vr(WD+24*t+4*s+2*j,2)}, v6 offset:{6144*t+1024*s+512*j}')
    a('s_waitcnt vmcnt(0)')
    ln_scalars(a, 2, 3, M, M + 1, 7)
    for i in range(2):
        unpack(a, Y + 12 + 2 * i, X + i)
        xn_pair(a, Y + 12 + 2 * i, M, TT)
        a(f'v_mov_b32 v{XN+i}, v{TT}')
    a('s_branch Lfs_down2')

    a.label('Lfs_none')
    a('s_cmp_eq_u32 s53, 0')
    a('s_cbranch_scc1 Lfs_none2')
    a('s_lshl3_add_u32 s11, s13, s10')
    a(f's_cmp_lg_u32 s11, {63*8}')
    a('s_cbranch_scc1 Lfs_fin')
    a('v_lshlrev_b32 v7, 2, v10')
    a('v_and_b32 v8, 2047, v11')
    a(f's_mov_b32 s11, {hx(WS_SEL)}')
    a('s_mov_b64 exec, 0xff')
    a('buffer_store_dword v8, v7, s[28:31], s11 offen sc0 sc1')
    a('s_branch Lfs_fin')
    a.label('Lfs_none2')
    a('s_cmp_lt_u32 s13, 64')
    a('s_cbranch_scc1 Lfs_fin')

    a.label('Lfs_elem')
    E = 140; XD = 160; EO = 180
    a('s_and_b32 s11, s13, 63')
    a('s_mul_i32 s12, s11, 40960')
    a('s_add_u32 s18, s12, s52')
    a(f's_add_u32 s12, s12, {hx(WS_X1)}')
    a(f'v_lshrrev_b32 v{E}, 4, v15')
    a(f'v_mul_u32_u24 v{E+1}, 1280, v{E}')
    a(f'v_and_b32 v{E+2}, 15, v15')
    a(f'v_lshl_add_u32 v{E+1}, v{E+2}, 4, v{E+1}')
    for i in range(5): a(f'buffer_load_dwordx4 {vr(XD+4*i,4)}, v{E+1}, s[28:31], s12 offen offset:{256*i}')
    a('s_and_b32 s19, s11, 3')
    a('s_lshl1_add_u32 s19, s19, s60')
    a('s_lshl_b32 s19, s19, 8')
    a('s_lshr_b32 s11, s11, 2')
    a('s_lshl4_add_u32 s19, s11, s19')
    a(f'v_and_b32 v{E}, 15, v{E}')
    a(f'v_add_u32 v{E}, s19, v{E}')
    a(f'v_lshlrev_b32 v{E+2}, 2, v{E}')
    a(f'buffer_load_dword v{E+4}, v{E+2}, s[28:31], s44 offen')
    a(f'buffer_load_dword v{E+5}, v{E+2}, s[28:31], s45 offen')
    a(f'v_mov_b32 v{E+3}, s17')
    a(f'ds_read_b128 {vr(E+8,4)}, v{E+3}')
    a(f'ds_read_b128 {vr(E+12,4)}, v{E+3} offset:16')
    a(f'v_sub_u32 v{E}, 2047, v{E}')
    a('s_waitcnt vmcnt(0) lgkmcnt(0)')
    ln_scalars(a, E + 4, E + 5, E + 6, E + 7, E + 3)
    for i in range(8):
        a(f'v_and_b32 v{E+8+i}, 2047, v{E+8+i}')
        a(f'v_cmp_ne_u32 vcc, v{E+8+i}, v{E}')
        a('s_and_b64 exec, exec, vcc')
    a('s_cbranch_execz Lfs_eskip')
    MM = vr(E + 6, 2)
    for i in range(0, 20, 2):
        tt = [E + 8, E + 14]
        for k in range(2): unpack(a, tt[k] + 4, XD + i + k)
        for k in range(2): a(f'v_pk_add_f32 {vr(tt[k]+2,2)}, {vr(tt[k]+4,2)}, {MM} op_sel_hi:[1,0] neg_lo:[0,1] neg_hi:[0,1]')
        for k in range(2): a(f'v_cvt_pk_bf16_f32 v{tt[k]}, v{tt[k]+2}, v{tt[k]+3}')
        for k in range(2): unpack(a, tt[k] + 2, tt[k])
        for k in range(2): a(f'v_pk_mul_f32 {vr(tt[k]+2,2)}, {vr(tt[k]+2,2)}, {MM} op_sel:[0,1] op_sel_hi:[1,1]')
        for k in range(2): a(f'v_cvt_pk_bf16_f32 v{tt[k]}, v{tt[k]+2}, v{tt[k]+3}')
        for k in range(2): unpack(a, tt[k] + 2, tt[k])
        for k in range(2): a(f'v_pk_add_f32 {vr(tt[k]+2,2)}, {vr(tt[k]+2,2)}, {vr(tt[k]+4,2)}')
        for k in range(2): a(f'v_cvt_pk_bf16_f32 v{XD+i+k}, v{tt[k]+2}, v{tt[k]+3}')
        if i % 4 == 2: a(f'buffer_store_dwordx4 {vr(XD+i-2,4)}, v{E+1}, s[20:23], s18 offen offset:{256*(i//4)} sc1')
    a.label('Lfs_eskip')
    endpgm(a)

    a.label('Lfs_down2')
    a('v_lshlrev_b32 v7, 7, v13')
    a('v_lshl_add_u32 v7, v10, 4, v7')
    a('s_mul_i32 s11, s10, 3072')
    a(f's_add_u32 s11, s11, {hx(WS_H)}')
    a('s_add_u32 s11, s11, s51')
    def poll(tag, reg, n, masked):
        a('s_mov_b32 s15, 0')
        a.label(f'Lfs_poll{tag}')
        a('s_add_u32 s15, s15, 1')
        a('s_and_b32 s18, s15, 7')
        a(f's_cbranch_scc1 Lfs_pl{tag}')
        for s in range(n): a(f'buffer_load_dwordx4 {vr(reg+4*s,4)}, v7, s[28:31], s11 offen offset:{512*s} sc0 sc1')
        a(f's_branch Lfs_pm{tag}')
        a.label(f'Lfs_pl{tag}')
        for s in range(n): a(f'buffer_load_dwordx4 {vr(reg+4*s,4)}, v7, s[28:31], s11 offen offset:{512*s} {os.environ.get("PSC", "sc1")}')
        a.label(f'Lfs_pm{tag}')
        for s in range(n):
            a(f's_waitcnt vmcnt({n-1-s})')
            r = reg + 4 * s
            if s == 0: a(f'v_max_u32 v8, v{r}, v{r+1}')
            else: a(f'v_max3_u32 v8, v{r}, v{r+1}, v8')
            a(f'v_max3_u32 v8, v{r+2}, v{r+3}, v8')
        a('v_cmp_eq_u32 vcc, -1, v8')
        a('s_cmp_gt_u32 s15, 0x40000')
        a(f's_cbranch_scc1 Lfs_go{tag}')
        a(f's_cbranch_vccz Lfs_go{tag}')
        a(f's_sleep {os.environ.get("SLP", "2")}')
        a(f's_branch Lfs_poll{tag}')
        a.label(f'Lfs_go{tag}')
    poll('h', HF, 6, False)
    a('s_waitcnt lgkmcnt(0)')
    stamp(a, 6)
    for s in range(6):
        for t in range(3):
            a(f'v_mfma_f32_16x16x32_bf16 {vr(Y+4*t,4)}, {vr(WD+24*t+4*s,4)}, {vr(HF+4*s,4)}, {"0" if s == 0 else vr(Y+4*t,4)}')
    a('s_mul_i32 s12, s10, 1536')
    a('v_add_u32 v8, s12, v7')
    for t in range(3): a(f'ds_write_b128 v8, {vr(Y+4*t,4)} offset:{L_RED+512*t}')
    a('s_lshl_b32 s12, s10, 9')
    a('v_add_u32 v8, s12, v7')
    a('s_waitcnt lgkmcnt(0)')
    a('s_barrier')
    stamp(a, 7)
    a('s_cmp_gt_u32 s10, 2')
    a('s_cbranch_scc1 Lfs_fin')
    a('s_cmp_ge_u32 s61, 40')
    a('s_cbranch_scc1 Lfs_fin')
    for w in range(8): a(f'ds_read_b128 {vr(WD+4*w,4)}, v8 offset:{L_RED+1536*w}')
    a('v_lshrrev_b32 v7, 1, v13')
    a('v_lshlrev_b32 v7, 7, v7')
    a('v_lshl_add_u32 v7, v10, 4, v7')
    a('v_and_b32 v9, 1, v13')
    a('v_lshl_add_u32 v7, v9, 3, v7')
    a('s_lshl_b32 s11, s61, 8')
    a(f's_add_u32 s11, s11, {hx(WS_XS)}')
    a('s_add_u32 s11, s11, s51')
    a('s_waitcnt lgkmcnt(0)')
    for st_ in (4, 2, 1):
        for w in range(st_):
            for i in range(2): a(f'v_pk_add_f32 {vr(WD+4*w+2*i,2)}, {vr(WD+4*w+2*i,2)}, {vr(WD+4*(w+st_)+2*i,2)}')
    for i in range(2):
        y = WD + 2 * i
        a(f'v_cvt_pk_bf16_f32 v{TT}, v{y}, v{y+1}')
        unpack(a, y, TT)
        a(f'v_pk_mul_f32 {vr(y,2)}, {vr(y,2)}, {vr(SG,2)} op_sel_hi:[1,0]')
        a(f'v_cvt_pk_bf16_f32 v{TT}, v{y}, v{y+1}')
        unpack(a, y, TT)
        unpack(a, TT + 2, XN + i)
        a(f'v_pk_add_f32 {vr(y,2)}, {vr(y,2)}, {vr(TT+2,2)}')
        a(f'v_cvt_pk_bf16_f32 v{TT}, v{y}, v{y+1}')
        unpack(a, y, TT)
        a(f'v_pk_add_f32 {vr(y,2)}, {vr(y,2)}, {vr(Y+12+2*i,2)}')
        a(f'v_cvt_pk_bf16_f32 v{X+i}, v{y}, v{y+1}')
        a(f'v_min_u32 v{X+2+i}, -2, v{X+i}')
    a('s_mov_b32 exec_lo, 0x00ff00ff')
    a('s_mov_b32 exec_hi, 0x00ff00ff')
    a(f'buffer_store_dwordx2 {vr(X+2,2)}, v7, s[28:31], s11 offen sc0 sc1')
    a(f'buffer_store_dwordx2 {vr(X,2)}, v14, s[20:23], s16 offen sc1')
    endpgm(a)

    a.label('Lfs_fix')
    WA = 40; WB = 60; DA = 80; DB = 84
    a('s_barrier')
    for i in range(3):
        a(f'v_add_u32 v16, {64*i}, v0')
        a('v_mul_u32_u24 v17, 10923, v16')
        a('v_lshrrev_b32 v17, 16, v17')
        a('v_mul_u32_u24 v18, 6, v17')
        a('v_sub_u32 v16, v16, v18')
        a('v_and_b32 v18, 12, v17')
        a('v_and_b32 v19, 3, v17')
        a('v_lshl_or_b32 v18, v18, 1, v19')
        a('v_lshrrev_b32 v17, 4, v17')
        a('v_lshl_or_b32 v18, v17, 2, v18')
        a('v_mul_u32_u24 v18, 3840, v18')
        a(f'v_lshl_add_u32 v{20+i}, v16, 4, v18')
    a(f's_mul_i32 s11, s10, {32*3840}')
    a('s_mul_i32 s12, s63, 96')
    a('s_add_u32 s11, s11, s12')
    a('s_mul_i32 s12, s10, 3072')
    a(f's_add_u32 s12, s12, {L_FX}')
    for n in range(3):
        if n == 2:
            a('s_cmp_ge_u32 s10, 4')
            a('s_cbranch_scc1 Lfs_nofx')
        for i in range(3):
            a(f's_add_u32 m0, s12, {24576*n+1024*i}')
            a(f'buffer_load_dwordx4 v{20+i}, s[24:27], s11 offen lds')
        if n < 2: a(f's_add_u32 s11, s11, {256*3840}')
    a.label('Lfs_nofx')
    a('v_lshrrev_b32 v6, 2, v0')
    a('v_mul_u32_u24 v6, 96, v6')
    a('v_and_b32 v7, 3, v0')
    a('v_lshl_add_u32 v6, v7, 3, v6')
    a('s_mul_i32 s11, s59, 15360')
    a('s_lshl_b32 s12, s60, 6')
    a('s_add_u32 s11, s11, s12')
    a(f's_add_u32 s11, s11, {L_FX}')
    a('v_add_u32 v6, s11, v6')
    a('s_waitcnt vmcnt(0)')
    a('s_barrier')
    stamp(a, 9)
    for s in range(5):
        for j in range(2):
            a(f'ds_read_b64_tr_b16 {vr(WA+4*s+2*j,2)}, v6 offset:{3072*s+1536*j}')
            a(f'ds_read_b64_tr_b16 {vr(WB+4*s+2*j,2)}, v6 offset:{3072*s+1536*j+32}')
    a('v_lshlrev_b32 v7, 7, v13')
    a('v_lshl_add_u32 v7, v10, 4, v7')
    a('s_mul_i32 s11, s59, 2560')
    a(f's_add_u32 s11, s11, {hx(WS_XS)}')
    for i in range(20): a(f'v_mov_b32 v{XF+i}, {hx(ONES2)}')
    a('s_mov_b32 exec_lo, 0x00ff00ff')
    a('s_mov_b32 exec_hi, 0x00ff00ff')
    poll('x', XF, 5, True)
    a('s_mov_b64 exec, -1')
    a('s_waitcnt lgkmcnt(0)')
    stamp(a, 10)
    a('s_cmp_eq_u32 s60, 0')
    a('s_cbranch_scc1 Lfs_fx2')
    for i in range(20): a(f'v_mov_b32 v{WB+i}, v{XF+i}')
    a.label('Lfs_fx2')
    for s in range(5):
        a(f'v_mfma_f32_16x16x32_bf16 {vr(DA,4)}, {vr(WA+4*s,4)}, {vr(XF+4*s,4)}, {"0" if s == 0 else vr(DA,4)}')
        a(f'v_mfma_f32_16x16x32_bf16 {vr(DB,4)}, {vr(WB+4*s,4)}, {vr(XF+4*s,4)}, {"0" if s == 0 else vr(DB,4)}')
    a('s_lshl_b32 s11, s59, 12')
    a('s_lshl_b32 s12, s60, 11')
    a('s_add_u32 s11, s11, s12')
    a('v_add_u32 v8, s11, v1')
    a(f'ds_write_b128 v8, {vr(DA,4)} offset:{L_W}')
    a(f'ds_write_b128 v8, {vr(DB,4)} offset:{L_W+1024}')
    a('s_lshl_b32 s11, s10, 10')
    a('v_add_u32 v8, s11, v1')
    a('v_lshrrev_b32 v9, 2, v10')
    a('v_lshlrev_b32 v9, 8, v9')
    a('v_lshl_add_u32 v9, v10, 4, v9')
    a('v_and_b32 v7, 3, v10')
    a('v_lshl_add_u32 v9, v7, 2, v9')
    a('v_lshlrev_b32 v7, 4, v10')
    a('s_waitcnt lgkmcnt(0)')
    a('s_barrier')
    a('s_cmp_gt_u32 s10, 2')
    a('s_cbranch_scc1 Lfs_fin')
    for q in range(4):
        a(f'ds_read_b32 v{40+q}, v7 offset:{L_W+4096*q+3072+512}')
        a(f'ds_read_b32 v{44+q}, v9 offset:{L_W+4096*q+3072}')
    for q in range(4): a(f'ds_read_b128 {vr(16+4*q,4)}, v8 offset:{L_W+4096*q}')
    a('s_mul_i32 s11, s63, 3')
    a('s_add_u32 s11, s11, s10')
    a('s_cmp_lt_u32 s11, 40')
    a(f's_cselect_b32 s12, {hx(QSCALE)}, 1.0')
    a('s_lshl_b32 s11, s11, 16')
    a('v_lshrrev_b32 v6, 1, v13')
    a('v_lshlrev_b32 v6, 15, v6')
    a('v_lshl_add_u32 v6, v12, 4, v6')
    a('v_and_b32 v14, 1, v13')
    a('v_lshl_add_u32 v6, v14, 3, v6')
    a('s_waitcnt lgkmcnt(4)')
    for b in (40, 44):
        a(f'v_add_f32 v{b}, v{b}, v{b+1}')
        a(f'v_add_f32 v{b+2}, v{b+2}, v{b+3}')
        a(f'v_add_f32 v{b}, v{b}, v{b+2}')
    ln_scalars(a, 40, 44, M, M + 1, 14)
    a(f'v_mul_f32 v{M+1}, s12, v{M+1}')
    a('s_waitcnt lgkmcnt(0)')
    for i in range(2):
        a(f'v_pk_add_f32 {vr(16+2*i,2)}, {vr(16+2*i,2)}, {vr(20+2*i,2)}')
        a(f'v_pk_add_f32 {vr(24+2*i,2)}, {vr(24+2*i,2)}, {vr(28+2*i,2)}')
    for i in range(2): a(f'v_pk_add_f32 {vr(16+2*i,2)}, {vr(16+2*i,2)}, {vr(24+2*i,2)}')
    for i in range(4): a(f'v_mov_b32_dpp v{20+i}, v{16+i} row_newbcast:8 row_mask:0xf bank_mask:0xf')
    for i in range(4): a(f'v_fma_f32 v{16+i}, -v{M}, v{20+i}, v{16+i}')
    for i in range(4): a(f'v_mul_f32 v{16+i}, v{16+i}, v{M+1}')
    a('v_cvt_pk_bf16_f32 v20, v16, v17')
    a('v_cvt_pk_bf16_f32 v21, v18, v19')
    a('s_mov_b32 exec_lo, 0x00ff00ff')
    a('s_mov_b32 exec_hi, 0x00ff00ff')
    a('buffer_store_dwordx2 v[20:21], v6, s[28:31], s11 offen sc1')
    a.label('Lfs_fin')
    endpgm(a)
    a.label('Lfs_end')
    a('s_endpgm')
```

```python
from common import *
from k_ffn import FS_LDS
X = os.environ.get('XQ', '')
NT = ' nt' if 'N' in X else ''
SLOT = 36864; NSLOT = 3
MR = NSLOT * SLOT; CS = MR + 1024
SK = CS + 1024
QKV_LDS = SK + 512

def gen_qkv(a):
    a.pv = 199
    kernel_start(a, 'qkv2_kernel')
    ksrd(a, 20, KA_WS, WS_SIZE)
    a(f's_mov_b32 s3, {hx(WS_X1)}')
    a('s_branch Lqkv_common')
    kernel_start(a, 'qkv1_kernel')
    ksrd(a, 20, KA_X, S * D * 2)
    a('s_mov_b32 s3, 0')
    a.label('Lqkv_common')
    ksrd(a, 24, KA_WQKV, D * 3 * D * 2)
    ksrd(a, 28, KA_WS, WS_SIZE)
    a('s_cmp_ge_u32 s2, 256')
    a('s_cbranch_scc1 Lqkv_end')
    wave_lane(a)
    a('s_and_b32 s11, s2, 7')
    a('s_lshr_b32 s12, s2, 3')
    a('s_sub_u32 s12, s12, 8')
    a('s_lshr_b32 s13, s11, 1')
    a('s_and_b32 s15, s12, 3')
    a('s_lshl2_add_u32 s13, s13, s15')
    a('s_and_b32 s14, s11, 1')
    a('s_mul_i32 s14, s14, 6')
    a('s_lshr_b32 s16, s12, 2')
    a('s_add_u32 s14, s14, s16')
    a(f's_mov_b32 s40, {SLOT}')
    a(f's_mov_b32 s44, {hx(WS_EP)}')
    a('s_cmp_lt_u32 s2, 64')
    a('s_cbranch_scc1 Lqkv_side')
    a('s_cmp_lt_u32 s10, 4')
    a('s_cbranch_scc1 Lqkv_comp')

    VA = 2; VW = 6
    a('s_mul_i32 s15, s15, 3')
    a('s_add_u32 s15, s15, s16')
    a('s_add_u32 s15, s15, s11')
    mod_small(a, 15, 10, 2)
    a('s_sub_u32 s16, s10, 4')
    a('v_lshrrev_b32 v12, 3, v0')
    a('v_lshrrev_b32 v13, 4, v0')
    a('v_and_b32 v14, 7, v0')
    a('v_xor_b32 v14, v14, v13')
    a('s_lshl_b32 s17, s16, 5')
    a('v_add_u32 v12, s17, v12')
    a('v_mul_u32_u24 v12, 1280, v12')
    a(f'v_lshl_add_u32 v{VA}, v14, 4, v12')
    a('v_xor_b32 v14, 4, v14')
    a(f'v_lshl_add_u32 v{VA+1}, v14, 4, v12')
    a(f'v_add_u32 v{VA+1}, {10240-1024}, v{VA+1}')
    a(f'v_add_u32 v{VA+2}, {2*(10240-1024)}, v{VA}')
    a(f'v_add_u32 v{VA+3}, {2*(10240-1024)}, v{VA+1}')
    a(f's_mul_i32 s17, s16, {16*3840}')
    a('s_mul_i32 s18, s14, 320')
    a('s_add_u32 s41, s17, s18')
    a(f's_mov_b32 s42, {64*3840}')
    for i in range(5):
        a(f'v_add_u32 v12, {64*i}, v0')
        a('v_mul_u32_u24 v13, 3277, v12')
        a('v_lshrrev_b32 v13, 16, v13')
        a('v_mul_u32_u24 v14, 20, v13')
        a('v_sub_u32 v12, v12, v14')
        a('v_lshrrev_b32 v14, 2, v13')
        a('v_and_b32 v14, 2, v14')
        a('v_xor_b32 v12, v12, v14')
        a('v_mul_u32_u24 v13, 3840, v13')
        a(f'v_lshl_add_u32 v{VW+i}, v12, 4, v13')
        if 0 < i < 4: a(f'v_subrev_u32 v{VW+i}, {1024*i}, v{VW+i}')
    a('s_mul_i32 s18, s13, 163840')
    a('s_add_u32 s18, s18, s3')
    a('s_lshl_b32 s36, s15, 7')
    a('s_add_u32 s36, s36, s18')
    a('s_mul_i32 s37, s15, s42')
    a('s_add_u32 s37, s37, s41')
    a('s_lshl_b32 s17, s16, 12')
    a('s_mov_b32 s38, s17')
    a('s_lshl_b32 s39, s16, 10')
    a('s_add_u32 s39, s39, 0x4000')
    a('s_mov_b32 s33, -2')
    a('s_waitcnt lgkmcnt(0)')
    a('s_load_dword s45, s[28:29], s44')
    stamp(a, 1)
    a('s_branch Lqkv_issue')
    a.label('Lqkv_lloop')
    a('s_waitcnt vmcnt(9) lgkmcnt(0)')
    a('s_barrier')
    lstamp(a, 33)
    a.label('Lqkv_issue')
    a('s_mov_b32 m0, s38')
    for i in range(4): a(f'buffer_load_dwordx4 v{VA+i}, s[20:23], s36 offen offset:{1024*i}{NT} lds')
    a('s_add_u32 m0, s38, s39')
    for i in range(4): a(f'buffer_load_dwordx4 v{VW+i}, s[24:27], s37 offen offset:{1024*i}{NT} lds')
    a('s_add_u32 m0, m0, 4096')
    a(f'buffer_load_dwordx4 v{VW+4}, s[24:27], s37 offen{NT} lds')
    a('s_add_u32 s36, s36, 128')
    a('s_add_u32 s37, s37, s42')
    a('s_add_u32 s15, s15, 1')
    a('s_cmp_eq_u32 s15, 10')
    a('s_cselect_b32 s36, s18, s36')
    a('s_cselect_b32 s37, s41, s37')
    a(f's_add_u32 s38, s38, {SLOT}')
    a(f's_cmp_ge_u32 s38, {NSLOT*SLOT}')
    a('s_cselect_b32 s38, s17, s38')
    a('s_add_u32 s33, s33, 1')
    a('s_cmp_eq_u32 s33, -1')
    a('s_cbranch_scc1 Lqkv_issue')
    a('s_cmp_lt_u32 s33, 8')
    a('s_cbranch_scc1 Lqkv_lloop')
    a('v_and_b32 v12, 31, v0')
    a('v_lshlrev_b32 v2, 4, v12')
    a('v_min_u32 v3, 19, v12')
    a('v_lshlrev_b32 v3, 4, v3')
    a('v_lshrrev_b32 v13, 5, v0')
    a('v_mul_u32_u24 v13, 15360, v13')
    a('v_add_u32 v4, v3, v13')
    a('s_lshl2_add_u32 s19, s14, s16')
    a('s_mul_i32 s19, s19, 320')
    a(f's_add_u32 s19, s19, {hx(WS_CS)}')
    a('s_cmp_lt_u32 s14, 4')
    a(f's_cselect_b32 s47, {hx(QSCALE)}, 1.0')
    a('s_lshl_b32 s17, s16, 8')
    a(f's_add_u32 s17, s17, {MR}')
    a('v_lshl_add_u32 v5, v12, 3, s17')
    a('s_mul_i32 s17, s16, 160')
    a(f's_add_u32 s17, s17, {CS}')
    a('v_lshrrev_b32 v3, 1, v3')
    a('v_add_u32 v6, s17, v3')
    a('s_lshl_b32 s17, s16, 7')
    a(f's_add_u32 s17, s17, {SK}')
    a('v_lshl_add_u32 v7, v12, 2, s17')
    a('s_mov_b32 s33, 0')
    for i in range(4): a(f'v_mov_b32 v{44+i}, -1')
    a('s_sub_u32 s49, s2, 64')
    a('s_lshl2_add_u32 s49, s49, s16')
    a('s_mul_i32 s49, s49, 3584')
    a(f's_min_u32 s49, s49, {80*PLANE-3584}')
    a(f's_add_u32 s49, s49, {hx(WS_O)}')
    a('v_lshlrev_b32 v43, 4, v0')
    def fill():
        for i in range(4):
            if i == 3: a('s_mov_b32 exec_hi, 0')
            a(f'buffer_store_dwordx4 v[44:47], v43, s[28:31], s49 offen offset:{1024*i} sc1')
        a('s_mov_b32 exec_hi, -1')
    a('s_cmp_lg_u32 s3, 0')
    a('s_cbranch_scc1 Lqkv_tail2')
    a('s_lshl2_add_u32 s18, s13, s16')
    a('s_lshl_b32 s18, s18, 9')
    a(f's_add_u32 s18, s18, {hx(WS_MR)}')
    def fetch():
        a('buffer_load_dwordx4 v[16:19], v2, s[28:31], s18 offen sc0 sc1')
        a('buffer_load_dwordx4 v[20:23], v4, s[28:31], s19 offen sc0 sc1')
    fetch()
    a(f's_add_u32 s45, s45, {hx(EPK)}')
    a('s_not_b32 s46, s45')
    a('v_mov_b32 v24, 0')
    a('s_waitcnt vmcnt(11)')
    a('s_barrier')
    fill()
    a('s_waitcnt vmcnt(6)')
    a('s_barrier')
    a('s_waitcnt vmcnt(4)')
    a.label('Lqkv_hpoll')
    a('v_xor_b32 v18, s45, v18')
    a('v_xor_b32 v19, s46, v19')
    a('v_xor_b32 v21, s45, v21')
    a('v_xor_b32 v23, s45, v23')
    a('v_or_b32 v21, v21, v23')
    a('v_or3_b32 v18, v18, v19, v21')
    a('v_cmp_ne_u32 vcc, 0, v18')
    a('s_cbranch_vccz Lqkv_hgo')
    a('s_add_u32 s33, s33, 1')
    a('s_cmp_gt_u32 s33, 0x40000')
    a('s_cbranch_scc1 Lqkv_hgo')
    fetch()
    a('s_waitcnt vmcnt(0)')
    a('s_branch Lqkv_hpoll')
    a.label('Lqkv_tail2')
    a('v_lshrrev_b32 v8, 4, v12')
    a('v_lshlrev_b32 v8, 8, v8')
    a('v_and_or_b32 v8, v12, 15, v8')
    a('s_lshl_b32 s17, s16, 9')
    a('s_lshl4_add_u32 s17, s13, s17')
    a('v_add_u32 v8, s17, v8')
    a('v_lshlrev_b32 v9, 2, v8')
    a('v_mov_b32 v10, 0')
    a(f's_mov_b32 s17, {hx(WS_ST)}')
    a(f's_mov_b32 s18, {hx(WS_ST+8192)}')
    a(f's_mov_b32 s46, {hx(WS_SEL)}')
    a('buffer_load_dword v25, v9, s[28:31], s17 offen')
    a('buffer_load_dword v26, v9, s[28:31], s18 offen')
    a('buffer_load_dwordx4 v[20:23], v4, s[28:31], s19 offen')
    def fetch2():
        a('buffer_load_dwordx4 v[32:35], v10, s[28:31], s46 offen sc0 sc1')
        a('buffer_load_dwordx4 v[36:39], v10, s[28:31], s46 offen offset:16 sc0 sc1')
    fetch2()
    a('v_sub_u32 v8, 2047, v8')
    a('s_waitcnt vmcnt(14)')
    a('s_barrier')
    fill()
    a('s_waitcnt vmcnt(9)')
    a('s_barrier')
    a('s_waitcnt vmcnt(4)')
    inv = hx(f2u(1.0 / D))
    ln_scalars(a, 25, 26, 27, 28, 29)
    a(f'v_mul_f32 v25, {inv}, v25')
    a(f'v_mul_f32 v26, {inv}, v26')
    a('v_fma_f32 v26, -v25, v25, v26')
    a('v_max_f32 v26, 0, v26')
    a('v_add_f32 v29, 1.0, v28')
    a('v_sub_f32 v30, v25, v27')
    a('v_fma_f32 v25, v30, v28, v25')
    a('v_mul_f32 v26, v26, v29')
    a('v_mul_f32 v26, v26, v29')
    rbf16(a, 25, 25)
    rbf16(a, 26, 26)
    a(f'v_add_f32 v26, {hx(f2u(1e-5))}, v26')
    rbf16(a, 26, 26)
    a('v_sqrt_f32 v26, v26')
    a('v_rcp_f32 v30, v29')
    rbf16(a, 26, 26)
    a('v_rcp_f32 v26, v26')
    a('v_fma_f32 v16, v27, v28, v25')
    a('v_mul_f32 v16, v16, v30')
    a('v_mul_f32 v17, v29, v26')
    a.label('Lqkv_hpoll2')
    a('v_max3_u32 v30, v32, v33, v34')
    a('v_max3_u32 v31, v35, v36, v37')
    a('v_max3_u32 v30, v30, v38, v39')
    a('v_max_u32 v30, v30, v31')
    a('v_cmp_eq_u32 vcc, -1, v30')
    a('s_cbranch_vccz Lqkv_hgo2')
    a('s_add_u32 s33, s33, 1')
    a('s_cmp_gt_u32 s33, 0x40000')
    a('s_cbranch_scc1 Lqkv_hgo2')
    fetch2()
    a('s_waitcnt vmcnt(0)')
    a('s_branch Lqkv_hpoll2')
    a.label('Lqkv_hgo2')
    for i in range(8): a(f'v_xor_b32 v{32+i}, v{32+i}, v8')
    a('v_min3_u32 v30, v32, v33, v34')
    a('v_min3_u32 v31, v35, v36, v37')
    a('v_min3_u32 v30, v30, v38, v39')
    a('v_min_u32 v30, v30, v31')
    a('v_cmp_eq_u32 vcc, 0, v30')
    a('v_cndmask_b32 v24, 0, 1, vcc')
    a('s_cmp_lg_u32 s14, 0')
    a('s_cbranch_scc1 Lqkv_hgo')
    a('v_mov_b32 v32, v27')
    a('v_mov_b32 v33, v28')
    a('v_mov_b32 v34, v24')
    a('s_lshl2_add_u32 s18, s13, s16')
    a('s_lshl_b32 s18, s18, 9')
    a(f's_add_u32 s18, s18, {hx(WS_MR)}')
    a('buffer_store_dwordx4 v[32:35], v2, s[28:31], s18 offen sc1')
    a.label('Lqkv_hgo')
    a('ds_write_b32 v7, v24')
    a('v_mul_f32 v17, s47, v17')
    a('v_mov_b32 v21, v20')
    a('v_mov_b32 v23, v22')
    a('ds_write_b64 v5, v[16:17]')
    a('v_permlane32_swap_b32 v20, v21')
    a('v_permlane32_swap_b32 v22, v23')
    a('v_add_f32 v20, v20, v21')
    a('v_add_f32 v21, v22, v23')
    a('ds_write_b64 v6, v[20:21]')
    a('s_waitcnt lgkmcnt(0)')
    a('s_barrier')
    a.label('Lqkv_fin')
    endpgm(a)
    comp(a)
    side1(a)
    a.label('Lqkv_end')
    a('s_endpgm')
    reg_kernel('qkv1_kernel', 256, 512, QKV_LDS, 200, 100); reg_kernel('qkv2_kernel', 256, 512, FS_LDS, 200, 100)

def ack(a):
    a(f'v_mov_b32 v8, s45')
    a(f'v_add_u32 v8, {hx(EPK)}, v8')
    a('v_not_b32 v9, v8')
    a('v_mov_b32 v10, 0')
    a('s_lshl_b32 s46, s2, 3')
    a(f's_add_u32 s46, s46, {hx(WS_ACK)}')
    a('s_mov_b64 exec, 1')
    a('buffer_store_dwordx2 v[8:9], v10, s[28:31], s46 offen sc0 sc1')
    a('s_mov_b64 exec, -1')

def comp(a):
    a.label('Lqkv_comp')
    ACC = 16; BUF = 96; AX = 2; AW = 4
    CSR = 96; MRR = 116; T = 124
    a('s_and_b32 s16, s10, 1')
    a('s_lshr_b32 s17, s10, 1')
    a('v_and_b32 v12, 15, v0')
    a('v_lshrrev_b32 v13, 4, v0')
    a('v_bfe_u32 v14, v0, 1, 3')
    a('v_xor_b32 v14, v14, v13')
    a('v_lshlrev_b32 v14, 4, v14')
    a('v_lshl_add_u32 v14, v12, 7, v14')
    a('s_lshl_b32 s18, s17, 13')
    a(f'v_add_u32 v{AX}, s18, v14')
    a(f'v_xor_b32 v{AX+1}, 64, v{AX}')
    a('v_bfe_u32 v14, v0, 2, 2')
    a('v_lshl_add_u32 v14, v13, 3, v14')
    a('v_mul_u32_u24 v14, 320, v14')
    a('v_and_b32 v15, 3, v0')
    a('v_lshl_add_u32 v14, v15, 3, v14')
    a('s_mul_i32 s18, s16, 160')
    a('s_add_u32 s18, s18, 0x4000')
    a('v_add_u32 v14, s18, v14')
    a('v_and_b32 v15, 16, v0')
    a('v_lshlrev_b32 v15, 1, v15')
    a(f'v_add_u32 v{AW}, v14, v15')
    a(f'v_sub_u32 v{AW+1}, v14, v15')
    a('s_cmp_eq_u32 s16, 0')
    a('s_cbranch_scc1 Lqkv_nosw')
    a(f'v_swap_b32 v{AW}, v{AW+1}')
    a.label('Lqkv_nosw')
    a('s_waitcnt lgkmcnt(0)')
    a('s_load_dword s45, s[28:29], s44')
    for i in range(80): a(f'v_mov_b32 v{ACC+i}, 0')
    a('s_lshl1_add_u32 s19, s14, s16')
    a(f's_mul_i32 s19, s19, {10*PLANE}')
    a('s_lshl1_add_u32 s41, s13, s17')
    a('s_lshl_b32 s41, s41, 10')
    a('s_add_u32 s41, s41, s19')
    NR = 14
    def rd(b, s):
        base = BUF + 36 * b
        xs = [f'ds_read_b128 {vr(base+4*tt,4)}, v{AX+s} offset:{2048*tt}' for tt in range(4)]
        ws = [[f'ds_read_b64_tr_b16 {vr(base+16+4*ct+2*j,2)}, v{AW+ct%2} offset:{(32*s+4*j)*320+32*ct}' for j in range(2)] for ct in range(5)]
        return ws[0] + xs + sum(ws[1:], [])
    def mf(b):
        base = BUF + 36 * b
        L = []
        for ct in range(5):
            wneed = 2 if ct == 0 else 6 + 2 * ct
            for tt in range(4):
                acc = vr(ACC + (ct * 4 + tt) * 4, 4)
                L.append((f'v_mfma_f32_16x16x32_bf16 {acc}, {vr(base+16+4*ct,4)}, {vr(base+4*tt,4)}, {acc}', max(wneed, 3 + tt)))
        return L
    def kstep(b, R, start, extra={}, full=False):
        M = mf(b); R = list(R); issued = 0; have = 0
        if full:
            a('s_waitcnt lgkmcnt(0)'); have = NR
        for i, (m, need) in enumerate(M):
            if need > have:
                a(f's_waitcnt lgkmcnt({min(15, NR - need + issued)})'); have = need
            a(m)
            for x in extra.get(i, []): a(x)
            if i >= start and R:
                a(R.pop(0)); issued += 1
        assert not R
    a('s_mov_b32 s33, 0')
    a('s_mov_b32 s34, 0')
    a('s_waitcnt lgkmcnt(0)')
    stamp(a, 2)
    a('s_barrier')
    stamp(a, 3)
    cstamp(a, 12)
    for x in rd(0, 0): a(x)
    a('s_sub_u32 s47, s2, 64')
    a('s_xor_b32 s46, s10, 1')
    a('s_or_b32 s46, s46, s3')
    a('s_cmp_lg_u32 s46, 0')
    a('s_cbranch_scc1 Lqkv_noclr')
    a('s_cmp_ge_u32 s47, 134')
    a('s_cbranch_scc1 Lqkv_noclr')
    a('s_sub_u32 s46, s47, 67')
    a('s_min_u32 s46, s46, s47')
    a('s_cmp_lt_u32 s46, 32')
    a('s_cselect_b32 s46, 0, -1')
    for i in range(4): a(f'v_mov_b32 v{184+i}, s46')
    a('s_lshl_b32 s46, s47, 10')
    a(f's_add_u32 s46, s46, {hx(WS_CTL)}')
    a('v_lshlrev_b32 v1, 4, v0')
    a('buffer_store_dwordx4 v[184:187], v1, s[28:31], s46 offen sc1')
    a.label('Lqkv_noclr')
    a('s_or_b32 s46, s10, s3')
    a('s_cmp_lg_u32 s46, 0')
    a('s_cbranch_scc1 Lqkv_cloop')
    ack(a)
    a.label('Lqkv_cloop')
    ex = {0: ['s_add_u32 s34, s34, 1'], 1: [f's_cmp_eq_u32 s34, {NSLOT}'], 2: [f's_cselect_b32 s35, {hx(-(NSLOT-1)*SLOT)}, s40'], 3: ['s_cselect_b32 s34, 0, s34'],
          4: ['s_add_u32 s33, s33, 1'], 5: ['s_cmp_eq_u32 s33, 10']}
    for i in range(4): ex[14 + i] = [f'v_add_u32 v{AX+i}, s35, v{AX+i}']
    kstep(0, rd(1, 1), 0, extra=ex)
    a('s_cbranch_scc1 Lqkv_cdone')
    kstep(1, rd(0, 0), 2, extra={1: ['s_barrier']}, full=True)
    a('s_branch Lqkv_cloop')
    a.label('Lqkv_cdone')
    stamp(a, 4)
    cstamp(a, 13)
    a('s_waitcnt lgkmcnt(0)')
    for m, _ in mf(1): a(m)
    a('s_mul_i32 s18, s16, 320')
    a(f's_add_u32 s18, s18, {CS}')
    a(f'v_lshl_add_u32 v{AX}, v13, 4, s18')
    a('s_lshl_b32 s18, s17, 9')
    a(f's_add_u32 s18, s18, {MR}')
    a(f'v_lshl_add_u32 v{AX+2}, v12, 3, s18')
    a('v_and_b32 v1, 31, v0')
    a('s_lshl_b32 s18, s17, 8')
    a(f's_add_u32 s18, s18, {SK}')
    a(f'v_lshl_add_u32 v{AX+1}, v1, 2, s18')
    a('v_lshlrev_b32 v1, 4, v1')
    a('v_lshrrev_b32 v14, 5, v0')
    a('v_lshl_add_u32 v1, v14, 15, v1')
    a('s_barrier')
    stamp(a, 5)
    a(f'ds_read2_b32 v[8:9], v{AX+1} offset0:0 offset1:32')
    for tt in range(4): a(f'ds_read_b64 {vr(MRR+2*tt,2)}, v{AX+2} offset:{128*tt}')
    for c in range(5): a(f'ds_read_b128 {vr(CSR+4*c,4)}, v{AX} offset:{64*c}')
    n = 0
    for ct in range(5):
        cs = CSR + 4 * ct
        a(f's_waitcnt lgkmcnt({4-ct})')
        if ct == 0:
            for tp in range(2): a(f'v_cmp_eq_u32 s[{48+2*tp}:{49+2*tp}], 0, v{8+tp}')
        for tp in range(2):
            R = T + 4 * (n % 4); n += 1
            for k in range(2):
                tt = 2 * tp + k
                acc = ACC + (ct * 4 + tt) * 4
                for p in range(2):
                    a(f'v_pk_fma_f32 {vr(acc+2*p,2)}, {vr(cs+2*p,2)}, {vr(MRR+2*tt,2)}, {vr(acc+2*p,2)} op_sel_hi:[1,0,1] neg_lo:[0,1,0] neg_hi:[0,1,0]')
                for p in range(2):
                    a(f'v_pk_mul_f32 {vr(acc+2*p,2)}, {vr(acc+2*p,2)}, {vr(MRR+2*tt,2)} op_sel:[0,1] op_sel_hi:[1,1]')
                a(f'v_cvt_pk_bf16_f32 v{R+2*k}, v{acc}, v{acc+1}')
                a(f'v_cvt_pk_bf16_f32 v{R+2*k+1}, v{acc+2}, v{acc+3}')
            a(f'v_permlane16_swap_b32 v{R}, v{R+2}')
            a(f'v_permlane16_swap_b32 v{R+1}, v{R+3}')
            a(f's_mov_b64 exec, s[{48+2*tp}:{49+2*tp}]')
            a(f'buffer_store_dwordx4 {vr(R,4)}, v1, s[28:31], s41 offen offset:{512*tp} sc1')
            a('s_mov_b64 exec, -1')
        if ct < 4: a(f's_add_u32 s41, s41, {2*PLANE}')
    endpgm(a)

def side1(a):
    a.label('Lqkv_side')
    a('s_mov_b32 s13, s2')
    a(f's_mov_b32 s52, {hx(WS_X2)}')
    a('s_mov_b32 s53, 1')
    a('s_mov_b32 s51, 0')
    a('s_cmp_lg_u32 s3, 0')
    a('s_cbranch_scc1 Lfs')
    a('v_lshrrev_b32 v5, 3, v0')
    a('v_and_b32 v6, 7, v0')
    a('v_lshlrev_b32 v7, 2, v0')
    a('v_mov_b32 v8, 0')
    a('ds_write_b32 v7, v8 offset:1024')
    a('s_waitcnt lgkmcnt(0)')
    a('s_barrier')
    a('s_cmp_ge_u32 s10, 4')
    a('s_cbranch_scc1 Lside_pack')
    a('s_lshl2_add_u32 s14, s13, s10')
    a('v_mul_u32_u24 v4, 1280, v5')
    a('v_lshl_add_u32 v4, v6, 4, v4')
    a('s_mul_i32 s15, s14, 10240')
    a('s_load_dword s45, s[28:29], s44')
    for i in range(10): a(f'buffer_load_dwordx4 {vr(20+4*i,4)}, v4, s[20:23], s15 offen offset:{128*i}')
    a('s_cmp_ge_u32 s13, 60')
    a('s_cselect_b32 s53, 1, 0')
    a('s_cmp_eq_u32 s53, 1')
    a('s_cbranch_scc1 Lside_nob')
    a('v_mul_u32_u24 v7, 3840, v5')
    a('v_lshl_add_u32 v7, v6, 4, v7')
    a('s_and_b32 s16, s13, 1')
    a('s_mul_i32 s16, s16, 40')
    a('s_add_u32 s16, s16, s10')
    a(f's_mul_i32 s17, s16, {8*3840}')
    a('s_lshr_b32 s18, s13, 1')
    a('s_lshl_b32 s19, s18, 7')
    a('s_add_u32 s17, s17, s19')
    for n in range(10):
        a(f'buffer_load_dwordx4 {vr(60+4*n,4)}, v7, s[24:27], s17 offen')
        if n < 9: a(f's_add_u32 s17, s17, {32*3840}')
    a('s_waitcnt vmcnt(10)')
    a('s_branch Lside_a')
    a.label('Lside_nob')
    a('s_waitcnt vmcnt(0)')
    a.label('Lside_a')
    stamp(a, 1)
    for i in range(40):
        u = 100 + 2 * (i % 2)
        unpack(a, u, 20 + i)
        if i == 0:
            a(f'v_pk_mul_f32 v[106:107], {vr(u,2)}, {vr(u,2)}')
            a(f'v_pk_add_f32 v[104:105], {vr(u,2)}, 0')
        else:
            a(f'v_pk_fma_f32 v[106:107], {vr(u,2)}, {vr(u,2)}, v[106:107]')
            a(f'v_pk_add_f32 v[104:105], {vr(u,2)}, v[104:105]')
    a('v_add_f32 v104, v104, v105')
    a('v_add_f32 v106, v106, v107')
    for m in ('quad_perm:[1,0,3,2]', 'quad_perm:[2,3,0,1]', 'row_half_mirror'):
        for v in (104, 106): a(f'v_add_f32_dpp v{v}, v{v}, v{v} {m} row_mask:0xf bank_mask:0xf')
    ln_scalars(a, 104, 106, 108, 109, 100)
    a('s_waitcnt lgkmcnt(0)')
    a(f's_add_u32 s54, s45, {hx(EPK)}')
    a('v_mov_b32 v110, s54')
    a('v_not_b32 v111, v110')
    a('v_lshlrev_b32 v11, 4, v5')
    a('s_lshl_b32 s15, s14, 7')
    a(f's_add_u32 s15, s15, {hx(WS_MR)}')
    a('s_mov_b32 exec_lo, 0x01010101')
    a('s_mov_b32 exec_hi, 0x01010101')
    a('buffer_store_dwordx4 v[108:111], v11, s[28:31], s15 offen sc0 sc1')
    a('s_mov_b64 exec, -1')
    stamp(a, 2)
    a('s_cmp_eq_u32 s53, 1')
    a('s_cbranch_scc1 Lside_nob2')
    a('s_waitcnt vmcnt(1)')
    for n in range(10):
        for q in range(4):
            u = 100 + 2 * (q % 2)
            unpack(a, u, 60 + 4 * n + q)
            if n == 0: a(f'v_pk_add_f32 {vr(112+2*q,2)}, {vr(u,2)}, 0')
            else: a(f'v_pk_add_f32 {vr(112+2*q,2)}, {vr(u,2)}, {vr(112+2*q,2)}')
    for q in range(8): a(f'v_add_f32_dpp v{112+q}, v{112+q}, v{112+q} row_ror:8 row_mask:0xf bank_mask:0xf')
    for op in ('v_permlane16_swap_b32', 'v_permlane32_swap_b32'):
        for q in range(8): a(f'v_mov_b32 v{120+q}, v{112+q}')
        for q in range(8): a(f'{op} v{112+q}, v{120+q}')
        for q in range(8): a(f'v_add_f32 v{112+q}, v{112+q}, v{120+q}')
    a('s_lshl_b32 s19, s10, 8')
    a('v_lshl_add_u32 v13, v6, 5, s19')
    a('ds_write_b128 v13, v[112:115]')
    a('ds_write_b128 v13, v[116:119] offset:16')
    a.label('Lside_nob2')
    a('s_lshl_b32 s19, s10, 2')
    a('v_mov_b32 v13, s19')
    a('s_waitcnt lgkmcnt(0)')
    a('v_mov_b32 v14, 1')
    a('ds_write_b32 v13, v14 offset:1024')
    a('s_cmp_lg_u32 s10, 0')
    a('s_cbranch_scc1 Lside_gupf')
    a.label('Lside_meet')
    a('ds_read_b128 v[20:23], v13 offset:1024')
    a('s_waitcnt lgkmcnt(0)')
    a('v_and_b32 v20, v20, v21')
    a('v_and_b32 v22, v22, v23')
    a('v_and_b32 v20, v20, v22')
    a('v_cmp_eq_u32 vcc, 0, v20')
    a('s_cbranch_vccnz Lside_meet')
    ack(a)
    a('s_cmp_eq_u32 s53, 1')
    a('s_cbranch_scc1 Lside_bump')
    a('v_lshlrev_b32 v13, 2, v0')
    for w in range(4): a(f'ds_read_b32 v{72+w}, v13 offset:{256*w}')
    a('s_and_b32 s16, s13, 1')
    a('s_mul_i32 s16, s16, 15360')
    a('s_lshl_b32 s17, s18, 9')
    a('s_add_u32 s16, s16, s17')
    a(f's_add_u32 s16, s16, {hx(WS_CS)}')
    a('v_lshlrev_b32 v13, 3, v0')
    a('s_waitcnt lgkmcnt(0)')
    for w in range(1, 4): a(f'v_add_f32 v72, v72, v{72+w}')
    a('v_mov_b32 v73, s54')
    a('buffer_store_dwordx2 v[72:73], v13, s[28:31], s16 offen sc0 sc1')
    a.label('Lside_bump')
    stamp(a, 3)
    a('s_cmp_lg_u32 s13, 63')
    a('s_cbranch_scc1 Lqkv_fin')
    a('v_lshlrev_b32 v13, 5, v0')
    a(f's_mov_b32 s16, {hx(WS_ACK)}')
    a('s_not_b32 s55, s54')
    a('s_mov_b32 s33, 0')
    a.label('Lside_apoll')
    a('s_sleep 32')
    a('buffer_load_dwordx4 v[20:23], v13, s[28:31], s16 offen sc0 sc1')
    a('buffer_load_dwordx4 v[24:27], v13, s[28:31], s16 offen offset:16 sc0 sc1')
    a('s_add_u32 s33, s33, 1')
    a('s_waitcnt vmcnt(0)')
    for i in range(8): a(f'v_xor_b32 v{20+i}, s{54+i%2}, v{20+i}')
    a('v_or3_b32 v20, v20, v21, v22')
    a('v_or3_b32 v23, v23, v24, v25')
    a('v_or3_b32 v20, v20, v26, v27')
    a('v_or_b32 v20, v20, v23')
    a('v_cmp_ne_u32 vcc, 0, v20')
    a('s_cbranch_vccz Lside_ago')
    a('s_cmp_lt_u32 s33, 0x40000')
    a('s_cbranch_scc1 Lside_apoll')
    a.label('Lside_ago')
    a('v_mov_b32 v20, s54')
    a('v_mov_b32 v21, 0')
    a('s_mov_b64 exec, 1')
    a('buffer_store_dword v20, v21, s[28:31], s44 offen sc0 sc1')
    endpgm(a)

    a.label('Lside_gupf')
    ksrd(a, 36, KA_WG, D * F * 2)
    ksrd(a, 40, KA_WU, D * F * 2)
    a('s_mul_i32 s16, s13, 3')
    a('s_add_u32 s16, s16, s10')
    a('s_sub_u32 s16, s16, 1')
    a('s_mul_i32 s16, s16, 10240')
    a('v_lshlrev_b32 v18, 4, v0')
    a('s_waitcnt lgkmcnt(0)')
    for n in range(10):
        a(f'buffer_load_dwordx4 v[72:75], v18, s[36:39], s16 offen offset:{(1024*n)%4096}')
        a(f'buffer_load_dwordx4 v[76:79], v18, s[40:43], s16 offen offset:{(1024*n)%4096}')
        if n % 4 == 3: a('s_add_u32 s16, s16, 4096')
    endpgm(a)

    a.label('Lside_pack')
    ksrd(a, 32, KA_WO, D * D * 2)
    ksrd(a, 48, KA_WD, D * F * 2)
    a('s_lshl2_add_u32 s14, s13, s10')
    a('s_sub_u32 s14, s14, 4')
    a('s_lshr_b32 s16, s13, 3')
    a('s_lshl2_add_u32 s16, s16, s10')
    a('s_sub_u32 s16, s16, 4')
    a('s_lshl_b32 s16, s16, 10')
    a('s_cmp_ge_u32 s16, Lcode_end-Lcode_start-1024')
    a('s_cbranch_scc1 Lside_nopf')
    a('s_getpc_b64 s[56:57]')
    a.label('Lside_pc')
    a('s_sub_u32 s56, s56, Lside_pc-Lcode_start')
    a('s_subb_u32 s57, s57, 0')
    a('v_lshl_add_u32 v2, v0, 4, s16')
    a('global_load_dwordx4 v[36:39], v2, s[56:57]')
    a.label('Lside_nopf')
    a('v_mul_u32_u24 v19, 1280, v5')
    a('v_lshl_add_u32 v19, v6, 4, v19')
    a('v_lshrrev_b32 v10, 2, v5')
    a('v_lshlrev_b32 v10, 9, v10')
    a('v_and_b32 v11, 3, v5')
    a('v_lshl_add_u32 v10, v11, 5, v10')
    a('v_and_b32 v11, 1, v6')
    a('v_lshl_add_u32 v10, v11, 4, v10')
    a('v_lshrrev_b32 v11, 1, v6')
    a('s_mov_b32 s17, 49152')
    a('v_mad_u32_u24 v13, v11, s17, v10')
    a('s_mul_i32 s16, s14, 200')
    a('v_add_u32 v16, s16, v0')
    a('v_lshlrev_b32 v17, 4, v16')
    a('s_waitcnt lgkmcnt(0)')
    for n in range(4):
        if n == 3: a('s_mov_b64 exec, 0xff')
        a(f'buffer_load_dwordx4 {vr(20+4*n,4)}, v17, s[32:35], 0 offen offset:{1024*n}')
    a('s_mov_b64 exec, -1')
    for n in range(8):
        a(f's_lshl3_add_u32 s16, s14, {n}')
        a('s_min_u32 s16, s16, 1919')
        a('s_mul_i32 s17, s16, 6554')
        a('s_lshr_b32 s17, s17, 16')
        a('s_mul_i32 s18, s17, 10')
        a('s_sub_u32 s18, s16, s18')
        a(f's_mul_i32 s19, s17, {8*1280}')
        a('s_lshl_b32 s55, s18, 7')
        a('s_add_u32 s19, s19, s55')
        a(f'buffer_load_dwordx4 {vr(40+4*n,4)}, v19, s[48:51], s19 offen nt')
        d = 60 + n
        a(f's_mul_i32 s{d}, s18, {4*49152}')
        a('s_and_b32 s55, s17, 3')
        a('s_lshl_b32 s55, s55, 7')
        a(f's_add_u32 s{d}, s{d}, s55')
        a('s_lshr_b32 s55, s17, 2')
        a('s_lshl_b32 s55, s55, 10')
        a(f's_add_u32 s{d}, s{d}, s55')
        a(f's_add_u32 s{d}, s{d}, {hx(WS_PD)}')
    stamp(a, 1)
    a('s_waitcnt vmcnt(0)')
    for n in range(8): a(f'buffer_store_dwordx4 {vr(40+4*n,4)}, v13, s[28:31], s{60+n} offen sc1')
    a('s_mov_b32 s18, 102400')
    a(f's_mov_b32 s19, {hx(WS_PWO)}')
    a('s_mov_b32 s17, 52429')
    for n in range(4):
        a(f'v_add_u32 v140, {64*n}, v16')
        a('v_mul_lo_u32 v141, v140, s17')
        a('v_lshrrev_b32 v141, 22, v141')
        a('v_mul_u32_u24 v142, 80, v141')
        a('v_sub_u32 v142, v140, v142')
        a('v_lshrrev_b32 v143, 3, v142')
        a('v_bfe_u32 v144, v142, 1, 3')
        a('v_cmp_gt_u32 vcc, 64, v142')
        a('v_cndmask_b32 v143, v144, v143, vcc')
        a('v_and_b32 v144, 7, v142')
        a('v_and_or_b32 v142, v142, 1, 8')
        a('v_cndmask_b32 v142, v142, v144, vcc')
        a('v_and_b32 v144, 0xffffffe3, v141')
        a('v_bfe_u32 v145, v141, 3, 2')
        a('v_lshl_or_b32 v144, v145, 2, v144')
        a('v_bfe_u32 v145, v141, 2, 1')
        a('v_lshl_or_b32 v144, v145, 4, v144')
        a('v_mul_u32_u24 v144, 160, v144')
        a('v_mad_u32_u24 v144, v143, s18, v144')
        a('v_and_b32 v145, 3, v142')
        a('v_mul_u32_u24 v145, 40, v145')
        a('v_lshrrev_b32 v146, 2, v142')
        a('v_lshl_add_u32 v146, v146, 4, v145')
        a('v_add_u32 v145, v145, v146')
        a('v_cmp_gt_u32 vcc, 8, v142')
        a('v_cndmask_b32 v145, v145, v146, vcc')
        a('v_add_u32 v147, v144, v145')
        a('v_cndmask_b32 v145, 40, 8, vcc')
        a('v_add_u32 v148, v147, v145')
        if n == 3: a('s_mov_b64 exec, 0xff')
        a(f'buffer_store_dwordx2 {vr(20+4*n,2)}, v147, s[28:31], s19 offen')
        a(f'buffer_store_dwordx2 {vr(22+4*n,2)}, v148, s[28:31], s19 offen')
    endpgm(a)
```

```python
from common import *
import common
from k_qkv import gen_qkv
from k_ao import gen_ao
from k_ffn import gen_ffn

def emit(order, gens, path):
    a = Asm()
    a.raw('.p2align 8'); a.label('Lcode_start')
    for g in gens: g(a)
    gen_prof(a)
    a.label('Lcode_end')
    a('s_endpgm')
    body = insert_nops(a.L)
    out = []
    for k in order:
        g, b, lds = LAUNCH[k]
        out.append(f'; @launch grid=({g},1,1) block=({b},1,1) lds={lds}')
    out.append('.amdgcn_target "amdgcn-amd-amdhsa--gfx950"')
    out.append('.text')
    out += body
    out.append('.section .rodata,"a"')
    for (k, v, s) in kernels:
        out.append('.p2align 6')
        out.append(f'.amdhsa_kernel {k}')
        out.append(f'  .amdhsa_next_free_vgpr {v}')
        out.append(f'  .amdhsa_next_free_sgpr {s}')
        out.append(f'  .amdhsa_accum_offset {(v+3)//4*4}')
        out.append('  .amdhsa_group_segment_fixed_size 0')
        out.append('  .amdhsa_kernarg_size 88')
        out.append('  .amdhsa_user_sgpr_count 2')
        out.append('  .amdhsa_user_sgpr_kernarg_segment_ptr 1')
        out.append('  .amdhsa_system_sgpr_workgroup_id_x 1')
        out.append('.end_amdhsa_kernel')
    open(path, 'w').write('\n'.join(out) + '\n')

if __name__ == '__main__':
    path = sys.argv[1] if len(sys.argv) > 1 else 'interleave_layers__sliding_block__moe_arch_mod__prompt.s'
    emit([KNAME],
         [gen_qkv, gen_ao, gen_ffn], path)
```

```python
import sys, struct, math, os
sys.path.insert(0, os.path.dirname(os.path.abspath(__file__)))
from asmlib import *

S, D, H, DH, F = 2048, 640, 32, 20, 1536
KA_X, KA_WQKV, KA_WO, KA_BX, KA_WR, KA_WG, KA_WU, KA_WD, KA_OUT, KA_DBG, KA_WS = [8 * i for i in range(11)]
PLANE = 2048 * 16
WS_QKV = 0
WS_O = WS_QKV + 240 * PLANE
WS_X1 = WS_O + 80 * PLANE
WS_X2 = WS_X1 + S * D * 2
WS_PWO = WS_X2 + S * D * 2
WS_PD = WS_PWO + D * D * 2
WS_CTL = WS_PD + 42 * 49152
WS_ST = WS_CTL
WS_FL = WS_ST + 24576
WS_H = WS_FL + 8192
WS_XS = WS_H + 24576
WS_SEL = WS_XS + 10240
CTL_SZ = 67 * 1024
WS_MR = WS_CTL + 2 * CTL_SZ
WS_CS = WS_MR + 32768
WS_ACK = WS_CS + 2 * 1920 * 8
WS_EP = WS_ACK + 2048
WS_END = WS_EP + 128
EPK = 0x9E3779B9
WS_PROF = 0x2000000
WS_SIZE = 0x4000000
assert WS_END <= WS_PROF

def f2u(x): return struct.unpack('<I', struct.pack('<f', x))[0]
def hx(x): return hex(x & 0xFFFFFFFF)
QSCALE = f2u(DH ** -0.5 * math.log2(math.e))
ONES2 = 0x3F803F80
NEGBIG = f2u(-1e30)
NL2E = hx(f2u(-math.log2(math.e)))

kernels = []
LAUNCH = {}
PROF = bool(os.environ.get('PROF'))
PV = 160
def stamp(a, i):
    if not PROF: return
    a('s_memrealtime s[100:101]')
    a('s_waitcnt lgkmcnt(0)')
    a(f'v_writelane_b32 v{a.pv}, s100, {i}')
def cstamp(a, i):
    if not PROF: return
    a('s_memtime s[100:101]')
    a('s_waitcnt lgkmcnt(0)')
    a(f'v_writelane_b32 v{a.pv}, s100, {i}')
def lstamp(a, sreg):
    if not PROF: return
    a('s_memrealtime s[100:101]')
    a('s_memtime s[98:99]')
    a(f's_add_u32 m0, s{sreg}, 16')
    a('s_waitcnt lgkmcnt(0)')
    a(f'v_writelane_b32 v{a.pv}, s100, m0')
    a(f's_add_u32 m0, s{sreg}, 32')
    a('s_nop 0')
    a(f'v_writelane_b32 v{a.pv}, s98, m0')
def endpgm(a):
    if not PROF:
        a('s_endpgm'); return
    a('s_mov_b64 exec, -1')
    stamp(a, 14)
    a('s_waitcnt vmcnt(0)')
    stamp(a, 15)
    a(f'v_mov_b32 v2, v{a.pv}')
    a('s_branch Lprof_end')
def gen_prof(a):
    if not PROF: return
    a.label('Lprof_end')
    a(f's_load_dwordx4 s[4:7], s[0:1], {KA_DBG}')
    a('s_waitcnt lgkmcnt(0)')
    a('s_lshr_b32 s4, s4, 9')
    a('s_and_b32 s4, s4, 15')
    a('s_lshl_b32 s4, s4, 9')
    a('s_add_u32 s4, s4, s2')
    a('s_lshl_b32 s4, s4, 4')
    a('s_add_u32 s4, s4, s10')
    a('s_lshl_b32 s4, s4, 8')
    add64(a, 6, 6, WS_PROF)
    a('s_mov_b32 s12, s6'); a('s_mov_b32 s13, s7')
    a(f's_mov_b32 s14, {16 * 512 * 16 * 256}'); a('s_mov_b32 s15, 0x20000')
    a('v_mbcnt_lo_u32_b32 v1, -1, 0')
    a('v_mbcnt_hi_u32_b32 v1, -1, v1')
    a('v_lshlrev_b32 v1, 2, v1')
    a('buffer_store_dword v2, v1, s[12:15], s4 offen')
    a('s_endpgm')

def ksrd(a, d, ka, size):
    a(f's_load_dwordx2 s[{d}:{d+1}], s[0:1], {ka}')
    a(f's_mov_b32 s{d+2}, {hx(size)}')
    a(f's_mov_b32 s{d+3}, 0x20000')

def add64(a, d, s, off):
    o = off if isinstance(off, str) else hx(off)
    a(f's_add_u32 s{d}, s{s}, {o}')
    a(f's_addc_u32 s{d+1}, s{s+1}, 0')

def rbf16(a, d, s):
    a(f'v_cvt_pk_bf16_f32 v{d}, v{s}, v{s}')
    a(f'v_and_b32 v{d}, 0xffff0000, v{d}')

def unpack(a, lo, src):
    a(f'v_lshlrev_b32 v{lo}, 16, v{src}')
    a(f'v_and_b32 v{lo+1}, 0xffff0000, v{src}')

def ln_scalars(a, s1, s2, m, rs, t):
    inv = hx(f2u(1.0 / D))
    a(f'v_mul_f32 v{m}, {inv}, v{s1}')
    a(f'v_mul_f32 v{t}, {inv}, v{s2}')
    a(f'v_fma_f32 v{t}, -v{m}, v{m}, v{t}')
    a(f'v_max_f32 v{t}, 0, v{t}')
    rbf16(a, t, t)
    a(f'v_add_f32 v{t}, {hx(f2u(1e-5))}, v{t}')
    rbf16(a, t, t)
    a(f'v_sqrt_f32 v{t}, v{t}')
    rbf16(a, t, t)
    a(f'v_rcp_f32 v{rs}, v{t}')
    rbf16(a, m, m)

def kernel_start(a, label):
    a.raw('.p2align 8')
    a.raw(f'.globl {label}')
    a.raw(f'.type {label},@function')
    a.label(label)
    if os.environ.get('DBGT'):
        idx = {'qkv1_kernel': 0, 'ao1_kernel': 1, 'qkv2_kernel': 2, 'ao2_kernel': 3, 'ffn2_kernel': 4}[label]
        a('s_cmp_lg_u32 s2, 5')
        a(f's_cbranch_scc1 Ldbgt{idx}')
        a('s_memrealtime s[4:5]')
        a(f's_load_dwordx2 s[8:9], s[0:1], {KA_WS}')
        a('s_mov_b32 s10, 0x4000000')
        a('s_mov_b32 s11, 0x20000')
        a('s_waitcnt lgkmcnt(0)')
        a('v_mov_b32 v1, s4')
        a(f'v_mov_b32 v2, {hx(WS_PROF + 4 * idx)}')
        a('buffer_store_dword v1, v2, s[8:11], 0 offen sc0 sc1')
        a.label(f'Ldbgt{idx}')
    if PROF:
        a(f'v_mov_b32 v{a.pv}, 0')
        stamp(a, 0)

def reg_kernel(label, grid, block, lds, vgpr, sgpr):
    kernels.append((label, vgpr, 102 if PROF else sgpr))
    LAUNCH[label] = (grid, block, lds)

def wave_lane(a):
    a('v_lshrrev_b32 v1, 6, v0')
    a('v_and_b32 v0, 63, v0')
    a('v_readfirstlane_b32 s10, v1')

def mod_small(a, s, n, times):
    for _ in range(times):
        a(f's_sub_u32 s99, s{s}, {n}')
        a(f's_cmp_ge_u32 s{s}, {n}')
        a(f's_cselect_b32 s{s}, s99, s{s}')
```

```python
from common import *
def xn_pair(a, lo, M, t):
    a(f'v_pk_add_f32 {vr(t+2,2)}, {vr(lo,2)}, {vr(M,2)} op_sel_hi:[1,0] neg_lo:[0,1] neg_hi:[0,1]')
    a(f'v_cvt_pk_bf16_f32 v{t}, v{t+2}, v{t+3}')
    unpack(a, t + 2, t)
    a(f'v_pk_mul_f32 {vr(t+2,2)}, {vr(t+2,2)}, {vr(M,2)} op_sel:[0,1] op_sel_hi:[1,1]')
    a(f'v_cvt_pk_bf16_f32 v{t}, v{t+2}, v{t+3}')

L_LIST = 0
L_SEL = 12288 + 128
L_CNT = 12288
L_GM = L_CNT + 64
L_RED = 0
L_W = 13312
FS_LDS = L_W + 147456
L_FX = L_W + 81920

def gen_ffn(a):
    a.pv = 199
    kernel_start(a, 'ffn2_kernel')
    ksrd(a, 20, KA_OUT, S * D * 2)
    ksrd(a, 24, KA_WQKV, D * 3 * D * 2)
    ksrd(a, 28, KA_WS, WS_SIZE)
    a('s_cmp_ge_u32 s2, 128')
    a('s_cbranch_scc1 Lfs_end')
    wave_lane(a)
    a('s_mov_b32 s13, s2')
    a('s_mov_b32 s52, 0')
    a('s_mov_b32 s53, 0')
    a(f's_mov_b32 s51, {CTL_SZ}')
    reg_kernel('ffn2_kernel', 128, 512, FS_LDS, 200, 100)
    ST = 16; KEY = 28; T = 32
    a.label('Lfs')
    ksrd(a, 32, KA_WR, D * 2)
    ksrd(a, 36, KA_WG, D * F * 2)
    ksrd(a, 40, KA_WU, D * F * 2)
    a('s_lshl_b32 s11, s10, 6')
    a('v_add_u32 v15, s11, v0')
    a('v_lshlrev_b32 v2, 4, v15')
    a('v_mul_u32_u24 v3, 20, v0')
    a('v_lshlrev_b32 v1, 4, v0')
    a(f's_add_u32 s44, s51, {hx(WS_ST)}')
    a(f's_add_u32 s45, s51, {hx(WS_ST+8192)}')
    a(f's_add_u32 s46, s51, {hx(WS_ST+16384)}')
    for i in range(4): a(f'v_mov_b32 v{T+8+i}, 0')
    a('v_mov_b32 v9, 0')
    a(f'ds_write_b128 v2, {vr(T+8,4)} offset:{L_LIST}')
    a(f'ds_write_b32 v9, v9 offset:{L_CNT}')
    a('s_cmp_ge_u32 s13, 48')
    a('s_cselect_b32 s54, 1, 0')
    a('s_cmp_ge_u32 s13, 62')
    a('s_cselect_b32 s54, 2, s54')
    a('v_lshrrev_b32 v4, 4, v0')
    a('v_bfe_u32 v5, v0, 2, 2')
    a('v_lshl_add_u32 v4, v4, 3, v5')
    a('s_and_b32 s11, s10, 1')
    a('s_lshl_b32 s11, s11, 2')
    a('v_add_u32 v4, s11, v4')
    a('v_mul_u32_u24 v4, 3072, v4')
    a('v_and_b32 v5, 3, v0')
    a('v_lshl_add_u32 v4, v5, 4, v4')
    a('s_lshr_b32 s11, s10, 1')
    a(f's_mul_i32 s11, s11, {32*3072}')
    a('s_and_b32 s62, s13, 7')
    a('s_lshr_b32 s12, s13, 4')
    a('s_lshl3_add_u32 s62, s12, s62')
    a('s_bfe_u32 s12, s13, 0x10003')
    a('s_lshl1_add_u32 s62, s62, s12')
    a('s_lshl_b32 s12, s62, 6')
    a('s_add_u32 s55, s11, s12')
    a('s_and_b32 s63, s13, 1')
    a('s_mul_i32 s63, s63, 20')
    a('s_lshr_b32 s12, s13, 1')
    a('s_add_u32 s63, s63, s12')
    a('s_lshl_b32 s56, s10, 10')
    a(f's_add_u32 s56, s56, {L_W}')
    a('s_sub_u32 s14, s13, 48')
    a(f's_mul_i32 s57, s14, {3*49152}')
    a('s_mul_i32 s12, s10, 6144')
    a('s_add_u32 s57, s57, s12')
    a(f's_add_u32 s57, s57, {hx(WS_PD)}')
    a('s_mul_i32 s58, s10, 18432')
    a(f's_add_u32 s58, s58, {L_W}')
    a('s_waitcnt lgkmcnt(0)')
    stamp(a, 1)
    for k in range(3): a(f'buffer_load_dwordx4 {vr(ST+4*k,4)}, v2, s[28:31], s{44+k} offen')
    a(f'buffer_load_dwordx4 {vr(T,4)}, v3, s[32:35], 0 offen')
    a(f'buffer_load_dword v{T+4}, v3, s[32:35], 0 offen offset:16')
    def pace(tag, gu, dn, wait):
        a('s_cmp_eq_u32 s54, 1')
        a(f's_cbranch_scc1 Lfs_pd{tag}')
        a('s_cmp_eq_u32 s54, 2')
        a(f's_cbranch_scc1 Lfs_pn{tag}')
        for n in gu:
            a(f's_add_u32 m0, s56, {8192*n}')
            a('buffer_load_dwordx4 v4, s[36:39], s55 offen lds')
            a(f's_add_u32 m0, s56, {8192*n+40960}')
            a('buffer_load_dwordx4 v4, s[40:43], s55 offen lds')
            a(f's_add_u32 s55, s55, {128*3072}')
        if wait: a(f's_waitcnt vmcnt({2*len(gu)})')
        a(f's_branch Lfs_px{tag}')
        a.label(f'Lfs_pd{tag}')
        for t in dn:
            for hh in range(2):
                a(f's_add_u32 m0, s58, {6144*t+3072*hh}')
                a(f's_add_u32 s12, s57, {49152*t+3072*hh}')
                for i in range(3): a(f'buffer_load_dwordx4 v1, s[28:31], s12 offen offset:{1024*i} lds')
        if wait:
            a(f's_waitcnt vmcnt({6*len(dn)})')
            a(f's_branch Lfs_px{tag}')
        a.label(f'Lfs_pn{tag}')
        if wait: a('s_waitcnt vmcnt(0)')
        a.label(f'Lfs_px{tag}')
    PC = {'a': ([0], [1, 2], [3, 4]), 'b': ([0, 1, 2, 3, 4], [], []), 'c': ([0, 1, 2], [3, 4], []), 'd': ([0, 1], [2, 3], [4])}[os.environ.get('PACE', 'a')]
    pace(0, PC[0], [0], True)
    stamp(a, 2)
    inv = hx(f2u(1.0 / D))
    for i in range(5): unpack(a, T + 8 + 2 * i, T + i)
    for j in range(4): a(f'v_mul_f32 v{ST+j}, {inv}, v{ST+j}')
    a(f'v_pk_add_f32 {vr(T+8,2)}, {vr(T+8,2)}, {vr(T+10,2)}')
    a(f'v_pk_add_f32 {vr(T+12,2)}, {vr(T+12,2)}, {vr(T+14,2)}')
    a(f'v_pk_add_f32 {vr(T+8,2)}, {vr(T+8,2)}, {vr(T+16,2)}')
    a(f'v_mov_b32 v{T+2}, {hx(f2u(1e-5))}')
    a(f'v_pk_add_f32 {vr(T+8,2)}, {vr(T+8,2)}, {vr(T+12,2)}')
    a(f's_mov_b32 s15, {inv}')
    a(f'v_add_f32 v{T}, v{T+8}, v{T+9}')
    rows = [f'v_fma_f32 v{ST+4+j}, v{ST+4+j}, s15, v{T+2}' for j in range(4)]
    rows += [f'v_fma_f32 v{ST+4+j}, -v{ST+j}, v{ST+j}, v{ST+4+j}' for j in range(4)]
    rows += [f'v_max_f32 v{ST+4+j}, v{T+2}, v{ST+4+j}' for j in range(4)]
    rows += [f'v_rsq_f32 v{ST+4+j}, v{ST+4+j}' for j in range(4)]
    red = [[f'v_add_f32_dpp v{T}, v{T}, v{T} row_ror:{r} row_mask:0xf bank_mask:0xf'] for r in (8, 4, 2, 1)]
    red += [[f'v_mov_b32 v{T+1}, v{T}'], [f'v_permlane16_swap_b32 v{T}, v{T+1}', f'v_add_f32 v{T}, v{T}, v{T+1}', f'v_mov_b32 v{T+1}, v{T}'],
            [f'v_permlane32_swap_b32 v{T}, v{T+1}', f'v_add_f32 v{T}, v{T}, v{T+1}']]
    for i, x in enumerate(rows):
        a(x)
        if i % 2 == 1 and red:
            for y in red.pop(0): a(y)
    assert not red
    for j in range(4): a(f'v_fma_f32 v{KEY+j}, -v{ST+j}, v{T}, v{ST+8+j}')
    a('v_lshlrev_b32 v8, 2, v15')
    a('v_sub_u32 v8, 2047, v8')
    a('s_mov_b32 s15, 0xfffff800')
    for j in range(4): a(f'v_mul_f32 v{KEY+j}, v{KEY+j}, v{ST+4+j}')
    for j in range(4): a(f'v_ashrrev_i32 v{ST+j}, 31, v{KEY+j}')
    for j in range(4): a(f'v_subrev_u32 v{ST+4+j}, {j}, v8')
    for j in range(4): a(f'v_or_b32 v{ST+j}, 0x80000000, v{ST+j}')
    for j in range(4): a(f'v_xor_b32 v{KEY+j}, v{KEY+j}, v{ST+j}')
    for j in range(4): a(f'v_and_or_b32 v{KEY+j}, v{KEY+j}, s15, v{ST+4+j}')
    a(f'v_max3_u32 v{T}, v{KEY}, v{KEY+1}, v{KEY+2}')
    a('s_lshl_b32 s11, s10, 2')
    a(f'v_max_u32 v{T}, v{T}, v{KEY+3}')
    a('v_mov_b32 v7, s11')
    for r in (8, 4, 2, 1):
        a(f'v_max_u32_dpp v{T}, v{T}, v{T} row_ror:{r} row_mask:0xf bank_mask:0xf')
    for op in ('v_permlane16_swap_b32', 'v_permlane32_swap_b32'):
        a(f'v_mov_b32 v{T+1}, v{T}')
        a(f'{op} v{T}, v{T+1}')
        a(f'v_max_u32 v{T}, v{T}, v{T+1}')
    a(f'ds_write_b32 v7, v{T} offset:{L_GM}')
    pace(1, PC[1], [1], False)
    a('s_waitcnt lgkmcnt(0)')
    a('s_barrier')
    stamp(a, 3)
    a(f'ds_read_b128 {vr(T,4)}, v9 offset:{L_GM}')
    a(f'ds_read_b128 {vr(T+4,4)}, v9 offset:{L_GM+16}')
    a('s_waitcnt lgkmcnt(0)')
    a(f'v_min3_u32 v{T}, v{T}, v{T+1}, v{T+2}')
    a(f'v_min3_u32 v{T+3}, v{T+3}, v{T+4}, v{T+5}')
    a(f'v_min3_u32 v{T}, v{T}, v{T+6}, v{T+7}')
    a(f'v_min_u32 v{T}, v{T}, v{T+3}')
    for j in range(4): a(f'v_cmp_ge_u32 s[{64+2*j}:{65+2*j}], v{KEY+j}, v{T}')
    for j in range(4): a(f's_bcnt1_i32_b64 s{80+j}, s[{64+2*j}:{65+2*j}]')
    a('s_mov_b32 s88, 0')
    for j in range(4): a(f's_add_u32 s{89+j}, s{88+j}, s{80+j}')
    a(f'v_mov_b32 v{T+1}, s92')
    a('s_mov_b64 exec, 1')
    a(f'ds_add_rtn_u32 v{T+2}, v9, v{T+1} offset:{L_CNT}')
    a('s_mov_b64 exec, -1')
    for j in range(4):
        a(f'v_mbcnt_lo_u32_b32 v{ST+j}, s{64+2*j}, 0')
        a(f'v_mbcnt_hi_u32_b32 v{ST+j}, s{65+2*j}, v{ST+j}')
        a(f'v_add_lshl_u32 v{ST+j}, v{ST+j}, s{88+j}, 2')
    a('s_waitcnt lgkmcnt(0)')
    a(f'v_readfirstlane_b32 s97, v{T+2}')
    a('s_lshl_b32 s97, s97, 2')
    for j in range(4):
        a(f's_mov_b64 exec, s[{64+2*j}:{65+2*j}]')
        a(f'v_add_u32 v{ST+j}, s97, v{ST+j}')
        a(f'ds_write_b32 v{ST+j}, v{KEY+j} offset:{L_LIST}')
    a('s_mov_b64 exec, -1')
    a('v_lshlrev_b32 v7, 2, v0')
    a('s_lshl_b32 s17, s10, 5')
    a(f's_add_u32 s17, s17, {L_SEL}')
    pace(2, PC[2], [2], False)
    a('s_mov_b32 s12, 0')
    a('s_waitcnt lgkmcnt(0)')
    a('s_barrier')
    stamp(a, 4)
    C = 32
    a(f'ds_read_b32 v14, v9 offset:{L_CNT}')
    a.label('Lfs_rank_outer')
    a(f'ds_read_b32 v{ST}, v7 offset:{L_LIST}')
    a(f'v_mov_b32 v{ST+1}, 0')
    a(f'v_mov_b32 v{ST+2}, 0')
    a(f'v_mov_b32 v{ST+3}, 0')
    a('s_mov_b32 s97, 0')
    a.label('Lfs_rank_inner')
    for i in range(8): a(f'ds_read_b128 {vr(C+4*i,4)}, v{ST+2} offset:{L_LIST+16*i}')
    a(f'v_add_u32 v{ST+2}, 128, v{ST+2}')
    for q in range(4):
        a(f's_waitcnt lgkmcnt({6-2*q})')
        for i in range(8): a(f'v_cmp_gt_u32 s[{64+2*i}:{65+2*i}], v{C+8*q+i}, v{ST}')
        for i in range(8): a(f'v_addc_co_u32 v{ST+1+2*(i%2)}, vcc, 0, v{ST+1+2*(i%2)}, s[{64+2*i}:{65+2*i}]')
    a('v_readfirstlane_b32 s96, v14')
    a('s_add_u32 s97, s97, 32')
    a('s_cmp_lt_u32 s97, s96')
    a('s_cbranch_scc1 Lfs_rank_inner')
    a(f'v_add_u32 v{ST+1}, v{ST+1}, v{ST+3}')
    a(f'v_cmp_gt_u32 vcc, 8, v{ST+1}')
    a(f'v_lshl_add_u32 v{ST+1}, v{ST+1}, 2, s17')
    a('s_and_saveexec_b64 s[18:19], vcc')
    a(f'ds_write_b32 v{ST+1}, v{ST}')
    a('s_mov_b64 exec, s[18:19]')
    a('v_add_u32 v7, 256, v7')
    a('s_add_u32 s12, s12, 64')
    a('s_cmp_lt_u32 s12, s96')
    a('s_cbranch_scc1 Lfs_rank_outer')
    a('v_and_b32 v10, 7, v0')
    a('v_lshl_add_u32 v7, v10, 2, s17')
    a('ds_read_b32 v11, v7')
    a('v_lshrrev_b32 v13, 4, v0')
    a('s_and_b32 s59, s10, 3')
    a('s_lshr_b32 s60, s10, 2')
    a('s_waitcnt lgkmcnt(0)')
    stamp(a, 5)
    a('v_and_b32 v8, 2047, v11')
    a('v_sub_u32 v8, 2047, v8')
    a('v_bfe_u32 v12, v8, 4, 4')
    a('v_lshlrev_b32 v12, 7, v12')
    a('v_and_or_b32 v12, v8, 15, v12')
    a('v_lshrrev_b32 v9, 8, v8')
    a('v_lshl_add_u32 v12, v9, 4, v12')
    a('v_lshlrev_b32 v8, 2, v8')
    a('s_cmp_eq_u32 s54, 1')
    a('s_cbranch_scc1 Lfs_down')
    a('s_cmp_eq_u32 s54, 2')
    a('s_cbranch_scc1 Lfs_none')

    XF = 16; WFg = 40; WFu = 60; G = 80; U = 84; M = 4
    a('v_mul_u32_u24 v7, 1280, v12')
    a('v_lshl_add_u32 v7, v13, 4, v7')
    a('s_mul_i32 s11, s59, 320')
    a(f's_add_u32 s11, s11, {hx(WS_X1)}')
    a('buffer_load_dword v2, v8, s[28:31], s44 offen')
    a('buffer_load_dword v3, v8, s[28:31], s45 offen')
    a('s_mov_b32 exec_lo, 0x00ff00ff')
    a('s_mov_b32 exec_hi, 0x00ff00ff')
    for s in range(5): a(f'buffer_load_dwordx4 {vr(XF+4*s,4)}, v7, s[28:31], s11 offen offset:{64*s}')
    a('s_not_b64 exec, exec')
    for i in range(20): a(f'v_mov_b32 v{XF+i}, {hx(ONES2)}')
    a('s_mov_b64 exec, -1')
    a('v_lshrrev_b32 v6, 2, v0')
    a('v_lshlrev_b32 v6, 6, v6')
    a('v_and_b32 v7, 3, v0')
    a('v_lshl_add_u32 v6, v7, 3, v6')
    a('s_mul_i32 s11, s59, 10240')
    a('s_lshl_b32 s12, s60, 5')
    a('s_add_u32 s11, s11, s12')
    a(f's_add_u32 s11, s11, {L_W}')
    a('v_add_u32 v6, s11, v6')
    a('s_waitcnt vmcnt(7)')
    a('s_barrier')
    for s in range(5):
        for j in range(2):
            a(f'ds_read_b64_tr_b16 {vr(WFg+4*s+2*j,2)}, v6 offset:{2048*s+1024*j}')
            a(f'ds_read_b64_tr_b16 {vr(WFu+4*s+2*j,2)}, v6 offset:{40960+2048*s+1024*j}')
    a('v_lshlrev_b32 v7, 6, v10')
    a('v_lshrrev_b32 v9, 3, v0')
    a('v_lshl_add_u32 v8, v9, 3, v7')
    a('s_lshl_b32 s12, s60, 12')
    a('v_add_u32 v8, s12, v8')
    a('v_lshl_add_u32 v7, v13, 4, v7')
    a('s_lshl_b32 s12, s10, 10')
    a('v_add_u32 v7, s12, v7')
    a('s_waitcnt vmcnt(5)')
    ln_scalars(a, 2, 3, M, M + 1, 14)
    a('s_waitcnt vmcnt(0) lgkmcnt(0)')
    stamp(a, 6)
    for s in range(5):
        a(f'v_mfma_f32_16x16x32_bf16 {vr(G,4)}, {vr(WFg+4*s,4)}, {vr(XF+4*s,4)}, {"0" if s == 0 else vr(G,4)}')
        a(f'v_mfma_f32_16x16x32_bf16 {vr(U,4)}, {vr(WFu+4*s,4)}, {vr(XF+4*s,4)}, {"0" if s == 0 else vr(U,4)}')
    for i in range(8): a(f'v_mov_b32_dpp v{WFg+i}, v{G+i} row_newbcast:8 row_mask:0xf bank_mask:0xf')
    for i in range(8): a(f'v_fma_f32 v{G+i}, -v{M}, v{WFg+i}, v{G+i}')
    a('s_mov_b32 exec_lo, 0x00ff00ff')
    a('s_mov_b32 exec_hi, 0x00ff00ff')
    a(f'ds_write_b128 v7, {vr(G,4)} offset:{L_RED}')
    a(f'ds_write_b128 v7, {vr(U,4)} offset:{L_RED+512}')
    a('s_mov_b64 exec, -1')
    a('s_waitcnt lgkmcnt(0)')
    a('s_barrier')
    stamp(a, 7)
    a('s_cmp_lg_u32 s59, 0')
    a('s_cbranch_scc1 Lfs_gu2')
    for w in range(4):
        for m in range(2): a(f'ds_read_b64 {vr(XF+8*m+2*w,2)}, v8 offset:{L_RED+1024*w+512*m}')
    a('v_lshrrev_b32 v7, 2, v9')
    a('v_lshlrev_b32 v7, 7, v7')
    a('v_lshl_add_u32 v7, v10, 4, v7')
    a('v_and_b32 v9, 3, v9')
    a('v_lshl_add_u32 v7, v9, 2, v7')
    a('s_lshl1_add_u32 s11, s62, s60')
    a('s_lshl_b32 s11, s11, 8')
    a(f's_add_u32 s11, s11, {hx(WS_H)}')
    a('s_add_u32 s11, s11, s51')
    a('s_waitcnt lgkmcnt(0)')
    for m in range(2):
        a(f'v_pk_add_f32 {vr(XF+8*m,2)}, {vr(XF+8*m,2)}, {vr(XF+8*m+2,2)}')
        a(f'v_pk_add_f32 {vr(XF+8*m+4,2)}, {vr(XF+8*m+4,2)}, {vr(XF+8*m+6,2)}')
    for m, d in ((0, G), (1, U)): a(f'v_pk_add_f32 {vr(d,2)}, {vr(XF+8*m,2)}, {vr(XF+8*m+4,2)}')
    for d in (G, U): a(f'v_pk_mul_f32 {vr(d,2)}, {vr(d,2)}, {vr(M,2)} op_sel:[0,1] op_sel_hi:[1,1]')
    for d in (G, U): a(f'v_cvt_pk_bf16_f32 v{d+2}, v{d}, v{d+1}')
    for d in (G, U): unpack(a, d, d + 2)
    for i in range(2): a(f'v_mul_f32 v{G+2+i}, {NL2E}, v{G+i}')
    for i in range(2): a(f'v_exp_f32 v{G+2+i}, v{G+2+i}')
    for i in range(2): a(f'v_add_f32 v{G+2+i}, 1.0, v{G+2+i}')
    for i in range(2): a(f'v_rcp_f32 v{G+2+i}, v{G+2+i}')
    for i in range(2): a(f'v_mul_f32 v{G+i}, v{G+i}, v{G+2+i}')
    a(f'v_cvt_pk_bf16_f32 v{G+2}, v{G}, v{G+1}')
    unpack(a, G, G + 2)
    for i in range(2): a(f'v_mul_f32 v{G+i}, v{G+i}, v{U+i}')
    a(f'v_cvt_pk_bf16_f32 v{G+2}, v{G}, v{G+1}')
    a(f'v_min_u32 v{G+2}, -2, v{G+2}')
    a(f'buffer_store_dword v{G+2}, v7, s[28:31], s11 offen sc0 sc1')
    a.label('Lfs_gu2')
    stamp(a, 8)
    a('s_cmp_eq_u32 s53, 0')
    a('s_cbranch_scc1 Lfs_fin')
    a('s_cmp_lt_u32 s13, 40')
    a('s_cbranch_scc1 Lfs_fix')
    a('s_branch Lfs_fin')

    a.label('Lfs_down')
    WD = 16; HF = 88; Y = 112; X = 128; TT = 132; SG = 136; XN = 138
    a('s_min_u32 s61, s10, 2')
    a('s_mul_i32 s11, s14, 3')
    a('s_add_u32 s61, s61, s11')
    a('s_lshl_b32 s11, s61, 5')
    a('s_add_u32 s16, s11, s52')
    a(f's_add_u32 s11, s11, {hx(WS_X1)}')
    a('v_mul_u32_u24 v14, 1280, v12')
    a('v_lshl_add_u32 v14, v13, 3, v14')
    a('buffer_load_dword v2, v8, s[28:31], s44 offen')
    a('buffer_load_dword v3, v8, s[28:31], s45 offen')
    a(f'buffer_load_dwordx2 {vr(X,2)}, v14, s[28:31], s11 offen')
    a('v_lshl_add_u32 v6, v0, 3, s58')
    a('s_barrier')
    a('v_and_b32 v8, 0xfffff800, v11')
    a('v_ashrrev_i32 v9, 31, v8')
    a('v_not_b32 v9, v9')
    a('v_or_b32 v9, 0x80000000, v9')
    a('v_xor_b32 v8, v8, v9')
    rbf16(a, 8, 8)
    a(f'v_mul_f32 v8, {NL2E}, v8')
    a('v_exp_f32 v8, v8')
    a('v_add_f32 v8, 1.0, v8')
    a('v_rcp_f32 v8, v8')
    rbf16(a, SG, 8)
    a('s_waitcnt vmcnt(3)')
    for t in range(3):
        for s in range(6):
            for j in range(2): a(f'ds_read_b64_tr_b16 {vr(WD+24*t+4*s+2*j,2)}, v6 offset:{6144*t+1024*s+512*j}')
    a('s_waitcnt vmcnt(0)')
    ln_scalars(a, 2, 3, M, M + 1, 7)
    for i in range(2):
        unpack(a, Y + 12 + 2 * i, X + i)
        xn_pair(a, Y + 12 + 2 * i, M, TT)
        a(f'v_mov_b32 v{XN+i}, v{TT}')
    a('s_branch Lfs_down2')

    a.label('Lfs_none')
    a('s_cmp_eq_u32 s53, 0')
    a('s_cbranch_scc1 Lfs_none2')
    a('s_lshl3_add_u32 s11, s13, s10')
    a(f's_cmp_lg_u32 s11, {63*8}')
    a('s_cbranch_scc1 Lfs_fin')
    a('v_lshlrev_b32 v7, 2, v10')
    a('v_and_b32 v8, 2047, v11')
    a(f's_mov_b32 s11, {hx(WS_SEL)}')
    a('s_mov_b64 exec, 0xff')
    a('buffer_store_dword v8, v7, s[28:31], s11 offen sc0 sc1')
    a('s_branch Lfs_fin')
    a.label('Lfs_none2')
    a('s_cmp_lt_u32 s13, 64')
    a('s_cbranch_scc1 Lfs_fin')

    a.label('Lfs_elem')
    E = 140; XD = 160; EO = 180
    a('s_and_b32 s11, s13, 63')
    a('s_mul_i32 s12, s11, 40960')
    a('s_add_u32 s18, s12, s52')
    a(f's_add_u32 s12, s12, {hx(WS_X1)}')
    a(f'v_lshrrev_b32 v{E}, 4, v15')
    a(f'v_mul_u32_u24 v{E+1}, 1280, v{E}')
    a(f'v_and_b32 v{E+2}, 15, v15')
    a(f'v_lshl_add_u32 v{E+1}, v{E+2}, 4, v{E+1}')
    for i in range(5): a(f'buffer_load_dwordx4 {vr(XD+4*i,4)}, v{E+1}, s[28:31], s12 offen offset:{256*i}')
    a('s_and_b32 s19, s11, 3')
    a('s_lshl1_add_u32 s19, s19, s60')
    a('s_lshl_b32 s19, s19, 8')
    a('s_lshr_b32 s11, s11, 2')
    a('s_lshl4_add_u32 s19, s11, s19')
    a(f'v_and_b32 v{E}, 15, v{E}')
    a(f'v_add_u32 v{E}, s19, v{E}')
    a(f'v_lshlrev_b32 v{E+2}, 2, v{E}')
    a(f'buffer_load_dword v{E+4}, v{E+2}, s[28:31], s44 offen')
    a(f'buffer_load_dword v{E+5}, v{E+2}, s[28:31], s45 offen')
    a(f'v_mov_b32 v{E+3}, s17')
    a(f'ds_read_b128 {vr(E+8,4)}, v{E+3}')
    a(f'ds_read_b128 {vr(E+12,4)}, v{E+3} offset:16')
    a(f'v_sub_u32 v{E}, 2047, v{E}')
    a('s_waitcnt vmcnt(0) lgkmcnt(0)')
    ln_scalars(a, E + 4, E + 5, E + 6, E + 7, E + 3)
    for i in range(8):
        a(f'v_and_b32 v{E+8+i}, 2047, v{E+8+i}')
        a(f'v_cmp_ne_u32 vcc, v{E+8+i}, v{E}')
        a('s_and_b64 exec, exec, vcc')
    a('s_cbranch_execz Lfs_eskip')
    MM = vr(E + 6, 2)
    for i in range(0, 20, 2):
        tt = [E + 8, E + 14]
        for k in range(2): unpack(a, tt[k] + 4, XD + i + k)
        for k in range(2): a(f'v_pk_add_f32 {vr(tt[k]+2,2)}, {vr(tt[k]+4,2)}, {MM} op_sel_hi:[1,0] neg_lo:[0,1] neg_hi:[0,1]')
        for k in range(2): a(f'v_cvt_pk_bf16_f32 v{tt[k]}, v{tt[k]+2}, v{tt[k]+3}')
        for k in range(2): unpack(a, tt[k] + 2, tt[k])
        for k in range(2): a(f'v_pk_mul_f32 {vr(tt[k]+2,2)}, {vr(tt[k]+2,2)}, {MM} op_sel:[0,1] op_sel_hi:[1,1]')
        for k in range(2): a(f'v_cvt_pk_bf16_f32 v{tt[k]}, v{tt[k]+2}, v{tt[k]+3}')
        for k in range(2): unpack(a, tt[k] + 2, tt[k])
        for k in range(2): a(f'v_pk_add_f32 {vr(tt[k]+2,2)}, {vr(tt[k]+2,2)}, {vr(tt[k]+4,2)}')
        for k in range(2): a(f'v_cvt_pk_bf16_f32 v{XD+i+k}, v{tt[k]+2}, v{tt[k]+3}')
        if i % 4 == 2: a(f'buffer_store_dwordx4 {vr(XD+i-2,4)}, v{E+1}, s[20:23], s18 offen offset:{256*(i//4)} sc1')
    a.label('Lfs_eskip')
    endpgm(a)

    a.label('Lfs_down2')
    a('v_lshlrev_b32 v7, 7, v13')
    a('v_lshl_add_u32 v7, v10, 4, v7')
    a('s_mul_i32 s11, s10, 3072')
    a(f's_add_u32 s11, s11, {hx(WS_H)}')
    a('s_add_u32 s11, s11, s51')
    def poll(tag, reg, n, masked):
        a('s_mov_b32 s15, 0')
        a.label(f'Lfs_poll{tag}')
        a('s_add_u32 s15, s15, 1')
        a('s_and_b32 s18, s15, 7')
        a(f's_cbranch_scc1 Lfs_pl{tag}')
        for s in range(n): a(f'buffer_load_dwordx4 {vr(reg+4*s,4)}, v7, s[28:31], s11 offen offset:{512*s} sc0 sc1')
        a(f's_branch Lfs_pm{tag}')
        a.label(f'Lfs_pl{tag}')
        for s in range(n): a(f'buffer_load_dwordx4 {vr(reg+4*s,4)}, v7, s[28:31], s11 offen offset:{512*s} {os.environ.get("PSC", "sc1")}')
        a.label(f'Lfs_pm{tag}')
        for s in range(n):
            a(f's_waitcnt vmcnt({n-1-s})')
            r = reg + 4 * s
            if s == 0: a(f'v_max_u32 v8, v{r}, v{r+1}')
            else: a(f'v_max3_u32 v8, v{r}, v{r+1}, v8')
            a(f'v_max3_u32 v8, v{r+2}, v{r+3}, v8')
        a('v_cmp_eq_u32 vcc, -1, v8')
        a('s_cmp_gt_u32 s15, 0x40000')
        a(f's_cbranch_scc1 Lfs_go{tag}')
        a(f's_cbranch_vccz Lfs_go{tag}')
        a(f's_sleep {os.environ.get("SLP", "2")}')
        a(f's_branch Lfs_poll{tag}')
        a.label(f'Lfs_go{tag}')
    poll('h', HF, 6, False)
    a('s_waitcnt lgkmcnt(0)')
    stamp(a, 6)
    for s in range(6):
        for t in range(3):
            a(f'v_mfma_f32_16x16x32_bf16 {vr(Y+4*t,4)}, {vr(WD+24*t+4*s,4)}, {vr(HF+4*s,4)}, {"0" if s == 0 else vr(Y+4*t,4)}')
    a('s_mul_i32 s12, s10, 1536')
    a('v_add_u32 v8, s12, v7')
    for t in range(3): a(f'ds_write_b128 v8, {vr(Y+4*t,4)} offset:{L_RED+512*t}')
    a('s_lshl_b32 s12, s10, 9')
    a('v_add_u32 v8, s12, v7')
    a('s_waitcnt lgkmcnt(0)')
    a('s_barrier')
    stamp(a, 7)
    a('s_cmp_gt_u32 s10, 2')
    a('s_cbranch_scc1 Lfs_fin')
    a('s_cmp_ge_u32 s61, 40')
    a('s_cbranch_scc1 Lfs_fin')
    for w in range(8): a(f'ds_read_b128 {vr(WD+4*w,4)}, v8 offset:{L_RED+1536*w}')
    a('v_lshrrev_b32 v7, 1, v13')
    a('v_lshlrev_b32 v7, 7, v7')
    a('v_lshl_add_u32 v7, v10, 4, v7')
    a('v_and_b32 v9, 1, v13')
    a('v_lshl_add_u32 v7, v9, 3, v7')
    a('s_lshl_b32 s11, s61, 8')
    a(f's_add_u32 s11, s11, {hx(WS_XS)}')
    a('s_add_u32 s11, s11, s51')
    a('s_waitcnt lgkmcnt(0)')
    for st_ in (4, 2, 1):
        for w in range(st_):
            for i in range(2): a(f'v_pk_add_f32 {vr(WD+4*w+2*i,2)}, {vr(WD+4*w+2*i,2)}, {vr(WD+4*(w+st_)+2*i,2)}')
    for i in range(2):
        y = WD + 2 * i
        a(f'v_cvt_pk_bf16_f32 v{TT}, v{y}, v{y+1}')
        unpack(a, y, TT)
        a(f'v_pk_mul_f32 {vr(y,2)}, {vr(y,2)}, {vr(SG,2)} op_sel_hi:[1,0]')
        a(f'v_cvt_pk_bf16_f32 v{TT}, v{y}, v{y+1}')
        unpack(a, y, TT)
        unpack(a, TT + 2, XN + i)
        a(f'v_pk_add_f32 {vr(y,2)}, {vr(y,2)}, {vr(TT+2,2)}')
        a(f'v_cvt_pk_bf16_f32 v{TT}, v{y}, v{y+1}')
        unpack(a, y, TT)
        a(f'v_pk_add_f32 {vr(y,2)}, {vr(y,2)}, {vr(Y+12+2*i,2)}')
        a(f'v_cvt_pk_bf16_f32 v{X+i}, v{y}, v{y+1}')
        a(f'v_min_u32 v{X+2+i}, -2, v{X+i}')
    a('s_mov_b32 exec_lo, 0x00ff00ff')
    a('s_mov_b32 exec_hi, 0x00ff00ff')
    a(f'buffer_store_dwordx2 {vr(X+2,2)}, v7, s[28:31], s11 offen sc0 sc1')
    a(f'buffer_store_dwordx2 {vr(X,2)}, v14, s[20:23], s16 offen sc1')
    if os.environ.get('DBGT'):
        a('s_mov_b64 exec, -1')
        a('s_cmp_lg_u32 s61, 0')
        a('s_cbranch_scc1 Lfs_fin')
        ksrd(a, 32, KA_DBG, 256)
        a('s_memrealtime s[4:5]')
        a('v_lshlrev_b32 v2, 2, v0')
        a(f's_mov_b32 s6, {hx(WS_PROF)}')
        a('buffer_load_dword v3, v2, s[28:31], s6 offen sc0 sc1')
        a('s_waitcnt vmcnt(0) lgkmcnt(0)')
        a('v_sub_u32 v3, s4, v3')
        a('buffer_store_dword v3, v2, s[32:35], 0 offen')
    endpgm(a)

    a.label('Lfs_fix')
    WA = 40; WB = 60; DA = 80; DB = 84
    a('s_barrier')
    for i in range(3):
        a(f'v_add_u32 v16, {64*i}, v0')
        a('v_mul_u32_u24 v17, 10923, v16')
        a('v_lshrrev_b32 v17, 16, v17')
        a('v_mul_u32_u24 v18, 6, v17')
        a('v_sub_u32 v16, v16, v18')
        a('v_and_b32 v18, 12, v17')
        a('v_and_b32 v19, 3, v17')
        a('v_lshl_or_b32 v18, v18, 1, v19')
        a('v_lshrrev_b32 v17, 4, v17')
        a('v_lshl_or_b32 v18, v17, 2, v18')
        a('v_mul_u32_u24 v18, 3840, v18')
        a(f'v_lshl_add_u32 v{20+i}, v16, 4, v18')
    a(f's_mul_i32 s11, s10, {32*3840}')
    a('s_mul_i32 s12, s63, 96')
    a('s_add_u32 s11, s11, s12')
    a('s_mul_i32 s12, s10, 3072')
    a(f's_add_u32 s12, s12, {L_FX}')
    for n in range(3):
        if n == 2:
            a('s_cmp_ge_u32 s10, 4')
            a('s_cbranch_scc1 Lfs_nofx')
        for i in range(3):
            a(f's_add_u32 m0, s12, {24576*n+1024*i}')
            a(f'buffer_load_dwordx4 v{20+i}, s[24:27], s11 offen lds')
        if n < 2: a(f's_add_u32 s11, s11, {256*3840}')
    a.label('Lfs_nofx')
    a('v_lshrrev_b32 v6, 2, v0')
    a('v_mul_u32_u24 v6, 96, v6')
    a('v_and_b32 v7, 3, v0')
    a('v_lshl_add_u32 v6, v7, 3, v6')
    a('s_mul_i32 s11, s59, 15360')
    a('s_lshl_b32 s12, s60, 6')
    a('s_add_u32 s11, s11, s12')
    a(f's_add_u32 s11, s11, {L_FX}')
    a('v_add_u32 v6, s11, v6')
    a('s_waitcnt vmcnt(0)')
    a('s_barrier')
    stamp(a, 9)
    for s in range(5):
        for j in range(2):
            a(f'ds_read_b64_tr_b16 {vr(WA+4*s+2*j,2)}, v6 offset:{3072*s+1536*j}')
            a(f'ds_read_b64_tr_b16 {vr(WB+4*s+2*j,2)}, v6 offset:{3072*s+1536*j+32}')
    a('v_lshlrev_b32 v7, 7, v13')
    a('v_lshl_add_u32 v7, v10, 4, v7')
    a('s_mul_i32 s11, s59, 2560')
    a(f's_add_u32 s11, s11, {hx(WS_XS)}')
    for i in range(20): a(f'v_mov_b32 v{XF+i}, {hx(ONES2)}')
    a('s_mov_b32 exec_lo, 0x00ff00ff')
    a('s_mov_b32 exec_hi, 0x00ff00ff')
    poll('x', XF, 5, True)
    a('s_mov_b64 exec, -1')
    a('s_waitcnt lgkmcnt(0)')
    stamp(a, 10)
    a('s_cmp_eq_u32 s60, 0')
    a('s_cbranch_scc1 Lfs_fx2')
    for i in range(20): a(f'v_mov_b32 v{WB+i}, v{XF+i}')
    a.label('Lfs_fx2')
    for s in range(5):
        a(f'v_mfma_f32_16x16x32_bf16 {vr(DA,4)}, {vr(WA+4*s,4)}, {vr(XF+4*s,4)}, {"0" if s == 0 else vr(DA,4)}')
        a(f'v_mfma_f32_16x16x32_bf16 {vr(DB,4)}, {vr(WB+4*s,4)}, {vr(XF+4*s,4)}, {"0" if s == 0 else vr(DB,4)}')
    a('s_lshl_b32 s11, s59, 12')
    a('s_lshl_b32 s12, s60, 11')
    a('s_add_u32 s11, s11, s12')
    a('v_add_u32 v8, s11, v1')
    a(f'ds_write_b128 v8, {vr(DA,4)} offset:{L_W}')
    a(f'ds_write_b128 v8, {vr(DB,4)} offset:{L_W+1024}')
    a('s_lshl_b32 s11, s10, 10')
    a('v_add_u32 v8, s11, v1')
    a('v_lshrrev_b32 v9, 2, v10')
    a('v_lshlrev_b32 v9, 8, v9')
    a('v_lshl_add_u32 v9, v10, 4, v9')
    a('v_and_b32 v7, 3, v10')
    a('v_lshl_add_u32 v9, v7, 2, v9')
    a('v_lshlrev_b32 v7, 4, v10')
    a('s_waitcnt lgkmcnt(0)')
    a('s_barrier')
    a('s_cmp_gt_u32 s10, 2')
    a('s_cbranch_scc1 Lfs_fin')
    for q in range(4):
        a(f'ds_read_b32 v{40+q}, v7 offset:{L_W+4096*q+3072+512}')
        a(f'ds_read_b32 v{44+q}, v9 offset:{L_W+4096*q+3072}')
    for q in range(4): a(f'ds_read_b128 {vr(16+4*q,4)}, v8 offset:{L_W+4096*q}')
    a('s_mul_i32 s11, s63, 3')
    a('s_add_u32 s11, s11, s10')
    a('s_cmp_lt_u32 s11, 40')
    a(f's_cselect_b32 s12, {hx(QSCALE)}, 1.0')
    a('s_lshl_b32 s11, s11, 16')
    a('v_lshrrev_b32 v6, 1, v13')
    a('v_lshlrev_b32 v6, 15, v6')
    a('v_lshl_add_u32 v6, v12, 4, v6')
    a('v_and_b32 v14, 1, v13')
    a('v_lshl_add_u32 v6, v14, 3, v6')
    a('s_waitcnt lgkmcnt(4)')
    for b in (40, 44):
        a(f'v_add_f32 v{b}, v{b}, v{b+1}')
        a(f'v_add_f32 v{b+2}, v{b+2}, v{b+3}')
        a(f'v_add_f32 v{b}, v{b}, v{b+2}')
    ln_scalars(a, 40, 44, M, M + 1, 14)
    a(f'v_mul_f32 v{M+1}, s12, v{M+1}')
    a('s_waitcnt lgkmcnt(0)')
    for i in range(2):
        a(f'v_pk_add_f32 {vr(16+2*i,2)}, {vr(16+2*i,2)}, {vr(20+2*i,2)}')
        a(f'v_pk_add_f32 {vr(24+2*i,2)}, {vr(24+2*i,2)}, {vr(28+2*i,2)}')
    for i in range(2): a(f'v_pk_add_f32 {vr(16+2*i,2)}, {vr(16+2*i,2)}, {vr(24+2*i,2)}')
    for i in range(4): a(f'v_mov_b32_dpp v{20+i}, v{16+i} row_newbcast:8 row_mask:0xf bank_mask:0xf')
    for i in range(4): a(f'v_fma_f32 v{16+i}, -v{M}, v{20+i}, v{16+i}')
    for i in range(4): a(f'v_mul_f32 v{16+i}, v{16+i}, v{M+1}')
    a('v_cvt_pk_bf16_f32 v20, v16, v17')
    a('v_cvt_pk_bf16_f32 v21, v18, v19')
    a('s_mov_b32 exec_lo, 0x00ff00ff')
    a('s_mov_b32 exec_hi, 0x00ff00ff')
    a('buffer_store_dwordx2 v[20:21], v6, s[28:31], s11 offen sc1')
    a.label('Lfs_fin')
    endpgm(a)
    a.label('Lfs_end')
    a('s_endpgm')
```

```python
import sys, struct, math, os
sys.path.insert(0, os.path.dirname(os.path.abspath(__file__)))
from asmlib import *

S, D, H, DH, F = 2048, 640, 32, 20, 1536
KA_X, KA_WQKV, KA_WO, KA_BX, KA_WR, KA_WG, KA_WU, KA_WD, KA_OUT, KA_DBG, KA_WS = [8 * i for i in range(11)]
PLANE = 2048 * 16
WS_QKV = 0
QKV_SZ = 240 * PLANE
WS_O = WS_QKV + 2 * QKV_SZ
WS_X1 = WS_O + 80 * PLANE
X_SZ = S * D * 2
WS_X2 = WS_X1 + 2 * X_SZ
WS_PD = WS_X2 + X_SZ
WS_CTL = WS_PD + 42 * 49152
WS_ST = WS_CTL
WS_FL = WS_ST + 24576
WS_H = WS_FL + 8192
WS_XS = WS_H + 24576
WS_SEL = WS_XS + 10240
CTL_SZ = 67 * 1024
WS_MR = WS_CTL + 2 * CTL_SZ
WS_CS = WS_MR + 32768
WS_FLG = WS_CS + 2 * 1920 * 8
WS_EP = WS_FLG + 4 * 32768
WS_END = WS_EP + 128
EPK = 0x9E3779B9
WS_PROF = 0x2000000
WS_SIZE = 0x4000000
assert WS_END <= WS_PROF

def f2u(x): return struct.unpack('<I', struct.pack('<f', x))[0]
def hx(x): return hex(x & 0xFFFFFFFF)
QSCALE = f2u(DH ** -0.5 * math.log2(math.e))
ONES2 = 0x3F803F80
NEGBIG = f2u(-1e30)
NL2E = hx(f2u(-math.log2(math.e)))

kernels = []
LAUNCH = {}
PROF = bool(os.environ.get('PROF'))
PV = 160
def stamp(a, i):
    if not PROF: return
    a('s_memrealtime s[100:101]')
    a('s_waitcnt lgkmcnt(0)')
    a(f'v_writelane_b32 v{a.pv}, s100, {i}')
def cstamp(a, i):
    if not PROF: return
    a('s_memtime s[100:101]')
    a('s_waitcnt lgkmcnt(0)')
    a(f'v_writelane_b32 v{a.pv}, s100, {i}')
def lstamp(a, sreg): pass
KNAME = 'interleave_layers__sliding_block__moe_arch_mod__prompt_kernel'
_pd = [0]
def prof_dump(a):
    if not PROF: return
    _pd[0] += 1
    a(f's_load_dwordx2 s[4:5], s[0:1], {KA_WS}')
    a('s_lshl_b32 s8, s96, 9')
    a('s_add_u32 s8, s8, s2')
    a('s_lshl_b32 s8, s8, 4')
    a('s_add_u32 s8, s8, s10')
    a('s_lshl_b32 s8, s8, 8')
    a(f's_add_u32 s8, s8, {hx(WS_PROF)}')
    a(f's_mov_b32 s6, {hx(WS_SIZE)}'); a('s_mov_b32 s7, 0x20000')
    a('v_lshlrev_b32 v1, 2, v0')
    a('s_waitcnt lgkmcnt(0)')
    a(f'buffer_store_dword v{a.pv}, v1, s[4:7], s8 offen')
    a('s_add_u32 s96, s96, 1')
    a('s_nop 1')
    a(f'v_mov_b32 v{a.pv}, 0')
    stamp(a, 0)
def endpgm(a): a('s_branch ' + a.fin)
def gen_prof(a): pass

def phase_end(a, slot_expr):
    a('s_mov_b64 exec, -1')
    stamp(a, 14)
    a('s_waitcnt vmcnt(0) lgkmcnt(0)')
    stamp(a, 15)
    a('s_barrier')
    _pd[0] += 1; L = f'Lsig{_pd[0]}'
    a('s_cmp_lg_u32 s10, 8')
    a(f's_cbranch_scc1 {L}')
    slot_expr(a)
    a('s_lshl_b32 s12, s97, 15')
    a('s_add_u32 s11, s11, s12')
    a(f's_add_u32 s11, s11, {hx(WS_FLG)}')
    a('v_mov_b32 v2, s98')
    a('v_mov_b32 v3, 0')
    a('s_mov_b64 exec, 1')
    a('buffer_store_dword v2, v3, s[28:31], s11 offen sc0 sc1')
    a('s_mov_b64 exec, -1')
    a.label(L)
    a('s_add_u32 s97, s97, 1')
    prof_dump(a)

def flag_wait(a, vregs):
    _pd[0] += 1; L = f'Lfw{_pd[0]}'
    n = len(vregs)
    a('s_lshl_b32 s11, s97, 15')
    a(f's_add_u32 s11, s11, {hx(WS_FLG - 32768)}')
    a('s_mov_b32 s12, 0')
    for i in range(n): a(f's_mov_b64 s[{88+2*i}:{89+2*i}], exec')
    a.label(L)
    a('s_add_u32 s12, s12, 1')
    a(f's_and_b32 s99, s12, {os.environ.get("PMASK", "7")}')
    a(f's_cbranch_scc1 {L}a')
    for sc, nxt in (('sc0 sc1', True), ('sc1', False)):
        for i, v in enumerate(vregs):
            a(f's_mov_b64 exec, s[{88+2*i}:{89+2*i}]')
            a(f'buffer_load_dword v{20+i}, v{v}, s[28:31], s11 offen {sc}')
        if nxt:
            a(f's_branch {L}b')
            a.label(L + 'a')
    a.label(L + 'b')
    a('s_waitcnt vmcnt(0)')
    for i in range(n):
        a(f's_mov_b64 exec, s[{88+2*i}:{89+2*i}]')
        a(f'v_cmp_ne_u32 s[{88+2*i}:{89+2*i}], s98, v{20+i}')
    a('s_mov_b64 vcc, s[88:89]')
    for i in range(1, n): a(f's_or_b64 vcc, vcc, s[{88+2*i}:{89+2*i}]')
    a(f's_cbranch_vccz {L}c')
    a(f's_sleep {os.environ.get("SLPF", "1")}')
    a('s_cmp_lt_u32 s12, 0x40000')
    a(f's_cbranch_scc1 {L}')
    a.label(L + 'c')
    a('s_mov_b64 exec, -1')

def ksrd(a, d, ka, size):
    a(f's_load_dwordx2 s[{d}:{d+1}], s[0:1], {ka}')
    a(f's_mov_b32 s{d+2}, {hx(size)}')
    a(f's_mov_b32 s{d+3}, 0x20000')

def add64(a, d, s, off):
    o = off if isinstance(off, str) else hx(off)
    a(f's_add_u32 s{d}, s{s}, {o}')
    a(f's_addc_u32 s{d+1}, s{s+1}, 0')

def rbf16(a, d, s):
    a(f'v_cvt_pk_bf16_f32 v{d}, v{s}, v{s}')
    a(f'v_and_b32 v{d}, 0xffff0000, v{d}')

def unpack(a, lo, src):
    a(f'v_lshlrev_b32 v{lo}, 16, v{src}')
    a(f'v_and_b32 v{lo+1}, 0xffff0000, v{src}')

def ln_scalars(a, s1, s2, m, rs, t):
    inv = hx(f2u(1.0 / D))
    a(f'v_mul_f32 v{m}, {inv}, v{s1}')
    a(f'v_mul_f32 v{t}, {inv}, v{s2}')
    a(f'v_fma_f32 v{t}, -v{m}, v{m}, v{t}')
    a(f'v_max_f32 v{t}, 0, v{t}')
    rbf16(a, t, t)
    a(f'v_add_f32 v{t}, {hx(f2u(1e-5))}, v{t}')
    rbf16(a, t, t)
    a(f'v_sqrt_f32 v{t}, v{t}')
    rbf16(a, t, t)
    a(f'v_rcp_f32 v{rs}, v{t}')
    rbf16(a, m, m)

def kernel_start(a, label):
    a.raw('.p2align 8')
    a.raw(f'.globl {label}')
    a.raw(f'.type {label},@function')
    a.label(label)
    if PROF:
        a(f'v_mov_b32 v{a.pv}, 0')
        stamp(a, 0)

def reg_kernel(label, grid, block, lds, vgpr, sgpr):
    kernels.append((label, vgpr, 102 if PROF else sgpr))
    LAUNCH[label] = (grid, block, lds)

def wave_lane(a):
    a('v_lshrrev_b32 v1, 6, v0')
    a('v_and_b32 v0, 63, v0')
    a('v_readfirstlane_b32 s10, v1')

def mod_small(a, s, n, times):
    for _ in range(times):
        a(f's_sub_u32 s99, s{s}, {n}')
        a(f's_cmp_ge_u32 s{s}, {n}')
        a(f's_cselect_b32 s{s}, s99, s{s}')

def slot_to_off_s(a, sreg): a(f's_lshl_b32 s{sreg}, s{sreg}, 7')
def slot_to_off_v(a, v, t): a(f'v_lshlrev_b32 v{v}, 7, v{v}')
def wait_all(a):
    a('v_lshlrev_b32 v2, 7, v0')
    for i in range(1, 4): a(f'v_add_u32 v{2+i}, {8192*i}, v2')
    flag_wait(a, [2, 3, 4, 5])
```

```python
from common import *
XA = os.environ.get('XA', '')
def gen_ao(a):
    a.pv = 167
    PS = 8192 + 64
    Q = 2; KA = 8; KB = 9; VA = 10; MX = 12
    ME = 16; MD = 32; SB = 48; KF = 80; NM = 96; OA = 112; P = 128; VF = 136; T = 152; PK = 160
    WOB = 7 * PS
    a.label('Lq_fin')
    def qslot(a):
        a('s_mul_i32 s11, s13, 12')
        a('s_add_u32 s11, s11, s14')
        a('s_add_u32 s11, s11, 64')
        a('s_cmp_lt_u32 s2, 64')
        a('s_cselect_b32 s11, s2, s11')
        slot_to_off_s(a, 11)
    phase_end(a, qslot)
    a.fin = 'La_fin'
    a('s_cmp_eq_u32 s3, 0')
    a(f's_cselect_b32 s63, 0, {CTL_SZ}')
    a(f's_cselect_b32 s4, {KA_X}, {KA_WS}')
    a(f's_cselect_b32 s5, 0, {QKV_SZ}')
    a(f's_mov_b32 s66, {hx(WS_SIZE)}')
    a(f's_cselect_b32 s66, {S*D*2}, s66')
    a('s_load_dwordx2 s[64:65], s[0:1], s4')
    a('s_mov_b32 s67, 0x20000')
    for i in range(4): a(f's_mov_b32 s{20+i}, s{28+i}')
    ksrd(a, 68, KA_WR, D * 2)
    a('s_and_b32 s11, s2, 7')
    a('s_lshr_b32 s12, s2, 3')
    a('s_lshr_b32 s72, s11, 1')
    a('s_and_b32 s73, s12, 7')
    a('s_lshl3_add_u32 s72, s72, s73')
    a('s_and_b32 s74, s11, 1')
    a('s_lshr_b32 s75, s12, 3')
    a('s_lshl2_add_u32 s74, s74, s75')
    a('s_add_u32 s73, s73, s75')
    mod_small(a, 73, 5, 2)
    a('s_lshr_b32 s13, s12, 3')
    a('s_lshl2_add_u32 s13, s11, s13')
    a('s_and_b32 s14, s12, 7')
    a('s_cmp_eq_u32 s10, 8')
    a('s_cbranch_scc1 Lao_loader')
    a('s_lshr_b32 s15, s13, 1')
    a('s_mul_i32 s15, s15, 5')
    a('s_and_b32 s16, s13, 1')
    a('s_mul_i32 s17, s16, 3')
    a('s_add_u32 s17, s17, s15')
    a('s_lshl_b32 s17, s17, 15')
    a('s_add_u32 s18, s15, 2')
    a('s_lshl_b32 s18, s18, 15')
    a('s_lshl2_add_u32 s19, s14, s10')
    a('s_sub_u32 s24, s19, 4')
    a('s_cmp_lt_u32 s19, 4')
    a('s_cselect_b32 s19, s19, s24')
    a('s_cselect_b32 s46, 1, 0')
    a('s_lshl_b32 s19, s19, 10')
    a(f's_add_u32 s19, s19, {80*PLANE}')
    a('s_add_u32 s19, s19, s5')
    a('s_add_u32 s24, s17, s19')
    a('s_add_u32 s25, s18, s19')
    a('s_lshl3_add_u32 s26, s14, s10')
    a('s_lshl_b32 s26, s26, 9')
    a('s_add_u32 s27, s17, s26')
    a('s_lshl3_add_u32 s44, s16, s18')
    a('s_add_u32 s44, s44, s26')
    a('s_lshl_b32 s45, s10, 10')
    a('v_lshlrev_b32 v1, 4, v0')
    a('v_and_b32 v14, 31, v0')
    a('v_lshrrev_b32 v15, 5, v0')
    a('v_lshlrev_b32 v11, 4, v14')
    a(f'v_lshl_add_u32 v{T}, v15, 15, v11')
    a(f'v_mov_b32 v{Q+4}, {hx(ONES2)}')
    a(f'v_mov_b32 v{Q+5}, {hx(ONES2)}')
    a('s_cmp_eq_u32 s46, 1')
    a(f's_cselect_b32 s47, {hx(NEGBIG >> 16)}, 0')
    a(f'v_mov_b32 v{SB}, s47')
    a(f'v_mov_b32 v{SB+1}, 0')
    a(f'v_mov_b32 v{SB+2}, {hx(ONES2)}')
    a(f'v_mov_b32 v{SB+3}, {hx(ONES2)}')
    a('v_add_u32 v12, s45, v1')
    a(f'ds_write_b128 v12, {vr(SB,4)} offset:{6*PS}')
    a('s_lshl_b32 s48, s10, 9')
    a(f'v_mul_u32_u24 v12, {PS}, v15')
    a(f'v_add3_u32 v{KA}, v12, v11, s48')
    a('s_lshl3_add_u32 s51, s16, s48')
    a(f's_add_u32 s51, s51, {2*PS}')
    a(f's_add_u32 s52, s48, {6*PS}')
    a(f'v_mov_b32 v12, s51')
    a(f'v_mov_b32 v13, s52')
    a('v_cmp_eq_u32 vcc, 0, v15')
    a('v_cndmask_b32 v12, v13, v12, vcc')
    a(f'v_add_u32 v{KB}, v12, v11')
    a('v_and_b32 v12, 1, v0')
    a('v_lshlrev_b32 v12, 3, v12')
    a('v_bfe_u32 v13, v0, 1, 1')
    a(f'v_mul_u32_u24 v13, {PS}, v13')
    a(f'v_add3_u32 v12, v12, v13, s48')
    a(f'v_add_u32 v12, {3*PS}, v12')
    a(f's_add_u32 s51, s51, {3*PS}')
    a('s_add_u32 s52, s52, 8')
    a(f'v_mov_b32 v13, s51')
    a(f'v_mov_b32 v{VA}, s52')
    a(f'v_and_b32 v{VA+1}, 3, v0')
    a(f'v_cmp_eq_u32 vcc, 0, v{VA+1}')
    a(f'v_cndmask_b32 v13, v{VA}, v13, vcc')
    a(f'v_and_b32 v{VA+1}, 16, v0')
    a(f'v_cmp_eq_u32 vcc, 0, v{VA+1}')
    a('v_cndmask_b32 v12, v13, v12, vcc')
    a('v_bfe_u32 v13, v0, 2, 2')
    a('v_lshl_add_u32 v13, v15, 2, v13')
    a(f'v_lshl_add_u32 v{VA}, v13, 4, v12')
    def masks():
        a('v_lshlrev_b32 v12, 2, v15')
        a('v_sub_u32 v12, v14, v12')
        a(f'v_mov_b32 v13, {hx(NEGBIG)}')
        for v in range(16):
            kk = 8 * (v // 4) + v % 4
            sp = 54 + 2 * (v % 4)
            a(f'v_cmp_le_i32 s[{sp}:{sp+1}], {kk}, v12')
            if v % 4 == 3:
                for u in range(v - 3, v + 1):
                    sp = 54 + 2 * (u % 4)
                    a(f'v_cndmask_b32 v{MD+u}, v13, 0, s[{sp}:{sp+1}]')
                    a(f'v_cndmask_b32 v{ME+u}, 0, v13, s[{sp}:{sp+1}]')
    masks()
    a('s_add_u32 s6, s27, s5')
    a('s_add_u32 s7, s44, s5')
    a(f's_add_u32 s27, s27, {hx(WS_O)}')
    a(f's_add_u32 s44, s44, {hx(WS_O)}')
    a('v_lshlrev_b32 v11, 4, v14')
    a(f'v_mov_b32 v{T+7}, {hx(f2u(2.0**100))}')
    a('s_mov_b32 s62, 0')
    a(f's_mov_b32 s8, {hx(WS_SEL)}')
    stamp(a, 1)
    a('s_waitcnt lgkmcnt(0)')
    a('s_barrier')
    stamp(a, 2)
    for kv in range(2):
        for pl in range(3):
            a(f's_add_u32 m0, s45, {(3*kv+pl)*PS}')
            src = 's25' if pl == 2 else 's24'
            off = kv * 80 * PLANE + (PLANE if pl == 1 else 0)
            if off:
                a(f's_add_u32 s47, {src}, {off}'); src = 's47'
            a(f'buffer_load_dwordx4 v1, s[20:23], {src} offen sc1 lds')
        if kv == 0:
            a(f'buffer_load_dwordx4 {vr(Q,4)}, v{T}, s[20:23], s6 offen sc1')
            a('s_mov_b32 exec_hi, 0')
            a(f'buffer_load_dwordx2 {vr(Q+4,2)}, v11, s[20:23], s7 offen sc1')
            a('s_mov_b32 exec_hi, -1')
    a('s_cmp_eq_u32 s3, 0')
    a('s_cbranch_scc1 Lao_nosel')
    a('s_load_dwordx8 s[80:87], s[28:29], s8')
    a.label('Lao_nosel')
    a('s_waitcnt vmcnt(0) lgkmcnt(0)')
    stamp(a, 3)
    a('s_barrier')
    stamp(a, 4)
    cstamp(a, 12)
    def kread(t, b):
        a(f'ds_read_b128 {vr(KF+8*b,4)}, v{KA} offset:{512*t}')
        a(f'ds_read_b64 {vr(KF+8*b+4,2)}, v{KB} offset:{512*t}')
    def vread(t, b):
        for i in range(2):
            for j in range(2):
                a(f'ds_read_b64_tr_b16 {vr(VF+8*b+4*i+2*j,2)}, v{VA} offset:{512*t+(16*i+8*j)*16}')
    def m1(b, sb, c): a(f'v_mfma_f32_32x32x16_bf16 {vr(sb,16)}, {vr(KF+8*b,4)}, {vr(Q,4)}, {c}')
    def m2(b, sb): a(f'v_mfma_f32_32x32x8_bf16 {vr(sb,16)}, {vr(KF+8*b+4,2)}, {vr(Q+4,2)}, {vr(sb,16)}')
    def mxall(sb, first):
        for i in range(8):
            r = sb + 2 * i
            if first and i < 2: a(f'v_max_f32 v{MX+i}, v{r}, v{r+1}')
            else: a(f'v_max3_f32 v{MX+i%2}, v{r}, v{r+1}, v{MX+i%2}')
    XR = 16; WR = 22; U = 28; XF = 28+12-4
    def early():
        a('s_and_b32 s75, s10, 3')
        a('s_lshr_b32 s76, s10, 2')
        a('s_lshl2_add_u32 s77, s72, s75')
        a('s_lshl1_add_u32 s78, s74, s76')
        a('s_lshl_b32 s78, s78, 6')
        a('s_lshl_b32 s79, s74, 5')
        a('s_add_u32 s79, s79, 1024')
        a(f'v_and_b32 v{U}, 15, v0')
        a(f'v_lshrrev_b32 v{U+1}, 4, v0')
        a(f'v_bfrev_b32 v{U+2}, v{U+1}')
        a(f'v_lshrrev_b32 v{U+2}, 26, v{U+2}')
        a(f'v_add_u32 v{U+2}, s78, v{U+2}')
        a(f'v_lshl_add_u32 v{U+3}, v{U+1}, 3, s79')
        a(f'v_mul_u32_u24 v161, 1280, v{U}')
        a(f'v_add_u32 v160, v161, v{U+2}')
        a(f'v_add_u32 v161, v161, v{U+3}')
        a(f'v_lshlrev_b32 v{U+6}, 4, v{U}')
        a('s_mul_i32 s92, s77, 20480')
        a('s_add_u32 s93, s92, s3')
        a(f's_add_u32 s94, s92, {hx(WS_X2)}')
        a(f's_add_u32 s92, s92, {hx(WS_X1)}')
        a('s_cmp_eq_u32 s3, 0')
        a(f's_cselect_b32 s95, 0, {X_SZ}')
        a('s_add_u32 s92, s92, s95')
        a('s_and_b32 s18, s77, 7')
        a('s_lshl_b32 s18, s18, 10')
        a('s_lshr_b32 s95, s77, 3')
        a('s_lshl_b32 s95, s95, 6')
        a('s_add_u32 s18, s18, s95')
        a(f's_add_u32 s95, s18, {hx(WS_ST)}')
        a(f's_add_u32 s78, s18, {hx(WS_ST+8192)}')
        a(f'v_lshlrev_b32 v{U+7}, 2, v{U}')
        a('s_cmp_eq_u32 s3, 0')
        a('s_cbranch_scc1 Lao_nost')
        a(f'buffer_load_dword v{U+10}, v{U+7}, s[20:23], s95 offen sc1')
        a(f'buffer_load_dword v{U+11}, v{U+7}, s[20:23], s78 offen sc1')
        a.label('Lao_nost')
        a(f'buffer_load_dwordx4 {vr(XR,4)}, v160, s[64:67], s93 offen sc1')
        a(f'buffer_load_dwordx2 {vr(XR+4,2)}, v161, s[64:67], s93 offen sc1')
        a(f'v_cmp_eq_u32 vcc, 0, v{U}')
        a(f'v_mov_b32 v162, {hx(ONES2)}')
        for i in range(6): a(f'v_cndmask_b32 v{WR+i}, 0, v162, vcc')
        a('s_mov_b32 exec_lo, 0x01000100')
        a('s_mov_b32 exec_hi, 0x01000100')
        a(f'buffer_load_dwordx4 {vr(WR,4)}, v{U+2}, s[68:71], 0 offen')
        a(f'buffer_load_dwordx2 {vr(WR+4,2)}, v{U+3}, s[68:71], 0 offen')
        a('s_mov_b64 exec, -1')
    order = [8, 0, 1, 2, 3, 4, 5, 6, 7]
    kread(8, 0); kread(0, 1); vread(8, 0)
    a('s_waitcnt lgkmcnt(6)')
    m1(0, SB, vr(MD, 16)); m2(0, SB)
    mxall(SB, True)
    a.label('Latt_havemax')
    a(f'v_max_f32 v{MX}, v{MX}, v{MX+1}')
    a(f'v_mov_b32 v{MX+1}, v{MX}')
    a(f'v_permlane32_swap_b32 v{MX}, v{MX+1}')
    a(f'v_max_f32 v{MX}, v{MX}, v{MX+1}')
    for v in range(16): a(f'v_sub_f32 v{ME+v}, v{ME+v}, v{MX}')
    for v in range(16): a(f'v_sub_f32 v{SB+v}, v{SB+v}, v{MX}')
    stamp(a, 5)
    def pv(b, i, first):
        c = '0' if first else vr(OA, 16)
        a(f'v_mfma_f32_32x32x16_bf16 {vr(OA,16)}, {vr(VF+8*b+4*i,4)}, {vr(P+4*i,4)}, {c}')
    for n in range(9):
        sb = SB + 16 * (n % 2); sn = SB + 16 * ((n + 1) % 2)
        nx = n + 1 < 9
        for i in range(2): a(f'v_exp_f32 v{sb+i}, v{sb+i}')
        if n > 0: pv((n - 1) % 2, 1, False)
        if nx: vread(order[n + 1], (n + 1) % 2)
        for i in range(2, 5): a(f'v_exp_f32 v{sb+i}, v{sb+i}')
        if nx:
            a('s_waitcnt lgkmcnt(4)')
            m1((n + 1) % 2, sn, vr(ME, 16) if n == 0 else vr(NM, 16))
        else: a('s_waitcnt lgkmcnt(0)')
        if n + 2 < 9: kread(order[n + 2], n % 2)
        for i in range(5, 8): a(f'v_exp_f32 v{sb+i}, v{sb+i}')
        for i in range(4): a(f'v_cvt_pk_bf16_f32 v{P+i}, v{sb+2*i}, v{sb+2*i+1}')
        if nx: m2((n + 1) % 2, sn)
        for i in range(8, 12): a(f'v_exp_f32 v{sb+i}, v{sb+i}')
        pv(n % 2, 0, n == 0)
        if n == 4: early()
        if n == 0:
            for v in range(16): a(f'v_sub_f32 v{NM+v}, 0, v{MX}')
        for i in range(12, 16): a(f'v_exp_f32 v{sb+i}, v{sb+i}')
        for i in range(4, 8): a(f'v_cvt_pk_bf16_f32 v{P+i}, v{sb+2*i}, v{sb+2*i+1}')
    pv(0, 1, False)
    stamp(a, 6)
    cstamp(a, 13)
    a(f'v_add_f32 v{T+1}, |v{OA}|, v{OA+12}')
    a(f'v_add_f32 v{T+6}, |v{OA+1}|, |v{OA+2}|')
    for v in range(3, 12): a(f'v_add_f32 v{T+1+5*(v%2)}, |v{OA+v}|, v{T+1+5*(v%2)}')
    a(f'v_add_f32 v{T+1}, v{T+1}, v{T+6}')
    a(f'v_cmp_nlt_f32 vcc, v{T+1}, v{T+7}')
    a('s_cmp_eq_u32 s62, 1')
    a('s_cbranch_scc1 Latt_out')
    a('s_cbranch_vccnz Latt_exact')
    a.label('Latt_out')
    a(f'v_rcp_f32 v{T+1}, v{OA+12}')
    for v in range(12): a(f'v_mul_f32 v{OA+v}, v{OA+v}, v{T+1}')
    for v in range(6): a(f'v_cvt_pk_bf16_f32 v{P+v}, v{OA+2*v}, v{OA+2*v+1}')
    for v in range(6): a(f'v_min_u32 v{P+v}, -2, v{P+v}')
    a(f'v_permlane32_swap_b32 v{P}, v{P+2}')
    a(f'v_permlane32_swap_b32 v{P+1}, v{P+3}')
    a(f'buffer_store_dwordx4 {vr(P,4)}, v{T}, s[20:23], s27 offen sc1')
    a('s_mov_b32 exec_hi, 0')
    a(f'buffer_store_dwordx2 {vr(P+4,2)}, v11, s[20:23], s44 offen sc1')
    a('s_mov_b32 exec_hi, -1')
    stamp(a, 7)
    RA = 12; AF = 48; WF = 100; NB = 3
    AC = lambda t: 28 + 4 * t if t < 2 else 88 + 4 * (t - 2)
    OP_RED = 0; SA = 4; OP_ST = 24576
    a('s_lshl_b32 s78, s77, 8')
    a('s_lshl_b32 s79, s76, 18')
    a('s_add_u32 s78, s78, s79')
    a(f's_add_u32 s78, s78, {hx(WS_O)}')
    for p in range(5):
        a(f's_lshl_b32 s{SA+p}, s73, 19')
        a(f's_add_u32 s{SA+p}, s{SA+p}, s78')
        if p < 4:
            a('s_add_u32 s73, s73, 1')
            a('s_cmp_eq_u32 s73, 5')
            a('s_cselect_b32 s73, 0, s73')
    a(f'v_lshrrev_b32 v{RA}, 2, v0')
    a(f'v_mul_u32_u24 v{RA}, 160, v{RA}')
    a('v_and_b32 v3, 3, v0')
    a(f'v_lshl_add_u32 v{RA}, v3, 3, v{RA}')
    a('s_mul_i32 s36, s76, 10240')
    a(f's_add_u32 s36, s36, {WOB}')
    a('s_lshl_b32 s37, s76, 6')
    a('s_xor_b32 s38, s37, 64')
    a('s_add_u32 s37, s37, s36')
    a('s_add_u32 s38, s38, s36')
    a(f'v_add_u32 v{RA+2}, s38, v{RA}')
    a(f'v_add_u32 v4, s36, v{RA}')
    a(f'v_add_u32 v{RA}, s37, v{RA}')
    a(f'v_add_u32 v{RA+1}, {3*20480}, v{RA}')
    a(f'v_add_u32 v{RA+3}, {3*20480}, v{RA+2}')
    a(f'v_add_u32 v5, {3*20480}, v4')
    a(f'v_lshlrev_b32 v2, 15, v{U+1}')
    a(f'v_add_u32 v2, v2, v{U+6}')
    a(f'v_add_u32 v7, {4*PLANE}, v2')
    a(f'v_and_b32 v3, 3, v0')
    for i in range(1, 4): a(f'v_cmp_eq_u32 s[{50+2*i}:{51+2*i}], {i}, v3')
    a(f'v_lshlrev_b32 v9, 2, v{U}')
    a('s_mul_i32 s39, s76, 768')
    a('s_lshl_b32 s38, s75, 6')
    a('s_add_u32 s39, s39, s38')
    a('v_add_u32 v11, s39, v9')
    a(f'v_lshl_add_u32 v8, v{U+1}, 8, v11')
    a(f'v_add_u32 v10, s18, v9')
    a('v_lshrrev_b32 v10, 2, v10')
    a('v_sub_u32 v10, 2047, v10')
    a('s_waitcnt vmcnt(2)')
    stamp(a, 8)
    MM = vr(U + 8, 2)
    a('s_cmp_eq_u32 s3, 0')
    a('s_cbranch_scc1 Lop_res')
    ln_scalars(a, U + 10, U + 11, U + 8, U + 9, 3)
    for i in range(0, 6, 2):
        tt = [88, 94]
        for k in range(2): unpack(a, tt[k] + 4, XR + i + k)
        for k in range(2): a(f'v_pk_add_f32 {vr(tt[k]+2,2)}, {vr(tt[k]+4,2)}, {MM} op_sel_hi:[1,0] neg_lo:[0,1] neg_hi:[0,1]')
        for k in range(2): a(f'v_cvt_pk_bf16_f32 v{tt[k]}, v{tt[k]+2}, v{tt[k]+3}')
        for k in range(2): unpack(a, tt[k] + 2, tt[k])
        for k in range(2): a(f'v_pk_mul_f32 {vr(tt[k]+2,2)}, {vr(tt[k]+2,2)}, {MM} op_sel:[0,1] op_sel_hi:[1,1]')
        for k in range(2): a(f'v_cvt_pk_bf16_f32 v{tt[k]}, v{tt[k]+2}, v{tt[k]+3}')
        for k in range(2): unpack(a, tt[k] + 2, tt[k])
        for k in range(2): a(f'v_pk_add_f32 {vr(tt[k]+2,2)}, {vr(tt[k]+2,2)}, {vr(tt[k]+4,2)}')
        for k in range(2): a(f'v_cvt_pk_bf16_f32 v{XR+i+k}, v{tt[k]+2}, v{tt[k]+3}')
    a('v_cmp_eq_u32 vcc, s80, v10')
    for i in range(1, 8):
        a(f'v_cmp_eq_u32 s[48:49], s{80+i}, v10')
        a('s_or_b64 vcc, vcc, s[48:49]')
    a('s_and_saveexec_b64 s[48:49], vcc')
    a('s_cbranch_execz Lop_res2')
    a(f'buffer_load_dwordx4 {vr(XR,4)}, v160, s[20:23], s94 offen sc1')
    a(f'buffer_load_dwordx2 {vr(XR+4,2)}, v161, s[20:23], s94 offen sc1')
    a('s_waitcnt vmcnt(0)')
    a.label('Lop_res2')
    a('s_mov_b64 exec, s[48:49]')
    a.label('Lop_res')
    for i in range(6): unpack(a, XF + 2 * i, XR + i)
    a('s_barrier')
    stamp(a, 9)
    WB = lambda s: WF + 20 * (s % NB)
    def wread(s, t):
        p, k = s // 2, s % 2
        reg = (RA if t < 2 else RA + 2 if t < 4 else 4) + (1 if p >= 3 else 0)
        off = (p % 3) * 20480 + k * 5120 + (32 * (t % 2) if t < 4 else 128)
        for j in range(2):
            a(f'ds_read_b64_tr_b16 {vr(WB(s)+4*t+2*j,2)}, v{reg} offset:{off+j*2560}')
    def mm(s, t):
        c = '0' if s == 0 else vr(AC(t), 4)
        a(f'v_mfma_f32_16x16x32_bf16 {vr(AC(t),4)}, {vr(WB(s)+4*t,4)}, {vr(AF+4*s,4)}, {c}')
    a('s_mov_b32 s43, 0')
    aload = lambda s, sc: f'buffer_load_dwordx4 {vr(AF+4*s,4)}, v{7 if s % 2 else 2}, s[20:23], s{SA+s//2} offen {sc}'
    for s in range(10): a(aload(s, os.environ.get('ASC', 'sc1')))
    for s in range(NB):
        for t in range(5): wread(s, t)
    for s in range(10):
        r = AF + 4 * s
        a(f's_waitcnt vmcnt({9-s})')
        a(f'v_max3_u32 v6, v{r}, v{r+1}, v{r+2}')
        a(f'v_max_u32 v6, v6, v{r+3}')
        a('v_cmp_eq_u32 vcc, -1, v6')
        a(f's_cbranch_vccnz Lop_retry{s+1}')
        a.label(f'Lop_ok{s+1}')
        if s == 0: stamp(a, 10)
        a(f's_waitcnt lgkmcnt({min(15, 10 * (min(s + NB - 1, 9) - s))})')
        for t in range(5):
            mm(s, t)
            if s + NB < 10 and t > 0: wread(s + NB, t - 1)
        if s + NB < 10: wread(s + NB, 4)
    stamp(a, 11)
    a('s_mul_i32 s36, s10, 3072')
    a('v_add_u32 v12, s36, v1')
    a('s_xor_b32 s36, s10, 4')
    a('s_mul_i32 s36, s36, 3072')
    a('v_add_u32 v13, s36, v1')
    for t in range(3): a(f'ds_write_b128 v12, {vr(AC(2+t),4)} offset:{OP_RED+1024*t}')
    a('s_waitcnt lgkmcnt(0)')
    a('s_barrier')
    for t in range(3): a(f'ds_read_b128 {vr(WF+4*t,4)}, v13 offset:{OP_RED+1024*t}')
    a('s_cmp_eq_u32 s76, 0')
    def fin(idx):
        acc = lambda i: AC(0) + 2 * i if i < 4 else AC(4) + 2 * (i - 4)
        for i in idx: a(f'v_pk_add_f32 {vr(acc(i),2)}, {vr(acc(i),2)}, {vr(WF+2*i,2)}')
        for i in idx: a(f'v_cvt_pk_bf16_f32 v{XR+i}, v{acc(i)}, v{acc(i)+1}')
        if idx[0] == 0:
            for i in range(2): a(f'v_permlane16_swap_b32 v{XR+i}, v{XR+2+i}')
        for i in idx: unpack(a, acc(i), XR + i)
        for i in idx: a(f'v_pk_add_f32 {vr(acc(i),2)}, {vr(acc(i),2)}, {vr(XF+2*i,2)}')
        for i in idx: a(f'v_cvt_pk_bf16_f32 v{XR+i}, v{acc(i)}, v{acc(i)+1}')
    a('s_waitcnt lgkmcnt(1)')
    fin(range(4))
    a(f'buffer_store_dwordx4 {vr(XR,4)}, v160, s[20:23], s92 offen sc1')
    D1, D2 = AF, AF + 4
    a(f'v_mfma_f32_16x16x32_bf16 {vr(D1,4)}, {vr(WR,4)}, {vr(XR,4)}, 0')
    a(f'v_mfma_f32_16x16x32_bf16 {vr(D2,4)}, {vr(XR,4)}, {vr(XR,4)}, 0')
    a('s_cbranch_scc0 Lop_notail')
    a('s_waitcnt lgkmcnt(0)')
    fin((4, 5))
    a(f'buffer_store_dwordx2 {vr(XR+4,2)}, v161, s[20:23], s92 offen sc1')
    a(f'v_mfma_f32_16x16x16_bf16 {vr(D1,4)}, {vr(WR+4,2)}, {vr(XR+4,2)}, {vr(D1,4)}')
    a(f'v_mfma_f32_16x16x16_bf16 {vr(D2,4)}, {vr(XR+4,2)}, {vr(XR+4,2)}, {vr(D2,4)}')
    a.label('Lop_notail')
    a('s_mov_b32 exec_lo, 0xffff')
    a('s_mov_b32 exec_hi, 0xffff')
    a(f'ds_write_b32 v8, v{D1} offset:{OP_ST}')
    a('s_mov_b32 exec_lo, 0x00f0000f')
    a('s_mov_b32 exec_hi, 0xf0000f00')
    for i in range(1, 4): a(f'v_cndmask_b32 v{D2}, v{D2}, v{D2+i}, s[{50+2*i}:{51+2*i}]')
    a(f'ds_write_b32 v11, v{D2} offset:{OP_ST+256}')
    a('s_waitcnt lgkmcnt(0)')
    a('s_barrier')
    endpgm(a)
    for s in range(1, 11):
        a.label(f'Lop_retry{s}')
        a('s_call_b64 s[44:45], Lop_refresh')
        a(f's_branch Lop_ok{s}')
    a.label('Lop_refresh')
    a('s_mov_b32 s46, 0')
    a('s_waitcnt vmcnt(0)')
    if os.environ.get('SLP2'): a(f's_sleep {os.environ["SLP2"]}')
    for s in range(10):
        r = AF + 4 * s
        a(f'v_max3_u32 v6, v{r}, v{r+1}, v{r+2}')
        a(f'v_max_u32 v6, v6, v{r+3}')
        a('v_cmp_eq_u32 vcc, -1, v6')
        a(f's_cbranch_vccz Lop_rf{s}')
        a(aload(s, os.environ.get('RSC', 'sc0 sc1')))
        a('s_mov_b32 s46, 1')
        a.label(f'Lop_rf{s}')
    a('s_add_u32 s43, s43, 1')
    a('s_cmp_gt_u32 s43, 0x40000')
    a('s_cselect_b32 s46, 0, s46')
    a('s_cmp_eq_u32 s46, 1')
    a('s_cbranch_scc1 Lop_refresh')
    a('s_waitcnt vmcnt(0)')
    a('s_setpc_b64 s[44:45]')
    a.label('Lao_loader')
    a('v_lshlrev_b32 v1, 4, v0')
    ksrd(a, 44, KA_WO, D * D * 2)
    ksrd(a, 36, KA_WG, D * F * 2)
    ksrd(a, 40, KA_WU, D * F * 2)
    a('v_add_u32 v2, 8, v0')
    a('v_cmp_gt_u32 vcc, 40, v0')
    a('v_cndmask_b32 v2, v2, v0, vcc')
    a('v_subrev_u32 v3, 52, v0')
    a('v_and_b32 v4, 3, v3')
    a('s_lshl_b32 s16, s14, 1')
    a('s_sub_u32 s16, s16, 2')
    a('v_add_u32 v4, s16, v4')
    a('v_max_i32 v4, 0, v4')
    a('v_mul_u32_u24 v4, 12, v4')
    a('v_and_b32 v3, 12, v3')
    a('s_lshr_b32 s16, s13, 3')
    a('s_add_u32 s16, s16, 64')
    a('v_add3_u32 v4, v4, v3, s16')
    a('v_cmp_gt_u32 vcc, 54, v0')
    a('v_cndmask_b32 v2, v4, v2, vcc')
    slot_to_off_v(a, 2, 3)
    a('s_mov_b32 s85, s11')
    a('s_mov_b32 s86, s12')
    a('s_cmp_lg_u32 s3, 0')
    a('s_cbranch_scc1 Lao_fw')
    a('s_mov_b32 exec_lo, 0')
    a('s_mov_b32 exec_hi, 0xffc00000')
    a.label('Lao_fw')
    flag_wait(a, [2])
    a('s_mov_b64 exec, -1')
    a('s_barrier')
    stamp(a, 2)
    a('s_lshl_b32 s79, s74, 7')
    a('s_lshl_b32 s80, s74, 5')
    a(f's_add_u32 s80, s80, {1024-128}')
    for i in range(5):
        a(f'v_add_u32 v2, {64*i}, v0')
        a('v_mul_u32_u24 v3, 6554, v2')
        a('v_lshrrev_b32 v3, 16, v3')
        a('v_mul_u32_u24 v4, 10, v3')
        a('v_sub_u32 v2, v2, v4')
        a('v_and_b32 v4, 12, v3')
        a('v_and_b32 v5, 3, v3')
        a('v_lshl_or_b32 v4, v4, 1, v5')
        a('v_lshrrev_b32 v3, 4, v3')
        a('v_lshl_or_b32 v4, v3, 2, v4')
        a('v_mul_u32_u24 v4, 1280, v4')
        a('v_lshl_add_u32 v4, v2, 4, v4')
        a('v_mov_b32 v3, s79')
        a('v_mov_b32 v5, s80')
        a('v_cmp_gt_u32 vcc, 8, v2')
        a('v_cndmask_b32 v3, v5, v3, vcc')
        a(f'v_add_u32 v{10+i}, v4, v3')
    a(f's_mul_i32 s80, s73, {128*1280}')
    a(f's_mov_b32 s82, {WOB}')
    a('s_barrier')
    a('s_waitcnt lgkmcnt(0)')
    if 'G' not in XA:
        a('v_mul_u32_u24 v2, 3072, v0')
        a('s_min_u32 s32, s86, 29')
        a('s_mul_i32 s33, s32, 26')
        a('s_lshr_b32 s33, s33, 8')
        a('s_mul_i32 s34, s33, 10')
        a('s_sub_u32 s32, s32, s34')
        a(f's_mul_i32 s32, s32, {64*3072}')
        a('s_lshl3_add_u32 s33, s33, s85')
        a('s_lshl_b32 s33, s33, 7')
        a('s_add_u32 s32, s32, s33')
        a('buffer_load_dword v4, v2, s[36:39], s32 offen')
        a('buffer_load_dword v4, v2, s[40:43], s32 offen')
    a.label('Lao_lloop')
    for i in range(5):
        a(f's_add_u32 m0, s82, {1024*i}')
        a(f'buffer_load_dwordx4 v{10+i}, s[44:47], s80 offen lds')
    a(f's_add_u32 s80, s80, {32*1280}')
    a(f's_cmp_eq_u32 s80, {640*1280}')
    a('s_cselect_b32 s80, 0, s80')
    a('s_add_u32 s82, s82, 5120')
    a('s_waitcnt vmcnt(40)')
    a(f's_cmp_lt_u32 s82, {WOB+102400}')
    a('s_cbranch_scc1 Lao_lloop')
    stamp(a, 1)
    wait_all(a)
    a('s_barrier')
    a('v_lshrrev_b32 v2, 4, v0')
    a('v_lshlrev_b32 v2, 10, v2')
    a('v_and_b32 v3, 15, v0')
    a('v_lshl_add_u32 v2, v3, 2, v2')
    a('s_and_b32 s16, s72, 1')
    a('s_lshl_b32 s16, s16, 12')
    a('s_lshr_b32 s17, s72, 1')
    a('s_lshl_b32 s17, s17, 6')
    a('s_add_u32 s16, s16, s17')
    a('s_add_u32 s16, s16, s63')
    a(f's_add_u32 s16, s16, {hx(WS_ST)}')
    a('s_add_u32 s17, s16, 8192')
    a('s_add_u32 s18, s16, 16384')
    a('v_lshlrev_b32 v3, 2, v0')
    a('s_barrier')
    a('s_barrier')
    for k in range(6): a(f'ds_read_b32 v{8+k}, v3 offset:{OP_ST+256*k}')
    a('s_waitcnt lgkmcnt(0)')
    for k in range(3):
        a(f'v_add_f32 v{8+k}, v{8+k}, v{11+k}')
        a(f'buffer_atomic_add_f32 v{8+k}, v2, s[20:23], s{16+k} offen')
    endpgm(a)
    a.label('Latt_exact')
    a('s_mov_b32 s62, 1')
    a('s_waitcnt vmcnt(0)')
    masks()
    for n, t in enumerate([0, 1, 2, 3, 4, 5, 6, 7, 8]):
        kread(t, 0)
        a('s_waitcnt lgkmcnt(0)')
        m1(0, SB, vr(ME, 16) if t == 0 else vr(MD, 16) if t == 8 else '0'); m2(0, SB)
        mxall(SB, n == 0)
    kread(0, 1); vread(8, 0)
    a('s_branch Latt_havemax')
    a.label('La_fin')
    phase_end(a, lambda a: (a('s_lshl3_add_u32 s11, s72, s74'), slot_to_off_s(a, 11)))
    a('s_cmp_lg_u32 s3, 0')
    a('s_cbranch_scc1 Lf_start')
    a(f's_mov_b32 s3, {hx(WS_X1)}')
    a('s_branch Lq_start')
```

```python
from common import *
def xn_pair(a, lo, M, t):
    a(f'v_pk_add_f32 {vr(t+2,2)}, {vr(lo,2)}, {vr(M,2)} op_sel_hi:[1,0] neg_lo:[0,1] neg_hi:[0,1]')
    a(f'v_cvt_pk_bf16_f32 v{t}, v{t+2}, v{t+3}')
    unpack(a, t + 2, t)
    a(f'v_pk_mul_f32 {vr(t+2,2)}, {vr(t+2,2)}, {vr(M,2)} op_sel:[0,1] op_sel_hi:[1,1]')
    a(f'v_cvt_pk_bf16_f32 v{t}, v{t+2}, v{t+3}')

L_LIST = 0
L_SEL = 12288 + 128
L_CNT = 12288
L_GM = L_CNT + 64
L_RED = 0
L_W = 13312
FS_LDS = L_W + 147456
L_FX = L_W + 81920

def gen_ffn(a):
    a.fin = 'Lfs_fin'
    a.label('Lf_start')
    ksrd(a, 20, KA_OUT, S * D * 2)
    a('s_cmp_ge_u32 s2, 128')
    a('s_cbranch_scc1 Lfs_bye')
    a('s_mov_b32 s13, s2')
    a('s_mov_b32 s52, 0')
    a('s_mov_b32 s53, 0')
    a(f's_mov_b32 s51, {CTL_SZ}')
    ST = 16; KEY = 28; T = 32
    a.label('Lfs')
    ksrd(a, 32, KA_WR, D * 2)
    ksrd(a, 36, KA_WG, D * F * 2)
    ksrd(a, 40, KA_WU, D * F * 2)
    a('s_cmp_eq_u32 s53, 0')
    a(f's_mov_b32 s50, {hx(WS_X1)}')
    a(f's_cselect_b32 s50, {hx(WS_X1 + X_SZ)}, s50')
    a('s_cmp_eq_u32 s10, 8')
    a('s_cbranch_scc1 Lfs_w8')
    a('s_lshl_b32 s11, s10, 6')
    a('v_add_u32 v15, s11, v0')
    a('v_lshlrev_b32 v2, 4, v15')
    a('v_mul_u32_u24 v3, 20, v0')
    a('v_lshlrev_b32 v1, 4, v0')
    a(f's_add_u32 s44, s51, {hx(WS_ST)}')
    a(f's_add_u32 s45, s51, {hx(WS_ST+8192)}')
    a(f's_add_u32 s46, s51, {hx(WS_ST+16384)}')
    for i in range(4): a(f'v_mov_b32 v{T+8+i}, 0')
    a('v_mov_b32 v9, 0')
    a(f'ds_write_b128 v2, {vr(T+8,4)} offset:{L_LIST}')
    a(f'ds_write_b32 v9, v9 offset:{L_CNT}')
    a('s_cmp_ge_u32 s13, 48')
    a('s_cselect_b32 s54, 1, 0')
    a('s_cmp_ge_u32 s13, 62')
    a('s_cselect_b32 s54, 2, s54')
    a('v_lshrrev_b32 v4, 4, v0')
    a('v_bfe_u32 v5, v0, 2, 2')
    a('v_lshl_add_u32 v4, v4, 3, v5')
    a('s_and_b32 s11, s10, 1')
    a('s_lshl_b32 s11, s11, 2')
    a('v_add_u32 v4, s11, v4')
    a('v_mul_u32_u24 v4, 3072, v4')
    a('v_and_b32 v5, 3, v0')
    a('v_lshl_add_u32 v4, v5, 4, v4')
    a('s_lshr_b32 s11, s10, 1')
    a(f's_mul_i32 s11, s11, {32*3072}')
    a('s_and_b32 s62, s13, 7')
    a('s_lshr_b32 s12, s13, 4')
    a('s_lshl3_add_u32 s62, s12, s62')
    a('s_bfe_u32 s12, s13, 0x10003')
    a('s_lshl1_add_u32 s62, s62, s12')
    a('s_lshl_b32 s12, s62, 6')
    a('s_add_u32 s55, s11, s12')
    a('s_and_b32 s63, s13, 1')
    a('s_mul_i32 s63, s63, 20')
    a('s_lshr_b32 s12, s13, 1')
    a('s_add_u32 s63, s63, s12')
    a('s_lshl_b32 s56, s10, 10')
    a(f's_add_u32 s56, s56, {L_W}')
    a('s_sub_u32 s14, s13, 48')
    a(f's_mul_i32 s57, s14, {3*49152}')
    a('s_mul_i32 s12, s10, 6144')
    a('s_add_u32 s57, s57, s12')
    a(f's_add_u32 s57, s57, {hx(WS_PD)}')
    a('s_mul_i32 s58, s10, 18432')
    a(f's_add_u32 s58, s58, {L_W}')
    a('s_waitcnt lgkmcnt(0)')
    stamp(a, 1)
    a(f'buffer_load_dwordx4 {vr(T,4)}, v3, s[32:35], 0 offen')
    a(f'buffer_load_dword v{T+4}, v3, s[32:35], 0 offen offset:16')
    def dn_dma(blocks):
        for n in blocks:
            a(f's_add_u32 m0, s58, {3072*n}')
            a(f's_add_u32 s12, s57, {49152*(n//2)+3072*(n%2)}')
            for i in range(3): a(f'buffer_load_dwordx4 v1, s[28:31], s12 offen offset:{1024*i} sc1 lds')
    def pace(tag, gu, dn, wait=False):
        if not gu and not dn and not wait: return
        a('s_cmp_eq_u32 s54, 1')
        a(f's_cbranch_scc1 Lfs_pd{tag}')
        a('s_cmp_eq_u32 s54, 2')
        a(f's_cbranch_scc1 Lfs_pn{tag}')
        for n in gu:
            a(f's_add_u32 m0, s56, {8192*n}')
            a('buffer_load_dwordx4 v4, s[36:39], s55 offen lds')
            a(f's_add_u32 m0, s56, {8192*n+40960}')
            a('buffer_load_dwordx4 v4, s[40:43], s55 offen lds')
            a(f's_add_u32 s55, s55, {128*3072}')
        if wait: a(f's_waitcnt vmcnt({2*len(gu)})')
        a(f's_branch Lfs_px{tag}')
        a.label(f'Lfs_pd{tag}')
        dn_dma(dn)
        if wait:
            a(f's_waitcnt vmcnt({3*len(dn)})')
            a(f's_branch Lfs_px{tag}')
        a.label(f'Lfs_pn{tag}')
        if wait: a('s_waitcnt vmcnt(0)')
        a.label(f'Lfs_px{tag}')
    for i in range(3):
        a(f'v_add_u32 v16, {64*i}, v0')
        a('v_mul_u32_u24 v17, 10923, v16')
        a('v_lshrrev_b32 v17, 16, v17')
        a('v_mul_u32_u24 v18, 6, v17')
        a('v_sub_u32 v16, v16, v18')
        a('v_and_b32 v18, 12, v17')
        a('v_and_b32 v19, 3, v17')
        a('v_lshl_or_b32 v18, v18, 1, v19')
        a('v_lshrrev_b32 v17, 4, v17')
        a('v_lshl_or_b32 v18, v17, 2, v18')
        a('v_mul_u32_u24 v17, 3840, v18')
        a(f'v_lshl_add_u32 v{143+i}, v16, 4, v17')
    PG = {'a': ([0, 1], [2], [3], [4]), 'b': ([0, 1, 2], [3], [4], []), 'c': ([0], [1], [2, 3], [4]), 'd': ([0, 1], [], [2, 3], [4])}[os.environ.get('PACE', 'a')]
    ND = int(os.environ.get('ND', '3'))
    pace(0, PG[0], range(ND))
    a('s_barrier')
    stamp(a, 11)
    for k in range(3): a(f'buffer_load_dwordx4 {vr(ST+4*k,4)}, v2, s[28:31], s{44+k} offen sc1')
    pace(1, PG[1], [], True)
    stamp(a, 2)
    inv = hx(f2u(1.0 / D))
    for i in range(5): unpack(a, T + 8 + 2 * i, T + i)
    for j in range(4): a(f'v_mul_f32 v{ST+j}, {inv}, v{ST+j}')
    a(f'v_pk_add_f32 {vr(T+8,2)}, {vr(T+8,2)}, {vr(T+10,2)}')
    a(f'v_pk_add_f32 {vr(T+12,2)}, {vr(T+12,2)}, {vr(T+14,2)}')
    a(f'v_pk_add_f32 {vr(T+8,2)}, {vr(T+8,2)}, {vr(T+16,2)}')
    a(f'v_mov_b32 v{T+2}, {hx(f2u(1e-5))}')
    a(f'v_pk_add_f32 {vr(T+8,2)}, {vr(T+8,2)}, {vr(T+12,2)}')
    a(f's_mov_b32 s15, {inv}')
    a(f'v_add_f32 v{T}, v{T+8}, v{T+9}')
    rows = [f'v_fma_f32 v{ST+4+j}, v{ST+4+j}, s15, v{T+2}' for j in range(4)]
    rows += [f'v_fma_f32 v{ST+4+j}, -v{ST+j}, v{ST+j}, v{ST+4+j}' for j in range(4)]
    rows += [f'v_max_f32 v{ST+4+j}, v{T+2}, v{ST+4+j}' for j in range(4)]
    rows += [f'v_rsq_f32 v{ST+4+j}, v{ST+4+j}' for j in range(4)]
    red = [[f'v_add_f32_dpp v{T}, v{T}, v{T} row_ror:{r} row_mask:0xf bank_mask:0xf'] for r in (8, 4, 2, 1)]
    red += [[f'v_mov_b32 v{T+1}, v{T}'], [f'v_permlane16_swap_b32 v{T}, v{T+1}', f'v_add_f32 v{T}, v{T}, v{T+1}', f'v_mov_b32 v{T+1}, v{T}'],
            [f'v_permlane32_swap_b32 v{T}, v{T+1}', f'v_add_f32 v{T}, v{T}, v{T+1}']]
    for i, x in enumerate(rows):
        a(x)
        if i % 2 == 1 and red:
            for y in red.pop(0): a(y)
    assert not red
    for j in range(4): a(f'v_fma_f32 v{KEY+j}, -v{ST+j}, v{T}, v{ST+8+j}')
    a('v_lshlrev_b32 v8, 2, v15')
    a('v_sub_u32 v8, 2047, v8')
    a('s_mov_b32 s15, 0xfffff800')
    for j in range(4): a(f'v_mul_f32 v{KEY+j}, v{KEY+j}, v{ST+4+j}')
    for j in range(4): a(f'v_ashrrev_i32 v{ST+j}, 31, v{KEY+j}')
    for j in range(4): a(f'v_subrev_u32 v{ST+4+j}, {j}, v8')
    for j in range(4): a(f'v_or_b32 v{ST+j}, 0x80000000, v{ST+j}')
    for j in range(4): a(f'v_xor_b32 v{KEY+j}, v{KEY+j}, v{ST+j}')
    for j in range(4): a(f'v_and_or_b32 v{KEY+j}, v{KEY+j}, s15, v{ST+4+j}')
    a(f'v_max3_u32 v{T}, v{KEY}, v{KEY+1}, v{KEY+2}')
    a('s_lshl_b32 s11, s10, 2')
    a(f'v_max_u32 v{T}, v{T}, v{KEY+3}')
    a('v_mov_b32 v7, s11')
    for r in (8, 4, 2, 1):
        a(f'v_max_u32_dpp v{T}, v{T}, v{T} row_ror:{r} row_mask:0xf bank_mask:0xf')
    for op in ('v_permlane16_swap_b32', 'v_permlane32_swap_b32'):
        a(f'v_mov_b32 v{T+1}, v{T}')
        a(f'{op} v{T}, v{T+1}')
        a(f'v_max_u32 v{T}, v{T}, v{T+1}')
    a(f'ds_write_b32 v7, v{T} offset:{L_GM}')
    pace(2, PG[2], [])
    a('s_waitcnt lgkmcnt(0)')
    a('s_barrier')
    stamp(a, 3)
    a(f'ds_read_b128 {vr(T,4)}, v9 offset:{L_GM}')
    a(f'ds_read_b128 {vr(T+4,4)}, v9 offset:{L_GM+16}')
    a('s_waitcnt lgkmcnt(0)')
    a(f'v_min3_u32 v{T}, v{T}, v{T+1}, v{T+2}')
    a(f'v_min3_u32 v{T+3}, v{T+3}, v{T+4}, v{T+5}')
    a(f'v_min3_u32 v{T}, v{T}, v{T+6}, v{T+7}')
    a(f'v_min_u32 v{T}, v{T}, v{T+3}')
    for j in range(4): a(f'v_cmp_ge_u32 s[{64+2*j}:{65+2*j}], v{KEY+j}, v{T}')
    for j in range(4): a(f's_bcnt1_i32_b64 s{80+j}, s[{64+2*j}:{65+2*j}]')
    a('s_mov_b32 s88, 0')
    for j in range(4): a(f's_add_u32 s{89+j}, s{88+j}, s{80+j}')
    a(f'v_mov_b32 v{T+1}, s92')
    a('s_mov_b64 exec, 1')
    a(f'ds_add_rtn_u32 v{T+2}, v9, v{T+1} offset:{L_CNT}')
    a('s_mov_b64 exec, -1')
    for j in range(4):
        a(f'v_mbcnt_lo_u32_b32 v{ST+j}, s{64+2*j}, 0')
        a(f'v_mbcnt_hi_u32_b32 v{ST+j}, s{65+2*j}, v{ST+j}')
        a(f'v_add_lshl_u32 v{ST+j}, v{ST+j}, s{88+j}, 2')
    a('s_waitcnt lgkmcnt(0)')
    a(f'v_readfirstlane_b32 s95, v{T+2}')
    a('s_lshl_b32 s95, s95, 2')
    for j in range(4):
        a(f's_mov_b64 exec, s[{64+2*j}:{65+2*j}]')
        a(f'v_add_u32 v{ST+j}, s95, v{ST+j}')
        a(f'ds_write_b32 v{ST+j}, v{KEY+j} offset:{L_LIST}')
    a('s_mov_b64 exec, -1')
    a('v_lshlrev_b32 v7, 2, v0')
    a('s_lshl_b32 s17, s10, 5')
    a(f's_add_u32 s17, s17, {L_SEL}')
    pace(3, PG[3], [])
    a('s_mov_b32 s12, 0')
    a('s_waitcnt lgkmcnt(0)')
    a('s_barrier')
    stamp(a, 4)
    C = 32
    a(f'ds_read_b32 v14, v9 offset:{L_CNT}')
    a.label('Lfs_rank_outer')
    a(f'ds_read_b32 v{ST}, v7 offset:{L_LIST}')
    a(f'v_mov_b32 v{ST+1}, 0')
    a(f'v_mov_b32 v{ST+2}, 0')
    a(f'v_mov_b32 v{ST+3}, 0')
    a('s_mov_b32 s95, 0')
    a.label('Lfs_rank_inner')
    for i in range(8): a(f'ds_read_b128 {vr(C+4*i,4)}, v{ST+2} offset:{L_LIST+16*i}')
    a(f'v_add_u32 v{ST+2}, 128, v{ST+2}')
    for q in range(4):
        a(f's_waitcnt lgkmcnt({6-2*q})')
        for i in range(8): a(f'v_cmp_gt_u32 s[{64+2*i}:{65+2*i}], v{C+8*q+i}, v{ST}')
        for i in range(8): a(f'v_addc_co_u32 v{ST+1+2*(i%2)}, vcc, 0, v{ST+1+2*(i%2)}, s[{64+2*i}:{65+2*i}]')
    a('v_readfirstlane_b32 s94, v14')
    a('s_add_u32 s95, s95, 32')
    a('s_cmp_lt_u32 s95, s94')
    a('s_cbranch_scc1 Lfs_rank_inner')
    a(f'v_add_u32 v{ST+1}, v{ST+1}, v{ST+3}')
    a(f'v_cmp_gt_u32 vcc, 8, v{ST+1}')
    a(f'v_lshl_add_u32 v{ST+1}, v{ST+1}, 2, s17')
    a('s_and_saveexec_b64 s[18:19], vcc')
    a(f'ds_write_b32 v{ST+1}, v{ST}')
    a('s_mov_b64 exec, s[18:19]')
    a('v_add_u32 v7, 256, v7')
    a('s_add_u32 s12, s12, 64')
    a('s_cmp_lt_u32 s12, s94')
    a('s_cbranch_scc1 Lfs_rank_outer')
    a('v_and_b32 v10, 7, v0')
    a('v_lshl_add_u32 v7, v10, 2, s17')
    a('ds_read_b32 v11, v7')
    a('v_lshrrev_b32 v13, 4, v0')
    a('s_and_b32 s59, s10, 3')
    a('s_lshr_b32 s60, s10, 2')
    a('s_waitcnt lgkmcnt(0)')
    stamp(a, 5)
    a('v_and_b32 v8, 2047, v11')
    a('v_sub_u32 v8, 2047, v8')
    a('v_bfe_u32 v12, v8, 4, 4')
    a('v_lshlrev_b32 v12, 7, v12')
    a('v_and_or_b32 v12, v8, 15, v12')
    a('v_lshrrev_b32 v9, 8, v8')
    a('v_lshl_add_u32 v12, v9, 4, v12')
    a('v_lshlrev_b32 v8, 2, v8')
    a('s_cmp_eq_u32 s54, 1')
    a('s_cbranch_scc1 Lfs_down')
    a('s_cmp_eq_u32 s54, 2')
    a('s_cbranch_scc1 Lfs_none')

    XF = 16; WFg = 40; WFu = 60; G = 80; U = 84; M = 4
    a('v_mul_u32_u24 v7, 1280, v12')
    a('v_lshl_add_u32 v7, v13, 4, v7')
    a('s_mul_i32 s11, s59, 320')
    a('s_add_u32 s11, s11, s50')
    a('buffer_load_dword v2, v8, s[28:31], s44 offen sc1')
    a('buffer_load_dword v3, v8, s[28:31], s45 offen sc1')
    a('s_mov_b32 exec_lo, 0x00ff00ff')
    a('s_mov_b32 exec_hi, 0x00ff00ff')
    for s in range(5): a(f'buffer_load_dwordx4 {vr(XF+4*s,4)}, v7, s[28:31], s11 offen offset:{64*s} sc1')
    a('s_not_b64 exec, exec')
    for i in range(20): a(f'v_mov_b32 v{XF+i}, {hx(ONES2)}')
    a('s_mov_b64 exec, -1')
    a('v_lshrrev_b32 v6, 2, v0')
    a('v_lshlrev_b32 v6, 6, v6')
    a('v_and_b32 v7, 3, v0')
    a('v_lshl_add_u32 v6, v7, 3, v6')
    a('s_mul_i32 s11, s59, 10240')
    a('s_lshl_b32 s12, s60, 5')
    a('s_add_u32 s11, s11, s12')
    a(f's_add_u32 s11, s11, {L_W}')
    a('v_add_u32 v6, s11, v6')
    a('s_waitcnt vmcnt(7)')
    a('s_barrier')
    for s in range(5):
        for j in range(2):
            a(f'ds_read_b64_tr_b16 {vr(WFg+4*s+2*j,2)}, v6 offset:{2048*s+1024*j}')
            a(f'ds_read_b64_tr_b16 {vr(WFu+4*s+2*j,2)}, v6 offset:{40960+2048*s+1024*j}')
    a('v_lshlrev_b32 v7, 6, v10')
    a('v_lshrrev_b32 v9, 3, v0')
    a('v_lshl_add_u32 v8, v9, 3, v7')
    a('s_lshl_b32 s12, s60, 12')
    a('v_add_u32 v8, s12, v8')
    a('v_lshl_add_u32 v7, v13, 4, v7')
    a('s_lshl_b32 s12, s10, 10')
    a('v_add_u32 v7, s12, v7')
    a('s_waitcnt vmcnt(5)')
    ln_scalars(a, 2, 3, M, M + 1, 14)
    a('s_waitcnt vmcnt(0) lgkmcnt(0)')
    stamp(a, 6)
    for s in range(5):
        a(f'v_mfma_f32_16x16x32_bf16 {vr(G,4)}, {vr(WFg+4*s,4)}, {vr(XF+4*s,4)}, {"0" if s == 0 else vr(G,4)}')
        a(f'v_mfma_f32_16x16x32_bf16 {vr(U,4)}, {vr(WFu+4*s,4)}, {vr(XF+4*s,4)}, {"0" if s == 0 else vr(U,4)}')
    for i in range(8): a(f'v_mov_b32_dpp v{WFg+i}, v{G+i} row_newbcast:8 row_mask:0xf bank_mask:0xf')
    for i in range(8): a(f'v_fma_f32 v{G+i}, -v{M}, v{WFg+i}, v{G+i}')
    a('s_mov_b32 exec_lo, 0x00ff00ff')
    a('s_mov_b32 exec_hi, 0x00ff00ff')
    a(f'ds_write_b128 v7, {vr(G,4)} offset:{L_RED}')
    a(f'ds_write_b128 v7, {vr(U,4)} offset:{L_RED+512}')
    a('s_mov_b64 exec, -1')
    a('s_waitcnt lgkmcnt(0)')
    a('s_barrier')
    stamp(a, 7)
    a('s_cmp_lg_u32 s59, 0')
    a('s_cbranch_scc1 Lfs_gu2')
    for w in range(4):
        for m in range(2): a(f'ds_read_b64 {vr(XF+8*m+2*w,2)}, v8 offset:{L_RED+1024*w+512*m}')
    a('v_lshrrev_b32 v7, 2, v9')
    a('v_lshlrev_b32 v7, 7, v7')
    a('v_lshl_add_u32 v7, v10, 4, v7')
    a('v_and_b32 v9, 3, v9')
    a('v_lshl_add_u32 v7, v9, 2, v7')
    a('s_lshl1_add_u32 s11, s62, s60')
    a('s_lshl_b32 s11, s11, 8')
    a(f's_add_u32 s11, s11, {hx(WS_H)}')
    a('s_add_u32 s11, s11, s51')
    a('s_waitcnt lgkmcnt(0)')
    for m in range(2):
        a(f'v_pk_add_f32 {vr(XF+8*m,2)}, {vr(XF+8*m,2)}, {vr(XF+8*m+2,2)}')
        a(f'v_pk_add_f32 {vr(XF+8*m+4,2)}, {vr(XF+8*m+4,2)}, {vr(XF+8*m+6,2)}')
    for m, d in ((0, G), (1, U)): a(f'v_pk_add_f32 {vr(d,2)}, {vr(XF+8*m,2)}, {vr(XF+8*m+4,2)}')
    for d in (G, U): a(f'v_pk_mul_f32 {vr(d,2)}, {vr(d,2)}, {vr(M,2)} op_sel:[0,1] op_sel_hi:[1,1]')
    for d in (G, U): a(f'v_cvt_pk_bf16_f32 v{d+2}, v{d}, v{d+1}')
    for d in (G, U): unpack(a, d, d + 2)
    for i in range(2): a(f'v_mul_f32 v{G+2+i}, {NL2E}, v{G+i}')
    for i in range(2): a(f'v_exp_f32 v{G+2+i}, v{G+2+i}')
    for i in range(2): a(f'v_add_f32 v{G+2+i}, 1.0, v{G+2+i}')
    for i in range(2): a(f'v_rcp_f32 v{G+2+i}, v{G+2+i}')
    for i in range(2): a(f'v_mul_f32 v{G+i}, v{G+i}, v{G+2+i}')
    a(f'v_cvt_pk_bf16_f32 v{G+2}, v{G}, v{G+1}')
    unpack(a, G, G + 2)
    for i in range(2): a(f'v_mul_f32 v{G+i}, v{G+i}, v{U+i}')
    a(f'v_cvt_pk_bf16_f32 v{G+2}, v{G}, v{G+1}')
    a(f'v_min_u32 v{G+2}, -2, v{G+2}')
    a(f'buffer_store_dword v{G+2}, v7, s[28:31], s11 offen sc0 sc1')
    a.label('Lfs_gu2')
    stamp(a, 8)
    a('s_cmp_eq_u32 s53, 0')
    a('s_cbranch_scc1 Lfs_fin')
    a('s_cmp_lt_u32 s13, 40')
    a('s_cbranch_scc1 Lfs_fix')
    a('s_branch Lfs_fin')

    a.label('Lfs_down')
    WD = 16; HF = 88; Y = 112; X = 128; TT = 132; SG = 136; XN = 138
    a('s_min_u32 s61, s10, 2')
    a('s_mul_i32 s11, s14, 3')
    a('s_add_u32 s61, s61, s11')
    a('s_lshl_b32 s11, s61, 5')
    a('s_add_u32 s16, s11, s52')
    a('s_add_u32 s11, s11, s50')
    a('v_mul_u32_u24 v14, 1280, v12')
    a('v_lshl_add_u32 v14, v13, 3, v14')
    a('buffer_load_dword v2, v8, s[28:31], s44 offen sc1')
    a('buffer_load_dword v3, v8, s[28:31], s45 offen sc1')
    a(f'buffer_load_dwordx2 {vr(X,2)}, v14, s[28:31], s11 offen sc1')
    a('v_lshl_add_u32 v6, v0, 3, s58')
    a('s_barrier')
    dn_dma(range(ND, 6))
    a('v_and_b32 v8, 0xfffff800, v11')
    a('v_ashrrev_i32 v9, 31, v8')
    a('v_not_b32 v9, v9')
    a('v_or_b32 v9, 0x80000000, v9')
    a('v_xor_b32 v8, v8, v9')
    rbf16(a, 8, 8)
    a(f'v_mul_f32 v8, {NL2E}, v8')
    a('v_exp_f32 v8, v8')
    a('v_add_f32 v8, 1.0, v8')
    a('v_rcp_f32 v8, v8')
    rbf16(a, SG, 8)
    a(f's_waitcnt vmcnt({3*(6-ND)})')
    ln_scalars(a, 2, 3, M, M + 1, 7)
    for i in range(2):
        unpack(a, Y + 12 + 2 * i, X + i)
        xn_pair(a, Y + 12 + 2 * i, M, TT)
        a(f'v_mov_b32 v{XN+i}, v{TT}')
    a('s_waitcnt vmcnt(0)')
    for t in range(3):
        for s in range(6):
            for j in range(2): a(f'ds_read_b64_tr_b16 {vr(WD+24*t+4*s+2*j,2)}, v6 offset:{6144*t+1024*s+512*j}')
    stamp(a, 9)
    a('s_branch Lfs_down2')

    a.label('Lfs_none')
    a('s_cmp_eq_u32 s53, 0')
    a('s_cbranch_scc1 Lfs_none2')
    a('s_lshl3_add_u32 s11, s13, s10')
    a(f's_cmp_lg_u32 s11, {63*8}')
    a('s_cbranch_scc1 Lfs_fin')
    a('v_lshlrev_b32 v7, 2, v10')
    a('v_and_b32 v8, 2047, v11')
    a(f's_mov_b32 s11, {hx(WS_SEL)}')
    a('s_mov_b64 exec, 0xff')
    a('buffer_store_dword v8, v7, s[28:31], s11 offen sc0 sc1')
    a('s_branch Lfs_fin')
    a.label('Lfs_none2')
    a('s_cmp_lt_u32 s13, 64')
    a('s_cbranch_scc1 Lfs_fin')

    a.label('Lfs_elem')
    E = 40; XD = 60
    a('s_and_b32 s11, s13, 63')
    a('s_mul_i32 s12, s11, 40960')
    a('s_add_u32 s18, s12, s52')
    a('s_add_u32 s12, s12, s50')
    a(f'v_lshrrev_b32 v{E}, 4, v15')
    a(f'v_mul_u32_u24 v{E+1}, 1280, v{E}')
    a(f'v_and_b32 v{E+2}, 15, v15')
    a(f'v_lshl_add_u32 v{E+1}, v{E+2}, 4, v{E+1}')
    for i in range(5): a(f'buffer_load_dwordx4 {vr(XD+4*i,4)}, v{E+1}, s[28:31], s12 offen offset:{256*i} sc1')
    a('s_and_b32 s19, s11, 3')
    a('s_lshl1_add_u32 s19, s19, s60')
    a('s_lshl_b32 s19, s19, 8')
    a('s_lshr_b32 s11, s11, 2')
    a('s_lshl4_add_u32 s19, s11, s19')
    a(f'v_and_b32 v{E}, 15, v{E}')
    a(f'v_add_u32 v{E}, s19, v{E}')
    a(f'v_lshlrev_b32 v{E+2}, 2, v{E}')
    a(f'buffer_load_dword v{E+4}, v{E+2}, s[28:31], s44 offen sc1')
    a(f'buffer_load_dword v{E+5}, v{E+2}, s[28:31], s45 offen sc1')
    a(f'v_mov_b32 v{E+3}, s17')
    a(f'ds_read_b128 {vr(E+8,4)}, v{E+3}')
    a(f'ds_read_b128 {vr(E+12,4)}, v{E+3} offset:16')
    a(f'v_sub_u32 v{E}, 2047, v{E}')
    a('s_waitcnt vmcnt(0) lgkmcnt(0)')
    ln_scalars(a, E + 4, E + 5, E + 6, E + 7, E + 3)
    for i in range(8):
        a(f'v_and_b32 v{E+8+i}, 2047, v{E+8+i}')
        a(f'v_cmp_ne_u32 vcc, v{E+8+i}, v{E}')
        a('s_and_b64 exec, exec, vcc')
    a('s_cbranch_execz Lfs_eskip')
    MM = vr(E + 6, 2)
    for i in range(0, 20, 2):
        tt = [E + 8, E + 14]
        for k in range(2): unpack(a, tt[k] + 4, XD + i + k)
        for k in range(2): a(f'v_pk_add_f32 {vr(tt[k]+2,2)}, {vr(tt[k]+4,2)}, {MM} op_sel_hi:[1,0] neg_lo:[0,1] neg_hi:[0,1]')
        for k in range(2): a(f'v_cvt_pk_bf16_f32 v{tt[k]}, v{tt[k]+2}, v{tt[k]+3}')
        for k in range(2): unpack(a, tt[k] + 2, tt[k])
        for k in range(2): a(f'v_pk_mul_f32 {vr(tt[k]+2,2)}, {vr(tt[k]+2,2)}, {MM} op_sel:[0,1] op_sel_hi:[1,1]')
        for k in range(2): a(f'v_cvt_pk_bf16_f32 v{tt[k]}, v{tt[k]+2}, v{tt[k]+3}')
        for k in range(2): unpack(a, tt[k] + 2, tt[k])
        for k in range(2): a(f'v_pk_add_f32 {vr(tt[k]+2,2)}, {vr(tt[k]+2,2)}, {vr(tt[k]+4,2)}')
        for k in range(2): a(f'v_cvt_pk_bf16_f32 v{XD+i+k}, v{tt[k]+2}, v{tt[k]+3}')
        if i % 4 == 2: a(f'buffer_store_dwordx4 {vr(XD+i-2,4)}, v{E+1}, s[20:23], s18 offen offset:{256*(i//4)} sc1')
    a.label('Lfs_eskip')
    endpgm(a)

    a.label('Lfs_down2')
    a('v_lshlrev_b32 v7, 7, v13')
    a('v_lshl_add_u32 v7, v10, 4, v7')
    a('s_mul_i32 s11, s10, 3072')
    a(f's_add_u32 s11, s11, {hx(WS_H)}')
    a('s_add_u32 s11, s11, s51')
    def poll(tag, reg, n, masked):
        a('s_mov_b32 s15, 0')
        a.label(f'Lfs_poll{tag}')
        a('s_add_u32 s15, s15, 1')
        a('s_and_b32 s18, s15, 7')
        a(f's_cbranch_scc1 Lfs_pl{tag}')
        for s in range(n): a(f'buffer_load_dwordx4 {vr(reg+4*s,4)}, v7, s[28:31], s11 offen offset:{512*s} sc0 sc1')
        a(f's_branch Lfs_pm{tag}')
        a.label(f'Lfs_pl{tag}')
        for s in range(n): a(f'buffer_load_dwordx4 {vr(reg+4*s,4)}, v7, s[28:31], s11 offen offset:{512*s} {os.environ.get("PSC", "sc1")}')
        a.label(f'Lfs_pm{tag}')
        for s in range(n):
            a(f's_waitcnt vmcnt({n-1-s})')
            r = reg + 4 * s
            if s == 0: a(f'v_max_u32 v8, v{r}, v{r+1}')
            else: a(f'v_max3_u32 v8, v{r}, v{r+1}, v8')
            a(f'v_max3_u32 v8, v{r+2}, v{r+3}, v8')
        a('v_cmp_eq_u32 vcc, -1, v8')
        a('s_cmp_gt_u32 s15, 0x40000')
        a(f's_cbranch_scc1 Lfs_go{tag}')
        a(f's_cbranch_vccz Lfs_go{tag}')
        a(f's_sleep {os.environ.get("SLP", "2")}')
        a(f's_branch Lfs_poll{tag}')
        a.label(f'Lfs_go{tag}')
    poll('h', HF, 6, False)
    a('s_waitcnt lgkmcnt(0)')
    stamp(a, 6)
    for s in range(6):
        for t in range(3):
            a(f'v_mfma_f32_16x16x32_bf16 {vr(Y+4*t,4)}, {vr(WD+24*t+4*s,4)}, {vr(HF+4*s,4)}, {"0" if s == 0 else vr(Y+4*t,4)}')
    a('s_mul_i32 s12, s10, 1536')
    a('v_add_u32 v8, s12, v7')
    for t in range(3): a(f'ds_write_b128 v8, {vr(Y+4*t,4)} offset:{L_RED+512*t}')
    a('s_lshl_b32 s12, s10, 9')
    a('v_add_u32 v8, s12, v7')
    a('s_waitcnt lgkmcnt(0)')
    a('s_barrier')
    stamp(a, 7)
    a('s_cmp_gt_u32 s10, 2')
    a('s_cbranch_scc1 Lfs_fin')
    a('s_cmp_ge_u32 s61, 40')
    a('s_cbranch_scc1 Lfs_fin')
    for w in range(8): a(f'ds_read_b128 {vr(WD+4*w,4)}, v8 offset:{L_RED+1536*w}')
    a('v_lshrrev_b32 v7, 1, v13')
    a('v_lshlrev_b32 v7, 7, v7')
    a('v_lshl_add_u32 v7, v10, 4, v7')
    a('v_and_b32 v9, 1, v13')
    a('v_lshl_add_u32 v7, v9, 3, v7')
    a('s_lshl_b32 s11, s61, 8')
    a(f's_add_u32 s11, s11, {hx(WS_XS)}')
    a('s_add_u32 s11, s11, s51')
    a('s_waitcnt lgkmcnt(0)')
    for st_ in (4, 2, 1):
        for w in range(st_):
            for i in range(2): a(f'v_pk_add_f32 {vr(WD+4*w+2*i,2)}, {vr(WD+4*w+2*i,2)}, {vr(WD+4*(w+st_)+2*i,2)}')
    for i in range(2):
        y = WD + 2 * i
        a(f'v_cvt_pk_bf16_f32 v{TT}, v{y}, v{y+1}')
        unpack(a, y, TT)
        a(f'v_pk_mul_f32 {vr(y,2)}, {vr(y,2)}, {vr(SG,2)} op_sel_hi:[1,0]')
        a(f'v_cvt_pk_bf16_f32 v{TT}, v{y}, v{y+1}')
        unpack(a, y, TT)
        unpack(a, TT + 2, XN + i)
        a(f'v_pk_add_f32 {vr(y,2)}, {vr(y,2)}, {vr(TT+2,2)}')
        a(f'v_cvt_pk_bf16_f32 v{TT}, v{y}, v{y+1}')
        unpack(a, y, TT)
        a(f'v_pk_add_f32 {vr(y,2)}, {vr(y,2)}, {vr(Y+12+2*i,2)}')
        a(f'v_cvt_pk_bf16_f32 v{X+i}, v{y}, v{y+1}')
        a(f'v_min_u32 v{X+2+i}, -2, v{X+i}')
    a('s_mov_b32 exec_lo, 0x00ff00ff')
    a('s_mov_b32 exec_hi, 0x00ff00ff')
    a(f'buffer_store_dwordx2 {vr(X+2,2)}, v7, s[28:31], s11 offen sc0 sc1')
    a(f'buffer_store_dwordx2 {vr(X,2)}, v14, s[20:23], s16 offen sc1')
    endpgm(a)

    a.label('Lfs_fix')
    WA = 40; WB = 60; DA = 80; DB = 84
    a('s_barrier')
    a(f's_mul_i32 s11, s10, {32*3840}')
    a('s_mul_i32 s12, s63, 96')
    a('s_add_u32 s11, s11, s12')
    a('s_mul_i32 s12, s10, 3072')
    a(f's_add_u32 s12, s12, {L_FX}')
    for n in range(3):
        if n == 2:
            a('s_cmp_ge_u32 s10, 4')
            a('s_cbranch_scc1 Lfs_nofx')
        for i in range(3):
            a(f's_add_u32 m0, s12, {24576*n+1024*i}')
            a(f'buffer_load_dwordx4 v{143+i}, s[24:27], s11 offen lds')
        if n < 2: a(f's_add_u32 s11, s11, {256*3840}')
    a.label('Lfs_nofx')
    a('v_lshrrev_b32 v6, 2, v0')
    a('v_mul_u32_u24 v6, 96, v6')
    a('v_and_b32 v7, 3, v0')
    a('v_lshl_add_u32 v6, v7, 3, v6')
    a('s_mul_i32 s11, s59, 15360')
    a('s_lshl_b32 s12, s60, 6')
    a('s_add_u32 s11, s11, s12')
    a(f's_add_u32 s11, s11, {L_FX}')
    a('v_add_u32 v6, s11, v6')
    a('s_waitcnt vmcnt(0)')
    a('s_barrier')
    stamp(a, 9)
    for s in range(5):
        for j in range(2):
            a(f'ds_read_b64_tr_b16 {vr(WA+4*s+2*j,2)}, v6 offset:{3072*s+1536*j}')
            a(f'ds_read_b64_tr_b16 {vr(WB+4*s+2*j,2)}, v6 offset:{3072*s+1536*j+32}')
    a('v_lshlrev_b32 v7, 7, v13')
    a('v_lshl_add_u32 v7, v10, 4, v7')
    a('s_mul_i32 s11, s59, 2560')
    a(f's_add_u32 s11, s11, {hx(WS_XS)}')
    for i in range(20): a(f'v_mov_b32 v{XF+i}, {hx(ONES2)}')
    a('s_mov_b32 exec_lo, 0x00ff00ff')
    a('s_mov_b32 exec_hi, 0x00ff00ff')
    poll('x', XF, 5, True)
    a('s_mov_b64 exec, -1')
    a('s_waitcnt lgkmcnt(0)')
    stamp(a, 10)
    a('s_cmp_eq_u32 s60, 0')
    a('s_cbranch_scc1 Lfs_fx2')
    for i in range(20): a(f'v_mov_b32 v{WB+i}, v{XF+i}')
    a.label('Lfs_fx2')
    for s in range(5):
        a(f'v_mfma_f32_16x16x32_bf16 {vr(DA,4)}, {vr(WA+4*s,4)}, {vr(XF+4*s,4)}, {"0" if s == 0 else vr(DA,4)}')
        a(f'v_mfma_f32_16x16x32_bf16 {vr(DB,4)}, {vr(WB+4*s,4)}, {vr(XF+4*s,4)}, {"0" if s == 0 else vr(DB,4)}')
    a('s_lshl_b32 s11, s59, 12')
    a('s_lshl_b32 s12, s60, 11')
    a('s_add_u32 s11, s11, s12')
    a('v_add_u32 v8, s11, v1')
    a(f'ds_write_b128 v8, {vr(DA,4)} offset:{L_W}')
    a(f'ds_write_b128 v8, {vr(DB,4)} offset:{L_W+1024}')
    a('s_lshl_b32 s11, s10, 10')
    a('v_add_u32 v8, s11, v1')
    a('v_lshrrev_b32 v9, 2, v10')
    a('v_lshlrev_b32 v9, 8, v9')
    a('v_lshl_add_u32 v9, v10, 4, v9')
    a('v_and_b32 v7, 3, v10')
    a('v_lshl_add_u32 v9, v7, 2, v9')
    a('v_lshlrev_b32 v7, 4, v10')
    a('s_waitcnt lgkmcnt(0)')
    a('s_barrier')
    a('s_cmp_gt_u32 s10, 2')
    a('s_cbranch_scc1 Lfs_fin')
    for q in range(4):
        a(f'ds_read_b32 v{40+q}, v7 offset:{L_W+4096*q+3072+512}')
        a(f'ds_read_b32 v{44+q}, v9 offset:{L_W+4096*q+3072}')
    for q in range(4): a(f'ds_read_b128 {vr(16+4*q,4)}, v8 offset:{L_W+4096*q}')
    a('s_mul_i32 s11, s63, 3')
    a('s_add_u32 s11, s11, s10')
    a('s_cmp_lt_u32 s11, 40')
    a(f's_cselect_b32 s12, {hx(QSCALE)}, 1.0')
    a('s_lshl_b32 s11, s11, 16')
    a(f's_add_u32 s11, s11, {QKV_SZ}')
    a('v_lshrrev_b32 v6, 1, v13')
    a('v_lshlrev_b32 v6, 15, v6')
    a('v_lshl_add_u32 v6, v12, 4, v6')
    a('v_and_b32 v14, 1, v13')
    a('v_lshl_add_u32 v6, v14, 3, v6')
    a('s_waitcnt lgkmcnt(4)')
    for b in (40, 44):
        a(f'v_add_f32 v{b}, v{b}, v{b+1}')
        a(f'v_add_f32 v{b+2}, v{b+2}, v{b+3}')
        a(f'v_add_f32 v{b}, v{b}, v{b+2}')
    ln_scalars(a, 40, 44, M, M + 1, 14)
    a(f'v_mul_f32 v{M+1}, s12, v{M+1}')
    a('s_waitcnt lgkmcnt(0)')
    for i in range(2):
        a(f'v_pk_add_f32 {vr(16+2*i,2)}, {vr(16+2*i,2)}, {vr(20+2*i,2)}')
        a(f'v_pk_add_f32 {vr(24+2*i,2)}, {vr(24+2*i,2)}, {vr(28+2*i,2)}')
    for i in range(2): a(f'v_pk_add_f32 {vr(16+2*i,2)}, {vr(16+2*i,2)}, {vr(24+2*i,2)}')
    for i in range(4): a(f'v_mov_b32_dpp v{20+i}, v{16+i} row_newbcast:8 row_mask:0xf bank_mask:0xf')
    for i in range(4): a(f'v_fma_f32 v{16+i}, -v{M}, v{20+i}, v{16+i}')
    for i in range(4): a(f'v_mul_f32 v{16+i}, v{16+i}, v{M+1}')
    a('v_cvt_pk_bf16_f32 v20, v16, v17')
    a('v_cvt_pk_bf16_f32 v21, v18, v19')
    a('s_mov_b32 exec_lo, 0x00ff00ff')
    a('s_mov_b32 exec_hi, 0x00ff00ff')
    a('buffer_store_dwordx2 v[20:21], v6, s[28:31], s11 offen sc1')
    a.label('Lfs_fin')
    a('s_cmp_lg_u32 s53, 0')
    a('s_cbranch_scc1 Lq_fin')
    a.label('Lfs_bye')
    if PROF:
        a('s_mov_b64 exec, -1')
        stamp(a, 14)
        a('s_waitcnt vmcnt(0)')
        stamp(a, 15)
        prof_dump(a)
    a.label('Lend')
    a('s_endpgm')
    a.label('Lfs_w8')
    wait_all(a)
    a('s_barrier')
    a('s_cmp_lg_u32 s53, 0')
    a('s_cbranch_scc1 Lfs_w8a')
    a('s_cmp_lg_u32 s2, 0')
    a('s_cbranch_scc1 Lfs_bye')
    a('v_mov_b32 v2, s98')
    a(f'v_mov_b32 v3, {hx(WS_EP)}')
    a('s_mov_b64 exec, 1')
    a('buffer_store_dword v2, v3, s[28:31], 0 offen sc0 sc1')
    a('s_branch Lfs_bye')
    a.label('Lfs_w8a')
    a('s_cmp_lt_u32 s13, 62')
    a('s_cselect_b32 s11, 4, 2')
    a('s_cmp_lt_u32 s13, 40')
    a('s_cselect_b32 s11, 7, s11')
    a.label('Lfs_w8b')
    a('s_barrier')
    a('s_sub_u32 s11, s11, 1')
    a('s_cmp_lg_u32 s11, 0')
    a('s_cbranch_scc1 Lfs_w8b')
    a('s_branch Lq_fin')
    reg_kernel(KNAME, 256, 576, FS_LDS, 168, 102)
```

```python
from common import *
from k_ffn import FS_LDS
X = os.environ.get('XQ', '')
NT = ' nt' if 'N' in X else ''
SLOT = 36864; NSLOT = 3
MR = NSLOT * SLOT; CS = MR + 1024
SK = CS + 1024
QKV_LDS = SK + 512

from common import _pd as common_pd

def epoch(a):
    a('s_cmp_lg_u32 s97, 0')
    common_pd[0] += 1; L = f'Lep{common_pd[0]}'
    a(f's_cbranch_scc1 {L}')
    a('s_load_dword s98, s[28:29], s44')
    a('s_waitcnt lgkmcnt(0)')
    a(f's_add_u32 s98, s98, {hx(EPK)}')
    a.label(L)

def gen_qkv(a):
    a.pv = 167
    a.fin = 'Lq_fin'
    kernel_start(a, KNAME)
    ksrd(a, 28, KA_WS, WS_SIZE)
    ksrd(a, 20, KA_X, S * D * 2)
    a('s_cmp_ge_u32 s2, 256')
    a('s_cbranch_scc1 Lend')
    wave_lane(a)
    a('s_mov_b32 s96, 0')
    a('s_mov_b32 s97, 0')
    a('s_mov_b32 s3, 0')
    a.label('Lq_start')
    ksrd(a, 24, KA_WQKV, D * 3 * D * 2)
    a('s_and_b32 s11, s2, 7')
    a('s_lshr_b32 s12, s2, 3')
    a('s_sub_u32 s12, s12, 8')
    a('s_lshr_b32 s13, s11, 1')
    a('s_and_b32 s15, s12, 3')
    a('s_lshl2_add_u32 s13, s13, s15')
    a('s_and_b32 s14, s11, 1')
    a('s_mul_i32 s14, s14, 6')
    a('s_lshr_b32 s16, s12, 2')
    a('s_add_u32 s14, s14, s16')
    a(f's_mov_b32 s40, {SLOT}')
    a(f's_mov_b32 s44, {hx(WS_EP)}')
    a('s_cmp_lt_u32 s2, 64')
    a('s_cbranch_scc1 Lqkv_side')
    a('s_cmp_lt_u32 s10, 4')
    a('s_cbranch_scc1 Lqkv_comp')
    a('s_cmp_eq_u32 s10, 8')
    a('s_cbranch_scc1 Lqkv_w8')

    VA = 2; VW = 6
    a('s_mul_i32 s15, s15, 3')
    a('s_add_u32 s15, s15, s16')
    a('s_add_u32 s15, s15, s11')
    mod_small(a, 15, 10, 2)
    a('s_sub_u32 s16, s10, 4')
    a('v_lshrrev_b32 v12, 3, v0')
    a('v_lshrrev_b32 v13, 4, v0')
    a('v_and_b32 v14, 7, v0')
    a('v_xor_b32 v14, v14, v13')
    a('s_lshl_b32 s17, s16, 5')
    a('v_add_u32 v12, s17, v12')
    a('v_mul_u32_u24 v12, 1280, v12')
    a(f'v_lshl_add_u32 v{VA}, v14, 4, v12')
    a('v_xor_b32 v14, 4, v14')
    a(f'v_lshl_add_u32 v{VA+1}, v14, 4, v12')
    a(f'v_add_u32 v{VA+1}, {10240-1024}, v{VA+1}')
    a(f'v_add_u32 v{VA+2}, {2*(10240-1024)}, v{VA}')
    a(f'v_add_u32 v{VA+3}, {2*(10240-1024)}, v{VA+1}')
    a(f's_mul_i32 s17, s16, {16*3840}')
    a('s_mul_i32 s18, s14, 320')
    a('s_add_u32 s41, s17, s18')
    a(f's_mov_b32 s42, {64*3840}')
    for i in range(5):
        a(f'v_add_u32 v12, {64*i}, v0')
        a('v_mul_u32_u24 v13, 3277, v12')
        a('v_lshrrev_b32 v13, 16, v13')
        a('v_mul_u32_u24 v14, 20, v13')
        a('v_sub_u32 v12, v12, v14')
        a('v_lshrrev_b32 v14, 2, v13')
        a('v_and_b32 v14, 2, v14')
        a('v_xor_b32 v12, v12, v14')
        a('v_mul_u32_u24 v13, 3840, v13')
        a(f'v_lshl_add_u32 v{VW+i}, v12, 4, v13')
        if 0 < i < 4: a(f'v_subrev_u32 v{VW+i}, {1024*i}, v{VW+i}')
    a('s_mul_i32 s18, s13, 163840')
    a('s_add_u32 s18, s18, s3')
    a('s_lshl_b32 s36, s15, 7')
    a('s_add_u32 s36, s36, s18')
    a('s_mul_i32 s37, s15, s42')
    a('s_add_u32 s37, s37, s41')
    a('s_lshl_b32 s17, s16, 12')
    a('s_mov_b32 s38, s17')
    a('s_lshl_b32 s39, s16, 10')
    a('s_add_u32 s39, s39, 0x4000')
    a('s_waitcnt lgkmcnt(0)')
    stamp(a, 1)
    def adv():
        a('s_add_u32 s36, s36, 128')
        a('s_add_u32 s37, s37, s42')
        a('s_add_u32 s15, s15, 1')
        a('s_cmp_eq_u32 s15, 10')
        a('s_cselect_b32 s36, s18, s36')
        a('s_cselect_b32 s37, s41, s37')
    def dma_a(so, base):
        a(f's_mov_b32 m0, {base}')
        for i in range(4): a(f'buffer_load_dwordx4 v{VA+i}, s[20:23], {so} offen offset:{1024*i} sc1 lds')
    def dma_w(so, base):
        a(f's_add_u32 m0, {base}, s39')
        for i in range(4): a(f'buffer_load_dwordx4 v{VW+i}, s[24:27], {so} offen offset:{1024*i} lds')
        a('s_add_u32 m0, m0, 4096')
        a(f'buffer_load_dwordx4 v{VW+4}, s[24:27], {so} offen lds')
    a('s_mov_b32 s49, s36')
    a(f's_add_u32 s50, s38, {SLOT}')
    dma_w('s37', 's38')
    a('s_cmp_eq_u32 s3, 0')
    a('s_cbranch_scc1 Lqkv_p1')
    adv()
    dma_w('s37', 's50')
    a('s_barrier')
    dma_a('s49', 's38')
    dma_a('s36', 's50')
    a('s_waitcnt vmcnt(4)')
    a('s_branch Lqkv_p2')
    a.label('Lqkv_p1')
    dma_a('s36', 's38')
    adv()
    dma_a('s36', 's50')
    dma_w('s37', 's50')
    epoch(a)
    a.label('Lqkv_p2')
    adv()
    a(f's_add_u32 s38, s38, {2*SLOT}')
    a('s_mov_b32 s33, 0')
    a.label('Lqkv_lloop')
    a('s_waitcnt vmcnt(9)')
    a('s_barrier')
    dma_a('s36', 's38')
    dma_w('s37', 's38')
    adv()
    a(f's_add_u32 s38, s38, {SLOT}')
    a(f's_cmp_ge_u32 s38, {NSLOT*SLOT}')
    a('s_cselect_b32 s38, s17, s38')
    a('s_add_u32 s33, s33, 1')
    a('s_cmp_lt_u32 s33, 8')
    a('s_cbranch_scc1 Lqkv_lloop')
    a('v_and_b32 v12, 31, v0')
    a('v_lshlrev_b32 v2, 4, v12')
    a('v_min_u32 v3, 19, v12')
    a('v_lshlrev_b32 v3, 4, v3')
    a('v_lshrrev_b32 v13, 5, v0')
    a('v_mul_u32_u24 v13, 15360, v13')
    a('v_add_u32 v4, v3, v13')
    a('s_lshl2_add_u32 s19, s14, s16')
    a('s_mul_i32 s19, s19, 320')
    a(f's_add_u32 s19, s19, {hx(WS_CS)}')
    a('s_cmp_lt_u32 s14, 4')
    a(f's_cselect_b32 s47, {hx(QSCALE)}, 1.0')
    a('s_lshl_b32 s17, s16, 8')
    a(f's_add_u32 s17, s17, {MR}')
    a('v_lshl_add_u32 v5, v12, 3, s17')
    a('s_mul_i32 s17, s16, 160')
    a(f's_add_u32 s17, s17, {CS}')
    a('v_lshrrev_b32 v3, 1, v3')
    a('v_add_u32 v6, s17, v3')
    a('s_lshl_b32 s17, s16, 7')
    a(f's_add_u32 s17, s17, {SK}')
    a('v_lshl_add_u32 v7, v12, 2, s17')
    a('s_mov_b32 s33, 0')
    for i in range(4): a(f'v_mov_b32 v{44+i}, -1')
    a('s_and_b32 s49, s14, 12')
    a('s_add_u32 s49, s49, s16')
    a('s_min_u32 s49, s49, 9')
    a('s_and_b32 s50, s14, 3')
    a('s_mul_i32 s50, s50, 10')
    a('s_add_u32 s49, s49, s50')
    a('s_lshl_b32 s49, s49, 16')
    a('s_lshl_b32 s50, s13, 11')
    a('s_add_u32 s49, s49, s50')
    a(f's_add_u32 s49, s49, {hx(WS_O)}')
    a(f's_add_u32 s50, s49, {PLANE}')
    a('v_lshlrev_b32 v43, 4, v0')
    def fill():
        for i in range(4): a(f'buffer_store_dwordx4 v[44:47], v43, s[28:31], s{49+i//2} offen offset:{1024*(i%2)} sc1')
    a('s_cmp_lg_u32 s3, 0')
    a('s_cbranch_scc1 Lqkv_tail2')
    a('s_lshl2_add_u32 s18, s13, s16')
    a('s_lshl_b32 s18, s18, 9')
    a(f's_add_u32 s18, s18, {hx(WS_MR)}')
    def fetch():
        a('buffer_load_dwordx4 v[16:19], v2, s[28:31], s18 offen sc0 sc1')
        a('buffer_load_dwordx4 v[20:23], v4, s[28:31], s19 offen sc0 sc1')
    fetch()
    a('s_mov_b32 s45, s98')
    a('s_not_b32 s46, s45')
    a('v_mov_b32 v24, 0')
    a('s_waitcnt vmcnt(11)')
    a('s_barrier')
    fill()
    a('s_waitcnt vmcnt(6)')
    a('s_barrier')
    a('s_waitcnt vmcnt(4)')
    a.label('Lqkv_hpoll')
    a('v_xor_b32 v18, s45, v18')
    a('v_xor_b32 v19, s46, v19')
    a('v_xor_b32 v21, s45, v21')
    a('v_xor_b32 v23, s45, v23')
    a('v_or_b32 v21, v21, v23')
    a('v_or3_b32 v18, v18, v19, v21')
    a('v_cmp_ne_u32 vcc, 0, v18')
    a('s_cbranch_vccz Lqkv_hgo')
    a('s_add_u32 s33, s33, 1')
    a('s_cmp_gt_u32 s33, 0x40000')
    a('s_cbranch_scc1 Lqkv_hgo')
    fetch()
    a('s_waitcnt vmcnt(0)')
    a('s_branch Lqkv_hpoll')
    a.label('Lqkv_tail2')
    a('v_lshrrev_b32 v8, 4, v12')
    a('v_lshlrev_b32 v8, 8, v8')
    a('v_and_or_b32 v8, v12, 15, v8')
    a('s_lshl_b32 s17, s16, 9')
    a('s_lshl4_add_u32 s17, s13, s17')
    a('v_add_u32 v8, s17, v8')
    a('v_lshlrev_b32 v9, 2, v8')
    a('v_mov_b32 v10, 0')
    a(f's_mov_b32 s17, {hx(WS_ST)}')
    a(f's_mov_b32 s18, {hx(WS_ST+8192)}')
    a(f's_mov_b32 s46, {hx(WS_SEL)}')
    a('buffer_load_dword v25, v9, s[28:31], s17 offen sc1')
    a('buffer_load_dword v26, v9, s[28:31], s18 offen sc1')
    a('buffer_load_dwordx4 v[20:23], v4, s[28:31], s19 offen sc1')
    def fetch2():
        a('buffer_load_dwordx4 v[32:35], v10, s[28:31], s46 offen sc0 sc1')
        a('buffer_load_dwordx4 v[36:39], v10, s[28:31], s46 offen offset:16 sc0 sc1')
    fetch2()
    a('v_sub_u32 v8, 2047, v8')
    a('s_waitcnt vmcnt(14)')
    a('s_barrier')
    fill()
    a('s_waitcnt vmcnt(9)')
    a('s_barrier')
    a('s_waitcnt vmcnt(4)')
    inv = hx(f2u(1.0 / D))
    ln_scalars(a, 25, 26, 27, 28, 29)
    a(f'v_mul_f32 v25, {inv}, v25')
    a(f'v_mul_f32 v26, {inv}, v26')
    a('v_fma_f32 v26, -v25, v25, v26')
    a('v_max_f32 v26, 0, v26')
    a('v_add_f32 v29, 1.0, v28')
    a('v_sub_f32 v30, v25, v27')
    a('v_fma_f32 v25, v30, v28, v25')
    a('v_mul_f32 v26, v26, v29')
    a('v_mul_f32 v26, v26, v29')
    rbf16(a, 25, 25)
    rbf16(a, 26, 26)
    a(f'v_add_f32 v26, {hx(f2u(1e-5))}, v26')
    rbf16(a, 26, 26)
    a('v_sqrt_f32 v26, v26')
    a('v_rcp_f32 v30, v29')
    rbf16(a, 26, 26)
    a('v_rcp_f32 v26, v26')
    a('v_fma_f32 v16, v27, v28, v25')
    a('v_mul_f32 v16, v16, v30')
    a('v_mul_f32 v17, v29, v26')
    a.label('Lqkv_hpoll2')
    a('v_max3_u32 v30, v32, v33, v34')
    a('v_max3_u32 v31, v35, v36, v37')
    a('v_max3_u32 v30, v30, v38, v39')
    a('v_max_u32 v30, v30, v31')
    a('v_cmp_eq_u32 vcc, -1, v30')
    a('s_cbranch_vccz Lqkv_hgo2')
    a('s_add_u32 s33, s33, 1')
    a('s_cmp_gt_u32 s33, 0x40000')
    a('s_cbranch_scc1 Lqkv_hgo2')
    fetch2()
    a('s_waitcnt vmcnt(0)')
    a('s_branch Lqkv_hpoll2')
    a.label('Lqkv_hgo2')
    for i in range(8): a(f'v_xor_b32 v{32+i}, v{32+i}, v8')
    a('v_min3_u32 v30, v32, v33, v34')
    a('v_min3_u32 v31, v35, v36, v37')
    a('v_min3_u32 v30, v30, v38, v39')
    a('v_min_u32 v30, v30, v31')
    a('v_cmp_eq_u32 vcc, 0, v30')
    a('v_cndmask_b32 v24, 0, 1, vcc')
    a.label('Lqkv_hgo')
    a('ds_write_b32 v7, v24')
    a('v_mul_f32 v17, s47, v17')
    a('v_mov_b32 v21, v20')
    a('v_mov_b32 v23, v22')
    a('ds_write_b64 v5, v[16:17]')
    a('v_permlane32_swap_b32 v20, v21')
    a('v_permlane32_swap_b32 v22, v23')
    a('v_add_f32 v20, v20, v21')
    a('v_add_f32 v21, v22, v23')
    a('ds_write_b64 v6, v[20:21]')
    a('s_waitcnt lgkmcnt(0)')
    a('s_barrier')
    endpgm(a)
    a.label('Lqkv_w8')
    a('s_waitcnt lgkmcnt(0)')
    epoch(a)
    a('s_cmp_eq_u32 s3, 0')
    a('s_cbranch_scc1 Lqkv_w8a')
    a('v_and_b32 v2, 15, v0')
    a('s_lshl_b32 s16, s13, 4')
    a('v_add_u32 v2, s16, v2')
    slot_to_off_v(a, 2, 3)
    flag_wait(a, [2])
    a('s_barrier')
    a('s_branch Lqkv_w8b')
    a.label('Lqkv_w8a')
    a('s_sub_u32 s47, s2, 64')
    a('s_cmp_ge_u32 s47, 134')
    a('s_cbranch_scc1 Lqkv_w8b')
    a('s_sub_u32 s46, s47, 67')
    a('s_min_u32 s46, s46, s47')
    a('s_cmp_lt_u32 s46, 32')
    a('s_cselect_b32 s46, 0, -1')
    for i in range(4): a(f'v_mov_b32 v{4+i}, s46')
    a('s_lshl_b32 s46, s47, 10')
    a(f's_add_u32 s46, s46, {hx(WS_CTL)}')
    a('v_lshlrev_b32 v1, 4, v0')
    for i in range(9): a('s_barrier')
    a('buffer_store_dwordx4 v[4:7], v1, s[28:31], s46 offen sc1')
    a('s_branch Lqkv_w8c')
    a.label('Lqkv_w8b')
    for i in range(9): a('s_barrier')
    a.label('Lqkv_w8c')
    for i in range(2): a('s_barrier')
    endpgm(a)
    side1(a)
    comp(a)

def comp(a):
    a.label('Lqkv_comp')
    ACC = 8; BUF = 88; AX = 2; AW = 4
    CSR = 88; MRR = 108; T = 116
    a('s_and_b32 s16, s10, 1')
    a('s_lshr_b32 s17, s10, 1')
    a('v_and_b32 v160, 15, v0')
    a('v_lshrrev_b32 v161, 4, v0')
    a('v_bfe_u32 v162, v0, 1, 3')
    a('v_xor_b32 v162, v162, v161')
    a('v_lshlrev_b32 v162, 4, v162')
    a('v_lshl_add_u32 v162, v160, 7, v162')
    a('s_lshl_b32 s18, s17, 13')
    a(f'v_add_u32 v{AX}, s18, v162')
    a(f'v_xor_b32 v{AX+1}, 64, v{AX}')
    a('v_bfe_u32 v162, v0, 2, 2')
    a('v_lshl_add_u32 v162, v161, 3, v162')
    a('v_mul_u32_u24 v162, 320, v162')
    a('v_and_b32 v163, 3, v0')
    a('v_lshl_add_u32 v162, v163, 3, v162')
    a('s_mul_i32 s18, s16, 160')
    a('s_add_u32 s18, s18, 0x4000')
    a('v_add_u32 v162, s18, v162')
    a('v_and_b32 v163, 16, v0')
    a('v_lshlrev_b32 v163, 1, v163')
    a(f'v_add_u32 v{AW}, v162, v163')
    a(f'v_sub_u32 v{AW+1}, v162, v163')
    a('s_cmp_eq_u32 s16, 0')
    a('s_cbranch_scc1 Lqkv_nosw')
    a(f'v_swap_b32 v{AW}, v{AW+1}')
    a.label('Lqkv_nosw')
    a('s_waitcnt lgkmcnt(0)')
    epoch(a)
    for i in range(80): a(f'v_mov_b32 v{ACC+i}, 0')
    a('s_lshl1_add_u32 s19, s14, s16')
    a(f's_mul_i32 s19, s19, {10*PLANE}')
    a('s_lshl1_add_u32 s41, s13, s17')
    a('s_lshl_b32 s41, s41, 10')
    a('s_add_u32 s41, s41, s19')
    a('s_cmp_eq_u32 s3, 0')
    a('s_cbranch_scc1 Lqkv_c1')
    a(f's_add_u32 s41, s41, {QKV_SZ}')
    a('s_barrier')
    a.label('Lqkv_c1')
    NR = 14
    def rd(b, s):
        base = BUF + 36 * b
        xs = [f'ds_read_b128 {vr(base+4*tt,4)}, v{AX+s} offset:{2048*tt}' for tt in range(4)]
        ws = [[f'ds_read_b64_tr_b16 {vr(base+16+4*ct+2*j,2)}, v{AW+ct%2} offset:{(32*s+4*j)*320+32*ct}' for j in range(2)] for ct in range(5)]
        return ws[0] + xs + sum(ws[1:], [])
    def mf(b):
        base = BUF + 36 * b
        L = []
        for ct in range(5):
            wneed = 2 if ct == 0 else 6 + 2 * ct
            for tt in range(4):
                acc = vr(ACC + (ct * 4 + tt) * 4, 4)
                L.append((f'v_mfma_f32_16x16x32_bf16 {acc}, {vr(base+16+4*ct,4)}, {vr(base+4*tt,4)}, {acc}', max(wneed, 3 + tt)))
        return L
    def kstep(b, R, start, extra={}, full=False):
        M = mf(b); R = list(R); issued = 0; have = 0
        if full:
            a('s_waitcnt lgkmcnt(0)'); have = NR
        for i, (m, need) in enumerate(M):
            if need > have:
                a(f's_waitcnt lgkmcnt({min(15, NR - need + issued)})'); have = need
            a(m)
            for x in extra.get(i, []): a(x)
            if i >= start and R:
                a(R.pop(0)); issued += 1
        assert not R
    a('s_mov_b32 s33, 0')
    a('s_mov_b32 s34, 0')
    a('s_waitcnt lgkmcnt(0)')
    stamp(a, 2)
    a('s_barrier')
    stamp(a, 3)
    cstamp(a, 12)
    for x in rd(0, 0): a(x)
    a.label('Lqkv_cloop')
    ex = {0: ['s_add_u32 s34, s34, 1'], 1: [f's_cmp_eq_u32 s34, {NSLOT}'], 2: [f's_cselect_b32 s35, {hx(-(NSLOT-1)*SLOT)}, s40'], 3: ['s_cselect_b32 s34, 0, s34'],
          4: ['s_add_u32 s33, s33, 1'], 5: ['s_cmp_eq_u32 s33, 10']}
    for i in range(4): ex[14 + i] = [f'v_add_u32 v{AX+i}, s35, v{AX+i}']
    kstep(0, rd(1, 1), 0, extra=ex)
    a('s_cbranch_scc1 Lqkv_cdone')
    kstep(1, rd(0, 0), 2, extra={1: ['s_barrier']}, full=True)
    a('s_branch Lqkv_cloop')
    a.label('Lqkv_cdone')
    stamp(a, 4)
    cstamp(a, 13)
    a('s_waitcnt lgkmcnt(0)')
    for m, _ in mf(1): a(m)
    a('s_mul_i32 s18, s16, 320')
    a(f's_add_u32 s18, s18, {CS}')
    a(f'v_lshl_add_u32 v{AX}, v161, 4, s18')
    a('s_lshl_b32 s18, s17, 9')
    a(f's_add_u32 s18, s18, {MR}')
    a(f'v_lshl_add_u32 v{AX+2}, v160, 3, s18')
    a('v_and_b32 v1, 31, v0')
    a('s_lshl_b32 s18, s17, 8')
    a(f's_add_u32 s18, s18, {SK}')
    a(f'v_lshl_add_u32 v{AX+1}, v1, 2, s18')
    a('v_lshlrev_b32 v1, 4, v1')
    a('v_lshrrev_b32 v162, 5, v0')
    a('v_lshl_add_u32 v1, v162, 15, v1')
    a('s_barrier')
    stamp(a, 5)
    a(f'ds_read2_b32 v[6:7], v{AX+1} offset0:0 offset1:32')
    for tt in range(4): a(f'ds_read_b64 {vr(MRR+2*tt,2)}, v{AX+2} offset:{128*tt}')
    for c in range(5): a(f'ds_read_b128 {vr(CSR+4*c,4)}, v{AX} offset:{64*c}')
    n = 0
    for ct in range(5):
        cs = CSR + 4 * ct
        a(f's_waitcnt lgkmcnt({4-ct})')
        if ct == 0:
            for tp in range(2): a(f'v_cmp_eq_u32 s[{48+2*tp}:{49+2*tp}], 0, v{6+tp}')
        for tp in range(2):
            R = T + 4 * (n % 4); n += 1
            for k in range(2):
                tt = 2 * tp + k
                acc = ACC + (ct * 4 + tt) * 4
                for p in range(2):
                    a(f'v_pk_fma_f32 {vr(acc+2*p,2)}, {vr(cs+2*p,2)}, {vr(MRR+2*tt,2)}, {vr(acc+2*p,2)} op_sel_hi:[1,0,1] neg_lo:[0,1,0] neg_hi:[0,1,0]')
                for p in range(2):
                    a(f'v_pk_mul_f32 {vr(acc+2*p,2)}, {vr(acc+2*p,2)}, {vr(MRR+2*tt,2)} op_sel:[0,1] op_sel_hi:[1,1]')
                a(f'v_cvt_pk_bf16_f32 v{R+2*k}, v{acc}, v{acc+1}')
                a(f'v_cvt_pk_bf16_f32 v{R+2*k+1}, v{acc+2}, v{acc+3}')
            a(f'v_permlane16_swap_b32 v{R}, v{R+2}')
            a(f'v_permlane16_swap_b32 v{R+1}, v{R+3}')
            a(f's_mov_b64 exec, s[{48+2*tp}:{49+2*tp}]')
            a(f'buffer_store_dwordx4 {vr(R,4)}, v1, s[28:31], s41 offen offset:{512*tp} sc1')
            a('s_mov_b64 exec, -1')
        if ct < 4: a(f's_add_u32 s41, s41, {2*PLANE}')

def side1(a):
    a.label('Lqkv_side')
    a('s_mov_b32 s13, s2')
    a(f's_mov_b32 s52, {hx(WS_X2)}')
    a('s_mov_b32 s53, 1')
    a('s_mov_b32 s51, 0')
    a('s_cmp_lg_u32 s3, 0')
    a('s_cbranch_scc1 Lfs')
    a('v_lshrrev_b32 v5, 3, v0')
    a('v_and_b32 v6, 7, v0')
    a('v_lshlrev_b32 v7, 2, v0')
    a('v_mov_b32 v8, 0')
    a('ds_write_b32 v7, v8 offset:1024')
    a('s_waitcnt lgkmcnt(0)')
    a('s_barrier')
    epoch(a)
    a('s_cmp_eq_u32 s10, 8')
    a('s_cbranch_scc1 Lq_fin')
    a('s_cmp_ge_u32 s10, 4')
    a('s_cbranch_scc1 Lside_pack')
    a('s_lshl2_add_u32 s14, s13, s10')
    a('v_mul_u32_u24 v4, 1280, v5')
    a('v_lshl_add_u32 v4, v6, 4, v4')
    a('s_mul_i32 s15, s14, 10240')
    for i in range(10): a(f'buffer_load_dwordx4 {vr(20+4*i,4)}, v4, s[20:23], s15 offen offset:{128*i}')
    a('s_cmp_ge_u32 s13, 60')
    a('s_cselect_b32 s53, 1, 0')
    a('s_cmp_eq_u32 s53, 1')
    a('s_cbranch_scc1 Lside_nob')
    a('v_mul_u32_u24 v7, 3840, v5')
    a('v_lshl_add_u32 v7, v6, 4, v7')
    a('s_and_b32 s16, s13, 1')
    a('s_mul_i32 s16, s16, 40')
    a('s_add_u32 s16, s16, s10')
    a(f's_mul_i32 s17, s16, {8*3840}')
    a('s_lshr_b32 s18, s13, 1')
    a('s_lshl_b32 s19, s18, 7')
    a('s_add_u32 s17, s17, s19')
    for n in range(10):
        a(f'buffer_load_dwordx4 {vr(60+4*n,4)}, v7, s[24:27], s17 offen')
        if n < 9: a(f's_add_u32 s17, s17, {32*3840}')
    a('s_waitcnt vmcnt(10)')
    a('s_branch Lside_a')
    a.label('Lside_nob')
    a('s_waitcnt vmcnt(0)')
    a.label('Lside_a')
    stamp(a, 1)
    for i in range(40):
        u = 100 + 2 * (i % 2)
        unpack(a, u, 20 + i)
        if i == 0:
            a(f'v_pk_mul_f32 v[106:107], {vr(u,2)}, {vr(u,2)}')
            a(f'v_pk_add_f32 v[104:105], {vr(u,2)}, 0')
        else:
            a(f'v_pk_fma_f32 v[106:107], {vr(u,2)}, {vr(u,2)}, v[106:107]')
            a(f'v_pk_add_f32 v[104:105], {vr(u,2)}, v[104:105]')
    a('v_add_f32 v104, v104, v105')
    a('v_add_f32 v106, v106, v107')
    for m in ('quad_perm:[1,0,3,2]', 'quad_perm:[2,3,0,1]', 'row_half_mirror'):
        for v in (104, 106): a(f'v_add_f32_dpp v{v}, v{v}, v{v} {m} row_mask:0xf bank_mask:0xf')
    ln_scalars(a, 104, 106, 108, 109, 100)
    a('s_mov_b32 s54, s98')
    a('v_mov_b32 v110, s54')
    a('v_not_b32 v111, v110')
    a('v_lshlrev_b32 v11, 4, v5')
    a('s_lshl_b32 s15, s14, 7')
    a(f's_add_u32 s15, s15, {hx(WS_MR)}')
    a('s_mov_b32 exec_lo, 0x01010101')
    a('s_mov_b32 exec_hi, 0x01010101')
    a('buffer_store_dwordx4 v[108:111], v11, s[28:31], s15 offen sc0 sc1')
    a('s_mov_b64 exec, -1')
    stamp(a, 2)
    a('s_cmp_eq_u32 s53, 1')
    a('s_cbranch_scc1 Lside_nob2')
    a('s_waitcnt vmcnt(1)')
    for n in range(10):
        for q in range(4):
            u = 100 + 2 * (q % 2)
            unpack(a, u, 60 + 4 * n + q)
            if n == 0: a(f'v_pk_add_f32 {vr(112+2*q,2)}, {vr(u,2)}, 0')
            else: a(f'v_pk_add_f32 {vr(112+2*q,2)}, {vr(u,2)}, {vr(112+2*q,2)}')
    for q in range(8): a(f'v_add_f32_dpp v{112+q}, v{112+q}, v{112+q} row_ror:8 row_mask:0xf bank_mask:0xf')
    for op in ('v_permlane16_swap_b32', 'v_permlane32_swap_b32'):
        for q in range(8): a(f'v_mov_b32 v{120+q}, v{112+q}')
        for q in range(8): a(f'{op} v{112+q}, v{120+q}')
        for q in range(8): a(f'v_add_f32 v{112+q}, v{112+q}, v{120+q}')
    a('s_lshl_b32 s19, s10, 8')
    a('v_lshl_add_u32 v13, v6, 5, s19')
    a('ds_write_b128 v13, v[112:115]')
    a('ds_write_b128 v13, v[116:119] offset:16')
    a.label('Lside_nob2')
    a('s_lshl_b32 s19, s10, 2')
    a('v_mov_b32 v13, s19')
    a('s_waitcnt lgkmcnt(0)')
    a('v_mov_b32 v14, 1')
    a('ds_write_b32 v13, v14 offset:1024')
    a('s_cmp_lg_u32 s10, 0')
    a('s_cbranch_scc1 Lq_fin')
    a.label('Lside_meet')
    a('ds_read_b128 v[20:23], v13 offset:1024')
    a('s_waitcnt lgkmcnt(0)')
    a('v_and_b32 v20, v20, v21')
    a('v_and_b32 v22, v22, v23')
    a('v_and_b32 v20, v20, v22')
    a('v_cmp_eq_u32 vcc, 0, v20')
    a('s_cbranch_vccnz Lside_meet')
    a('s_cmp_eq_u32 s53, 1')
    a('s_cbranch_scc1 Lside_bump')
    a('v_lshlrev_b32 v13, 2, v0')
    for w in range(4): a(f'ds_read_b32 v{72+w}, v13 offset:{256*w}')
    a('s_and_b32 s16, s13, 1')
    a('s_mul_i32 s16, s16, 15360')
    a('s_lshl_b32 s17, s18, 9')
    a('s_add_u32 s16, s16, s17')
    a(f's_add_u32 s16, s16, {hx(WS_CS)}')
    a('v_lshlrev_b32 v13, 3, v0')
    a('s_waitcnt lgkmcnt(0)')
    for w in range(1, 4): a(f'v_add_f32 v72, v72, v{72+w}')
    a('v_mov_b32 v73, s54')
    a('buffer_store_dwordx2 v[72:73], v13, s[28:31], s16 offen sc0 sc1')
    a.label('Lside_bump')
    a('s_waitcnt vmcnt(0)')
    a('v_mov_b32 v13, 0')
    a('ds_write_b32 v13, v14 offset:1040')
    stamp(a, 3)
    endpgm(a)

    a.label('Lside_pack')
    ksrd(a, 32, KA_WO, D * D * 2)
    ksrd(a, 36, KA_WG, D * F * 2)
    ksrd(a, 40, KA_WU, D * F * 2)
    ksrd(a, 48, KA_WD, D * F * 2)
    a('s_lshl2_add_u32 s14, s13, s10')
    a('s_sub_u32 s14, s14, 4')
    a('s_lshr_b32 s16, s13, 3')
    a('s_lshl2_add_u32 s16, s16, s10')
    a('s_sub_u32 s16, s16, 4')
    a('s_lshl_b32 s16, s16, 10')
    a('s_cmp_ge_u32 s16, Lcode_end-Lcode_start-1024')
    a('s_cbranch_scc1 Lside_nopf')
    a('s_getpc_b64 s[56:57]')
    a.label('Lside_pc')
    a('s_sub_u32 s56, s56, Lside_pc-Lcode_start')
    a('s_subb_u32 s57, s57, 0')
    a('v_lshl_add_u32 v2, v0, 4, s16')
    a('global_load_dwordx4 v[36:39], v2, s[56:57]')
    a.label('Lside_nopf')
    a('v_lshlrev_b32 v18, 7, v0')
    a('s_mul_i32 s16, s14, 3200')
    a('s_mul_i32 s17, s14, 7680')
    a('v_mov_b32 v19, 0')
    a.label('Lside_hold')
    a('s_sleep 8')
    a('ds_read_b32 v21, v19 offset:1040')
    a('s_waitcnt lgkmcnt(0)')
    a('v_cmp_eq_u32 vcc, 0, v21')
    a('s_cbranch_vccnz Lside_hold')
    a('v_mul_u32_u24 v19, 1280, v5')
    a('v_lshl_add_u32 v19, v6, 4, v19')
    a('v_lshrrev_b32 v10, 2, v5')
    a('v_lshlrev_b32 v10, 9, v10')
    a('v_and_b32 v11, 3, v5')
    a('v_lshl_add_u32 v10, v11, 5, v10')
    a('v_and_b32 v11, 1, v6')
    a('v_lshl_add_u32 v10, v11, 4, v10')
    a('v_lshrrev_b32 v11, 1, v6')
    a('s_mov_b32 s18, 49152')
    a('v_mad_u32_u24 v13, v11, s18, v10')
    for n in range(8):
        a(f's_lshl3_add_u32 s52, s14, {n}')
        a('s_min_u32 s52, s52, 1919')
        a('s_mul_i32 s53, s52, 6554')
        a('s_lshr_b32 s53, s53, 16')
        a('s_mul_i32 s18, s53, 10')
        a('s_sub_u32 s18, s52, s18')
        a(f's_mul_i32 s19, s53, {8*1280}')
        a('s_lshl_b32 s55, s18, 7')
        a('s_add_u32 s19, s19, s55')
        a(f'buffer_load_dwordx4 {vr(40+4*n,4)}, v19, s[48:51], s19 offen nt')
        d = 60 + n
        a(f's_mul_i32 s{d}, s18, {4*49152}')
        a('s_and_b32 s55, s53, 3')
        a('s_lshl_b32 s55, s55, 7')
        a(f's_add_u32 s{d}, s{d}, s55')
        a('s_lshr_b32 s55, s53, 2')
        a('s_lshl_b32 s55, s55, 10')
        a(f's_add_u32 s{d}, s{d}, s55')
        a(f's_add_u32 s{d}, s{d}, {hx(WS_PD)}')
    a('s_mov_b32 exec_lo, 0x1ffffff')
    a('s_mov_b32 exec_hi, 0')
    a('buffer_load_dword v20, v18, s[32:35], s16 offen')
    a('s_mov_b32 exec_lo, -1')
    a('s_mov_b32 exec_hi, 0xfffffff')
    for sd in (36, 40): a(f'buffer_load_dword v20, v18, s[{sd}:{sd+3}], s17 offen')
    a('s_mov_b64 exec, -1')
    a('s_waitcnt vmcnt(3)')
    for n in range(8): a(f'buffer_store_dwordx4 {vr(40+4*n,4)}, v13, s[28:31], s{60+n} offen sc1')
    endpgm(a)
```

```python
import sys, struct, math, os
sys.path.insert(0, os.path.dirname(os.path.abspath(__file__)))
from asmlib import *

S, D, H, DH, F = 2048, 640, 32, 20, 1536
KA_X, KA_WQKV, KA_WO, KA_BX, KA_WR, KA_WG, KA_WU, KA_WD, KA_OUT, KA_DBG, KA_WS = [8 * i for i in range(11)]
PLANE = 2048 * 16
WS_QKV = 0
QKV_SZ = 240 * PLANE
WS_O = WS_QKV + 2 * QKV_SZ
WS_X1 = WS_O + 80 * PLANE
XT = S * D * 2
X_SZ = XT + 8 * 65536
WS_PD = WS_X1 + 2 * X_SZ
WS_CTL = WS_PD + 42 * 49152
WS_ST = WS_CTL
WS_H = WS_ST + 32768
WS_XS = WS_H + 24576
WS_SEL = WS_XS + 10240
CTL_SZ = 67 * 1024
WS_QS = WS_CTL + 2 * CTL_SZ
NCLR = 134 + 30
WS_MR = WS_QS + 30720
WS_CS = WS_MR + 32768
WS_FLG = WS_CS + 2 * 1920 * 8
WS_EP = WS_FLG + 4 * 32768
WS_END = WS_EP + 128
EPK = 0x9E3779B9
WS_PROF = 0x2000000
WS_SIZE = 0x4000000
assert WS_END <= WS_PROF

def f2u(x): return struct.unpack('<I', struct.pack('<f', x))[0]
def hx(x): return hex(x & 0xFFFFFFFF)
QSCALE = f2u(DH ** -0.5 * math.log2(math.e))
ONES2 = 0x3F803F80
NEGBIG = f2u(-1e30)
NL2E = hx(f2u(-math.log2(math.e)))

kernels = []
LAUNCH = {}
PROF = bool(os.environ.get('PROF'))
PV = 160
def stamp(a, i):
    if not PROF: return
    a('s_memrealtime s[100:101]')
    a('s_waitcnt lgkmcnt(0)')
    a(f'v_writelane_b32 v{a.pv}, s100, {i}')
def cstamp(a, i):
    if not PROF: return
    a('s_memtime s[100:101]')
    a('s_waitcnt lgkmcnt(0)')
    a(f'v_writelane_b32 v{a.pv}, s100, {i}')
def lstamp(a, sreg): pass
KNAME = 'interleave_layers__sliding_block__moe_arch_mod__prompt_kernel'
_pd = [0]
def prof_dump(a):
    if not PROF: return
    _pd[0] += 1
    a(f's_load_dwordx2 s[4:5], s[0:1], {KA_WS}')
    a('s_lshl_b32 s8, s96, 9')
    a('s_add_u32 s8, s8, s2')
    a('s_lshl_b32 s8, s8, 4')
    a('s_add_u32 s8, s8, s10')
    a('s_lshl_b32 s8, s8, 8')
    a(f's_add_u32 s8, s8, {hx(WS_PROF)}')
    a(f's_mov_b32 s6, {hx(WS_SIZE)}'); a('s_mov_b32 s7, 0x20000')
    a('v_lshlrev_b32 v1, 2, v0')
    a('s_waitcnt lgkmcnt(0)')
    a(f'buffer_store_dword v{a.pv}, v1, s[4:7], s8 offen')
    a('s_add_u32 s96, s96, 1')
    a('s_nop 1')
    a(f'v_mov_b32 v{a.pv}, 0')
    stamp(a, 0)
def endpgm(a): a('s_branch ' + a.fin)
def gen_prof(a): pass

def phase_end(a, slot_expr):
    a('s_mov_b64 exec, -1')
    stamp(a, 14)
    a('s_waitcnt vmcnt(0) lgkmcnt(0)')
    stamp(a, 15)
    a('s_barrier')
    _pd[0] += 1; L = f'Lsig{_pd[0]}'
    a('s_cmp_lg_u32 s10, 8')
    a(f's_cbranch_scc1 {L}')
    slot_expr(a)
    a('s_lshl_b32 s12, s97, 15')
    a('s_add_u32 s11, s11, s12')
    a(f's_add_u32 s11, s11, {hx(WS_FLG)}')
    a('v_mov_b32 v2, s98')
    a('v_mov_b32 v3, 0')
    a('s_mov_b64 exec, 1')
    a('buffer_store_dword v2, v3, s[28:31], s11 offen sc0 sc1')
    a('s_mov_b64 exec, -1')
    a.label(L)
    a('s_add_u32 s97, s97, 1')
    prof_dump(a)

def flag_wait(a, vregs, idle=None):
    _pd[0] += 1; L = f'Lfw{_pd[0]}'
    n = len(vregs)
    a('s_lshl_b32 s11, s97, 15')
    a(f's_add_u32 s11, s11, {hx(WS_FLG - 32768)}')
    a('s_mov_b32 s12, 0')
    for i in range(n): a(f's_mov_b64 s[{88+2*i}:{89+2*i}], exec')
    a.label(L)
    a('s_add_u32 s12, s12, 1')
    a(f's_and_b32 s99, s12, {os.environ.get("PMASK", "7")}')
    a(f's_cbranch_scc1 {L}a')
    for sc, nxt in (('sc0 sc1', True), ('sc1', False)):
        for i, v in enumerate(vregs):
            a(f's_mov_b64 exec, s[{88+2*i}:{89+2*i}]')
            a(f'buffer_load_dword v{20+i}, v{v}, s[28:31], s11 offen {sc}')
        if nxt:
            a(f's_branch {L}b')
            a.label(L + 'a')
    a.label(L + 'b')
    a('s_waitcnt vmcnt(0)')
    for i in range(n):
        a(f's_mov_b64 exec, s[{88+2*i}:{89+2*i}]')
        a(f'v_cmp_ne_u32 s[{88+2*i}:{89+2*i}], s98, v{20+i}')
    a('s_mov_b64 vcc, s[88:89]')
    for i in range(1, n): a(f's_or_b64 vcc, vcc, s[{88+2*i}:{89+2*i}]')
    a(f's_cbranch_vccz {L}c')
    if idle: idle()
    else: a(f's_sleep {os.environ.get("SLPF", "1")}')
    a('s_cmp_lt_u32 s12, 0x40000')
    a(f's_cbranch_scc1 {L}')
    a.label(L + 'c')
    a('s_mov_b64 exec, -1')

def ksrd(a, d, ka, size):
    a(f's_load_dwordx2 s[{d}:{d+1}], s[0:1], {ka}')
    a(f's_mov_b32 s{d+2}, {hx(size)}')
    a(f's_mov_b32 s{d+3}, 0x20000')

def add64(a, d, s, off):
    o = off if isinstance(off, str) else hx(off)
    a(f's_add_u32 s{d}, s{s}, {o}')
    a(f's_addc_u32 s{d+1}, s{s+1}, 0')

def rbf16(a, d, s):
    a(f'v_cvt_pk_bf16_f32 v{d}, v{s}, v{s}')
    a(f'v_and_b32 v{d}, 0xffff0000, v{d}')

def unpack(a, lo, src):
    a(f'v_lshlrev_b32 v{lo}, 16, v{src}')
    a(f'v_and_b32 v{lo+1}, 0xffff0000, v{src}')

def ln_scalars(a, s1, s2, m, rs, t):
    inv = hx(f2u(1.0 / D))
    a(f'v_mul_f32 v{m}, {inv}, v{s1}')
    a(f'v_mul_f32 v{t}, {inv}, v{s2}')
    a(f'v_fma_f32 v{t}, -v{m}, v{m}, v{t}')
    a(f'v_max_f32 v{t}, 0, v{t}')
    rbf16(a, t, t)
    a(f'v_add_f32 v{t}, {hx(f2u(1e-5))}, v{t}')
    rbf16(a, t, t)
    a(f'v_sqrt_f32 v{t}, v{t}')
    rbf16(a, t, t)
    a(f'v_rcp_f32 v{rs}, v{t}')
    rbf16(a, m, m)

def kernel_start(a, label):
    a.raw('.p2align 8')
    a.raw(f'.globl {label}')
    a.raw(f'.type {label},@function')
    a.label(label)
    if PROF:
        a(f'v_mov_b32 v{a.pv}, 0')
        stamp(a, 0)

def reg_kernel(label, grid, block, lds, vgpr, sgpr):
    kernels.append((label, vgpr, 102 if PROF else sgpr))
    LAUNCH[label] = (grid, block, lds)

def wave_lane(a):
    a('v_lshrrev_b32 v1, 6, v0')
    a('v_and_b32 v0, 63, v0')
    a('v_readfirstlane_b32 s10, v1')

def mod_small(a, s, n, times):
    for _ in range(times):
        a(f's_sub_u32 s99, s{s}, {n}')
        a(f's_cmp_ge_u32 s{s}, {n}')
        a(f's_cselect_b32 s{s}, s99, s{s}')

def slot_to_off_s(a, sreg): a(f's_lshl_b32 s{sreg}, s{sreg}, 7')
def slot_to_off_v(a, v, t): a(f'v_lshlrev_b32 v{v}, 7, v{v}')
def wait_all(a):
    a('v_lshlrev_b32 v2, 7, v0')
    for i in range(1, 4): a(f'v_add_u32 v{2+i}, {8192*i}, v2')
    flag_wait(a, [2, 3, 4, 5])
```

```python
from common import *
XA = os.environ.get('XA', '')
ASC = os.environ.get('ASC', 'sc1').replace('_', ' ')
def gen_ao(a):
    a.pv = 167
    PS = 8192 + 64
    Q = 2; KA = 8; KB = 9; VA = 10; MX = 12
    ME = 16; MD = 32; SB = 48; KF = 80; NM = 96; OA = 112; P = 128; VF = 136; T = 152; PK = 160
    WOB = 7 * PS
    QP = WOB + 102400
    a.label('Lq_fin')
    def qslot(a):
        a('s_mul_i32 s11, s13, 12')
        a('s_add_u32 s11, s11, s14')
        a('s_add_u32 s11, s11, 64')
        a('s_cmp_lt_u32 s2, 64')
        a('s_cselect_b32 s11, s2, s11')
        slot_to_off_s(a, 11)
    phase_end(a, qslot)
    a.fin = 'La_fin'
    a('s_cmp_eq_u32 s3, 0')
    a(f's_cselect_b32 s63, 0, {CTL_SZ}')
    a(f's_cselect_b32 s4, {KA_X}, {KA_WS}')
    a(f's_cselect_b32 s5, 0, {QKV_SZ}')
    a(f's_mov_b32 s66, {hx(WS_SIZE)}')
    a(f's_cselect_b32 s66, {S*D*2}, s66')
    a('s_load_dwordx2 s[64:65], s[0:1], s4')
    a('s_mov_b32 s67, 0x20000')
    for i in range(4): a(f's_mov_b32 s{20+i}, s{28+i}')
    ksrd(a, 68, KA_WR, D * 2)
    a('s_and_b32 s11, s2, 7')
    a('s_lshr_b32 s12, s2, 3')
    a('s_lshr_b32 s72, s11, 1')
    a('s_and_b32 s73, s12, 7')
    a('s_lshl3_add_u32 s72, s72, s73')
    a('s_and_b32 s74, s11, 1')
    a('s_lshr_b32 s75, s12, 3')
    a('s_lshl2_add_u32 s74, s74, s75')
    a('s_add_u32 s73, s73, s75')
    mod_small(a, 73, 5, 2)
    a('s_lshr_b32 s13, s12, 3')
    a('s_lshl2_add_u32 s13, s11, s13')
    a('s_and_b32 s14, s12, 7')
    a('s_cmp_lt_u32 s2, 40')
    a('s_cselect_b32 s9, s3, 0')
    a('s_min_u32 s9, s9, 1')
    a('s_cmp_eq_u32 s10, 8')
    a('s_cbranch_scc1 Lao_loader')
    a('s_lshr_b32 s15, s13, 1')
    a('s_mul_i32 s15, s15, 5')
    a('s_and_b32 s16, s13, 1')
    a('s_mul_i32 s17, s16, 3')
    a('s_add_u32 s17, s17, s15')
    a('s_lshl_b32 s17, s17, 15')
    a('s_add_u32 s18, s15, 2')
    a('s_lshl_b32 s18, s18, 15')
    a('s_lshl2_add_u32 s19, s14, s10')
    a('s_sub_u32 s24, s19, 4')
    a('s_cmp_lt_u32 s19, 4')
    a('s_cselect_b32 s19, s19, s24')
    a('s_cselect_b32 s46, 1, 0')
    a('s_lshl_b32 s19, s19, 10')
    a(f's_add_u32 s19, s19, {80*PLANE}')
    a('s_add_u32 s19, s19, s5')
    a('s_add_u32 s24, s17, s19')
    a('s_add_u32 s25, s18, s19')
    a('s_lshl3_add_u32 s26, s14, s10')
    a('s_lshl_b32 s26, s26, 9')
    a('s_add_u32 s27, s17, s26')
    a('s_lshl3_add_u32 s44, s16, s18')
    a('s_add_u32 s44, s44, s26')
    a('s_lshl_b32 s45, s10, 10')
    a('v_lshlrev_b32 v1, 4, v0')
    a('v_and_b32 v14, 31, v0')
    a('v_lshrrev_b32 v15, 5, v0')
    a('v_lshlrev_b32 v11, 4, v14')
    a(f'v_lshl_add_u32 v{T}, v15, 15, v11')
    a(f'v_mov_b32 v{Q+4}, {hx(ONES2)}')
    a(f'v_mov_b32 v{Q+5}, {hx(ONES2)}')
    a('s_cmp_eq_u32 s46, 1')
    a(f's_cselect_b32 s47, {hx(NEGBIG >> 16)}, 0')
    a(f'v_mov_b32 v{SB}, s47')
    a(f'v_mov_b32 v{SB+1}, 0')
    a(f'v_mov_b32 v{SB+2}, {hx(ONES2)}')
    a(f'v_mov_b32 v{SB+3}, {hx(ONES2)}')
    a('v_add_u32 v12, s45, v1')
    a(f'ds_write_b128 v12, {vr(SB,4)} offset:{6*PS}')
    a('s_lshl_b32 s48, s10, 9')
    a(f'v_mul_u32_u24 v12, {PS}, v15')
    a(f'v_add3_u32 v{KA}, v12, v11, s48')
    a('s_lshl3_add_u32 s51, s16, s48')
    a(f's_add_u32 s51, s51, {2*PS}')
    a(f's_add_u32 s52, s48, {6*PS}')
    a(f'v_mov_b32 v12, s51')
    a(f'v_mov_b32 v13, s52')
    a('v_cmp_eq_u32 vcc, 0, v15')
    a('v_cndmask_b32 v12, v13, v12, vcc')
    a(f'v_add_u32 v{KB}, v12, v11')
    a('v_and_b32 v12, 1, v0')
    a('v_lshlrev_b32 v12, 3, v12')
    a('v_bfe_u32 v13, v0, 1, 1')
    a(f'v_mul_u32_u24 v13, {PS}, v13')
    a(f'v_add3_u32 v12, v12, v13, s48')
    a(f'v_add_u32 v12, {3*PS}, v12')
    a(f's_add_u32 s51, s51, {3*PS}')
    a('s_add_u32 s52, s52, 8')
    a(f'v_mov_b32 v13, s51')
    a(f'v_mov_b32 v{VA}, s52')
    a(f'v_and_b32 v{VA+1}, 3, v0')
    a(f'v_cmp_eq_u32 vcc, 0, v{VA+1}')
    a(f'v_cndmask_b32 v13, v{VA}, v13, vcc')
    a(f'v_and_b32 v{VA+1}, 16, v0')
    a(f'v_cmp_eq_u32 vcc, 0, v{VA+1}')
    a('v_cndmask_b32 v12, v13, v12, vcc')
    a('v_bfe_u32 v13, v0, 2, 2')
    a('v_lshl_add_u32 v13, v15, 2, v13')
    a(f'v_lshl_add_u32 v{VA}, v13, 4, v12')
    def masks():
        a('v_lshlrev_b32 v12, 2, v15')
        a('v_sub_u32 v12, v14, v12')
        a(f'v_mov_b32 v13, {hx(NEGBIG)}')
        for v in range(16):
            kk = 8 * (v // 4) + v % 4
            sp = 54 + 2 * (v % 4)
            a(f'v_cmp_le_i32 s[{sp}:{sp+1}], {kk}, v12')
            if v % 4 == 3:
                for u in range(v - 3, v + 1):
                    sp = 54 + 2 * (u % 4)
                    a(f'v_cndmask_b32 v{MD+u}, v13, 0, s[{sp}:{sp+1}]')
                    a(f'v_cndmask_b32 v{ME+u}, 0, v13, s[{sp}:{sp+1}]')
    masks()
    a('s_add_u32 s6, s27, s5')
    a('s_add_u32 s7, s44, s5')
    a(f's_add_u32 s27, s27, {hx(WS_O)}')
    a(f's_add_u32 s44, s44, {hx(WS_O)}')
    a('v_lshlrev_b32 v11, 4, v14')
    a(f'v_mov_b32 v{T+7}, {hx(f2u(2.0**100))}')
    a('s_mov_b32 s62, 0')
    stamp(a, 1)
    a('s_cmp_eq_u32 s9, 1')
    a('s_cbranch_scc1 Lfix')
    a.label('Lfix_done')
    a('s_waitcnt lgkmcnt(0)')
    a('s_barrier')
    stamp(a, 2)
    for kv in range(2):
        for pl in range(3):
            a(f's_add_u32 m0, s45, {(3*kv+pl)*PS}')
            src = 's25' if pl == 2 else 's24'
            off = kv * 80 * PLANE + (PLANE if pl == 1 else 0)
            if off:
                a(f's_add_u32 s47, {src}, {off}'); src = 's47'
            a(f'buffer_load_dwordx4 v1, s[20:23], {src} offen sc1 lds')
        if kv == 0:
            a(f'buffer_load_dwordx4 {vr(Q,4)}, v{T}, s[20:23], s6 offen sc1')
            a('s_mov_b32 exec_hi, 0')
            a(f'buffer_load_dwordx2 {vr(Q+4,2)}, v11, s[20:23], s7 offen sc1')
            a('s_mov_b32 exec_hi, -1')
    a('s_waitcnt vmcnt(0) lgkmcnt(0)')
    stamp(a, 3)
    a('s_barrier')
    a('s_cmp_eq_u32 s3, 0')
    a('s_cbranch_scc1 Lao_nosel')
    a(f'v_mov_b32 v12, {QP}')
    a('s_lshr_b32 s47, s26, 4')
    a('v_add_u32 v13, s47, v14')
    a('s_barrier')
    a(f'ds_read_b128 {vr(SB,4)}, v12')
    a(f'ds_read_b128 {vr(SB+4,4)}, v12 offset:16')
    a(f'v_mov_b32 v{SB+8}, -1')
    a('s_waitcnt lgkmcnt(0)')
    for i in range(8): a(f'v_readfirstlane_b32 s{80+i}, v{SB+i}')
    for i in range(8):
        a(f'v_cmp_eq_u32 vcc, v{SB+i}, v13')
        a(f'v_cndmask_b32 v{SB+8}, v{SB+8}, {i}, vcc')
    a(f'v_cmp_le_i32 vcc, 0, v{SB+8}')
    a('s_and_saveexec_b64 s[48:49], vcc')
    a('s_cbranch_execz Lao_noq')
    a(f'v_lshl_add_u32 v12, v{SB+8}, 4, v12')
    a('v_lshl_add_u32 v13, v15, 7, v12')
    a(f'ds_read_b128 {vr(Q,4)}, v13 offset:32')
    a('s_lshl_b32 s47, s16, 3')
    a('v_add_u32 v12, s47, v12')
    a('s_mov_b32 exec_hi, 0')
    a(f'ds_read_b64 {vr(Q+4,2)}, v12 offset:{32+256}')
    a('s_waitcnt lgkmcnt(0)')
    a.label('Lao_noq')
    a('s_mov_b64 exec, s[48:49]')
    a.label('Lao_nosel')
    stamp(a, 4)
    cstamp(a, 12)
    def kread(t, b):
        a(f'ds_read_b128 {vr(KF+8*b,4)}, v{KA} offset:{512*t}')
        a(f'ds_read_b64 {vr(KF+8*b+4,2)}, v{KB} offset:{512*t}')
    def vread(t, b):
        for i in range(2):
            for j in range(2):
                a(f'ds_read_b64_tr_b16 {vr(VF+8*b+4*i+2*j,2)}, v{VA} offset:{512*t+(16*i+8*j)*16}')
    def m1(b, sb, c): a(f'v_mfma_f32_32x32x16_bf16 {vr(sb,16)}, {vr(KF+8*b,4)}, {vr(Q,4)}, {c}')
    def m2(b, sb): a(f'v_mfma_f32_32x32x8_bf16 {vr(sb,16)}, {vr(KF+8*b+4,2)}, {vr(Q+4,2)}, {vr(sb,16)}')
    def mxall(sb, first):
        for i in range(8):
            r = sb + 2 * i
            if first and i < 2: a(f'v_max_f32 v{MX+i}, v{r}, v{r+1}')
            else: a(f'v_max3_f32 v{MX+i%2}, v{r}, v{r+1}, v{MX+i%2}')
    XR = 16; WR = 22; U = 28; XF = 28+12-4
    def early():
        a('s_and_b32 s75, s10, 3')
        a('s_lshr_b32 s76, s10, 2')
        a('s_lshl2_add_u32 s77, s72, s75')
        a('s_lshl1_add_u32 s78, s74, s76')
        a('s_lshl_b32 s78, s78, 6')
        a('s_lshl_b32 s79, s74, 5')
        a('s_add_u32 s79, s79, 1024')
        a(f'v_and_b32 v{U}, 15, v0')
        a(f'v_lshrrev_b32 v{U+1}, 4, v0')
        a(f'v_bfrev_b32 v{U+2}, v{U+1}')
        a(f'v_lshrrev_b32 v{U+2}, 26, v{U+2}')
        a(f'v_add_u32 v{U+2}, s78, v{U+2}')
        a(f'v_lshl_add_u32 v{U+3}, v{U+1}, 3, s79')
        a(f'v_mul_u32_u24 v161, 1280, v{U}')
        a(f'v_add_u32 v160, v161, v{U+2}')
        a(f'v_add_u32 v161, v161, v{U+3}')
        a(f'v_lshlrev_b32 v{U+6}, 4, v{U}')
        a('s_mul_i32 s92, s77, 20480')
        a('s_add_u32 s93, s92, s3')
        a(f's_add_u32 s92, s92, {hx(WS_X1)}')
        a('s_cmp_eq_u32 s3, 0')
        a(f's_cselect_b32 s95, 0, {X_SZ}')
        a('s_add_u32 s92, s92, s95')
        a('s_lshl_b32 s89, s74, 16')
        a('s_lshl_b32 s88, s77, 9')
        a('s_add_u32 s89, s89, s88')
        a(f's_add_u32 s89, s89, {hx(WS_X1 + XT)}')
        a('s_add_u32 s88, s89, s95')
        a(f'v_lshlrev_b32 v163, 5, v{U}')
        a(f'v_lshl_add_u32 v163, v{U+1}, 3, v163')
        a('s_lshl_b32 s95, s77, 8')
        a(f's_add_u32 s95, s95, {hx(WS_ST)}')
        a('s_cmp_eq_u32 s3, 0')
        a('s_cbranch_scc1 Lao_nost')
        a(f'buffer_load_dwordx2 {vr(U+10,2)}, v{U+6}, s[20:23], s95 offen sc0 sc1')
        a(f'buffer_load_dwordx2 {vr(XR+4,2)}, v163, s[20:23], s89 offen sc1')
        a('s_branch Lao_nost2')
        a.label('Lao_nost')
        a(f'buffer_load_dwordx2 {vr(XR+4,2)}, v161, s[64:67], s93 offen')
        a.label('Lao_nost2')
        a(f'buffer_load_dwordx4 {vr(XR,4)}, v160, s[64:67], s93 offen sc1')
        a(f'v_cmp_eq_u32 vcc, 0, v{U}')
        a(f'v_mov_b32 v162, {hx(ONES2)}')
        for i in range(6): a(f'v_cndmask_b32 v{WR+i}, 0, v162, vcc')
        a('s_mov_b32 exec_lo, 0x01000100')
        a('s_mov_b32 exec_hi, 0x01000100')
        a(f'buffer_load_dwordx4 {vr(WR,4)}, v{U+2}, s[68:71], 0 offen')
        a(f'buffer_load_dwordx2 {vr(WR+4,2)}, v{U+3}, s[68:71], 0 offen')
        a('s_mov_b64 exec, -1')
    order = [8, 0, 1, 2, 3, 4, 5, 6, 7]
    kread(8, 0); kread(0, 1); vread(8, 0)
    a('s_waitcnt lgkmcnt(6)')
    m1(0, SB, vr(MD, 16)); m2(0, SB)
    mxall(SB, True)
    a.label('Latt_havemax')
    a(f'v_max_f32 v{MX}, v{MX}, v{MX+1}')
    a(f'v_mov_b32 v{MX+1}, v{MX}')
    a(f'v_permlane32_swap_b32 v{MX}, v{MX+1}')
    a(f'v_max_f32 v{MX}, v{MX}, v{MX+1}')
    for v in range(16): a(f'v_sub_f32 v{ME+v}, v{ME+v}, v{MX}')
    for v in range(16): a(f'v_sub_f32 v{SB+v}, v{SB+v}, v{MX}')
    stamp(a, 5)
    def pv(b, i, first):
        c = '0' if first else vr(OA, 16)
        a(f'v_mfma_f32_32x32x16_bf16 {vr(OA,16)}, {vr(VF+8*b+4*i,4)}, {vr(P+4*i,4)}, {c}')
    for n in range(9):
        sb = SB + 16 * (n % 2); sn = SB + 16 * ((n + 1) % 2)
        nx = n + 1 < 9
        for i in range(2): a(f'v_exp_f32 v{sb+i}, v{sb+i}')
        if n > 0: pv((n - 1) % 2, 1, False)
        if nx: vread(order[n + 1], (n + 1) % 2)
        for i in range(2, 5): a(f'v_exp_f32 v{sb+i}, v{sb+i}')
        if nx:
            a('s_waitcnt lgkmcnt(4)')
            m1((n + 1) % 2, sn, vr(ME, 16) if n == 0 else vr(NM, 16))
        else: a('s_waitcnt lgkmcnt(0)')
        if n + 2 < 9: kread(order[n + 2], n % 2)
        for i in range(5, 8): a(f'v_exp_f32 v{sb+i}, v{sb+i}')
        for i in range(4): a(f'v_cvt_pk_bf16_f32 v{P+i}, v{sb+2*i}, v{sb+2*i+1}')
        if nx: m2((n + 1) % 2, sn)
        for i in range(8, 12): a(f'v_exp_f32 v{sb+i}, v{sb+i}')
        pv(n % 2, 0, n == 0)
        if n == 4: early()
        if n == 0:
            for v in range(16): a(f'v_sub_f32 v{NM+v}, 0, v{MX}')
        for i in range(12, 16): a(f'v_exp_f32 v{sb+i}, v{sb+i}')
        for i in range(4, 8): a(f'v_cvt_pk_bf16_f32 v{P+i}, v{sb+2*i}, v{sb+2*i+1}')
    pv(0, 1, False)
    stamp(a, 6)
    cstamp(a, 13)
    a(f'v_add_f32 v{T+1}, |v{OA}|, v{OA+12}')
    a(f'v_add_f32 v{T+6}, |v{OA+1}|, |v{OA+2}|')
    for v in range(3, 12): a(f'v_add_f32 v{T+1+5*(v%2)}, |v{OA+v}|, v{T+1+5*(v%2)}')
    a(f'v_add_f32 v{T+1}, v{T+1}, v{T+6}')
    a(f'v_cmp_nlt_f32 vcc, v{T+1}, v{T+7}')
    a('s_cmp_eq_u32 s62, 1')
    a('s_cbranch_scc1 Latt_out')
    a('s_cbranch_vccnz Latt_exact')
    a.label('Latt_out')
    a(f'v_rcp_f32 v{T+1}, v{OA+12}')
    for v in range(12): a(f'v_mul_f32 v{OA+v}, v{OA+v}, v{T+1}')
    for v in range(6): a(f'v_cvt_pk_bf16_f32 v{P+v}, v{OA+2*v}, v{OA+2*v+1}')
    for v in range(6): a(f'v_min_u32 v{P+v}, -2, v{P+v}')
    a(f'v_permlane32_swap_b32 v{P}, v{P+2}')
    a(f'v_permlane32_swap_b32 v{P+1}, v{P+3}')
    a(f'buffer_store_dwordx4 {vr(P,4)}, v{T}, s[20:23], s27 offen sc1')
    a('s_mov_b32 exec_hi, 0')
    a(f'buffer_store_dwordx2 {vr(P+4,2)}, v11, s[20:23], s44 offen sc1')
    a('s_mov_b32 exec_hi, -1')
    stamp(a, 7)
    RA = 12; AF = 48; WF = 100; NB = 3
    AC = lambda t: 28 + 4 * t if t < 2 else 88 + 4 * (t - 2)
    OP_RED = 0; SA = 4; OP_ST = 24576
    a('s_lshl_b32 s78, s77, 8')
    a('s_lshl_b32 s79, s76, 18')
    a('s_add_u32 s78, s78, s79')
    a(f's_add_u32 s78, s78, {hx(WS_O)}')
    for p in range(5):
        a(f's_lshl_b32 s{SA+p}, s73, 19')
        a(f's_add_u32 s{SA+p}, s{SA+p}, s78')
        if p < 4:
            a('s_add_u32 s73, s73, 1')
            a('s_cmp_eq_u32 s73, 5')
            a('s_cselect_b32 s73, 0, s73')
    a(f'v_lshrrev_b32 v{RA}, 2, v0')
    a(f'v_mul_u32_u24 v{RA}, 160, v{RA}')
    a('v_and_b32 v3, 3, v0')
    a(f'v_lshl_add_u32 v{RA}, v3, 3, v{RA}')
    a('s_mul_i32 s36, s76, 10240')
    a(f's_add_u32 s36, s36, {WOB}')
    a('s_lshl_b32 s37, s76, 6')
    a('s_xor_b32 s38, s37, 64')
    a('s_add_u32 s37, s37, s36')
    a('s_add_u32 s38, s38, s36')
    a(f'v_add_u32 v{RA+2}, s38, v{RA}')
    a(f'v_add_u32 v4, s36, v{RA}')
    a(f'v_add_u32 v{RA}, s37, v{RA}')
    a(f'v_add_u32 v{RA+1}, {3*20480}, v{RA}')
    a(f'v_add_u32 v{RA+3}, {3*20480}, v{RA+2}')
    a(f'v_add_u32 v5, {3*20480}, v4')
    a(f'v_lshlrev_b32 v2, 15, v{U+1}')
    a(f'v_add_u32 v2, v2, v{U+6}')
    a(f'v_add_u32 v7, {4*PLANE}, v2')
    a(f'v_and_b32 v3, 3, v0')
    for i in range(1, 4): a(f'v_cmp_eq_u32 s[{50+2*i}:{51+2*i}], {i}, v3')
    a('s_lshl_b32 s39, s10, 8')
    a(f'v_add_u32 v11, s39, v{U+6}')
    a(f'v_lshl_add_u32 v8, v{U+1}, 2, v11')
    a('s_lshl_b32 s38, s77, 4')
    a(f'v_add_u32 v10, s38, v{U}')
    aload = lambda s, sc: f'buffer_load_dwordx4 {vr(AF+4*s,4)}, v{7 if s % 2 else 2}, s[20:23], s{SA+s//2} offen {sc}'
    a('s_waitcnt vmcnt(2)')
    if 'E' in XA:
        for s in range(10): a(aload(s, ASC))
    stamp(a, 8)
    MM = vr(U + 8, 2)
    a('s_cmp_eq_u32 s3, 0')
    a('s_cbranch_scc1 Lop_res')
    ln_scalars(a, U + 10, U + 11, U + 8, U + 9, 3)
    for i in range(0, 6, 2):
        tt = [88, 94]
        for k in range(2): unpack(a, tt[k] + 4, XR + i + k)
        for k in range(2): a(f'v_pk_add_f32 {vr(tt[k]+2,2)}, {vr(tt[k]+4,2)}, {MM} op_sel_hi:[1,0] neg_lo:[0,1] neg_hi:[0,1]')
        for k in range(2): a(f'v_cvt_pk_bf16_f32 v{tt[k]}, v{tt[k]+2}, v{tt[k]+3}')
        for k in range(2): unpack(a, tt[k] + 2, tt[k])
        for k in range(2): a(f'v_pk_mul_f32 {vr(tt[k]+2,2)}, {vr(tt[k]+2,2)}, {MM} op_sel:[0,1] op_sel_hi:[1,1]')
        for k in range(2): a(f'v_cvt_pk_bf16_f32 v{tt[k]}, v{tt[k]+2}, v{tt[k]+3}')
        for k in range(2): unpack(a, tt[k] + 2, tt[k])
        for k in range(2): a(f'v_pk_add_f32 {vr(tt[k]+2,2)}, {vr(tt[k]+2,2)}, {vr(tt[k]+4,2)}')
        for k in range(2): a(f'v_cvt_pk_bf16_f32 v{XR+i+k}, v{tt[k]+2}, v{tt[k]+3}')
    a('v_mov_b32 v3, -1')
    for i in range(8):
        a(f'v_cmp_eq_u32 vcc, s{80+i}, v10')
        a(f'v_cndmask_b32 v3, v3, {i}, vcc')
    a('v_cmp_le_i32 vcc, 0, v3')
    a('s_and_saveexec_b64 s[48:49], vcc')
    a('s_cbranch_execz Lop_res2')
    a('v_lshlrev_b32 v3, 4, v3')
    a(f'v_lshl_add_u32 v6, v{U+2}, 3, v3')
    a(f'v_and_b32 v10, 0xfffffff0, v{U+3}')
    a('v_lshl_add_u32 v3, v10, 3, v3')
    a(f'v_and_or_b32 v3, v{U+3}, 8, v3')
    a(f's_mov_b32 s94, {hx(WS_XS)}')
    a(f'buffer_load_dwordx4 {vr(XR,4)}, v6, s[20:23], s94 offen sc1')
    a(f'buffer_load_dwordx2 {vr(XR+4,2)}, v3, s[20:23], s94 offen sc1')
    a('s_waitcnt vmcnt(0)')
    a.label('Lop_res2')
    a('s_mov_b64 exec, s[48:49]')
    a.label('Lop_res')
    for i in range(6): unpack(a, XF + 2 * i, XR + i)
    if 'F' in XA:
        for s in range(10): a(aload(s, ASC))
    a('s_barrier')
    stamp(a, 9)
    WB = lambda s: WF + 20 * (s % NB)
    def wread(s, t):
        p, k = s // 2, s % 2
        reg = (RA if t < 2 else RA + 2 if t < 4 else 4) + (1 if p >= 3 else 0)
        off = (p % 3) * 20480 + k * 5120 + (32 * (t % 2) if t < 4 else 128)
        for j in range(2):
            a(f'ds_read_b64_tr_b16 {vr(WB(s)+4*t+2*j,2)}, v{reg} offset:{off+j*2560}')
    def mm(s, t):
        c = '0' if s == 0 else vr(AC(t), 4)
        a(f'v_mfma_f32_16x16x32_bf16 {vr(AC(t),4)}, {vr(WB(s)+4*t,4)}, {vr(AF+4*s,4)}, {c}')
    a('s_mov_b32 s43, 0')
    aload = lambda s, sc: f'buffer_load_dwordx4 {vr(AF+4*s,4)}, v{7 if s % 2 else 2}, s[20:23], s{SA+s//2} offen {sc}'
    if os.environ.get('DLY'): a(f's_sleep {os.environ["DLY"]}')
    if 'E' not in XA and 'F' not in XA:
        for s in range(10): a(aload(s, ASC))
    for s in range(NB):
        for t in range(5): wread(s, t)
    for s in range(10):
        r = AF + 4 * s
        a(f's_waitcnt vmcnt({9-s})')
        a(f'v_max3_u32 v6, v{r}, v{r+1}, v{r+2}')
        a(f'v_max_u32 v6, v6, v{r+3}')
        a('v_cmp_eq_u32 vcc, -1, v6')
        a(f's_cbranch_vccnz Lop_retry{s+1}')
        a.label(f'Lop_ok{s+1}')
        if s == 0: stamp(a, 10)
        a(f's_waitcnt lgkmcnt({min(15, 10 * (min(s + NB - 1, 9) - s))})')
        for t in range(5):
            mm(s, t)
            if s + NB < 10 and t > 0: wread(s + NB, t - 1)
        if s + NB < 10: wread(s + NB, 4)
    stamp(a, 11)
    a('s_mul_i32 s36, s10, 3072')
    a('v_add_u32 v12, s36, v1')
    a('s_xor_b32 s36, s10, 4')
    a('s_mul_i32 s36, s36, 3072')
    a('v_add_u32 v13, s36, v1')
    for t in range(3): a(f'ds_write_b128 v12, {vr(AC(2+t),4)} offset:{OP_RED+1024*t}')
    a('s_waitcnt lgkmcnt(0)')
    a('s_barrier')
    for t in range(3): a(f'ds_read_b128 {vr(WF+4*t,4)}, v13 offset:{OP_RED+1024*t}')
    a('s_cmp_eq_u32 s76, 0')
    def fin(idx):
        acc = lambda i: AC(0) + 2 * i if i < 4 else AC(4) + 2 * (i - 4)
        for i in idx: a(f'v_pk_add_f32 {vr(acc(i),2)}, {vr(acc(i),2)}, {vr(WF+2*i,2)}')
        for i in idx: a(f'v_cvt_pk_bf16_f32 v{XR+i}, v{acc(i)}, v{acc(i)+1}')
        if idx[0] == 0:
            for i in range(2): a(f'v_permlane16_swap_b32 v{XR+i}, v{XR+2+i}')
        for i in idx: unpack(a, acc(i), XR + i)
        for i in idx: a(f'v_pk_add_f32 {vr(acc(i),2)}, {vr(acc(i),2)}, {vr(XF+2*i,2)}')
        for i in idx: a(f'v_cvt_pk_bf16_f32 v{XR+i}, v{acc(i)}, v{acc(i)+1}')
    a('s_waitcnt lgkmcnt(1)')
    fin(range(4))
    a(f'buffer_store_dwordx4 {vr(XR,4)}, v160, s[20:23], s92 offen sc1')
    D1, D2 = AF, AF + 4
    a(f'v_mfma_f32_16x16x32_bf16 {vr(D1,4)}, {vr(WR,4)}, {vr(XR,4)}, 0')
    a(f'v_mfma_f32_16x16x32_bf16 {vr(D2,4)}, {vr(XR,4)}, {vr(XR,4)}, 0')
    a('s_cbranch_scc0 Lop_notail')
    a('s_waitcnt lgkmcnt(0)')
    fin((4, 5))
    if 'T' not in XA: a(f'buffer_store_dwordx2 {vr(XR+4,2)}, v163, s[20:23], s88 offen sc1')
    a(f'v_mfma_f32_16x16x16_bf16 {vr(D1,4)}, {vr(WR+4,2)}, {vr(XR+4,2)}, {vr(D1,4)}')
    a(f'v_mfma_f32_16x16x16_bf16 {vr(D2,4)}, {vr(XR+4,2)}, {vr(XR+4,2)}, {vr(D2,4)}')
    a.label('Lop_notail')
    a('s_mov_b32 exec_lo, 0xffff')
    a('s_mov_b32 exec_hi, 0xffff')
    a(f'ds_write_b32 v8, v{D1} offset:{OP_ST}')
    a('s_mov_b32 exec_lo, 0x00f0000f')
    a('s_mov_b32 exec_hi, 0xf0000f00')
    for i in range(1, 4): a(f'v_cndmask_b32 v{D2}, v{D2}, v{D2+i}, s[{50+2*i}:{51+2*i}]')
    a(f'ds_write_b32 v11, v{D2} offset:{OP_ST+4}')
    stamp(a, 14)
    a('s_waitcnt vmcnt(0) lgkmcnt(0)')
    a('s_barrier')
    endpgm(a)
    for s in range(1, 11):
        a.label(f'Lop_retry{s}')
        a('s_call_b64 s[44:45], Lop_refresh')
        a(f's_branch Lop_ok{s}')
    a.label('Lop_refresh')
    a('s_mov_b32 s46, 0')
    a('s_waitcnt vmcnt(0)')
    if os.environ.get('SLP2'): a(f's_sleep {os.environ["SLP2"]}')
    for s in range(10):
        r = AF + 4 * s
        a(f'v_max3_u32 v6, v{r}, v{r+1}, v{r+2}')
        a(f'v_max_u32 v6, v6, v{r+3}')
        a('v_cmp_eq_u32 vcc, -1, v6')
        a(f's_cbranch_vccz Lop_rf{s}')
        a(aload(s, os.environ.get('RSC', 'sc0 sc1').replace('_', ' ')))
        a('s_mov_b32 s46, 1')
        a.label(f'Lop_rf{s}')
    a('s_add_u32 s43, s43, 1')
    a('s_cmp_gt_u32 s43, 0x40000')
    a('s_cselect_b32 s46, 0, s46')
    a('s_cmp_eq_u32 s46, 1')
    a('s_cbranch_scc1 Lop_refresh')
    a('s_waitcnt vmcnt(0)')
    a('s_setpc_b64 s[44:45]')
    a.label('Lao_loader')
    a('v_lshlrev_b32 v1, 4, v0')
    ksrd(a, 44, KA_WO, D * D * 2)
    ksrd(a, 36, KA_WG, D * F * 2)
    ksrd(a, 40, KA_WU, D * F * 2)
    a('s_lshl_b32 s79, s74, 7')
    a('s_lshl_b32 s80, s74, 5')
    a(f's_add_u32 s80, s80, {1024-128}')
    for i in range(5):
        a(f'v_add_u32 v2, {64*i}, v0')
        a('v_mul_u32_u24 v3, 6554, v2')
        a('v_lshrrev_b32 v3, 16, v3')
        a('v_mul_u32_u24 v4, 10, v3')
        a('v_sub_u32 v2, v2, v4')
        a('v_and_b32 v4, 12, v3')
        a('v_and_b32 v5, 3, v3')
        a('v_lshl_or_b32 v4, v4, 1, v5')
        a('v_lshrrev_b32 v3, 4, v3')
        a('v_lshl_or_b32 v4, v3, 2, v4')
        a('v_mul_u32_u24 v4, 1280, v4')
        a('v_lshl_add_u32 v4, v2, 4, v4')
        a('v_mov_b32 v3, s79')
        a('v_mov_b32 v5, s80')
        a('v_cmp_gt_u32 vcc, 8, v2')
        a('v_cndmask_b32 v3, v5, v3, vcc')
        a(f'v_add_u32 v{10+i}, v4, v3')
    a(f's_mul_i32 s80, s73, {128*1280}')
    a(f's_mov_b32 s82, {WOB}')
    def wo_block():
        for i in range(5):
            a(f's_add_u32 m0, s82, {1024*i}')
            a(f'buffer_load_dwordx4 v{10+i}, s[44:47], s80 offen lds')
        a(f's_add_u32 s80, s80, {32*1280}')
        a(f's_cmp_eq_u32 s80, {640*1280}')
        a('s_cselect_b32 s80, 0, s80')
        a('s_add_u32 s82, s82, 5120')
    def idle():
        a('s_mov_b64 exec, -1')
        a(f's_cmp_ge_u32 s82, {WOB+102400}')
        a('s_cbranch_scc1 Lao_idle')
        for _ in range(int(os.environ.get('IB', '2'))): wo_block()
        a.label('Lao_idle')
        a('s_sleep 1')
    a('s_waitcnt lgkmcnt(0)')
    a('v_add_u32 v3, 2, v0')
    a('v_and_b32 v4, 3, v3')
    a('s_lshl_b32 s16, s14, 1')
    a('s_sub_u32 s16, s16, 2')
    a('v_add_u32 v4, s16, v4')
    a('v_max_i32 v4, 0, v4')
    a('v_mul_u32_u24 v4, 12, v4')
    a('v_and_b32 v3, 12, v3')
    a('s_lshr_b32 s16, s13, 3')
    a('s_add_u32 s16, s16, 64')
    a('v_add3_u32 v2, v4, v3, s16')
    a('s_lshr_b32 s16, s72, 1')
    a('s_mul_i32 s16, s16, 12')
    a('s_add_u32 s16, s16, 54')
    a('v_add_u32 v3, s16, v0')
    a('v_cmp_gt_u32 vcc, 10, v0')
    a('v_cndmask_b32 v2, v3, v2, vcc')
    slot_to_off_v(a, 2, 3)
    a('s_mov_b32 s85, s11')
    a('s_mov_b32 s86, s12')
    a('s_cmp_eq_u32 s9, 0')
    a('s_cbranch_scc1 Lao_nf')
    a('s_barrier')
    a.label('Lao_f8')
    wo_block()
    a(f's_cmp_lt_u32 s82, {WOB+40960}')
    a('s_cbranch_scc1 Lao_f8')
    a('s_barrier')
    a.label('Lao_nf')
    a('s_mov_b64 exec, 0x3fffff')
    flag_wait(a, [2], idle)
    a('s_barrier')
    stamp(a, 2)
    a('s_cmp_eq_u32 s3, 0')
    a('s_cbranch_scc1 Lao_nopatch')
    a('v_lshrrev_b32 v2, 3, v0')
    a('v_and_b32 v3, 7, v0')
    a('v_min_u32 v2, 5, v2')
    a('v_cmp_lt_u32 vcc, 2, v2')
    a('v_cndmask_b32 v4, 0, 3, vcc')
    a('v_sub_u32 v4, v2, v4')
    a('v_mov_b32 v5, 80')
    a('v_mov_b32 v6, 160')
    a('v_cndmask_b32 v5, v5, v6, vcc')
    a('s_lshr_b32 s16, s13, 1')
    a('s_mul_i32 s16, s16, 5')
    a('s_and_b32 s17, s13, 1')
    a('s_mul_i32 s17, s17, 3')
    a('v_add_u32 v6, s17, v4')
    a('v_cmp_eq_u32 vcc, 2, v4')
    a('v_cndmask_b32 v6, v6, v4, vcc')
    a('v_add_u32 v6, s16, v6')
    a('v_lshlrev_b32 v7, 4, v3')
    a('v_lshl_add_u32 v8, v6, 7, v7')
    a('v_lshl_add_u32 v9, v5, 7, v8')
    a('v_lshlrev_b32 v15, 2, v3')
    a(f's_mov_b32 s16, {hx(WS_QS)}')
    a(f's_mov_b32 s17, {hx(WS_SEL)}')
    a('s_mov_b32 s12, 0')
    a.label('Lao_qs')
    a('buffer_load_dword v16, v15, s[20:23], s17 offen sc0 sc1')
    a('buffer_load_dwordx4 v[20:23], v9, s[20:23], s16 offen sc0 sc1')
    a('buffer_load_dwordx4 v[24:27], v8, s[20:23], s16 offen sc0 sc1')
    a('s_add_u32 s12, s12, 1')
    a('s_waitcnt vmcnt(0)')
    a('v_max3_u32 v17, v20, v21, v22')
    a('v_max3_u32 v18, v23, v24, v25')
    a('v_max3_u32 v17, v17, v26, v27')
    a('v_max3_u32 v17, v17, v18, v16')
    a('v_cmp_eq_u32 vcc, -1, v17')
    a('s_cbranch_vccz Lao_qs2')
    a('s_sleep 2')
    a('s_cmp_lt_u32 s12, 0x40000')
    a('s_cbranch_scc1 Lao_qs')
    a.label('Lao_qs2')
    stamp(a, 3)
    a(f'v_add_u32 v15, {QP}, v15')
    a('ds_write_b32 v15, v16')
    a('v_lshl_add_u32 v7, v4, 7, v7')
    a(f'v_add_u32 v7, {QP}, v7')
    a('ds_write_b128 v7, v[24:27] offset:32')
    a('s_lshl_b32 s16, s14, 8')
    a('s_sub_u32 s16, s16, 256')
    a('v_subrev_u32 v16, s16, v16')
    a(f'v_mul_u32_u24 v2, {PS}, v2')
    a('v_lshl_add_u32 v2, v16, 4, v2')
    a('v_cmp_gt_u32 vcc, 0x200, v16')
    a('s_barrier')
    a('s_mov_b64 exec, vcc')
    a('ds_write_b128 v2, v[20:23]')
    a('s_mov_b64 exec, -1')
    a('s_waitcnt lgkmcnt(0)')
    a.label('Lao_nopatch')
    a('s_barrier')
    if 'G' not in XA:
        a('v_mul_u32_u24 v2, 3072, v0')
        a('s_min_u32 s32, s86, 29')
        a('s_mul_i32 s33, s32, 26')
        a('s_lshr_b32 s33, s33, 8')
        a('s_mul_i32 s34, s33, 10')
        a('s_sub_u32 s32, s32, s34')
        a(f's_mul_i32 s32, s32, {64*3072}')
        a('s_lshl3_add_u32 s33, s33, s85')
        a('s_lshl_b32 s33, s33, 7')
        a('s_add_u32 s32, s32, s33')
        a('buffer_load_dword v30, v2, s[36:39], s32 offen')
        a('buffer_load_dword v30, v2, s[40:43], s32 offen')
    a.label('Lao_lloop')
    a(f's_cmp_ge_u32 s82, {WOB+102400}')
    a('s_cbranch_scc1 Lao_ldone')
    wo_block()
    a(f's_waitcnt vmcnt({os.environ.get("WTH", "15")})')
    a('s_branch Lao_lloop')
    a.label('Lao_ldone')
    stamp(a, 1)
    a('s_waitcnt vmcnt(0)')
    if 'W' in XA:
        a('s_barrier')
        wait_all(a)
    else:
        wait_all(a)
        a('s_barrier')
    a('v_lshlrev_b32 v3, 2, v0')
    a('s_lshl_b32 s16, s72, 10')
    a('s_add_u32 s16, s16, s63')
    a(f's_add_u32 s16, s16, {hx(WS_ST)}')
    a('v_and_b32 v2, 3, v0')
    a('v_cmp_eq_u32 vcc, 3, v2')
    a('s_barrier')
    a('s_barrier')
    for k in range(8): a(f'ds_read_b32 v{8+k}, v3 offset:{OP_ST+256*k}')
    a('s_waitcnt lgkmcnt(0)')
    for k in range(4):
        a(f'v_add_f32 v{8+k}, v{8+k}, v{12+k}')
        a(f'v_cndmask_b32 v{8+k}, v{8+k}, 1.0, vcc')
        a(f'buffer_atomic_add_f32 v{8+k}, v3, s[20:23], s16 offen offset:{256*k}')
    endpgm(a)
    L_FX = WOB + 40960
    FXF = 48; WA = 68; WB_ = 88; DA = 108; DB = 112; R = 116; FM = 126
    a.label('Lfix')
    ksrd(a, 40, KA_WQKV, D * 3 * D * 2)
    a('s_and_b32 s76, s2, 1')
    a('s_mul_i32 s76, s76, 20')
    a('s_lshr_b32 s77, s2, 1')
    a('s_add_u32 s76, s76, s77')
    a('s_and_b32 s77, s10, 3')
    a('s_lshr_b32 s78, s10, 2')
    for i in range(3):
        a(f'v_add_u32 v{R}, {64*i}, v0')
        a(f'v_mul_u32_u24 v{R+1}, 10923, v{R}')
        a(f'v_lshrrev_b32 v{R+1}, 16, v{R+1}')
        a(f'v_mul_u32_u24 v{R+2}, 6, v{R+1}')
        a(f'v_sub_u32 v{R}, v{R}, v{R+2}')
        a(f'v_and_b32 v{R+2}, 12, v{R+1}')
        a(f'v_and_b32 v{R+3}, 3, v{R+1}')
        a(f'v_lshl_or_b32 v{R+2}, v{R+2}, 1, v{R+3}')
        a(f'v_lshrrev_b32 v{R+1}, 4, v{R+1}')
        a(f'v_lshl_or_b32 v{R+2}, v{R+1}, 2, v{R+2}')
        a(f'v_mul_u32_u24 v{R+1}, 3840, v{R+2}')
        a(f'v_lshl_add_u32 v{R+4+i}, v{R}, 4, v{R+1}')
    a(f's_mul_i32 s79, s10, {32*3840}')
    a('s_mul_i32 s80, s76, 96')
    a('s_add_u32 s79, s79, s80')
    a('s_mul_i32 s80, s10, 3072')
    a(f's_add_u32 s80, s80, {L_FX}')
    a('s_waitcnt lgkmcnt(0)')
    for n in range(3):
        if n == 2:
            a('s_cmp_ge_u32 s10, 4')
            a('s_cbranch_scc1 Lfix_w')
        for i in range(3):
            a(f's_add_u32 m0, s80, {24576*n+1024*i}')
            a(f'buffer_load_dwordx4 v{R+4+i}, s[40:43], s79 offen lds')
        if n < 2: a(f's_add_u32 s79, s79, {256*3840}')
    a.label('Lfix_w')
    a(f'v_lshrrev_b32 v{R}, 2, v0')
    a(f'v_mul_u32_u24 v{R}, 96, v{R}')
    a(f'v_and_b32 v{R+1}, 3, v0')
    a(f'v_lshl_add_u32 v{R}, v{R+1}, 3, v{R}')
    a('s_mul_i32 s79, s77, 15360')
    a('s_lshl_b32 s80, s78, 6')
    a('s_add_u32 s79, s79, s80')
    a(f's_add_u32 s79, s79, {L_FX}')
    a(f'v_add_u32 v{R}, s79, v{R}')
    a(f'v_and_b32 v{R+2}, 7, v0')
    a(f'v_lshrrev_b32 v{R+3}, 4, v0')
    a('s_waitcnt vmcnt(0)')
    a('s_barrier')
    for s in range(5):
        for j in range(2):
            a(f'ds_read_b64_tr_b16 {vr(WA+4*s+2*j,2)}, v{R} offset:{3072*s+1536*j}')
            a(f'ds_read_b64_tr_b16 {vr(WB_+4*s+2*j,2)}, v{R} offset:{3072*s+1536*j+32}')
    a(f'v_lshlrev_b32 v{R+1}, 7, v{R+3}')
    a(f'v_lshl_add_u32 v{R+1}, v{R+2}, 4, v{R+1}')
    a('s_mul_i32 s79, s77, 2560')
    a(f's_add_u32 s79, s79, {hx(WS_XS)}')
    for i in range(20): a(f'v_mov_b32 v{FXF+i}, {hx(ONES2)}')
    a('s_lshl_b32 s80, s77, 12')
    a('s_lshl_b32 s81, s78, 11')
    a('s_add_u32 s80, s80, s81')
    a(f'v_add_u32 v{R+4}, s80, v1')
    a('s_lshl_b32 s80, s10, 10')
    a(f'v_add_u32 v{R+5}, s80, v1')
    a(f'v_lshrrev_b32 v{R+6}, 2, v{R+2}')
    a(f'v_lshlrev_b32 v{R+6}, 8, v{R+6}')
    a(f'v_lshl_add_u32 v{R+6}, v{R+2}, 4, v{R+6}')
    a(f'v_and_b32 v{R+7}, 3, v{R+2}')
    a(f'v_lshl_add_u32 v{R+6}, v{R+7}, 2, v{R+6}')
    a(f'v_lshlrev_b32 v{R+7}, 4, v{R+2}')
    a(f'v_lshrrev_b32 v{R+8}, 1, v{R+3}')
    a(f'v_lshl_add_u32 v{R+8}, v{R+8}, 7, v{R+7}')
    a(f'v_and_b32 v{R+9}, 1, v{R+3}')
    a(f'v_lshl_add_u32 v{R+8}, v{R+9}, 3, v{R+8}')
    a('s_mul_i32 s81, s76, 3')
    a('s_add_u32 s81, s81, s10')
    a('s_cmp_lt_u32 s81, 40')
    a(f's_cselect_b32 s82, {hx(QSCALE)}, 1.0')
    a('s_lshl_b32 s81, s81, 8')
    a(f's_add_u32 s81, s81, {hx(WS_QS)}')
    a('s_mov_b32 exec_lo, 0x00ff00ff')
    a('s_mov_b32 exec_hi, 0x00ff00ff')
    a('s_mov_b32 s80, 0')
    a.label('Lfix_poll')
    for s in range(5): a(f'buffer_load_dwordx4 {vr(FXF+4*s,4)}, v{R+1}, s[20:23], s79 offen offset:{512*s} sc0 sc1')
    a('s_add_u32 s80, s80, 1')
    for s in range(5):
        a(f's_waitcnt vmcnt({4-s})')
        r = FXF + 4 * s
        if s == 0: a(f'v_max_u32 v{R+9}, v{r}, v{r+1}')
        else: a(f'v_max3_u32 v{R+9}, v{r}, v{r+1}, v{R+9}')
        a(f'v_max3_u32 v{R+9}, v{r+2}, v{r+3}, v{R+9}')
    a(f'v_cmp_eq_u32 vcc, -1, v{R+9}')
    a('s_cbranch_vccz Lfix_go')
    a('s_sleep 2')
    a('s_cmp_lt_u32 s80, 0x40000')
    a('s_cbranch_scc1 Lfix_poll')
    a.label('Lfix_go')
    a('s_mov_b64 exec, -1')
    a('s_waitcnt lgkmcnt(0)')
    a('s_cmp_eq_u32 s78, 0')
    a('s_cbranch_scc1 Lfix_m')
    for i in range(20): a(f'v_mov_b32 v{WB_+i}, v{FXF+i}')
    a.label('Lfix_m')
    for s in range(5):
        a(f'v_mfma_f32_16x16x32_bf16 {vr(DA,4)}, {vr(WA+4*s,4)}, {vr(FXF+4*s,4)}, {"0" if s == 0 else vr(DA,4)}')
        a(f'v_mfma_f32_16x16x32_bf16 {vr(DB,4)}, {vr(WB_+4*s,4)}, {vr(FXF+4*s,4)}, {"0" if s == 0 else vr(DB,4)}')
    a(f'ds_write_b128 v{R+4}, {vr(DA,4)}')
    a(f'ds_write_b128 v{R+4}, {vr(DB,4)} offset:1024')
    a('s_waitcnt lgkmcnt(0)')
    a('s_barrier')
    a('s_cmp_gt_u32 s10, 2')
    a('s_cbranch_scc1 Lfix_done')
    for q in range(4):
        a(f'ds_read_b32 v{WA+q}, v{R+7} offset:{4096*q+3072+512}')
        a(f'ds_read_b32 v{WA+4+q}, v{R+6} offset:{4096*q+3072}')
    for q in range(4): a(f'ds_read_b128 {vr(FXF+4*q,4)}, v{R+5} offset:{4096*q}')
    a('s_waitcnt lgkmcnt(4)')
    for b in (WA, WA + 4):
        a(f'v_add_f32 v{b}, v{b}, v{b+1}')
        a(f'v_add_f32 v{b+2}, v{b+2}, v{b+3}')
        a(f'v_add_f32 v{b}, v{b}, v{b+2}')
    ln_scalars(a, WA, WA + 4, FM, FM + 1, R + 9)
    a(f'v_mul_f32 v{FM+1}, s82, v{FM+1}')
    a('s_waitcnt lgkmcnt(0)')
    for i in range(2):
        a(f'v_pk_add_f32 {vr(FXF+2*i,2)}, {vr(FXF+2*i,2)}, {vr(FXF+4+2*i,2)}')
        a(f'v_pk_add_f32 {vr(FXF+8+2*i,2)}, {vr(FXF+8+2*i,2)}, {vr(FXF+12+2*i,2)}')
    for i in range(2): a(f'v_pk_add_f32 {vr(FXF+2*i,2)}, {vr(FXF+2*i,2)}, {vr(FXF+8+2*i,2)}')
    for i in range(4): a(f'v_mov_b32_dpp v{FXF+4+i}, v{FXF+i} row_newbcast:8 row_mask:0xf bank_mask:0xf')
    for i in range(4): a(f'v_fma_f32 v{FXF+i}, -v{FM}, v{FXF+4+i}, v{FXF+i}')
    for i in range(4): a(f'v_mul_f32 v{FXF+i}, v{FXF+i}, v{FM+1}')
    a(f'v_cvt_pk_bf16_f32 v{FXF+4}, v{FXF}, v{FXF+1}')
    a(f'v_cvt_pk_bf16_f32 v{FXF+5}, v{FXF+2}, v{FXF+3}')
    for i in range(2): a(f'v_min_u32 v{FXF+4+i}, -2, v{FXF+4+i}')
    a('s_mov_b32 exec_lo, 0x00ff00ff')
    a('s_mov_b32 exec_hi, 0x00ff00ff')
    a(f'buffer_store_dwordx2 {vr(FXF+4,2)}, v{R+8}, s[20:23], s81 offen sc0 sc1')
    a('s_mov_b64 exec, -1')
    a('s_branch Lfix_done')
    a.label('Latt_exact')
    a('s_mov_b32 s62, 1')
    a('s_waitcnt vmcnt(0)')
    masks()
    for n, t in enumerate([0, 1, 2, 3, 4, 5, 6, 7, 8]):
        kread(t, 0)
        a('s_waitcnt lgkmcnt(0)')
        m1(0, SB, vr(ME, 16) if t == 0 else vr(MD, 16) if t == 8 else '0'); m2(0, SB)
        mxall(SB, n == 0)
    kread(0, 1); vread(8, 0)
    a('s_branch Latt_havemax')
    a.label('La_fin')
    a('s_mov_b64 exec, -1')
    stamp(a, 15)
    a('s_barrier')
    prof_dump(a)
    a('s_cmp_lg_u32 s3, 0')
    a('s_cbranch_scc1 Lf_start')
    a(f's_mov_b32 s3, {hx(WS_X1)}')
    a('s_branch Lq_start')
```

```python
from common import *
def xn_pair(a, lo, M, t):
    a(f'v_pk_add_f32 {vr(t+2,2)}, {vr(lo,2)}, {vr(M,2)} op_sel_hi:[1,0] neg_lo:[0,1] neg_hi:[0,1]')
    a(f'v_cvt_pk_bf16_f32 v{t}, v{t+2}, v{t+3}')
    unpack(a, t + 2, t)
    a(f'v_pk_mul_f32 {vr(t+2,2)}, {vr(t+2,2)}, {vr(M,2)} op_sel:[0,1] op_sel_hi:[1,1]')
    a(f'v_cvt_pk_bf16_f32 v{t}, v{t+2}, v{t+3}')

L_LIST = 0
L_SEL = 12288 + 128
L_CNT = 12288
L_GM = L_CNT + 64
L_RED = 0
L_W = 13312
FS_LDS = L_W + 147456
L_FX = L_W + 81920

S1 = os.environ.get('S1', 'sc1').replace('_', ' '); S2 = os.environ.get('S2', 'sc1').replace('_', ' ')
def gen_ffn(a):
    a.fin = 'Lfs_fin'
    a.label('Lf_start')
    ksrd(a, 20, KA_OUT, S * D * 2)
    a('s_cmp_ge_u32 s2, 128')
    a('s_cbranch_scc1 Lfs_bye')
    a('s_mov_b32 s13, s2')
    a('s_mov_b32 s53, 0')
    a(f's_mov_b32 s51, {CTL_SZ}')
    ST = 64; KEY = 28; T = 32; RK = 16
    a.label('Lfs')
    ksrd(a, 32, KA_WR, D * 2)
    ksrd(a, 36, KA_WG, D * F * 2)
    ksrd(a, 40, KA_WU, D * F * 2)
    a('s_cmp_eq_u32 s53, 0')
    a(f's_mov_b32 s50, {hx(WS_X1)}')
    a(f's_cselect_b32 s50, {hx(WS_X1 + X_SZ)}, s50')
    a('s_cmp_eq_u32 s10, 8')
    a('s_cbranch_scc1 Lfs_w8')
    a('s_lshl_b32 s11, s10, 6')
    a('v_add_u32 v15, s11, v0')
    a('v_lshlrev_b32 v2, 4, v15')
    a('v_mul_u32_u24 v3, 20, v0')
    a('v_lshlrev_b32 v1, 4, v0')
    a(f's_add_u32 s44, s51, {hx(WS_ST)}')
    for j in range(1, 4): a(f's_add_u32 s{44+j}, s44, {8192*j}')
    for i in range(4): a(f'v_mov_b32 v{T+8+i}, 0')
    a('v_mov_b32 v9, 0')
    a(f'ds_write_b128 v2, {vr(T+8,4)} offset:{L_LIST}')
    a(f'ds_write_b32 v9, v9 offset:{L_CNT}')
    a('s_cmp_ge_u32 s13, 48')
    a('s_cselect_b32 s54, 1, 0')
    a('s_cmp_ge_u32 s13, 62')
    a('s_cselect_b32 s54, 2, s54')
    a('v_lshrrev_b32 v4, 4, v0')
    a('v_bfe_u32 v5, v0, 2, 2')
    a('v_lshl_add_u32 v4, v4, 3, v5')
    a('s_and_b32 s11, s10, 1')
    a('s_lshl_b32 s11, s11, 2')
    a('v_add_u32 v4, s11, v4')
    a('v_mul_u32_u24 v4, 3072, v4')
    a('v_and_b32 v5, 3, v0')
    a('v_lshl_add_u32 v4, v5, 4, v4')
    a('s_lshr_b32 s11, s10, 1')
    a(f's_mul_i32 s11, s11, {32*3072}')
    a('s_and_b32 s62, s13, 7')
    a('s_lshr_b32 s12, s13, 4')
    a('s_lshl3_add_u32 s62, s12, s62')
    a('s_bfe_u32 s12, s13, 0x10003')
    a('s_lshl1_add_u32 s62, s62, s12')
    a('s_lshl_b32 s12, s62, 6')
    a('s_add_u32 s55, s11, s12')
    a('s_lshl_b32 s56, s10, 10')
    a(f's_add_u32 s56, s56, {L_W}')
    a('s_sub_u32 s14, s13, 48')
    a('s_mul_i32 s14, s14, 3')
    a('s_min_u32 s14, s14, 37')
    a('s_mul_i32 s57, s14, 49152')
    a('s_mul_i32 s12, s10, 6144')
    a('s_add_u32 s57, s57, s12')
    a(f's_add_u32 s57, s57, {hx(WS_PD)}')
    a('s_mul_i32 s58, s10, 18432')
    a(f's_add_u32 s58, s58, {L_W}')
    a('s_waitcnt lgkmcnt(0)')
    stamp(a, 1)
    a(f'buffer_load_dwordx4 {vr(T,4)}, v3, s[32:35], 0 offen')
    a(f'buffer_load_dword v{T+4}, v3, s[32:35], 0 offen offset:16')
    def dn_dma(blocks):
        for n in blocks:
            a(f's_add_u32 m0, s58, {3072*n}')
            a(f's_add_u32 s12, s57, {49152*(n//2)+3072*(n%2)}')
            for i in range(3): a(f'buffer_load_dwordx4 v1, s[28:31], s12 offen offset:{1024*i} sc1 lds')
    def pace(tag, gu, dn, wait=False):
        if not gu and not dn and not wait: return
        a('s_cmp_eq_u32 s54, 1')
        a(f's_cbranch_scc1 Lfs_pd{tag}')
        a('s_cmp_eq_u32 s54, 2')
        a(f's_cbranch_scc1 Lfs_pn{tag}')
        for n in gu:
            a(f's_add_u32 m0, s56, {8192*n}')
            a('buffer_load_dwordx4 v4, s[36:39], s55 offen lds')
            a(f's_add_u32 m0, s56, {8192*n+40960}')
            a('buffer_load_dwordx4 v4, s[40:43], s55 offen lds')
            a(f's_add_u32 s55, s55, {128*3072}')
        if wait: a(f's_waitcnt vmcnt({2*len(gu)})')
        a(f's_branch Lfs_px{tag}')
        a.label(f'Lfs_pd{tag}')
        dn_dma(dn)
        if wait:
            a(f's_waitcnt vmcnt({3*len(dn)})')
            a(f's_branch Lfs_px{tag}')
        a.label(f'Lfs_pn{tag}')
        if wait: a('s_waitcnt vmcnt(0)')
        a.label(f'Lfs_px{tag}')
    PG = {'a': ([0, 1], [2, 3], [4]), 'b': ([0, 1, 2], [3, 4], []), 'c': ([0, 1, 2, 3, 4], [], []), 'd': ([0], [1, 2], [3, 4])}[os.environ.get('PACE', 'c')]
    ND = 6
    pace(0, PG[0], range(ND), True)
    inv = hx(f2u(1.0 / D))
    for i in range(5): unpack(a, T + 8 + 2 * i, T + i)
    a(f'v_pk_add_f32 {vr(T+8,2)}, {vr(T+8,2)}, {vr(T+10,2)}')
    a(f'v_pk_add_f32 {vr(T+12,2)}, {vr(T+12,2)}, {vr(T+14,2)}')
    a(f'v_pk_add_f32 {vr(T+8,2)}, {vr(T+8,2)}, {vr(T+16,2)}')
    a(f'v_pk_add_f32 {vr(T+8,2)}, {vr(T+8,2)}, {vr(T+12,2)}')
    a(f'v_add_f32 v{T}, v{T+8}, v{T+9}')
    for r in (8, 4, 2, 1): a(f'v_add_f32_dpp v{T}, v{T}, v{T} row_ror:{r} row_mask:0xf bank_mask:0xf')
    for op in ('v_permlane16_swap_b32', 'v_permlane32_swap_b32'):
        a(f'v_mov_b32 v{T+1}, v{T}')
        a(f'{op} v{T}, v{T+1}')
        a(f'v_add_f32 v{T}, v{T}, v{T+1}')
    a(f'v_mov_b32 v{T+2}, {hx(f2u(1e-5))}')
    for j in range(4): a(f'v_sub_u32 v{T+4+j}, {2047-512*j}, v15')
    a(f's_mov_b32 s15, {inv}')
    a('s_mov_b32 s16, 0xfffff800')
    a('s_mov_b32 s12, 0')
    for j in range(4): a(f'buffer_load_dwordx4 {vr(ST+4*j,4)}, v2, s[28:31], s{44+j} offen {S1}')
    a.label('Lfs_sp')
    a('s_mov_b32 s18, 0')
    a('s_waitcnt vmcnt(0)')
    for j in range(4):
        a(f'v_cmp_neq_f32 vcc, 0x41000000, v{ST+4*j+3}')
        a(f's_cbranch_vccz Lfs_sp{j}')
        a(f'buffer_load_dwordx4 {vr(ST+4*j,4)}, v2, s[28:31], s{44+j} offen {S2}')
        a('s_mov_b32 s18, 1')
        a.label(f'Lfs_sp{j}')
    a('s_cmp_eq_u32 s18, 0')
    a('s_cbranch_scc1 Lfs_sq')
    a('s_add_u32 s12, s12, 1')
    a('s_cmp_lg_u32 s54, 2')
    a('s_cbranch_scc1 Lfs_sr')
    a('s_sleep 16')
    a.label('Lfs_sr')
    a(f's_sleep {os.environ.get("SLPS", "1")}')
    a('s_cmp_lt_u32 s12, 0x40000')
    a('s_cbranch_scc1 Lfs_sp')
    a('s_waitcnt vmcnt(0)')
    a.label('Lfs_sq')
    stamp(a, 2)
    pace(1, PG[1], [])
    for j in range(4): a(f'v_mul_f32 v{ST+4*j}, {inv}, v{ST+4*j}')
    for j in range(4): a(f'v_fma_f32 v{ST+4*j+1}, v{ST+4*j+1}, s15, v{T+2}')
    for j in range(4): a(f'v_fma_f32 v{ST+4*j+1}, -v{ST+4*j}, v{ST+4*j}, v{ST+4*j+1}')
    for j in range(4): a(f'v_max_f32 v{ST+4*j+1}, v{T+2}, v{ST+4*j+1}')
    for j in range(4): a(f'v_rsq_f32 v{ST+4*j+1}, v{ST+4*j+1}')
    for j in range(4): a(f'v_fma_f32 v{KEY+j}, -v{ST+4*j}, v{T}, v{ST+4*j+2}')
    for j in range(4): a(f'v_mul_f32 v{KEY+j}, v{KEY+j}, v{ST+4*j+1}')
    for j in range(4): a(f'v_ashrrev_i32 v{ST+j}, 31, v{KEY+j}')
    for j in range(4): a(f'v_or_b32 v{ST+j}, 0x80000000, v{ST+j}')
    for j in range(4): a(f'v_xor_b32 v{KEY+j}, v{KEY+j}, v{ST+j}')
    for j in range(4): a(f'v_and_or_b32 v{KEY+j}, v{KEY+j}, s16, v{T+4+j}')
    a(f'v_max3_u32 v{T}, v{KEY}, v{KEY+1}, v{KEY+2}')
    a('s_lshl_b32 s11, s10, 2')
    a(f'v_max_u32 v{T}, v{T}, v{KEY+3}')
    a('v_mov_b32 v7, s11')
    for r in (8, 4, 2, 1):
        a(f'v_max_u32_dpp v{T}, v{T}, v{T} row_ror:{r} row_mask:0xf bank_mask:0xf')
    for op in ('v_permlane16_swap_b32', 'v_permlane32_swap_b32'):
        a(f'v_mov_b32 v{T+1}, v{T}')
        a(f'{op} v{T}, v{T+1}')
        a(f'v_max_u32 v{T}, v{T}, v{T+1}')
    a(f'ds_write_b32 v7, v{T} offset:{L_GM}')
    pace(2, PG[2], [])
    a('s_waitcnt lgkmcnt(0)')
    a('s_barrier')
    stamp(a, 3)
    a(f'ds_read_b128 {vr(T,4)}, v9 offset:{L_GM}')
    a(f'ds_read_b128 {vr(T+4,4)}, v9 offset:{L_GM+16}')
    a('s_waitcnt lgkmcnt(0)')
    a(f'v_min3_u32 v{T}, v{T}, v{T+1}, v{T+2}')
    a(f'v_min3_u32 v{T+3}, v{T+3}, v{T+4}, v{T+5}')
    a(f'v_min3_u32 v{T}, v{T}, v{T+6}, v{T+7}')
    a(f'v_min_u32 v{T}, v{T}, v{T+3}')
    for j in range(4): a(f'v_cmp_ge_u32 s[{64+2*j}:{65+2*j}], v{KEY+j}, v{T}')
    for j in range(4): a(f's_bcnt1_i32_b64 s{80+j}, s[{64+2*j}:{65+2*j}]')
    a('s_mov_b32 s88, 0')
    for j in range(4): a(f's_add_u32 s{89+j}, s{88+j}, s{80+j}')
    a(f'v_mov_b32 v{T+1}, s92')
    a('s_mov_b64 exec, 1')
    a(f'ds_add_rtn_u32 v{T+2}, v9, v{T+1} offset:{L_CNT}')
    a('s_mov_b64 exec, -1')
    for j in range(4):
        a(f'v_mbcnt_lo_u32_b32 v{ST+j}, s{64+2*j}, 0')
        a(f'v_mbcnt_hi_u32_b32 v{ST+j}, s{65+2*j}, v{ST+j}')
        a(f'v_add_lshl_u32 v{ST+j}, v{ST+j}, s{88+j}, 2')
    a('s_waitcnt lgkmcnt(0)')
    a(f'v_readfirstlane_b32 s95, v{T+2}')
    a('s_lshl_b32 s95, s95, 2')
    for j in range(4):
        a(f's_mov_b64 exec, s[{64+2*j}:{65+2*j}]')
        a(f'v_add_u32 v{ST+j}, s95, v{ST+j}')
        a(f'ds_write_b32 v{ST+j}, v{KEY+j} offset:{L_LIST}')
    a('s_mov_b64 exec, -1')
    a('v_and_b32 v7, 31, v0')
    a('v_lshlrev_b32 v7, 2, v7')
    a('v_and_b32 v6, 32, v0')
    a('v_lshlrev_b32 v6, 1, v6')
    a('s_lshl_b32 s17, s10, 5')
    a(f's_add_u32 s17, s17, {L_SEL}')
    a('s_mov_b32 s12, 0')
    a('s_waitcnt vmcnt(0) lgkmcnt(0)')
    a('s_barrier')
    stamp(a, 4)
    C = 32
    a(f'ds_read_b32 v14, v9 offset:{L_CNT}')
    a.label('Lfs_rank_outer')
    a(f'ds_read_b32 v{RK}, v7 offset:{L_LIST}')
    a(f'v_mov_b32 v{RK+2}, v6')
    a(f'v_mov_b32 v{RK+1}, 0')
    a(f'v_mov_b32 v{RK+3}, 0')
    a('s_mov_b32 s95, 0')
    a.label('Lfs_rank_inner')
    for i in range(4): a(f'ds_read_b128 {vr(C+4*i,4)}, v{RK+2} offset:{L_LIST+16*i}')
    a(f'v_add_u32 v{RK+2}, 128, v{RK+2}')
    for q in range(2):
        a(f's_waitcnt lgkmcnt({2-2*q})')
        for i in range(8): a(f'v_cmp_gt_u32 s[{64+2*i}:{65+2*i}], v{C+8*q+i}, v{RK}')
        for i in range(8): a(f'v_addc_co_u32 v{RK+1+2*(i%2)}, vcc, 0, v{RK+1+2*(i%2)}, s[{64+2*i}:{65+2*i}]')
    a('v_readfirstlane_b32 s94, v14')
    a('s_add_u32 s95, s95, 32')
    a('s_cmp_lt_u32 s95, s94')
    a('s_cbranch_scc1 Lfs_rank_inner')
    a(f'v_add_u32 v{RK+1}, v{RK+1}, v{RK+3}')
    a(f'v_mov_b32 v{RK+3}, v{RK+1}')
    a(f'v_permlane32_swap_b32 v{RK+1}, v{RK+3}')
    a(f'v_add_u32 v{RK+1}, v{RK+1}, v{RK+3}')
    a(f'v_cmp_gt_u32 vcc, 8, v{RK+1}')
    a(f'v_lshl_add_u32 v{RK+1}, v{RK+1}, 2, s17')
    a('s_and_saveexec_b64 s[18:19], vcc')
    a(f'ds_write_b32 v{RK+1}, v{RK}')
    a('s_mov_b64 exec, s[18:19]')
    a('v_add_u32 v7, 128, v7')
    a('s_add_u32 s12, s12, 32')
    a('s_cmp_lt_u32 s12, s94')
    a('s_cbranch_scc1 Lfs_rank_outer')
    a('v_and_b32 v10, 7, v0')
    a('v_lshl_add_u32 v7, v10, 2, s17')
    a('ds_read_b32 v11, v7')
    a('v_lshrrev_b32 v13, 4, v0')
    a('s_and_b32 s59, s10, 3')
    a('s_lshr_b32 s60, s10, 2')
    a('s_waitcnt lgkmcnt(0)')
    stamp(a, 5)
    a('v_and_b32 v12, 2047, v11')
    a('v_sub_u32 v12, 2047, v12')
    a('v_lshlrev_b32 v8, 4, v12')
    a('s_cmp_eq_u32 s54, 1')
    a('s_cbranch_scc1 Lfs_down')
    a('s_cmp_eq_u32 s54, 2')
    a('s_cbranch_scc1 Lfs_none')

    XF = 16; WFg = 40; WFu = 60; G = 80; U = 84; M = 4
    a('v_mul_u32_u24 v7, 1280, v12')
    a('v_lshl_add_u32 v7, v13, 4, v7')
    a('s_mul_i32 s11, s59, 320')
    a('s_add_u32 s11, s11, s50')
    a(f'buffer_load_dwordx2 v[2:3], v8, s[28:31], s44 offen {S1}')
    a('s_mov_b32 exec_lo, 0x00ff00ff')
    a('s_mov_b32 exec_hi, 0x00ff00ff')
    a(f'buffer_load_dwordx4 {vr(XF,4)}, v7, s[28:31], s11 offen sc1')
    a('s_cmp_eq_u32 s59, 3')
    a('s_cbranch_scc1 Lfs_gt')
    for s in range(1, 5): a(f'buffer_load_dwordx4 {vr(XF+4*s,4)}, v7, s[28:31], s11 offen offset:{64*s} sc1')
    a('s_branch Lfs_ge')
    a.label('Lfs_gt')
    a('v_lshrrev_b32 v7, 1, v13')
    a('v_lshlrev_b32 v7, 16, v7')
    a('v_lshl_add_u32 v7, v12, 5, v7')
    a('v_and_b32 v6, 1, v13')
    a('v_lshl_add_u32 v7, v6, 4, v7')
    for s in range(1, 5):
        a(f's_add_u32 s11, s50, {XT + (s-1)*131072}')
        a(f'buffer_load_dwordx4 {vr(XF+4*s,4)}, v7, s[28:31], s11 offen sc1')
    a.label('Lfs_ge')
    a('s_not_b64 exec, exec')
    for i in range(20): a(f'v_mov_b32 v{XF+i}, {hx(ONES2)}')
    a('s_mov_b64 exec, -1')
    a('v_lshrrev_b32 v6, 2, v0')
    a('v_lshlrev_b32 v6, 6, v6')
    a('v_and_b32 v7, 3, v0')
    a('v_lshl_add_u32 v6, v7, 3, v6')
    a('s_mul_i32 s11, s59, 10240')
    a('s_lshl_b32 s12, s60, 5')
    a('s_add_u32 s11, s11, s12')
    a(f's_add_u32 s11, s11, {L_W}')
    a('v_add_u32 v6, s11, v6')
    for s in range(5):
        for j in range(2):
            a(f'ds_read_b64_tr_b16 {vr(WFg+4*s+2*j,2)}, v6 offset:{2048*s+1024*j}')
            a(f'ds_read_b64_tr_b16 {vr(WFu+4*s+2*j,2)}, v6 offset:{40960+2048*s+1024*j}')
    a('v_lshlrev_b32 v7, 6, v10')
    a('v_lshrrev_b32 v9, 3, v0')
    a('v_lshl_add_u32 v8, v9, 3, v7')
    a('s_lshl_b32 s12, s60, 12')
    a(f's_add_u32 s12, s12, {L_FX}')
    a('v_add_u32 v8, s12, v8')
    a('v_lshl_add_u32 v7, v13, 4, v7')
    a('s_lshl_b32 s12, s10, 10')
    a(f's_add_u32 s12, s12, {L_FX}')
    a('v_add_u32 v7, s12, v7')
    a('s_waitcnt vmcnt(5)')
    ln_scalars(a, 2, 3, M, M + 1, 14)
    a('s_waitcnt vmcnt(0) lgkmcnt(0)')
    stamp(a, 6)
    for s in range(5):
        a(f'v_mfma_f32_16x16x32_bf16 {vr(G,4)}, {vr(WFg+4*s,4)}, {vr(XF+4*s,4)}, {"0" if s == 0 else vr(G,4)}')
        a(f'v_mfma_f32_16x16x32_bf16 {vr(U,4)}, {vr(WFu+4*s,4)}, {vr(XF+4*s,4)}, {"0" if s == 0 else vr(U,4)}')
    for i in range(8): a(f'v_mov_b32_dpp v{WFg+i}, v{G+i} row_newbcast:8 row_mask:0xf bank_mask:0xf')
    for i in range(8): a(f'v_fma_f32 v{G+i}, -v{M}, v{WFg+i}, v{G+i}')
    a('s_mov_b32 exec_lo, 0x00ff00ff')
    a('s_mov_b32 exec_hi, 0x00ff00ff')
    a(f'ds_write_b128 v7, {vr(G,4)} offset:{L_RED}')
    a(f'ds_write_b128 v7, {vr(U,4)} offset:{L_RED+512}')
    a('s_mov_b64 exec, -1')
    a('s_waitcnt lgkmcnt(0)')
    a('s_barrier')
    stamp(a, 7)
    a('s_cmp_lg_u32 s59, 0')
    a('s_cbranch_scc1 Lfs_gu2')
    for w in range(4):
        for m in range(2): a(f'ds_read_b64 {vr(XF+8*m+2*w,2)}, v8 offset:{L_RED+1024*w+512*m}')
    a('v_lshrrev_b32 v7, 2, v9')
    a('v_lshlrev_b32 v7, 7, v7')
    a('v_lshl_add_u32 v7, v10, 4, v7')
    a('v_and_b32 v9, 3, v9')
    a('v_lshl_add_u32 v7, v9, 2, v7')
    a('s_lshl1_add_u32 s11, s62, s60')
    a('s_lshl_b32 s11, s11, 8')
    a(f's_add_u32 s11, s11, {hx(WS_H)}')
    a('s_add_u32 s11, s11, s51')
    a('s_waitcnt lgkmcnt(0)')
    for m in range(2):
        a(f'v_pk_add_f32 {vr(XF+8*m,2)}, {vr(XF+8*m,2)}, {vr(XF+8*m+2,2)}')
        a(f'v_pk_add_f32 {vr(XF+8*m+4,2)}, {vr(XF+8*m+4,2)}, {vr(XF+8*m+6,2)}')
    for m, d in ((0, G), (1, U)): a(f'v_pk_add_f32 {vr(d,2)}, {vr(XF+8*m,2)}, {vr(XF+8*m+4,2)}')
    for d in (G, U): a(f'v_pk_mul_f32 {vr(d,2)}, {vr(d,2)}, {vr(M,2)} op_sel:[0,1] op_sel_hi:[1,1]')
    for d in (G, U): a(f'v_cvt_pk_bf16_f32 v{d+2}, v{d}, v{d+1}')
    for d in (G, U): unpack(a, d, d + 2)
    for i in range(2): a(f'v_mul_f32 v{G+2+i}, {NL2E}, v{G+i}')
    for i in range(2): a(f'v_exp_f32 v{G+2+i}, v{G+2+i}')
    for i in range(2): a(f'v_add_f32 v{G+2+i}, 1.0, v{G+2+i}')
    for i in range(2): a(f'v_rcp_f32 v{G+2+i}, v{G+2+i}')
    for i in range(2): a(f'v_mul_f32 v{G+i}, v{G+i}, v{G+2+i}')
    a(f'v_cvt_pk_bf16_f32 v{G+2}, v{G}, v{G+1}')
    unpack(a, G, G + 2)
    for i in range(2): a(f'v_mul_f32 v{G+i}, v{G+i}, v{U+i}')
    a(f'v_cvt_pk_bf16_f32 v{G+2}, v{G}, v{G+1}')
    a(f'v_min_u32 v{G+2}, -2, v{G+2}')
    a(f'buffer_store_dword v{G+2}, v7, s[28:31], s11 offen sc0 sc1')
    a.label('Lfs_gu2')
    stamp(a, 8)
    a('s_branch Lfs_fin')

    a.label('Lfs_down')
    WD = 16; HF = 88; Y = 112; X = 128; TT = 132; SG = 136; XN = 138
    a('s_min_u32 s61, s10, 2')
    a('s_add_u32 s61, s61, s14')
    a('s_lshl_b32 s11, s61, 5')
    a('s_mov_b32 s16, s11')
    a('s_add_u32 s11, s11, s50')
    a('v_mul_u32_u24 v14, 1280, v12')
    a('v_lshl_add_u32 v14, v13, 3, v14')
    a(f'buffer_load_dwordx2 v[2:3], v8, s[28:31], s44 offen {S1}')
    a('v_lshlrev_b32 v7, 5, v12')
    a('v_lshl_add_u32 v7, v13, 3, v7')
    a('s_lshl_b32 s12, s61, 16')
    a('s_add_u32 s12, s12, s50')
    a(f's_add_u32 s12, s12, {hx(XT - 32 * 65536)}')
    a('s_cmp_ge_u32 s61, 32')
    a('s_cselect_b32 s11, s12, s11')
    a('s_cselect_b64 vcc, -1, 0')
    a('v_cndmask_b32 v7, v14, v7, vcc')
    a(f'buffer_load_dwordx2 {vr(X,2)}, v7, s[28:31], s11 offen sc1')
    a('v_lshl_add_u32 v6, v0, 3, s58')
    a('s_barrier')
    dn_dma(range(ND, 6))
    a('v_and_b32 v8, 0xfffff800, v11')
    a('v_ashrrev_i32 v9, 31, v8')
    a('v_not_b32 v9, v9')
    a('v_or_b32 v9, 0x80000000, v9')
    a('v_xor_b32 v8, v8, v9')
    rbf16(a, 8, 8)
    a(f'v_mul_f32 v8, {NL2E}, v8')
    a('v_exp_f32 v8, v8')
    a('v_add_f32 v8, 1.0, v8')
    a('v_rcp_f32 v8, v8')
    rbf16(a, SG, 8)
    a(f's_waitcnt vmcnt({3*(6-ND)})')
    ln_scalars(a, 2, 3, M, M + 1, 7)
    for i in range(2):
        unpack(a, Y + 12 + 2 * i, X + i)
        xn_pair(a, Y + 12 + 2 * i, M, TT)
        a(f'v_mov_b32 v{XN+i}, v{TT}')
    a('s_waitcnt vmcnt(0)')
    for t in range(3):
        for s in range(6):
            for j in range(2): a(f'ds_read_b64_tr_b16 {vr(WD+24*t+4*s+2*j,2)}, v6 offset:{6144*t+1024*s+512*j}')
    stamp(a, 9)
    a('s_branch Lfs_down2')

    a.label('Lfs_none')
    a('s_cmp_eq_u32 s53, 0')
    a('s_cbranch_scc1 Lfs_none2')
    a('s_lshl3_add_u32 s11, s13, s10')
    a(f's_cmp_lg_u32 s11, {63*8}')
    a('s_cbranch_scc1 Lfs_fin')
    a('v_lshlrev_b32 v7, 2, v10')
    a(f's_mov_b32 s11, {hx(WS_SEL)}')
    a('s_mov_b64 exec, 0xff')
    a('buffer_store_dword v12, v7, s[28:31], s11 offen sc0 sc1')
    a('s_branch Lfs_fin')
    a.label('Lfs_none2')
    a('s_cmp_lt_u32 s13, 64')
    a('s_cbranch_scc1 Lfs_fin')

    a.label('Lfs_elem')
    E = 40; XD = 60
    a('s_and_b32 s11, s13, 63')
    a('s_mul_i32 s12, s11, 40960')
    a('s_mov_b32 s18, s12')
    a('s_add_u32 s12, s12, s50')
    a(f'v_lshrrev_b32 v{E}, 4, v15')
    a(f'v_mul_u32_u24 v{E+1}, 1280, v{E}')
    a(f'v_and_b32 v{E+2}, 15, v15')
    a(f'v_lshl_add_u32 v{E+1}, v{E+2}, 4, v{E+1}')
    for i in range(4): a(f'buffer_load_dwordx4 {vr(XD+4*i,4)}, v{E+1}, s[28:31], s12 offen offset:{256*i} sc1')
    a(f'v_lshrrev_b32 v{E+3}, 1, v{E+2}')
    a(f'v_lshlrev_b32 v{E+3}, 16, v{E+3}')
    a(f'v_lshl_add_u32 v{E+3}, v{E}, 5, v{E+3}')
    a(f'v_and_b32 v{E+2}, 1, v{E+2}')
    a(f'v_lshl_add_u32 v{E+3}, v{E+2}, 4, v{E+3}')
    a('s_lshl_b32 s12, s11, 10')
    a('s_add_u32 s12, s12, s50')
    a(f's_add_u32 s12, s12, {XT}')
    a(f'buffer_load_dwordx4 {vr(XD+16,4)}, v{E+3}, s[28:31], s12 offen sc1')
    a('s_lshl_b32 s19, s11, 5')
    a(f'v_add_u32 v{E}, s19, v{E}')
    a(f'v_lshlrev_b32 v{E+2}, 4, v{E}')
    a(f'buffer_load_dwordx2 {vr(E+4,2)}, v{E+2}, s[28:31], s44 offen {S1}')
    a(f'v_mov_b32 v{E+3}, s17')
    a(f'ds_read_b128 {vr(E+8,4)}, v{E+3}')
    a(f'ds_read_b128 {vr(E+12,4)}, v{E+3} offset:16')
    a(f'v_sub_u32 v{E}, 2047, v{E}')
    a('s_waitcnt vmcnt(0) lgkmcnt(0)')
    ln_scalars(a, E + 4, E + 5, E + 6, E + 7, E + 3)
    for i in range(8):
        a(f'v_and_b32 v{E+8+i}, 2047, v{E+8+i}')
        a(f'v_cmp_ne_u32 vcc, v{E+8+i}, v{E}')
        a('s_and_b64 exec, exec, vcc')
    a('s_cbranch_execz Lfs_eskip')
    MM = vr(E + 6, 2)
    for i in range(0, 20, 2):
        tt = [E + 8, E + 14]
        for k in range(2): unpack(a, tt[k] + 4, XD + i + k)
        for k in range(2): a(f'v_pk_add_f32 {vr(tt[k]+2,2)}, {vr(tt[k]+4,2)}, {MM} op_sel_hi:[1,0] neg_lo:[0,1] neg_hi:[0,1]')
        for k in range(2): a(f'v_cvt_pk_bf16_f32 v{tt[k]}, v{tt[k]+2}, v{tt[k]+3}')
        for k in range(2): unpack(a, tt[k] + 2, tt[k])
        for k in range(2): a(f'v_pk_mul_f32 {vr(tt[k]+2,2)}, {vr(tt[k]+2,2)}, {MM} op_sel:[0,1] op_sel_hi:[1,1]')
        for k in range(2): a(f'v_cvt_pk_bf16_f32 v{tt[k]}, v{tt[k]+2}, v{tt[k]+3}')
        for k in range(2): unpack(a, tt[k] + 2, tt[k])
        for k in range(2): a(f'v_pk_add_f32 {vr(tt[k]+2,2)}, {vr(tt[k]+2,2)}, {vr(tt[k]+4,2)}')
        for k in range(2): a(f'v_cvt_pk_bf16_f32 v{XD+i+k}, v{tt[k]+2}, v{tt[k]+3}')
        if i % 4 == 2: a(f'buffer_store_dwordx4 {vr(XD+i-2,4)}, v{E+1}, s[20:23], s18 offen offset:{256*(i//4)}')
    a.label('Lfs_eskip')
    endpgm(a)

    a.label('Lfs_down2')
    a('v_lshlrev_b32 v7, 7, v13')
    a('v_lshl_add_u32 v7, v10, 4, v7')
    a('s_mul_i32 s11, s10, 3072')
    a(f's_add_u32 s11, s11, {hx(WS_H)}')
    a('s_add_u32 s11, s11, s51')
    def poll(tag, reg, n, masked):
        a('s_mov_b32 s15, 0')
        a.label(f'Lfs_poll{tag}')
        a('s_add_u32 s15, s15, 1')
        a('s_and_b32 s18, s15, 7')
        a(f's_cbranch_scc1 Lfs_pl{tag}')
        for s in range(n): a(f'buffer_load_dwordx4 {vr(reg+4*s,4)}, v7, s[28:31], s11 offen offset:{512*s} sc0 sc1')
        a(f's_branch Lfs_pm{tag}')
        a.label(f'Lfs_pl{tag}')
        for s in range(n): a(f'buffer_load_dwordx4 {vr(reg+4*s,4)}, v7, s[28:31], s11 offen offset:{512*s} {os.environ.get("PSC", "sc1")}')
        a.label(f'Lfs_pm{tag}')
        for s in range(n):
            a(f's_waitcnt vmcnt({n-1-s})')
            r = reg + 4 * s
            if s == 0: a(f'v_max_u32 v8, v{r}, v{r+1}')
            else: a(f'v_max3_u32 v8, v{r}, v{r+1}, v8')
            a(f'v_max3_u32 v8, v{r+2}, v{r+3}, v8')
        a('v_cmp_eq_u32 vcc, -1, v8')
        a('s_cmp_gt_u32 s15, 0x40000')
        a(f's_cbranch_scc1 Lfs_go{tag}')
        a(f's_cbranch_vccz Lfs_go{tag}')
        a(f's_sleep {os.environ.get("SLP", "2")}')
        a(f's_branch Lfs_poll{tag}')
        a.label(f'Lfs_go{tag}')
    poll('h', HF, 6, False)
    a('s_waitcnt lgkmcnt(0)')
    stamp(a, 6)
    for s in range(6):
        for t in range(3):
            a(f'v_mfma_f32_16x16x32_bf16 {vr(Y+4*t,4)}, {vr(WD+24*t+4*s,4)}, {vr(HF+4*s,4)}, {"0" if s == 0 else vr(Y+4*t,4)}')
    a('s_mul_i32 s12, s10, 1536')
    a('v_add_u32 v8, s12, v7')
    for t in range(3): a(f'ds_write_b128 v8, {vr(Y+4*t,4)} offset:{L_RED+512*t}')
    a('s_lshl_b32 s12, s10, 9')
    a('v_add_u32 v8, s12, v7')
    a('s_waitcnt lgkmcnt(0)')
    a('s_barrier')
    stamp(a, 7)
    a('s_cmp_gt_u32 s10, 2')
    a('s_cbranch_scc1 Lfs_fin')
    for w in range(8): a(f'ds_read_b128 {vr(WD+4*w,4)}, v8 offset:{L_RED+1536*w}')
    a('v_lshrrev_b32 v7, 1, v13')
    a('v_lshlrev_b32 v7, 7, v7')
    a('v_lshl_add_u32 v7, v10, 4, v7')
    a('v_and_b32 v9, 1, v13')
    a('v_lshl_add_u32 v7, v9, 3, v7')
    a('s_lshl_b32 s11, s61, 8')
    a(f's_add_u32 s11, s11, {hx(WS_XS)}')
    a('s_add_u32 s11, s11, s51')
    a('s_waitcnt lgkmcnt(0)')
    for st_ in (4, 2, 1):
        for w in range(st_):
            for i in range(2): a(f'v_pk_add_f32 {vr(WD+4*w+2*i,2)}, {vr(WD+4*w+2*i,2)}, {vr(WD+4*(w+st_)+2*i,2)}')
    for i in range(2):
        y = WD + 2 * i
        a(f'v_cvt_pk_bf16_f32 v{TT}, v{y}, v{y+1}')
        unpack(a, y, TT)
        a(f'v_pk_mul_f32 {vr(y,2)}, {vr(y,2)}, {vr(SG,2)} op_sel_hi:[1,0]')
        a(f'v_cvt_pk_bf16_f32 v{TT}, v{y}, v{y+1}')
        unpack(a, y, TT)
        unpack(a, TT + 2, XN + i)
        a(f'v_pk_add_f32 {vr(y,2)}, {vr(y,2)}, {vr(TT+2,2)}')
        a(f'v_cvt_pk_bf16_f32 v{TT}, v{y}, v{y+1}')
        unpack(a, y, TT)
        a(f'v_pk_add_f32 {vr(y,2)}, {vr(y,2)}, {vr(Y+12+2*i,2)}')
        a(f'v_cvt_pk_bf16_f32 v{X+i}, v{y}, v{y+1}')
        a(f'v_min_u32 v{X+2+i}, -2, v{X+i}')
    a('s_mov_b32 exec_lo, 0x00ff00ff')
    a('s_mov_b32 exec_hi, 0x00ff00ff')
    a('s_cmp_eq_u32 s53, 0')
    a('s_cbranch_scc1 Lfs_out')
    a(f'buffer_store_dwordx2 {vr(X+2,2)}, v7, s[28:31], s11 offen sc0 sc1')
    endpgm(a)
    a.label('Lfs_out')
    a(f'buffer_store_dwordx2 {vr(X,2)}, v14, s[20:23], s16 offen')
    endpgm(a)

    a.label('Lfs_fin')
    a('s_cmp_lg_u32 s53, 0')
    a('s_cbranch_scc1 Lq_fin')
    a.label('Lfs_bye')
    if PROF:
        a('s_mov_b64 exec, -1')
        stamp(a, 14)
        a('s_waitcnt vmcnt(0)')
        stamp(a, 15)
        prof_dump(a)
    a.label('Lend')
    a('s_endpgm')
    a.label('Lfs_w8')
    a('s_cmp_lg_u32 s53, 0')
    a('s_cbranch_scc1 Lfs_w8a')
    a('s_cmp_lg_u32 s2, 0')
    a('s_cbranch_scc1 Lfs_bye')
    a('v_mov_b32 v2, s98')
    a(f'v_mov_b32 v3, {hx(WS_EP)}')
    a('s_mov_b64 exec, 1')
    a('buffer_store_dword v2, v3, s[28:31], 0 offen sc0 sc1')
    a('s_branch Lfs_bye')
    a.label('Lfs_w8a')
    a('s_cmp_lt_u32 s13, 62')
    a('s_cselect_b32 s11, 4, 2')
    a('s_cmp_lt_u32 s13, 48')
    a('s_cselect_b32 s11, 3, s11')
    a.label('Lfs_w8b')
    a('s_barrier')
    a('s_sub_u32 s11, s11, 1')
    a('s_cmp_lg_u32 s11, 0')
    a('s_cbranch_scc1 Lfs_w8b')
    a('s_branch Lq_fin')
    reg_kernel(KNAME, 256, 576, FS_LDS, 168, 102)
```

```python
from common import *
from k_ffn import FS_LDS, S2
X = os.environ.get('XQ', '')
NT = ' nt' if 'N' in X else ''
SLOT = 36864; NSLOT = 3
MR = NSLOT * SLOT; CS = MR + 1024
SK = CS + 1024
QKV_LDS = SK + 512

from common import _pd as common_pd

def epoch(a):
    a('s_cmp_lg_u32 s97, 0')
    common_pd[0] += 1; L = f'Lep{common_pd[0]}'
    a(f's_cbranch_scc1 {L}')
    a('s_load_dword s98, s[28:29], s44')
    a('s_waitcnt lgkmcnt(0)')
    a(f's_add_u32 s98, s98, {hx(EPK)}')
    a.label(L)

def gen_qkv(a):
    a.pv = 167
    a.fin = 'Lq_fin'
    kernel_start(a, KNAME)
    ksrd(a, 28, KA_WS, WS_SIZE)
    ksrd(a, 20, KA_X, S * D * 2)
    a('s_cmp_ge_u32 s2, 256')
    a('s_cbranch_scc1 Lend')
    wave_lane(a)
    a('s_mov_b32 s96, 0')
    a('s_mov_b32 s97, 0')
    a('s_mov_b32 s3, 0')
    a.label('Lq_start')
    ksrd(a, 24, KA_WQKV, D * 3 * D * 2)
    a('s_and_b32 s11, s2, 7')
    a('s_lshr_b32 s12, s2, 3')
    a('s_sub_u32 s12, s12, 8')
    a('s_lshr_b32 s13, s11, 1')
    a('s_and_b32 s15, s12, 3')
    a('s_lshl2_add_u32 s13, s13, s15')
    a('s_and_b32 s14, s11, 1')
    a('s_mul_i32 s14, s14, 6')
    a('s_lshr_b32 s16, s12, 2')
    a('s_add_u32 s14, s14, s16')
    a(f's_mov_b32 s40, {SLOT}')
    a(f's_mov_b32 s44, {hx(WS_EP)}')
    a('s_cmp_lt_u32 s2, 64')
    a('s_cbranch_scc1 Lqkv_side')
    a('s_cmp_lt_u32 s10, 4')
    a('s_cbranch_scc1 Lqkv_comp')
    a('s_cmp_eq_u32 s10, 8')
    a('s_cbranch_scc1 Lqkv_w8')

    VA = 2; VW = 6
    a('s_mul_i32 s15, s15, 3')
    a('s_add_u32 s15, s15, s16')
    a('s_add_u32 s15, s15, s11')
    mod_small(a, 15, 10, 2)
    a('s_sub_u32 s16, s10, 4')
    a('v_lshrrev_b32 v12, 3, v0')
    a('v_lshrrev_b32 v13, 4, v0')
    a('v_and_b32 v14, 7, v0')
    a('v_xor_b32 v14, v14, v13')
    a('s_lshl_b32 s17, s16, 5')
    a('v_add_u32 v12, s17, v12')
    VT = 48
    a('v_lshrrev_b32 v15, 1, v14')
    a('v_lshlrev_b32 v15, 16, v15')
    a('v_lshl_add_u32 v15, v12, 5, v15')
    a(f'v_and_b32 v{VT}, 1, v14')
    a(f'v_lshl_add_u32 v15, v{VT}, 4, v15')
    a(f'v_add_u32 v{VT}, 4096, v15')
    a(f'v_xor_b32 v{VT+1}, 0x20000, v{VT}')
    a(f'v_subrev_u32 v{VT+1}, {1024-256}, v{VT+1}')
    a(f'v_subrev_u32 v{VT+2}, {2*(1024-256)}, v{VT}')
    a(f'v_subrev_u32 v{VT+3}, {2*(1024-256)}, v{VT+1}')
    a('v_mul_u32_u24 v12, 1280, v12')
    a(f'v_lshl_add_u32 v{VA}, v14, 4, v12')
    a('v_xor_b32 v14, 4, v14')
    a(f'v_lshl_add_u32 v{VA+1}, v14, 4, v12')
    a(f'v_add_u32 v{VA+1}, {10240-1024}, v{VA+1}')
    a(f'v_add_u32 v{VA+2}, {2*(10240-1024)}, v{VA}')
    a(f'v_add_u32 v{VA+3}, {2*(10240-1024)}, v{VA+1}')
    a(f's_mul_i32 s17, s16, {16*3840}')
    a('s_mul_i32 s18, s14, 320')
    a('s_add_u32 s41, s17, s18')
    a(f's_mov_b32 s42, {64*3840}')
    for i in range(5):
        a(f'v_add_u32 v12, {64*i}, v0')
        a('v_mul_u32_u24 v13, 3277, v12')
        a('v_lshrrev_b32 v13, 16, v13')
        a('v_mul_u32_u24 v14, 20, v13')
        a('v_sub_u32 v12, v12, v14')
        a('v_lshrrev_b32 v14, 2, v13')
        a('v_and_b32 v14, 2, v14')
        a('v_xor_b32 v12, v12, v14')
        a('v_mul_u32_u24 v13, 3840, v13')
        a(f'v_lshl_add_u32 v{VW+i}, v12, 4, v13')
        if 0 < i < 4: a(f'v_subrev_u32 v{VW+i}, {1024*i}, v{VW+i}')
    a('s_mul_i32 s18, s13, 163840')
    a('s_add_u32 s18, s18, s3')
    a('s_lshl_b32 s51, s13, 12')
    a(f's_add_u32 s51, s51, {hx(WS_X1 + XT - 4096 - 8 * 262144)}')
    a('s_cmp_eq_u32 s3, 0')
    a('s_cselect_b32 s52, 10, 8')
    a('s_mul_i32 s37, s15, s42')
    a('s_add_u32 s37, s37, s41')
    a('s_lshl_b32 s17, s16, 12')
    a('s_mov_b32 s38, s17')
    a('s_lshl_b32 s39, s16, 10')
    a('s_add_u32 s39, s39, 0x4000')
    a('s_waitcnt lgkmcnt(0)')
    stamp(a, 1)
    def adv():
        a('s_add_u32 s37, s37, s42')
        a('s_add_u32 s15, s15, 1')
        a('s_cmp_eq_u32 s15, 10')
        a('s_cselect_b32 s15, 0, s15')
        a('s_cselect_b32 s37, s41, s37')
    def dma_a(kc, base):
        common_pd[0] += 1; L = f'Lda{common_pd[0]}'
        a(f's_mov_b32 m0, {base}')
        a(f's_cmp_ge_u32 {kc}, s52')
        a(f's_cbranch_scc1 {L}t')
        a(f's_lshl_b32 s36, {kc}, 7')
        a('s_add_u32 s36, s36, s18')
        for i in range(4): a(f'buffer_load_dwordx4 v{VA+i}, s[20:23], s36 offen offset:{1024*i} sc1 lds')
        a(f's_branch {L}e')
        a.label(L + 't')
        a(f's_lshl_b32 s36, {kc}, 18')
        a('s_add_u32 s36, s36, s51')
        for i in range(4): a(f'buffer_load_dwordx4 v{VT+i}, s[20:23], s36 offen offset:{1024*i} sc1 lds')
        a.label(L + 'e')
    def dma_w(so, base):
        a(f's_add_u32 m0, {base}, s39')
        for i in range(4): a(f'buffer_load_dwordx4 v{VW+i}, s[24:27], {so} offen offset:{1024*i} lds')
        a('s_add_u32 m0, m0, 4096')
        a(f'buffer_load_dwordx4 v{VW+4}, s[24:27], {so} offen lds')
    a('s_mov_b32 s49, s15')
    a(f's_add_u32 s50, s38, {SLOT}')
    dma_w('s37', 's38')
    a('s_cmp_eq_u32 s3, 0')
    a('s_cbranch_scc1 Lqkv_p1')
    adv()
    dma_w('s37', 's50')
    a('s_barrier')
    dma_a('s49', 's38')
    dma_a('s15', 's50')
    a('s_waitcnt vmcnt(4)')
    a('s_branch Lqkv_p2')
    a.label('Lqkv_p1')
    dma_a('s15', 's38')
    adv()
    dma_a('s15', 's50')
    dma_w('s37', 's50')
    epoch(a)
    a.label('Lqkv_p2')
    adv()
    a(f's_add_u32 s38, s38, {2*SLOT}')
    a('s_mov_b32 s33, 0')
    a.label('Lqkv_lloop')
    a('s_waitcnt vmcnt(9)')
    a('s_barrier')
    dma_a('s15', 's38')
    dma_w('s37', 's38')
    adv()
    a(f's_add_u32 s38, s38, {SLOT}')
    a(f's_cmp_ge_u32 s38, {NSLOT*SLOT}')
    a('s_cselect_b32 s38, s17, s38')
    a('s_add_u32 s33, s33, 1')
    a('s_cmp_lt_u32 s33, 8')
    a('s_cbranch_scc1 Lqkv_lloop')
    a('v_and_b32 v12, 31, v0')
    a('v_lshlrev_b32 v2, 4, v12')
    a('v_min_u32 v3, 19, v12')
    a('v_lshlrev_b32 v3, 4, v3')
    a('v_lshrrev_b32 v13, 5, v0')
    a('v_mul_u32_u24 v13, 15360, v13')
    a('v_add_u32 v4, v3, v13')
    a('s_lshl2_add_u32 s19, s14, s16')
    a('s_mul_i32 s19, s19, 320')
    a(f's_add_u32 s19, s19, {hx(WS_CS)}')
    a('s_cmp_lt_u32 s14, 4')
    a(f's_cselect_b32 s47, {hx(QSCALE)}, 1.0')
    a('s_lshl_b32 s17, s16, 8')
    a(f's_add_u32 s17, s17, {MR}')
    a('v_lshl_add_u32 v5, v12, 3, s17')
    a('s_mul_i32 s17, s16, 160')
    a(f's_add_u32 s17, s17, {CS}')
    a('v_lshrrev_b32 v3, 1, v3')
    a('v_add_u32 v6, s17, v3')
    a('s_mov_b32 s33, 0')
    for i in range(4): a(f'v_mov_b32 v{44+i}, -1')
    a('s_and_b32 s49, s14, 12')
    a('s_add_u32 s49, s49, s16')
    a('s_min_u32 s49, s49, 9')
    a('s_and_b32 s50, s14, 3')
    a('s_mul_i32 s50, s50, 10')
    a('s_add_u32 s49, s49, s50')
    a('s_lshl_b32 s49, s49, 16')
    a('s_lshl_b32 s50, s13, 11')
    a('s_add_u32 s49, s49, s50')
    a(f's_add_u32 s49, s49, {hx(WS_O)}')
    a(f's_add_u32 s50, s49, {PLANE}')
    a('v_lshlrev_b32 v43, 4, v0')
    def fill():
        for i in range(4): a(f'buffer_store_dwordx4 v[44:47], v43, s[28:31], s{49+i//2} offen offset:{1024*(i%2)} sc1')
    a('s_cmp_lg_u32 s3, 0')
    a('s_cbranch_scc1 Lqkv_tail2')
    a('s_lshl2_add_u32 s18, s13, s16')
    a('s_lshl_b32 s18, s18, 9')
    a(f's_add_u32 s18, s18, {hx(WS_MR)}')
    def fetch():
        a('buffer_load_dwordx4 v[16:19], v2, s[28:31], s18 offen sc0 sc1')
        a('buffer_load_dwordx4 v[20:23], v4, s[28:31], s19 offen sc0 sc1')
    fetch()
    a('s_mov_b32 s45, s98')
    a('s_not_b32 s46, s45')
    a('s_waitcnt vmcnt(11)')
    a('s_barrier')
    fill()
    a('s_waitcnt vmcnt(6)')
    a('s_barrier')
    a('s_waitcnt vmcnt(4)')
    a.label('Lqkv_hpoll')
    a('v_xor_b32 v18, s45, v18')
    a('v_xor_b32 v19, s46, v19')
    a('v_xor_b32 v21, s45, v21')
    a('v_xor_b32 v23, s45, v23')
    a('v_or_b32 v21, v21, v23')
    a('v_or3_b32 v18, v18, v19, v21')
    a('v_cmp_ne_u32 vcc, 0, v18')
    a('s_cbranch_vccz Lqkv_hgo')
    a('s_add_u32 s33, s33, 1')
    a('s_cmp_gt_u32 s33, 0x40000')
    a('s_cbranch_scc1 Lqkv_hgo')
    fetch()
    a('s_waitcnt vmcnt(0)')
    a('s_branch Lqkv_hpoll')
    a.label('Lqkv_tail2')
    a('s_lshl2_add_u32 s17, s13, s16')
    a('s_lshl_b32 s17, s17, 9')
    a(f's_add_u32 s17, s17, {hx(WS_ST)}')
    a('buffer_load_dwordx2 v[32:33], v2, s[28:31], s17 offen sc0 sc1')
    a('buffer_load_dwordx4 v[20:23], v4, s[28:31], s19 offen sc1')
    a('s_waitcnt vmcnt(11)')
    a('s_barrier')
    fill()
    a('s_waitcnt vmcnt(6)')
    a('s_barrier')
    a('s_waitcnt vmcnt(4)')
    inv = hx(f2u(1.0 / D))
    ln_scalars(a, 32, 33, 27, 28, 29)
    a(f'v_mul_f32 v25, {inv}, v32')
    a(f'v_mul_f32 v26, {inv}, v33')
    a('v_fma_f32 v26, -v25, v25, v26')
    a('v_max_f32 v26, 0, v26')
    a('v_add_f32 v29, 1.0, v28')
    a('v_sub_f32 v30, v25, v27')
    a('v_fma_f32 v25, v30, v28, v25')
    a('v_mul_f32 v26, v26, v29')
    a('v_mul_f32 v26, v26, v29')
    rbf16(a, 25, 25)
    rbf16(a, 26, 26)
    a(f'v_add_f32 v26, {hx(f2u(1e-5))}, v26')
    rbf16(a, 26, 26)
    a('v_sqrt_f32 v26, v26')
    a('v_rcp_f32 v30, v29')
    rbf16(a, 26, 26)
    a('v_rcp_f32 v26, v26')
    a('v_fma_f32 v16, v27, v28, v25')
    a('v_mul_f32 v16, v16, v30')
    a('v_mul_f32 v17, v29, v26')
    a.label('Lqkv_hgo')
    a('v_mul_f32 v17, s47, v17')
    a('v_mov_b32 v21, v20')
    a('v_mov_b32 v23, v22')
    a('ds_write_b64 v5, v[16:17]')
    a('v_permlane32_swap_b32 v20, v21')
    a('v_permlane32_swap_b32 v22, v23')
    a('v_add_f32 v20, v20, v21')
    a('v_add_f32 v21, v22, v23')
    a('ds_write_b64 v6, v[20:21]')
    a('s_waitcnt lgkmcnt(0)')
    a('s_barrier')
    endpgm(a)
    a.label('Lqkv_w8')
    a('s_waitcnt lgkmcnt(0)')
    epoch(a)
    a('s_cmp_eq_u32 s3, 0')
    a('s_cbranch_scc1 Lqkv_w8a')
    a('v_lshlrev_b32 v2, 5, v0')
    a('s_lshl_b32 s16, s13, 11')
    a(f's_add_u32 s16, s16, {hx(WS_ST)}')
    a('s_mov_b32 s12, 0')
    a.label('Lqkv_xp')
    a(f'buffer_load_dword v4, v2, s[28:31], s16 offen offset:12 {S2}')
    a(f'buffer_load_dword v5, v2, s[28:31], s16 offen offset:28 {S2}')
    a('s_add_u32 s12, s12, 1')
    a('s_waitcnt vmcnt(0)')
    a('v_min_f32 v4, v4, v5')
    a('v_cmp_neq_f32 vcc, 0x41000000, v4')
    a('s_cbranch_vccz Lqkv_xq')
    a('s_sleep 2')
    a('s_cmp_lt_u32 s12, 0x40000')
    a('s_cbranch_scc1 Lqkv_xp')
    a.label('Lqkv_xq')
    a('s_barrier')
    a('s_branch Lqkv_w8b')
    a.label('Lqkv_w8a')
    a('s_sub_u32 s47, s2, 64')
    a('s_sub_u32 s46, s47, 67')
    a('s_min_u32 s46, s46, s47')
    a('s_cmp_lt_u32 s46, 32')
    a('s_cselect_b32 s46, 0, -1')
    for i in range(4): a(f'v_mov_b32 v{4+i}, s46')
    a('s_lshl_b32 s46, s47, 10')
    a(f's_add_u32 s46, s46, {hx(WS_CTL)}')
    a('v_lshlrev_b32 v1, 4, v0')
    for i in range(9): a('s_barrier')
    a(f's_cmp_ge_u32 s47, {NCLR}')
    a('s_cbranch_scc1 Lqkv_w8d')
    a('buffer_store_dwordx4 v[4:7], v1, s[28:31], s46 offen sc1')
    a.label('Lqkv_w8d')
    a('s_branch Lqkv_w8c')
    a.label('Lqkv_w8b')
    for i in range(9): a('s_barrier')
    a.label('Lqkv_w8c')
    for i in range(2): a('s_barrier')
    endpgm(a)
    side1(a)
    comp(a)

def comp(a):
    a.label('Lqkv_comp')
    ACC = 8; BUF = 88; AX = 2; AW = 4
    CSR = 88; MRR = 108; T = 116
    a('s_and_b32 s16, s10, 1')
    a('s_lshr_b32 s17, s10, 1')
    a('v_and_b32 v160, 15, v0')
    a('v_lshrrev_b32 v161, 4, v0')
    a('v_bfe_u32 v162, v0, 1, 3')
    a('v_xor_b32 v162, v162, v161')
    a('v_lshlrev_b32 v162, 4, v162')
    a('v_lshl_add_u32 v162, v160, 7, v162')
    a('s_lshl_b32 s18, s17, 13')
    a(f'v_add_u32 v{AX}, s18, v162')
    a(f'v_xor_b32 v{AX+1}, 64, v{AX}')
    a('v_bfe_u32 v162, v0, 2, 2')
    a('v_lshl_add_u32 v162, v161, 3, v162')
    a('v_mul_u32_u24 v162, 320, v162')
    a('v_and_b32 v163, 3, v0')
    a('v_lshl_add_u32 v162, v163, 3, v162')
    a('s_mul_i32 s18, s16, 160')
    a('s_add_u32 s18, s18, 0x4000')
    a('v_add_u32 v162, s18, v162')
    a('v_and_b32 v163, 16, v0')
    a('v_lshlrev_b32 v163, 1, v163')
    a(f'v_add_u32 v{AW}, v162, v163')
    a(f'v_sub_u32 v{AW+1}, v162, v163')
    a('s_cmp_eq_u32 s16, 0')
    a('s_cbranch_scc1 Lqkv_nosw')
    a(f'v_swap_b32 v{AW}, v{AW+1}')
    a.label('Lqkv_nosw')
    a('s_waitcnt lgkmcnt(0)')
    epoch(a)
    for i in range(80): a(f'v_mov_b32 v{ACC+i}, 0')
    a('s_lshl1_add_u32 s19, s14, s16')
    a(f's_mul_i32 s19, s19, {10*PLANE}')
    a('s_lshl1_add_u32 s41, s13, s17')
    a('s_lshl_b32 s41, s41, 10')
    a('s_add_u32 s41, s41, s19')
    a('s_cmp_eq_u32 s3, 0')
    a('s_cbranch_scc1 Lqkv_c1')
    a(f's_add_u32 s41, s41, {QKV_SZ}')
    a('s_barrier')
    a.label('Lqkv_c1')
    NR = 14
    def rd(b, s):
        base = BUF + 36 * b
        xs = [f'ds_read_b128 {vr(base+4*tt,4)}, v{AX+s} offset:{2048*tt}' for tt in range(4)]
        ws = [[f'ds_read_b64_tr_b16 {vr(base+16+4*ct+2*j,2)}, v{AW+ct%2} offset:{(32*s+4*j)*320+32*ct}' for j in range(2)] for ct in range(5)]
        return ws[0] + xs + sum(ws[1:], [])
    def mf(b):
        base = BUF + 36 * b
        L = []
        for ct in range(5):
            wneed = 2 if ct == 0 else 6 + 2 * ct
            for tt in range(4):
                acc = vr(ACC + (ct * 4 + tt) * 4, 4)
                L.append((f'v_mfma_f32_16x16x32_bf16 {acc}, {vr(base+16+4*ct,4)}, {vr(base+4*tt,4)}, {acc}', max(wneed, 3 + tt)))
        return L
    def kstep(b, R, start, extra={}, full=False):
        M = mf(b); R = list(R); issued = 0; have = 0
        if full:
            a('s_waitcnt lgkmcnt(0)'); have = NR
        for i, (m, need) in enumerate(M):
            if need > have:
                a(f's_waitcnt lgkmcnt({min(15, NR - need + issued)})'); have = need
            a(m)
            for x in extra.get(i, []): a(x)
            if i >= start and R:
                a(R.pop(0)); issued += 1
        assert not R
    a('s_mov_b32 s33, 0')
    a('s_mov_b32 s34, 0')
    a('s_waitcnt lgkmcnt(0)')
    stamp(a, 2)
    a('s_barrier')
    stamp(a, 3)
    cstamp(a, 12)
    for x in rd(0, 0): a(x)
    a.label('Lqkv_cloop')
    ex = {0: ['s_add_u32 s34, s34, 1'], 1: [f's_cmp_eq_u32 s34, {NSLOT}'], 2: [f's_cselect_b32 s35, {hx(-(NSLOT-1)*SLOT)}, s40'], 3: ['s_cselect_b32 s34, 0, s34'],
          4: ['s_add_u32 s33, s33, 1'], 5: ['s_cmp_eq_u32 s33, 10']}
    for i in range(4): ex[14 + i] = [f'v_add_u32 v{AX+i}, s35, v{AX+i}']
    kstep(0, rd(1, 1), 0, extra=ex)
    a('s_cbranch_scc1 Lqkv_cdone')
    kstep(1, rd(0, 0), 2, extra={1: ['s_barrier']}, full=True)
    a('s_branch Lqkv_cloop')
    a.label('Lqkv_cdone')
    stamp(a, 4)
    cstamp(a, 13)
    a('s_waitcnt lgkmcnt(0)')
    for m, _ in mf(1): a(m)
    a('s_mul_i32 s18, s16, 320')
    a(f's_add_u32 s18, s18, {CS}')
    a(f'v_lshl_add_u32 v{AX}, v161, 4, s18')
    a('s_lshl_b32 s18, s17, 9')
    a(f's_add_u32 s18, s18, {MR}')
    a(f'v_lshl_add_u32 v{AX+2}, v160, 3, s18')
    a('v_and_b32 v1, 31, v0')
    a('v_lshlrev_b32 v1, 4, v1')
    a('v_lshrrev_b32 v162, 5, v0')
    a('v_lshl_add_u32 v1, v162, 15, v1')
    a('s_barrier')
    stamp(a, 5)
    for tt in range(4): a(f'ds_read_b64 {vr(MRR+2*tt,2)}, v{AX+2} offset:{128*tt}')
    for c in range(5): a(f'ds_read_b128 {vr(CSR+4*c,4)}, v{AX} offset:{64*c}')
    n = 0
    for ct in range(5):
        cs = CSR + 4 * ct
        a(f's_waitcnt lgkmcnt({4-ct})')
        for tp in range(2):
            R = T + 4 * (n % 4); n += 1
            for k in range(2):
                tt = 2 * tp + k
                acc = ACC + (ct * 4 + tt) * 4
                for p in range(2):
                    a(f'v_pk_fma_f32 {vr(acc+2*p,2)}, {vr(cs+2*p,2)}, {vr(MRR+2*tt,2)}, {vr(acc+2*p,2)} op_sel_hi:[1,0,1] neg_lo:[0,1,0] neg_hi:[0,1,0]')
                for p in range(2):
                    a(f'v_pk_mul_f32 {vr(acc+2*p,2)}, {vr(acc+2*p,2)}, {vr(MRR+2*tt,2)} op_sel:[0,1] op_sel_hi:[1,1]')
                a(f'v_cvt_pk_bf16_f32 v{R+2*k}, v{acc}, v{acc+1}')
                a(f'v_cvt_pk_bf16_f32 v{R+2*k+1}, v{acc+2}, v{acc+3}')
            a(f'v_permlane16_swap_b32 v{R}, v{R+2}')
            a(f'v_permlane16_swap_b32 v{R+1}, v{R+3}')
            a(f'buffer_store_dwordx4 {vr(R,4)}, v1, s[28:31], s41 offen offset:{512*tp} sc1')
        if ct < 4: a(f's_add_u32 s41, s41, {2*PLANE}')

def side1(a):
    a.label('Lqkv_side')
    a('s_mov_b32 s13, s2')
    a('s_mov_b32 s53, 1')
    a('s_mov_b32 s51, 0')
    a('s_cmp_lg_u32 s3, 0')
    a('s_cbranch_scc1 Lfs')
    a('v_lshrrev_b32 v5, 3, v0')
    a('v_and_b32 v6, 7, v0')
    a('v_lshlrev_b32 v7, 2, v0')
    a('v_mov_b32 v8, 0')
    a('ds_write_b32 v7, v8 offset:1024')
    a('s_waitcnt lgkmcnt(0)')
    a('s_barrier')
    epoch(a)
    a('s_cmp_eq_u32 s10, 8')
    a('s_cbranch_scc1 Lq_fin')
    a('s_cmp_ge_u32 s10, 4')
    a('s_cbranch_scc1 Lside_pack')
    a('s_lshl2_add_u32 s14, s13, s10')
    a('v_mul_u32_u24 v4, 1280, v5')
    a('v_lshl_add_u32 v4, v6, 4, v4')
    a('s_mul_i32 s15, s14, 10240')
    for i in range(10): a(f'buffer_load_dwordx4 {vr(20+4*i,4)}, v4, s[20:23], s15 offen offset:{128*i}')
    a('s_cmp_ge_u32 s13, 60')
    a('s_cselect_b32 s53, 1, 0')
    a('s_cmp_eq_u32 s53, 1')
    a('s_cbranch_scc1 Lside_nob')
    a('v_mul_u32_u24 v7, 3840, v5')
    a('v_lshl_add_u32 v7, v6, 4, v7')
    a('s_and_b32 s16, s13, 1')
    a('s_mul_i32 s16, s16, 40')
    a('s_add_u32 s16, s16, s10')
    a(f's_mul_i32 s17, s16, {8*3840}')
    a('s_lshr_b32 s18, s13, 1')
    a('s_lshl_b32 s19, s18, 7')
    a('s_add_u32 s17, s17, s19')
    for n in range(10):
        a(f'buffer_load_dwordx4 {vr(60+4*n,4)}, v7, s[24:27], s17 offen')
        if n < 9: a(f's_add_u32 s17, s17, {32*3840}')
    a('s_waitcnt vmcnt(10)')
    a('s_branch Lside_a')
    a.label('Lside_nob')
    a('s_waitcnt vmcnt(0)')
    a.label('Lside_a')
    stamp(a, 1)
    for i in range(40):
        u = 100 + 2 * (i % 2)
        unpack(a, u, 20 + i)
        if i == 0:
            a(f'v_pk_mul_f32 v[106:107], {vr(u,2)}, {vr(u,2)}')
            a(f'v_pk_add_f32 v[104:105], {vr(u,2)}, 0')
        else:
            a(f'v_pk_fma_f32 v[106:107], {vr(u,2)}, {vr(u,2)}, v[106:107]')
            a(f'v_pk_add_f32 v[104:105], {vr(u,2)}, v[104:105]')
    a('v_add_f32 v104, v104, v105')
    a('v_add_f32 v106, v106, v107')
    for m in ('quad_perm:[1,0,3,2]', 'quad_perm:[2,3,0,1]', 'row_half_mirror'):
        for v in (104, 106): a(f'v_add_f32_dpp v{v}, v{v}, v{v} {m} row_mask:0xf bank_mask:0xf')
    ln_scalars(a, 104, 106, 108, 109, 100)
    a('s_mov_b32 s54, s98')
    a('v_mov_b32 v110, s54')
    a('v_not_b32 v111, v110')
    a('v_lshlrev_b32 v11, 4, v5')
    a('s_lshl_b32 s15, s14, 7')
    a(f's_add_u32 s15, s15, {hx(WS_MR)}')
    a('s_mov_b32 exec_lo, 0x01010101')
    a('s_mov_b32 exec_hi, 0x01010101')
    a('buffer_store_dwordx4 v[108:111], v11, s[28:31], s15 offen sc0 sc1')
    a('s_mov_b64 exec, -1')
    stamp(a, 2)
    a('s_cmp_eq_u32 s53, 1')
    a('s_cbranch_scc1 Lside_nob2')
    a('s_waitcnt vmcnt(1)')
    for n in range(10):
        for q in range(4):
            u = 100 + 2 * (q % 2)
            unpack(a, u, 60 + 4 * n + q)
            if n == 0: a(f'v_pk_add_f32 {vr(112+2*q,2)}, {vr(u,2)}, 0')
            else: a(f'v_pk_add_f32 {vr(112+2*q,2)}, {vr(u,2)}, {vr(112+2*q,2)}')
    for q in range(8): a(f'v_add_f32_dpp v{112+q}, v{112+q}, v{112+q} row_ror:8 row_mask:0xf bank_mask:0xf')
    for op in ('v_permlane16_swap_b32', 'v_permlane32_swap_b32'):
        for q in range(8): a(f'v_mov_b32 v{120+q}, v{112+q}')
        for q in range(8): a(f'{op} v{112+q}, v{120+q}')
        for q in range(8): a(f'v_add_f32 v{112+q}, v{112+q}, v{120+q}')
    a('s_lshl_b32 s19, s10, 8')
    a('v_lshl_add_u32 v13, v6, 5, s19')
    a('ds_write_b128 v13, v[112:115]')
    a('ds_write_b128 v13, v[116:119] offset:16')
    a.label('Lside_nob2')
    a('s_lshl_b32 s19, s10, 2')
    a('v_mov_b32 v13, s19')
    a('s_waitcnt lgkmcnt(0)')
    a('v_mov_b32 v14, 1')
    a('ds_write_b32 v13, v14 offset:1024')
    a('s_cmp_lg_u32 s10, 0')
    a('s_cbranch_scc1 Lq_fin')
    a.label('Lside_meet')
    a('ds_read_b128 v[20:23], v13 offset:1024')
    a('s_waitcnt lgkmcnt(0)')
    a('v_and_b32 v20, v20, v21')
    a('v_and_b32 v22, v22, v23')
    a('v_and_b32 v20, v20, v22')
    a('v_cmp_eq_u32 vcc, 0, v20')
    a('s_cbranch_vccnz Lside_meet')
    a('s_cmp_eq_u32 s53, 1')
    a('s_cbranch_scc1 Lside_bump')
    a('v_lshlrev_b32 v13, 2, v0')
    for w in range(4): a(f'ds_read_b32 v{72+w}, v13 offset:{256*w}')
    a('s_and_b32 s16, s13, 1')
    a('s_mul_i32 s16, s16, 15360')
    a('s_lshl_b32 s17, s18, 9')
    a('s_add_u32 s16, s16, s17')
    a(f's_add_u32 s16, s16, {hx(WS_CS)}')
    a('v_lshlrev_b32 v13, 3, v0')
    a('s_waitcnt lgkmcnt(0)')
    for w in range(1, 4): a(f'v_add_f32 v72, v72, v{72+w}')
    a('v_mov_b32 v73, s54')
    a('buffer_store_dwordx2 v[72:73], v13, s[28:31], s16 offen sc0 sc1')
    a.label('Lside_bump')
    a('s_waitcnt vmcnt(0)')
    a('v_mov_b32 v13, 0')
    a('ds_write_b32 v13, v14 offset:1040')
    stamp(a, 3)
    endpgm(a)

    a.label('Lside_pack')
    ksrd(a, 32, KA_WO, D * D * 2)
    ksrd(a, 36, KA_WG, D * F * 2)
    ksrd(a, 40, KA_WU, D * F * 2)
    ksrd(a, 48, KA_WD, D * F * 2)
    a('s_lshl2_add_u32 s14, s13, s10')
    a('s_sub_u32 s14, s14, 4')
    a('s_lshr_b32 s16, s13, 3')
    a('s_lshl2_add_u32 s16, s16, s10')
    a('s_sub_u32 s16, s16, 4')
    a('s_lshl_b32 s16, s16, 10')
    a('s_cmp_ge_u32 s16, Lcode_end-Lcode_start-1024')
    a('s_cbranch_scc1 Lside_nopf')
    a('s_getpc_b64 s[56:57]')
    a.label('Lside_pc')
    a('s_sub_u32 s56, s56, Lside_pc-Lcode_start')
    a('s_subb_u32 s57, s57, 0')
    a('v_lshl_add_u32 v2, v0, 4, s16')
    if 'I' not in X: a('global_load_dwordx4 v[36:39], v2, s[56:57]')
    a.label('Lside_nopf')
    a('s_waitcnt lgkmcnt(0)')
    a('v_lshlrev_b32 v18, 7, v0')
    a('s_mul_i32 s17, s14, 7680')
    if 'E' in X:
        a('s_mov_b32 exec_hi, 0xfffffff')
        a('buffer_load_dword v20, v18, s[36:39], s17 offen')
        a('s_mov_b32 exec_hi, -1')
    a('v_mul_u32_u24 v19, 1280, v5')
    a('v_lshl_add_u32 v19, v6, 4, v19')
    a('v_lshrrev_b32 v10, 2, v5')
    a('v_lshlrev_b32 v10, 9, v10')
    a('v_and_b32 v11, 3, v5')
    a('v_lshl_add_u32 v10, v11, 5, v10')
    a('v_and_b32 v11, 1, v6')
    a('v_lshl_add_u32 v10, v11, 4, v10')
    a('v_lshrrev_b32 v11, 1, v6')
    a('s_mov_b32 s18, 49152')
    a('v_mad_u32_u24 v13, v11, s18, v10')
    for n in range(8):
        a(f's_lshl3_add_u32 s52, s14, {n}')
        a('s_min_u32 s52, s52, 1919')
        a('s_mul_i32 s53, s52, 6554')
        a('s_lshr_b32 s53, s53, 16')
        a('s_mul_i32 s18, s53, 10')
        a('s_sub_u32 s18, s52, s18')
        a(f's_mul_i32 s19, s53, {8*1280}')
        a('s_lshl_b32 s55, s18, 7')
        a('s_add_u32 s19, s19, s55')
        a(f'buffer_load_dwordx4 {vr(40+4*n,4)}, v19, s[48:51], s19 offen nt')
        d = 60 + n
        a(f's_mul_i32 s{d}, s18, {4*49152}')
        a('s_and_b32 s55, s53, 3')
        a('s_lshl_b32 s55, s55, 7')
        a(f's_add_u32 s{d}, s{d}, s55')
        a('s_lshr_b32 s55, s53, 2')
        a('s_lshl_b32 s55, s55, 10')
        a(f's_add_u32 s{d}, s{d}, s55')
        a(f's_add_u32 s{d}, s{d}, {hx(WS_PD)}')
    a('v_mov_b32 v19, 0')
    a.label('Lside_hold')
    a('ds_read_b32 v21, v19 offset:1040')
    a('s_sleep 4')
    a('s_waitcnt lgkmcnt(0)')
    a('v_cmp_eq_u32 vcc, 0, v21')
    a('s_cbranch_vccnz Lside_hold')
    a('s_waitcnt vmcnt(0)')
    for n in range(8): a(f'buffer_store_dwordx4 {vr(40+4*n,4)}, v13, s[28:31], s{60+n} offen sc1')
    a('v_lshlrev_b32 v18, 7, v0')
    a('s_mul_i32 s16, s14, 3200')
    a('s_mul_i32 s17, s14, 7680')
    a('s_mov_b32 exec_lo, 0x1ffffff')
    a('s_mov_b32 exec_hi, 0')
    a('buffer_load_dword v20, v18, s[32:35], s16 offen')
    a('s_mov_b32 exec_lo, -1')
    a('s_mov_b32 exec_hi, 0xfffffff')
    for sd in ((40,) if 'E' in X else (36, 40)): a(f'buffer_load_dword v20, v18, s[{sd}:{sd+3}], s17 offen')
    endpgm(a)
```

```python
import sys, struct, math, os
sys.path.insert(0, os.path.dirname(os.path.abspath(__file__)))
from asmlib import *

S, D, H, DH, F = 2048, 640, 32, 20, 1536
KA_X, KA_WQKV, KA_WO, KA_BX, KA_WR, KA_WG, KA_WU, KA_WD, KA_OUT, KA_DBG, KA_WS = [8 * i for i in range(11)]
PLANE = 2048 * 16
WS_QKV = 0
QKV_SZ = 240 * PLANE
WS_O = WS_QKV + 2 * QKV_SZ
WS_X1 = WS_O + 80 * PLANE
XT = S * D * 2
X_SZ = XT + 8 * 65536
WS_PD = WS_X1 + 2 * X_SZ
WS_PG = WS_PD + 40 * 49152
WS_PWO = WS_PG + 48 * 81920
WS_CTL = WS_PWO + D * D * 2
WS_ST = WS_CTL
WS_H = WS_ST + 32768
WS_XS = WS_H + 24576
WS_SEL = WS_XS + 10240
CTL_SZ = 67 * 1024
WS_QS = WS_CTL + 2 * CTL_SZ
NCLR = 134 + 30
WS_MR = WS_QS + 30720
WS_CS = WS_MR + 32768
WS_FLG = WS_CS + 2 * 1920 * 8
WS_HF = WS_FLG + 4 * 32768
WS_EP = WS_HF + 2 * 262144
WS_END = WS_EP + 128
EPK = 0x9E3779B9
WS_PROF = 0x2000000
WS_SIZE = 0x4000000
assert WS_END <= WS_PROF

def f2u(x): return struct.unpack('<I', struct.pack('<f', x))[0]
def hx(x): return hex(x & 0xFFFFFFFF)
QSCALE = f2u(DH ** -0.5 * math.log2(math.e))
ONES2 = 0x3F803F80
NEGBIG = f2u(-1e30)
NL2E = hx(f2u(-math.log2(math.e)))

kernels = []
LAUNCH = {}
PROF = bool(os.environ.get('PROF'))
PV = 160
def stamp(a, i):
    if not PROF: return
    a('s_memrealtime s[100:101]')
    a('s_waitcnt lgkmcnt(0)')
    a(f'v_writelane_b32 v{a.pv}, s100, {i}')
def cstamp(a, i):
    if not PROF: return
    a('s_memtime s[100:101]')
    a('s_waitcnt lgkmcnt(0)')
    a(f'v_writelane_b32 v{a.pv}, s100, {i}')
def lstamp(a, sreg): pass
KNAME = 'interleave_layers__sliding_block__moe_arch_mod__prompt_kernel'
_pd = [0]
def prof_dump(a):
    if not PROF: return
    _pd[0] += 1
    a(f's_load_dwordx2 s[4:5], s[0:1], {KA_WS}')
    a('s_lshl_b32 s8, s96, 9')
    a('s_add_u32 s8, s8, s2')
    a('s_lshl_b32 s8, s8, 4')
    a('s_add_u32 s8, s8, s10')
    a('s_lshl_b32 s8, s8, 8')
    a(f's_add_u32 s8, s8, {hx(WS_PROF)}')
    a(f's_mov_b32 s6, {hx(WS_SIZE)}'); a('s_mov_b32 s7, 0x20000')
    a('v_lshlrev_b32 v1, 2, v0')
    a('s_waitcnt lgkmcnt(0)')
    a(f'buffer_store_dword v{a.pv}, v1, s[4:7], s8 offen')
    a('s_add_u32 s96, s96, 1')
    a('s_nop 1')
    a(f'v_mov_b32 v{a.pv}, 0')
    stamp(a, 0)
def endpgm(a): a('s_branch ' + a.fin)
def gen_prof(a): pass

def phase_end(a, slot_expr, nodrain=None):
    a('s_mov_b64 exec, -1')
    stamp(a, 14)
    a('s_waitcnt vmcnt(0) lgkmcnt(0)')
    if nodrain: a.label(nodrain)
    stamp(a, 15)
    a('s_barrier')
    _pd[0] += 1; L = f'Lsig{_pd[0]}'
    a('s_cmp_lg_u32 s10, 8')
    a(f's_cbranch_scc1 {L}')
    slot_expr(a)
    a('s_lshl_b32 s12, s97, 15')
    a('s_add_u32 s11, s11, s12')
    a(f's_add_u32 s11, s11, {hx(WS_FLG)}')
    a('v_mov_b32 v2, s98')
    a('v_mov_b32 v3, 0')
    a('s_mov_b64 exec, 1')
    a('buffer_store_dword v2, v3, s[28:31], s11 offen sc0 sc1')
    a('s_mov_b64 exec, -1')
    a.label(L)
    a('s_add_u32 s97, s97, 1')
    prof_dump(a)

def flag_wait(a, vregs, idle=None, base=None):
    _pd[0] += 1; L = f'Lfw{_pd[0]}'
    n = len(vregs)
    if base: a(f's_mov_b32 s11, {base}')
    else:
        a('s_lshl_b32 s11, s97, 15')
        a(f's_add_u32 s11, s11, {hx(WS_FLG - 32768)}')
    a('s_mov_b32 s12, 0')
    for i in range(n): a(f's_mov_b64 s[{88+2*i}:{89+2*i}], exec')
    a.label(L)
    a('s_add_u32 s12, s12, 1')
    a(f's_and_b32 s99, s12, {os.environ.get("PMASK", "7")}')
    a(f's_cbranch_scc1 {L}a')
    for sc, nxt in (('sc0 sc1', True), ('sc1', False)):
        for i, v in enumerate(vregs):
            a(f's_mov_b64 exec, s[{88+2*i}:{89+2*i}]')
            a(f'buffer_load_dword v{20+i}, v{v}, s[28:31], s11 offen {sc}')
        if nxt:
            a(f's_branch {L}b')
            a.label(L + 'a')
    a.label(L + 'b')
    a('s_waitcnt vmcnt(0)')
    for i in range(n):
        a(f's_mov_b64 exec, s[{88+2*i}:{89+2*i}]')
        a(f'v_cmp_ne_u32 s[{88+2*i}:{89+2*i}], s98, v{20+i}')
    a('s_mov_b64 vcc, s[88:89]')
    for i in range(1, n): a(f's_or_b64 vcc, vcc, s[{88+2*i}:{89+2*i}]')
    a(f's_cbranch_vccz {L}c')
    if idle: idle()
    else: a(f's_sleep {os.environ.get("SLPF", "1")}')
    a('s_cmp_lt_u32 s12, 0x40000')
    a(f's_cbranch_scc1 {L}')
    a.label(L + 'c')
    a('s_mov_b64 exec, -1')

def ksrd(a, d, ka, size):
    a(f's_load_dwordx2 s[{d}:{d+1}], s[0:1], {ka}')
    a(f's_mov_b32 s{d+2}, {hx(size)}')
    a(f's_mov_b32 s{d+3}, 0x20000')

def add64(a, d, s, off):
    o = off if isinstance(off, str) else hx(off)
    a(f's_add_u32 s{d}, s{s}, {o}')
    a(f's_addc_u32 s{d+1}, s{s+1}, 0')

def rbf16(a, d, s):
    a(f'v_cvt_pk_bf16_f32 v{d}, v{s}, v{s}')
    a(f'v_and_b32 v{d}, 0xffff0000, v{d}')

def unpack(a, lo, src):
    a(f'v_lshlrev_b32 v{lo}, 16, v{src}')
    a(f'v_and_b32 v{lo+1}, 0xffff0000, v{src}')

def ln_scalars(a, s1, s2, m, rs, t):
    inv = hx(f2u(1.0 / D))
    a(f'v_mul_f32 v{m}, {inv}, v{s1}')
    a(f'v_mul_f32 v{t}, {inv}, v{s2}')
    a(f'v_fma_f32 v{t}, -v{m}, v{m}, v{t}')
    a(f'v_max_f32 v{t}, 0, v{t}')
    rbf16(a, t, t)
    a(f'v_add_f32 v{t}, {hx(f2u(1e-5))}, v{t}')
    rbf16(a, t, t)
    a(f'v_sqrt_f32 v{t}, v{t}')
    rbf16(a, t, t)
    a(f'v_rcp_f32 v{rs}, v{t}')
    rbf16(a, m, m)

def kernel_start(a, label):
    a.raw('.p2align 8')
    a.raw(f'.globl {label}')
    a.raw(f'.type {label},@function')
    a.label(label)
    if PROF:
        a(f'v_mov_b32 v{a.pv}, 0')
        stamp(a, 0)

def reg_kernel(label, grid, block, lds, vgpr, sgpr):
    kernels.append((label, vgpr, 102 if PROF else sgpr))
    LAUNCH[label] = (grid, block, lds)

def wave_lane(a):
    a('v_lshrrev_b32 v1, 6, v0')
    a('v_and_b32 v0, 63, v0')
    a('v_readfirstlane_b32 s10, v1')

def mod_small(a, s, n, times):
    for _ in range(times):
        a(f's_sub_u32 s99, s{s}, {n}')
        a(f's_cmp_ge_u32 s{s}, {n}')
        a(f's_cselect_b32 s{s}, s99, s{s}')

def slot_to_off_s(a, sreg): a(f's_lshl_b32 s{sreg}, s{sreg}, 7')
def slot_to_off_v(a, v, t): a(f'v_lshlrev_b32 v{v}, 7, v{v}')
def wait_all(a):
    a('v_lshlrev_b32 v2, 7, v0')
    for i in range(1, 4): a(f'v_add_u32 v{2+i}, {8192*i}, v2')
    flag_wait(a, [2, 3, 4, 5])
```

```python
from common import *
XA = os.environ.get('XA', '') + ('' if os.environ.get('HINT') else 'H')
ASC = os.environ.get('ASC', 'sc1').replace('_', ' ')
def gen_ao(a):
    a.pv = 167
    PS = 8192 + 64
    Q = 2; KA = 8; KB = 9; VA = 10; MX = 12
    ME = 16; MD = 32; SB = 48; KF = 80; NM = 96; OA = 112; P = 128; VF = 136; T = 152; PK = 160
    WOB = 7 * PS
    QP = WOB + 102400
    a.label('Lq_fin')
    def qslot(a):
        a('s_mul_i32 s11, s13, 12')
        a('s_add_u32 s11, s11, s14')
        a('s_add_u32 s11, s11, 64')
        a('s_cmp_lt_u32 s2, 64')
        a('s_cselect_b32 s11, s2, s11')
        slot_to_off_s(a, 11)
    phase_end(a, qslot)
    a.fin = 'La_fin'
    a('s_cmp_eq_u32 s3, 0')
    a(f's_cselect_b32 s63, 0, {CTL_SZ}')
    a(f's_cselect_b32 s4, {KA_X}, {KA_WS}')
    a(f's_cselect_b32 s5, 0, {QKV_SZ}')
    a(f's_mov_b32 s66, {hx(WS_SIZE)}')
    a(f's_cselect_b32 s66, {S*D*2}, s66')
    a('s_load_dwordx2 s[64:65], s[0:1], s4')
    a('s_mov_b32 s67, 0x20000')
    for i in range(4): a(f's_mov_b32 s{20+i}, s{28+i}')
    ksrd(a, 68, KA_WR, D * 2)
    a('s_and_b32 s11, s2, 7')
    a('s_lshr_b32 s12, s2, 3')
    a('s_lshr_b32 s72, s11, 1')
    a('s_and_b32 s73, s12, 7')
    a('s_lshl3_add_u32 s72, s72, s73')
    a('s_and_b32 s74, s11, 1')
    a('s_lshr_b32 s75, s12, 3')
    a('s_lshl2_add_u32 s74, s74, s75')
    if 'o' in os.environ.get('MAP', 'o'):
        a('s_and_b32 s73, s12, 3')
        a('s_lshl2_add_u32 s72, s11, s73')
        a('s_lshr_b32 s74, s12, 2')
        a('s_mov_b32 s75, s74')
    a('s_add_u32 s73, s73, s75')
    mod_small(a, 73, 5, 2)
    a('s_lshr_b32 s13, s12, 3')
    a('s_lshl2_add_u32 s13, s11, s13')
    a('s_and_b32 s14, s12, 7')
    if 'a' in os.environ.get('MAP', 'o'):
        a('s_mov_b32 s13, s12')
        a('s_mov_b32 s14, s11')
    a('s_cmp_lt_u32 s2, 40')
    a('s_cselect_b32 s9, s3, 0')
    a('s_min_u32 s9, s9, 1')
    a('s_cmp_eq_u32 s10, 8')
    a('s_cbranch_scc1 Lao_loader')
    a('s_lshr_b32 s15, s13, 1')
    a('s_mul_i32 s15, s15, 5')
    a('s_and_b32 s16, s13, 1')
    a('s_mul_i32 s17, s16, 3')
    a('s_add_u32 s17, s17, s15')
    a('s_lshl_b32 s17, s17, 15')
    a('s_add_u32 s18, s15, 2')
    a('s_lshl_b32 s18, s18, 15')
    a('s_lshl2_add_u32 s19, s14, s10')
    a('s_sub_u32 s24, s19, 4')
    a('s_cmp_lt_u32 s19, 4')
    a('s_cselect_b32 s19, s19, s24')
    a('s_cselect_b32 s46, 1, 0')
    a('s_lshl_b32 s19, s19, 10')
    a(f's_add_u32 s19, s19, {80*PLANE}')
    a('s_add_u32 s19, s19, s5')
    a('s_add_u32 s24, s17, s19')
    a('s_add_u32 s25, s18, s19')
    a('s_lshl3_add_u32 s26, s14, s10')
    a('s_lshl_b32 s26, s26, 9')
    a('s_add_u32 s27, s17, s26')
    a('s_lshl3_add_u32 s44, s16, s18')
    a('s_add_u32 s44, s44, s26')
    a('s_lshl_b32 s45, s10, 10')
    a('v_lshlrev_b32 v1, 4, v0')
    a('v_and_b32 v14, 31, v0')
    a('v_lshrrev_b32 v15, 5, v0')
    a('v_lshlrev_b32 v11, 4, v14')
    a(f'v_lshl_add_u32 v{T}, v15, 15, v11')
    a(f'v_mov_b32 v{Q+4}, {hx(ONES2)}')
    a(f'v_mov_b32 v{Q+5}, {hx(ONES2)}')
    a('s_cmp_eq_u32 s46, 1')
    a(f's_cselect_b32 s47, {hx(NEGBIG >> 16)}, 0')
    a(f'v_mov_b32 v{SB}, s47')
    a(f'v_mov_b32 v{SB+1}, 0')
    a(f'v_mov_b32 v{SB+2}, {hx(ONES2)}')
    a(f'v_mov_b32 v{SB+3}, {hx(ONES2)}')
    a('v_add_u32 v12, s45, v1')
    a(f'ds_write_b128 v12, {vr(SB,4)} offset:{6*PS}')
    a('s_lshl_b32 s48, s10, 9')
    a(f'v_mul_u32_u24 v12, {PS}, v15')
    a(f'v_add3_u32 v{KA}, v12, v11, s48')
    a('s_lshl3_add_u32 s51, s16, s48')
    a(f's_add_u32 s51, s51, {2*PS}')
    a(f's_add_u32 s52, s48, {6*PS}')
    a(f'v_mov_b32 v12, s51')
    a(f'v_mov_b32 v13, s52')
    a('v_cmp_eq_u32 vcc, 0, v15')
    a('v_cndmask_b32 v12, v13, v12, vcc')
    a(f'v_add_u32 v{KB}, v12, v11')
    a('v_and_b32 v12, 1, v0')
    a('v_lshlrev_b32 v12, 3, v12')
    a('v_bfe_u32 v13, v0, 1, 1')
    a(f'v_mul_u32_u24 v13, {PS}, v13')
    a(f'v_add3_u32 v12, v12, v13, s48')
    a(f'v_add_u32 v12, {3*PS}, v12')
    a(f's_add_u32 s51, s51, {3*PS}')
    a('s_add_u32 s52, s52, 8')
    a(f'v_mov_b32 v13, s51')
    a(f'v_mov_b32 v{VA}, s52')
    a(f'v_and_b32 v{VA+1}, 3, v0')
    a(f'v_cmp_eq_u32 vcc, 0, v{VA+1}')
    a(f'v_cndmask_b32 v13, v{VA}, v13, vcc')
    a(f'v_and_b32 v{VA+1}, 16, v0')
    a(f'v_cmp_eq_u32 vcc, 0, v{VA+1}')
    a('v_cndmask_b32 v12, v13, v12, vcc')
    a('v_bfe_u32 v13, v0, 2, 2')
    a('v_lshl_add_u32 v13, v15, 2, v13')
    a(f'v_lshl_add_u32 v{VA}, v13, 4, v12')
    def masks():
        a('v_lshlrev_b32 v12, 2, v15')
        a('v_sub_u32 v12, v14, v12')
        a(f'v_mov_b32 v13, {hx(NEGBIG)}')
        for v in range(16):
            kk = 8 * (v // 4) + v % 4
            sp = 54 + 2 * (v % 4)
            a(f'v_cmp_le_i32 s[{sp}:{sp+1}], {kk}, v12')
            if v % 4 == 3:
                for u in range(v - 3, v + 1):
                    sp = 54 + 2 * (u % 4)
                    a(f'v_cndmask_b32 v{MD+u}, v13, 0, s[{sp}:{sp+1}]')
                    a(f'v_cndmask_b32 v{ME+u}, 0, v13, s[{sp}:{sp+1}]')
    masks()
    a('s_add_u32 s6, s27, s5')
    a('s_add_u32 s7, s44, s5')
    a(f's_add_u32 s27, s27, {hx(WS_O)}')
    a(f's_add_u32 s44, s44, {hx(WS_O)}')
    a('v_lshlrev_b32 v11, 4, v14')
    a(f'v_mov_b32 v{T+7}, {hx(f2u(2.0**100))}')
    a('s_mov_b32 s62, 0')
    a('s_lshl_b32 s8, s26, 3')
    a('s_lshl_b32 s50, s13, 7')
    a('s_add_u32 s8, s8, s50')
    a('s_lshl_b32 s50, s97, 17')
    a('s_add_u32 s8, s8, s50')
    a(f's_add_u32 s8, s8, {hx(WS_HF - 131072)}')
    a('s_mul_i32 s50, s10, 2560')
    a('s_mul_i32 s53, s74, 102400')
    a('s_add_u32 s53, s53, s50')
    a(f's_add_u32 s53, s53, {hx(WS_PWO)}')
    stamp(a, 1)
    a('s_cmp_eq_u32 s9, 1')
    a('s_cbranch_scc1 Lfix')
    a.label('Lfix_done')
    a('s_waitcnt lgkmcnt(0)')
    a('s_barrier')
    stamp(a, 2)
    for kv in range(2):
        for pl in range(3):
            a(f's_add_u32 m0, s45, {(3*kv+pl)*PS}')
            src = 's25' if pl == 2 else 's24'
            off = kv * 80 * PLANE + (PLANE if pl == 1 else 0)
            if off:
                a(f's_add_u32 s47, {src}, {off}'); src = 's47'
            a(f'buffer_load_dwordx4 v1, s[20:23], {src} offen sc1 lds')
        if kv == 0:
            a(f'buffer_load_dwordx4 {vr(Q,4)}, v{T}, s[20:23], s6 offen sc1')
            a('s_mov_b32 exec_hi, 0')
            a(f'buffer_load_dwordx2 {vr(Q+4,2)}, v11, s[20:23], s7 offen sc1')
            a('s_mov_b32 exec_hi, -1')
    NW = int(os.environ.get('NW', '0'))
    for c in range(5 - NW, 5):
        a(f's_add_u32 s47, s73, {c}')
        mod_small(a, 47, 5, 1)
        a('s_mul_i32 s47, s47, 20480')
        a('s_add_u32 s47, s47, s53')
        a(f's_add_u32 m0, s50, {WOB + 20480*c}')
        for i in range(3):
            if i == 2: a('s_mov_b32 exec_hi, 0')
            a(f'buffer_load_dwordx4 v1, s[20:23], s47 offen offset:{1024*i} sc1 lds')
        a('s_mov_b32 exec_hi, -1')
    a(f's_waitcnt vmcnt({3*NW}) lgkmcnt(0)')
    stamp(a, 3)
    a('s_barrier')
    a('s_cmp_eq_u32 s3, 0')
    a('s_cbranch_scc1 Lao_nosel')
    a(f'v_mov_b32 v12, {QP}')
    a('s_lshr_b32 s47, s26, 4')
    a('v_add_u32 v13, s47, v14')
    a('s_barrier')
    a(f'ds_read_b128 {vr(SB,4)}, v12')
    a(f'ds_read_b128 {vr(SB+4,4)}, v12 offset:16')
    a(f'v_mov_b32 v{SB+8}, -1')
    a('s_waitcnt lgkmcnt(0)')
    for i in range(8): a(f'v_readfirstlane_b32 s{80+i}, v{SB+i}')
    for i in range(8):
        a(f'v_cmp_eq_u32 vcc, v{SB+i}, v13')
        a(f'v_cndmask_b32 v{SB+8}, v{SB+8}, {i}, vcc')
    a(f'v_cmp_le_i32 vcc, 0, v{SB+8}')
    a('s_and_saveexec_b64 s[48:49], vcc')
    a('s_cbranch_execz Lao_noq')
    a(f'v_lshl_add_u32 v12, v{SB+8}, 4, v12')
    a('v_lshl_add_u32 v13, v15, 7, v12')
    a(f'ds_read_b128 {vr(Q,4)}, v13 offset:32')
    a('s_lshl_b32 s47, s16, 3')
    a('v_add_u32 v12, s47, v12')
    a('s_mov_b32 exec_hi, 0')
    a(f'ds_read_b64 {vr(Q+4,2)}, v12 offset:{32+256}')
    a('s_waitcnt lgkmcnt(0)')
    a.label('Lao_noq')
    a('s_mov_b64 exec, s[48:49]')
    a.label('Lao_nosel')
    stamp(a, 4)
    mark(a, 'kv')
    cstamp(a, 12)
    def kread(t, b):
        a(f'ds_read_b128 {vr(KF+8*b,4)}, v{KA} offset:{512*t}')
        a(f'ds_read_b64 {vr(KF+8*b+4,2)}, v{KB} offset:{512*t}')
    def vread(t, b):
        for i in range(2):
            for j in range(2):
                a(f'ds_read_b64_tr_b16 {vr(VF+8*b+4*i+2*j,2)}, v{VA} offset:{512*t+(16*i+8*j)*16}')
    def m1(b, sb, c): a(f'v_mfma_f32_32x32x16_bf16 {vr(sb,16)}, {vr(KF+8*b,4)}, {vr(Q,4)}, {c}')
    def m2(b, sb): a(f'v_mfma_f32_32x32x8_bf16 {vr(sb,16)}, {vr(KF+8*b+4,2)}, {vr(Q+4,2)}, {vr(sb,16)}')
    def mxall(sb, first):
        for i in range(8):
            r = sb + 2 * i
            if first and i < 2: a(f'v_max_f32 v{MX+i}, v{r}, v{r+1}')
            else: a(f'v_max3_f32 v{MX+i%2}, v{r}, v{r+1}, v{MX+i%2}')
    XR = 16; WR = 22; U = 28; XF = 28+12-4
    def early():
        a('s_and_b32 s75, s10, 3')
        a('s_lshr_b32 s76, s10, 2')
        a('s_lshl2_add_u32 s77, s72, s75')
        a('s_lshl1_add_u32 s78, s74, s76')
        a('s_lshl_b32 s78, s78, 6')
        a('s_lshl_b32 s79, s74, 5')
        a('s_add_u32 s79, s79, 1024')
        a(f'v_and_b32 v{U}, 15, v0')
        a(f'v_lshrrev_b32 v{U+1}, 4, v0')
        a(f'v_bfrev_b32 v{U+2}, v{U+1}')
        a(f'v_lshrrev_b32 v{U+2}, 26, v{U+2}')
        a(f'v_add_u32 v{U+2}, s78, v{U+2}')
        a(f'v_lshl_add_u32 v{U+3}, v{U+1}, 3, s79')
        a(f'v_mul_u32_u24 v161, 1280, v{U}')
        a(f'v_add_u32 v160, v161, v{U+2}')
        a(f'v_add_u32 v161, v161, v{U+3}')
        a(f'v_lshlrev_b32 v{U+6}, 4, v{U}')
        a('s_mul_i32 s92, s77, 20480')
        a('s_add_u32 s93, s92, s3')
        a(f's_add_u32 s92, s92, {hx(WS_X1)}')
        a('s_cmp_eq_u32 s3, 0')
        a(f's_cselect_b32 s95, 0, {X_SZ}')
        a('s_add_u32 s92, s92, s95')
        a('s_lshl_b32 s89, s74, 16')
        a('s_lshl_b32 s88, s77, 9')
        a('s_add_u32 s89, s89, s88')
        a(f's_add_u32 s89, s89, {hx(WS_X1 + XT)}')
        a('s_add_u32 s88, s89, s95')
        a(f'v_lshlrev_b32 v163, 5, v{U}')
        a(f'v_lshl_add_u32 v163, v{U+1}, 3, v163')
        a('s_lshl_b32 s95, s77, 8')
        a(f's_add_u32 s95, s95, {hx(WS_ST)}')
        a('s_cmp_eq_u32 s3, 0')
        a('s_cbranch_scc1 Lao_nost')
        a(f'buffer_load_dwordx2 {vr(U+10,2)}, v{U+6}, s[20:23], s95 offen sc0 sc1')
        a(f'buffer_load_dwordx2 {vr(XR+4,2)}, v163, s[20:23], s89 offen sc1')
        a('s_branch Lao_nost2')
        a.label('Lao_nost')
        a(f'buffer_load_dwordx2 {vr(XR+4,2)}, v161, s[64:67], s93 offen')
        a.label('Lao_nost2')
        a(f'buffer_load_dwordx4 {vr(XR,4)}, v160, s[64:67], s93 offen sc1')
        a(f'v_cmp_eq_u32 vcc, 0, v{U}')
        a(f'v_mov_b32 v162, {hx(ONES2)}')
        for i in range(6): a(f'v_cndmask_b32 v{WR+i}, 0, v162, vcc')
        a('s_mov_b32 exec_lo, 0x01000100')
        a('s_mov_b32 exec_hi, 0x01000100')
        a(f'buffer_load_dwordx4 {vr(WR,4)}, v{U+2}, s[68:71], 0 offen')
        a(f'buffer_load_dwordx2 {vr(WR+4,2)}, v{U+3}, s[68:71], 0 offen')
        a('s_mov_b64 exec, -1')
    order = [8, 0, 1, 2, 3, 4, 5, 6, 7]
    kread(8, 0); kread(0, 1); vread(8, 0)
    a('s_waitcnt lgkmcnt(6)')
    m1(0, SB, vr(MD, 16)); m2(0, SB)
    mxall(SB, True)
    a.label('Latt_havemax')
    a(f'v_max_f32 v{MX}, v{MX}, v{MX+1}')
    a(f'v_mov_b32 v{MX+1}, v{MX}')
    a(f'v_permlane32_swap_b32 v{MX}, v{MX+1}')
    a(f'v_max_f32 v{MX}, v{MX}, v{MX+1}')
    for v in range(16): a(f'v_sub_f32 v{ME+v}, v{ME+v}, v{MX}')
    for v in range(16): a(f'v_sub_f32 v{SB+v}, v{SB+v}, v{MX}')
    stamp(a, 5)
    def pv(b, i, first):
        c = '0' if first else vr(OA, 16)
        a(f'v_mfma_f32_32x32x16_bf16 {vr(OA,16)}, {vr(VF+8*b+4*i,4)}, {vr(P+4*i,4)}, {c}')
    for n in range(9):
        sb = SB + 16 * (n % 2); sn = SB + 16 * ((n + 1) % 2)
        nx = n + 1 < 9
        for i in range(2): a(f'v_exp_f32 v{sb+i}, v{sb+i}')
        if n > 0: pv((n - 1) % 2, 1, False)
        if nx: vread(order[n + 1], (n + 1) % 2)
        for i in range(2, 5): a(f'v_exp_f32 v{sb+i}, v{sb+i}')
        if nx:
            a('s_waitcnt lgkmcnt(4)')
            m1((n + 1) % 2, sn, vr(ME, 16) if n == 0 else vr(NM, 16))
        else: a('s_waitcnt lgkmcnt(0)')
        if n + 2 < 9: kread(order[n + 2], n % 2)
        for i in range(5, 8): a(f'v_exp_f32 v{sb+i}, v{sb+i}')
        for i in range(4): a(f'v_cvt_pk_bf16_f32 v{P+i}, v{sb+2*i}, v{sb+2*i+1}')
        if nx: m2((n + 1) % 2, sn)
        for i in range(8, 12): a(f'v_exp_f32 v{sb+i}, v{sb+i}')
        pv(n % 2, 0, n == 0)
        if n == 4: early()
        if n == 0:
            for v in range(16): a(f'v_sub_f32 v{NM+v}, 0, v{MX}')
        for i in range(12, 16): a(f'v_exp_f32 v{sb+i}, v{sb+i}')
        for i in range(4, 8): a(f'v_cvt_pk_bf16_f32 v{P+i}, v{sb+2*i}, v{sb+2*i+1}')
    pv(0, 1, False)
    stamp(a, 6)
    cstamp(a, 13)
    a(f'v_add_f32 v{T+1}, |v{OA}|, v{OA+12}')
    a(f'v_add_f32 v{T+6}, |v{OA+1}|, |v{OA+2}|')
    for v in range(3, 12): a(f'v_add_f32 v{T+1+5*(v%2)}, |v{OA+v}|, v{T+1+5*(v%2)}')
    a(f'v_add_f32 v{T+1}, v{T+1}, v{T+6}')
    a(f'v_cmp_nlt_f32 vcc, v{T+1}, v{T+7}')
    a('s_cmp_eq_u32 s62, 1')
    a('s_cbranch_scc1 Latt_out')
    a('s_cbranch_vccnz Latt_exact')
    a.label('Latt_out')
    a(f'v_rcp_f32 v{T+1}, v{OA+12}')
    for v in range(12): a(f'v_mul_f32 v{OA+v}, v{OA+v}, v{T+1}')
    for v in range(6): a(f'v_cvt_pk_bf16_f32 v{P+v}, v{OA+2*v}, v{OA+2*v+1}')
    for v in range(6): a(f'v_min_u32 v{P+v}, -2, v{P+v}')
    a(f'v_permlane32_swap_b32 v{P}, v{P+2}')
    a(f'v_permlane32_swap_b32 v{P+1}, v{P+3}')
    a(f'buffer_store_dwordx4 {vr(P,4)}, v{T}, s[20:23], s27 offen sc1')
    a('s_mov_b32 exec_hi, 0')
    a(f'buffer_store_dwordx2 {vr(P+4,2)}, v11, s[20:23], s44 offen sc1')
    if 'H' not in XA:
        a('s_mov_b32 exec_lo, 1')
        a(f'v_mov_b32 v{P+6}, s98')
        a(f'buffer_store_dword v{P+6}, v11, s[20:23], s8 offen sc1')
    a('s_mov_b64 exec, -1')
    stamp(a, 7)
    RA = 12; AF = 48; WF = 100; NB = 3
    AC = lambda t: 28 + 4 * t if t < 2 else 88 + 4 * (t - 2)
    OP_RED = 0; SA = 4; OP_ST = 24576
    a('s_lshl_b32 s78, s77, 8')
    a('s_lshl_b32 s79, s76, 18')
    a('s_add_u32 s78, s78, s79')
    a(f's_add_u32 s78, s78, {hx(WS_O)}')
    for p in range(5):
        a(f's_lshl_b32 s{SA+p}, s73, 19')
        a(f's_add_u32 s{SA+p}, s{SA+p}, s78')
        if p < 4:
            a('s_add_u32 s73, s73, 1')
            a('s_cmp_eq_u32 s73, 5')
            a('s_cselect_b32 s73, 0, s73')
    a(f'v_lshrrev_b32 v{RA}, 2, v0')
    a(f'v_mul_u32_u24 v{RA}, 160, v{RA}')
    a('v_and_b32 v3, 3, v0')
    a(f'v_lshl_add_u32 v{RA}, v3, 3, v{RA}')
    a('s_mul_i32 s36, s76, 10240')
    a(f's_add_u32 s36, s36, {WOB}')
    a('s_lshl_b32 s37, s76, 6')
    a('s_xor_b32 s38, s37, 64')
    a('s_add_u32 s37, s37, s36')
    a('s_add_u32 s38, s38, s36')
    a(f'v_add_u32 v{RA+2}, s38, v{RA}')
    a(f'v_add_u32 v4, s36, v{RA}')
    a(f'v_add_u32 v{RA}, s37, v{RA}')
    a(f'v_add_u32 v{RA+1}, {3*20480}, v{RA}')
    a(f'v_add_u32 v{RA+3}, {3*20480}, v{RA+2}')
    a(f'v_add_u32 v5, {3*20480}, v4')
    a(f'v_lshlrev_b32 v2, 15, v{U+1}')
    a(f'v_add_u32 v2, v2, v{U+6}')
    a(f'v_add_u32 v7, {4*PLANE}, v2')
    a(f'v_and_b32 v3, 3, v0')
    for i in range(1, 4): a(f'v_cmp_eq_u32 s[{50+2*i}:{51+2*i}], {i}, v3')
    a('s_lshl_b32 s39, s10, 8')
    a(f'v_add_u32 v11, s39, v{U+6}')
    a(f'v_lshl_add_u32 v8, v{U+1}, 2, v11')
    a('s_lshl_b32 s38, s77, 4')
    a(f'v_add_u32 v10, s38, v{U}')
    aload = lambda s, sc: f'buffer_load_dwordx4 {vr(AF+4*s,4)}, v{7 if s % 2 else 2}, s[20:23], s{SA+s//2} offen {sc}'
    a(f's_waitcnt vmcnt({2 if "H" in XA else 3})')
    if 'E' in XA:
        for s in range(10): a(aload(s, ASC))
    stamp(a, 8)
    MM = vr(U + 8, 2)
    a('s_cmp_eq_u32 s3, 0')
    a('s_cbranch_scc1 Lop_res')
    ln_scalars(a, U + 10, U + 11, U + 8, U + 9, 3)
    for i in range(0, 6, 2):
        tt = [88, 94]
        for k in range(2): unpack(a, tt[k] + 4, XR + i + k)
        for k in range(2): a(f'v_pk_add_f32 {vr(tt[k]+2,2)}, {vr(tt[k]+4,2)}, {MM} op_sel_hi:[1,0] neg_lo:[0,1] neg_hi:[0,1]')
        for k in range(2): a(f'v_cvt_pk_bf16_f32 v{tt[k]}, v{tt[k]+2}, v{tt[k]+3}')
        for k in range(2): unpack(a, tt[k] + 2, tt[k])
        for k in range(2): a(f'v_pk_mul_f32 {vr(tt[k]+2,2)}, {vr(tt[k]+2,2)}, {MM} op_sel:[0,1] op_sel_hi:[1,1]')
        for k in range(2): a(f'v_cvt_pk_bf16_f32 v{tt[k]}, v{tt[k]+2}, v{tt[k]+3}')
        for k in range(2): unpack(a, tt[k] + 2, tt[k])
        for k in range(2): a(f'v_pk_add_f32 {vr(tt[k]+2,2)}, {vr(tt[k]+2,2)}, {vr(tt[k]+4,2)}')
        for k in range(2): a(f'v_cvt_pk_bf16_f32 v{XR+i+k}, v{tt[k]+2}, v{tt[k]+3}')
    a('v_mov_b32 v3, -1')
    for i in range(8):
        a(f'v_cmp_eq_u32 vcc, s{80+i}, v10')
        a(f'v_cndmask_b32 v3, v3, {i}, vcc')
    a('v_cmp_le_i32 vcc, 0, v3')
    a('s_and_saveexec_b64 s[48:49], vcc')
    a('s_cbranch_execz Lop_res2')
    a('v_lshlrev_b32 v3, 4, v3')
    a(f'v_lshl_add_u32 v6, v{U+2}, 3, v3')
    a(f'v_and_b32 v10, 0xfffffff0, v{U+3}')
    a('v_lshl_add_u32 v3, v10, 3, v3')
    a(f'v_and_or_b32 v3, v{U+3}, 8, v3')
    a(f's_mov_b32 s94, {hx(WS_XS)}')
    a(f'buffer_load_dwordx4 {vr(XR,4)}, v6, s[20:23], s94 offen sc1')
    a(f'buffer_load_dwordx2 {vr(XR+4,2)}, v3, s[20:23], s94 offen sc1')
    a('s_waitcnt vmcnt(0)')
    a.label('Lop_res2')
    a('s_mov_b64 exec, s[48:49]')
    a.label('Lop_res')
    for i in range(6): unpack(a, XF + 2 * i, XR + i)
    if 'F' in XA:
        for s in range(10): a(aload(s, ASC))
    a('s_barrier')
    stamp(a, 9)
    WB = lambda s: WF + 20 * (s % NB)
    def wread(s, t):
        p, k = s // 2, s % 2
        reg = (RA if t < 2 else RA + 2 if t < 4 else 4) + (1 if p >= 3 else 0)
        off = (p % 3) * 20480 + k * 5120 + (32 * (t % 2) if t < 4 else 128)
        for j in range(2):
            a(f'ds_read_b64_tr_b16 {vr(WB(s)+4*t+2*j,2)}, v{reg} offset:{off+j*2560}')
    def mm(s, t):
        c = '0' if s == 0 else vr(AC(t), 4)
        a(f'v_mfma_f32_16x16x32_bf16 {vr(AC(t),4)}, {vr(WB(s)+4*t,4)}, {vr(AF+4*s,4)}, {c}')
    a('s_mov_b32 s43, 0')
    aload = lambda s, sc: f'buffer_load_dwordx4 {vr(AF+4*s,4)}, v{7 if s % 2 else 2}, s[20:23], s{SA+s//2} offen {sc}'
    if os.environ.get('DLY'): a(f's_sleep {os.environ["DLY"]}')
    SPL = [int(c) for c in os.environ.get('SPL', '433')]
    nl = 0
    for s in range(NB):
        for _ in range(SPL[s]):
            a(aload(nl, ASC)); nl += 1
        for t in range(5): wread(s, t)
    while nl < 10:
        a(aload(nl, ASC)); nl += 1
    for s in range(10):
        r = AF + 4 * s
        a(f's_waitcnt vmcnt({9-s})')
        a(f'v_max3_u32 v6, v{r}, v{r+1}, v{r+2}')
        a(f'v_max_u32 v6, v6, v{r+3}')
        a('v_cmp_eq_u32 vcc, -1, v6')
        a(f's_cbranch_vccnz Lop_retry{s+1}')
        a.label(f'Lop_ok{s+1}')
        if s == 0: stamp(a, 10)
        a(f's_waitcnt lgkmcnt({min(15, 10 * (min(s + NB - 1, 9) - s))})')
        for t in range(5):
            mm(s, t)
            if s + NB < 10 and t > 0: wread(s + NB, t - 1)
        if s + NB < 10: wread(s + NB, 4)
    stamp(a, 11)
    a('s_mul_i32 s36, s10, 3072')
    a('v_add_u32 v12, s36, v1')
    a('s_xor_b32 s36, s10, 4')
    a('s_mul_i32 s36, s36, 3072')
    a('v_add_u32 v13, s36, v1')
    for t in range(3): a(f'ds_write_b128 v12, {vr(AC(2+t),4)} offset:{OP_RED+1024*t}')
    a('s_waitcnt lgkmcnt(0)')
    a('s_barrier')
    for t in range(3): a(f'ds_read_b128 {vr(WF+4*t,4)}, v13 offset:{OP_RED+1024*t}')
    a('s_cmp_eq_u32 s76, 0')
    def fin(idx):
        acc = lambda i: AC(0) + 2 * i if i < 4 else AC(4) + 2 * (i - 4)
        for i in idx: a(f'v_pk_add_f32 {vr(acc(i),2)}, {vr(acc(i),2)}, {vr(WF+2*i,2)}')
        for i in idx: a(f'v_cvt_pk_bf16_f32 v{XR+i}, v{acc(i)}, v{acc(i)+1}')
        if idx[0] == 0:
            for i in range(2): a(f'v_permlane16_swap_b32 v{XR+i}, v{XR+2+i}')
        for i in idx: unpack(a, acc(i), XR + i)
        for i in idx: a(f'v_pk_add_f32 {vr(acc(i),2)}, {vr(acc(i),2)}, {vr(XF+2*i,2)}')
        for i in idx: a(f'v_cvt_pk_bf16_f32 v{XR+i}, v{acc(i)}, v{acc(i)+1}')
    a('s_waitcnt lgkmcnt(1)')
    fin(range(4))
    a(f'buffer_store_dwordx4 {vr(XR,4)}, v160, s[20:23], s92 offen sc1')
    D1, D2 = AF, AF + 4
    a(f'v_mfma_f32_16x16x32_bf16 {vr(D1,4)}, {vr(WR,4)}, {vr(XR,4)}, 0')
    a(f'v_mfma_f32_16x16x32_bf16 {vr(D2,4)}, {vr(XR,4)}, {vr(XR,4)}, 0')
    a('s_cbranch_scc0 Lop_notail')
    a('s_waitcnt lgkmcnt(0)')
    fin((4, 5))
    if 'T' not in XA: a(f'buffer_store_dwordx2 {vr(XR+4,2)}, v163, s[20:23], s88 offen sc1')
    a(f'v_mfma_f32_16x16x16_bf16 {vr(D1,4)}, {vr(WR+4,2)}, {vr(XR+4,2)}, {vr(D1,4)}')
    a(f'v_mfma_f32_16x16x16_bf16 {vr(D2,4)}, {vr(XR+4,2)}, {vr(XR+4,2)}, {vr(D2,4)}')
    a.label('Lop_notail')
    a('s_mov_b32 exec_lo, 0xffff')
    a('s_mov_b32 exec_hi, 0xffff')
    a(f'ds_write_b32 v8, v{D1} offset:{OP_ST}')
    a('s_mov_b32 exec_lo, 0x00f0000f')
    a('s_mov_b32 exec_hi, 0xf0000f00')
    for i in range(1, 4): a(f'v_cndmask_b32 v{D2}, v{D2}, v{D2+i}, s[{50+2*i}:{51+2*i}]')
    a(f'ds_write_b32 v11, v{D2} offset:{OP_ST+4}')
    a('s_waitcnt lgkmcnt(0)')
    a('s_barrier')
    endpgm(a)
    for s in range(1, 11):
        a.label(f'Lop_retry{s}')
        a('s_call_b64 s[44:45], Lop_refresh')
        a(f's_branch Lop_ok{s}')
    a.label('Lop_refresh')
    a('s_mov_b32 s46, 0')
    a('s_waitcnt vmcnt(0)')
    if os.environ.get('SLP2'): a(f's_sleep {os.environ["SLP2"]}')
    for s in range(10):
        r = AF + 4 * s
        a(f'v_max3_u32 v6, v{r}, v{r+1}, v{r+2}')
        a(f'v_max_u32 v6, v6, v{r+3}')
        a('v_cmp_eq_u32 vcc, -1, v6')
        a(f's_cbranch_vccz Lop_rf{s}')
        a(aload(s, os.environ.get('RSC', 'sc0 sc1').replace('_', ' ')))
        a('s_mov_b32 s46, 1')
        a.label(f'Lop_rf{s}')
    a('s_add_u32 s43, s43, 1')
    a('s_cmp_gt_u32 s43, 0x40000')
    a('s_cselect_b32 s46, 0, s46')
    a('s_cmp_eq_u32 s46, 1')
    a('s_cbranch_scc1 Lop_refresh')
    a('s_waitcnt vmcnt(0)')
    a('s_setpc_b64 s[44:45]')
    a.label('Lao_loader')
    a('v_lshlrev_b32 v1, 4, v0')
    a('s_mul_i32 s79, s74, 102400')
    a(f's_add_u32 s79, s79, {hx(WS_PWO)}')
    a('s_mul_i32 s80, s73, 20480')
    a('s_add_u32 s80, s80, s79')
    a('s_add_u32 s81, s79, 102400')
    a(f's_mov_b32 s82, {WOB}')
    a('s_cmp_eq_u32 s3, 0')
    a(f's_mov_b32 s83, {WOB+20480*(5-NW)}')
    a('s_cselect_b32 s83, 0, s83')
    def wo_block():
        a('s_mov_b32 m0, s82')
        for i in range(4): a(f'buffer_load_dwordx4 v1, s[20:23], s80 offen offset:{1024*i} sc1 lds')
        a('s_add_u32 s80, s80, 4096')
        a('s_cmp_eq_u32 s80, s81')
        a('s_cselect_b32 s80, s79, s80')
        a('s_add_u32 s82, s82, 4096')
    def idle():
        a('s_mov_b64 exec, -1')
        for _ in range(int(os.environ.get('IB', '3'))):
            a('s_cmp_ge_u32 s82, s83')
            a('s_cbranch_scc1 Lao_idle')
            wo_block()
        a.label('Lao_idle')
        a('s_sleep 1')
    a('s_waitcnt lgkmcnt(0)')
    a('v_add_u32 v3, 2, v0')
    a('v_and_b32 v4, 3, v3')
    a('s_lshl_b32 s16, s14, 1')
    a('s_sub_u32 s16, s16, 2')
    a('v_add_u32 v4, s16, v4')
    a('v_max_i32 v4, 0, v4')
    a('v_mul_u32_u24 v4, 12, v4')
    a('v_and_b32 v3, 12, v3')
    a('s_lshr_b32 s16, s13, 3')
    a('s_add_u32 s16, s16, 64')
    a('v_add3_u32 v2, v4, v3, s16')
    a('s_lshr_b32 s16, s72, 1')
    a('s_mul_i32 s16, s16, 12')
    a('s_add_u32 s16, s16, 54')
    a('v_add_u32 v3, s16, v0')
    a('v_cmp_gt_u32 vcc, 10, v0')
    a('v_cndmask_b32 v2, v3, v2, vcc')
    a('s_mul_i32 s16, s74, 25')
    a('s_add_u32 s16, s16, 56')
    a('s_lshr_b32 s16, s16, 2')
    a('s_sub_u32 s16, s16, 22')
    a('v_add_u32 v3, s16, v0')
    a('v_cmp_gt_u32 vcc, 22, v0')
    a('v_cndmask_b32 v2, v3, v2, vcc')
    slot_to_off_v(a, 2, 3)
    a('s_mov_b32 s85, s11')
    a('s_mov_b32 s86, s12')
    a('s_cmp_eq_u32 s9, 0')
    a('s_cbranch_scc1 Lao_nf')
    a('s_barrier')
    a.label('Lao_f8')
    wo_block()
    a(f's_cmp_lt_u32 s82, {WOB+40960}')
    a('s_cbranch_scc1 Lao_f8')
    a('s_barrier')
    a.label('Lao_nf')
    a('s_cmp_eq_u32 s3, 0')
    a('s_mov_b32 exec_lo, 0x3fffff')
    a('s_cselect_b32 exec_lo, 0x1fffffff, exec_lo')
    a('s_mov_b32 exec_hi, 0')
    flag_wait(a, [2], idle)
    a('s_barrier')
    stamp(a, 2)
    a('s_cmp_eq_u32 s3, 0')
    a('s_cbranch_scc1 Lao_nopatch')
    a('v_lshrrev_b32 v2, 3, v0')
    a('v_and_b32 v3, 7, v0')
    a('v_min_u32 v2, 5, v2')
    a('v_cmp_lt_u32 vcc, 2, v2')
    a('v_cndmask_b32 v4, 0, 3, vcc')
    a('v_sub_u32 v4, v2, v4')
    a('v_mov_b32 v5, 80')
    a('v_mov_b32 v6, 160')
    a('v_cndmask_b32 v5, v5, v6, vcc')
    a('s_lshr_b32 s16, s13, 1')
    a('s_mul_i32 s16, s16, 5')
    a('s_and_b32 s17, s13, 1')
    a('s_mul_i32 s17, s17, 3')
    a('v_add_u32 v6, s17, v4')
    a('v_cmp_eq_u32 vcc, 2, v4')
    a('v_cndmask_b32 v6, v6, v4, vcc')
    a('v_add_u32 v6, s16, v6')
    a('v_lshlrev_b32 v7, 4, v3')
    a('v_lshl_add_u32 v8, v6, 7, v7')
    a('v_lshl_add_u32 v9, v5, 7, v8')
    a('v_lshlrev_b32 v15, 2, v3')
    a(f's_mov_b32 s16, {hx(WS_QS)}')
    a(f's_mov_b32 s17, {hx(WS_SEL)}')
    a('s_mov_b32 s12, 0')
    a.label('Lao_qs')
    a('buffer_load_dword v16, v15, s[20:23], s17 offen sc0 sc1')
    a('buffer_load_dwordx4 v[20:23], v9, s[20:23], s16 offen sc0 sc1')
    a('buffer_load_dwordx4 v[24:27], v8, s[20:23], s16 offen sc0 sc1')
    a('s_add_u32 s12, s12, 1')
    a('s_waitcnt vmcnt(0)')
    a('v_max3_u32 v17, v20, v21, v22')
    a('v_max3_u32 v18, v23, v24, v25')
    a('v_max3_u32 v17, v17, v26, v27')
    a('v_max3_u32 v17, v17, v18, v16')
    a('v_cmp_eq_u32 vcc, -1, v17')
    a('s_cbranch_vccz Lao_qs2')
    a('s_sleep 2')
    a('s_cmp_lt_u32 s12, 0x40000')
    a('s_cbranch_scc1 Lao_qs')
    a.label('Lao_qs2')
    stamp(a, 3)
    a(f'v_add_u32 v15, {QP}, v15')
    a('ds_write_b32 v15, v16')
    a('v_lshl_add_u32 v7, v4, 7, v7')
    a(f'v_add_u32 v7, {QP}, v7')
    a('ds_write_b128 v7, v[24:27] offset:32')
    a('s_lshl_b32 s16, s14, 8')
    a('s_sub_u32 s16, s16, 256')
    a('v_subrev_u32 v16, s16, v16')
    a(f'v_mul_u32_u24 v2, {PS}, v2')
    a('v_lshl_add_u32 v2, v16, 4, v2')
    a('v_cmp_gt_u32 vcc, 0x200, v16')
    a('s_barrier')
    a('s_mov_b64 exec, vcc')
    a('ds_write_b128 v2, v[20:23]')
    a('s_mov_b64 exec, -1')
    a('s_waitcnt lgkmcnt(0)')
    a.label('Lao_nopatch')
    a('s_barrier')
    a.label('Lao_lloop')
    a(f's_cmp_ge_u32 s82, {WOB+20480*(5-NW)}')
    a('s_cbranch_scc1 Lao_ldone')
    wo_block()
    a(f's_waitcnt vmcnt({os.environ.get("WTH", "24")})')
    a('s_branch Lao_lloop')
    a.label('Lao_ldone')
    stamp(a, 1)
    wait_all(a)
    stamp(a, 4)
    if 'G' not in XA:
        a('v_lshlrev_b32 v2, 7, v0')
        a('s_min_u32 s32, s86, 29')
        a('s_mul_i32 s33, s32, 52')
        a('s_lshr_b32 s33, s33, 8')
        a('s_mul_i32 s34, s33, 5')
        a('s_sub_u32 s32, s32, s34')
        a('s_lshl_b32 s32, s32, 14')
        a('s_lshl3_add_u32 s33, s33, s85')
        a('s_mul_i32 s33, s33, 81920')
        a('s_add_u32 s32, s32, s33')
        a(f's_add_u32 s32, s32, {hx(WS_PG)}')
        a('buffer_load_dword v30, v2, s[20:23], s32 offen sc1')
        a('s_add_u32 s32, s32, 8192')
        a('buffer_load_dword v30, v2, s[20:23], s32 offen sc1')
    if 'H' not in XA:
        a('v_lshlrev_b32 v2, 7, v0')
        a('s_lshl_b32 s16, s72, 13')
        a('s_lshl_b32 s17, s97, 17')
        a('s_add_u32 s16, s16, s17')
        a(f's_add_u32 s16, s16, {hx(WS_HF - 131072)}')
        flag_wait(a, [2], base='s16')
    a('s_barrier')
    a('v_lshlrev_b32 v3, 2, v0')
    a('s_lshl_b32 s16, s72, 10')
    a('s_add_u32 s16, s16, s63')
    a(f's_add_u32 s16, s16, {hx(WS_ST)}')
    a('v_and_b32 v2, 3, v0')
    a('v_cmp_eq_u32 vcc, 3, v2')
    a('s_barrier')
    a('s_barrier')
    for k in range(8): a(f'ds_read_b32 v{8+k}, v3 offset:{OP_ST+256*k}')
    a('s_waitcnt lgkmcnt(0)')
    for k in range(4):
        a(f'v_add_f32 v{8+k}, v{8+k}, v{12+k}')
        a(f'v_cndmask_b32 v{8+k}, v{8+k}, 1.0, vcc')
        a(f'buffer_atomic_add_f32 v{8+k}, v3, s[20:23], s16 offen offset:{256*k}')
    a('s_branch La_fin2')
    L_FX = WOB + 40960
    FXF = 48; WA = 68; WB_ = 88; DA = 108; DB = 112; R = 116; FM = 126
    a.label('Lfix')
    ksrd(a, 40, KA_WQKV, D * 3 * D * 2)
    a('s_and_b32 s76, s2, 1')
    a('s_mul_i32 s76, s76, 20')
    a('s_lshr_b32 s77, s2, 1')
    a('s_add_u32 s76, s76, s77')
    a('s_and_b32 s77, s10, 3')
    a('s_lshr_b32 s78, s10, 2')
    for i in range(3):
        a(f'v_add_u32 v{R}, {64*i}, v0')
        a(f'v_mul_u32_u24 v{R+1}, 10923, v{R}')
        a(f'v_lshrrev_b32 v{R+1}, 16, v{R+1}')
        a(f'v_mul_u32_u24 v{R+2}, 6, v{R+1}')
        a(f'v_sub_u32 v{R}, v{R}, v{R+2}')
        a(f'v_and_b32 v{R+2}, 12, v{R+1}')
        a(f'v_and_b32 v{R+3}, 3, v{R+1}')
        a(f'v_lshl_or_b32 v{R+2}, v{R+2}, 1, v{R+3}')
        a(f'v_lshrrev_b32 v{R+1}, 4, v{R+1}')
        a(f'v_lshl_or_b32 v{R+2}, v{R+1}, 2, v{R+2}')
        a(f'v_mul_u32_u24 v{R+1}, 3840, v{R+2}')
        a(f'v_lshl_add_u32 v{R+4+i}, v{R}, 4, v{R+1}')
    a(f's_mul_i32 s79, s10, {32*3840}')
    a('s_mul_i32 s80, s76, 96')
    a('s_add_u32 s79, s79, s80')
    a('s_mul_i32 s80, s10, 3072')
    a(f's_add_u32 s80, s80, {L_FX}')
    a('s_waitcnt lgkmcnt(0)')
    for n in range(3):
        if n == 2:
            a('s_cmp_ge_u32 s10, 4')
            a('s_cbranch_scc1 Lfix_w')
        for i in range(3):
            a(f's_add_u32 m0, s80, {24576*n+1024*i}')
            a(f'buffer_load_dwordx4 v{R+4+i}, s[40:43], s79 offen lds')
        if n < 2: a(f's_add_u32 s79, s79, {256*3840}')
    a.label('Lfix_w')
    a(f'v_lshrrev_b32 v{R}, 2, v0')
    a(f'v_mul_u32_u24 v{R}, 96, v{R}')
    a(f'v_and_b32 v{R+1}, 3, v0')
    a(f'v_lshl_add_u32 v{R}, v{R+1}, 3, v{R}')
    a('s_mul_i32 s79, s77, 15360')
    a('s_lshl_b32 s80, s78, 6')
    a('s_add_u32 s79, s79, s80')
    a(f's_add_u32 s79, s79, {L_FX}')
    a(f'v_add_u32 v{R}, s79, v{R}')
    a(f'v_and_b32 v{R+2}, 7, v0')
    a(f'v_lshrrev_b32 v{R+3}, 4, v0')
    a('s_waitcnt vmcnt(0)')
    a('s_barrier')
    for s in range(5):
        for j in range(2):
            a(f'ds_read_b64_tr_b16 {vr(WA+4*s+2*j,2)}, v{R} offset:{3072*s+1536*j}')
            a(f'ds_read_b64_tr_b16 {vr(WB_+4*s+2*j,2)}, v{R} offset:{3072*s+1536*j+32}')
    a(f'v_lshlrev_b32 v{R+1}, 7, v{R+3}')
    a(f'v_lshl_add_u32 v{R+1}, v{R+2}, 4, v{R+1}')
    a('s_mul_i32 s79, s77, 2560')
    a(f's_add_u32 s79, s79, {hx(WS_XS)}')
    for i in range(20): a(f'v_mov_b32 v{FXF+i}, {hx(ONES2)}')
    a('s_lshl_b32 s80, s77, 12')
    a('s_lshl_b32 s81, s78, 11')
    a('s_add_u32 s80, s80, s81')
    a(f'v_add_u32 v{R+4}, s80, v1')
    a('s_lshl_b32 s80, s10, 10')
    a(f'v_add_u32 v{R+5}, s80, v1')
    a(f'v_lshrrev_b32 v{R+6}, 2, v{R+2}')
    a(f'v_lshlrev_b32 v{R+6}, 8, v{R+6}')
    a(f'v_lshl_add_u32 v{R+6}, v{R+2}, 4, v{R+6}')
    a(f'v_and_b32 v{R+7}, 3, v{R+2}')
    a(f'v_lshl_add_u32 v{R+6}, v{R+7}, 2, v{R+6}')
    a(f'v_lshlrev_b32 v{R+7}, 4, v{R+2}')
    a(f'v_lshrrev_b32 v{R+8}, 1, v{R+3}')
    a(f'v_lshl_add_u32 v{R+8}, v{R+8}, 7, v{R+7}')
    a(f'v_and_b32 v{R+9}, 1, v{R+3}')
    a(f'v_lshl_add_u32 v{R+8}, v{R+9}, 3, v{R+8}')
    a('s_mul_i32 s81, s76, 3')
    a('s_add_u32 s81, s81, s10')
    a('s_cmp_lt_u32 s81, 40')
    a(f's_cselect_b32 s82, {hx(QSCALE)}, 1.0')
    a('s_lshl_b32 s81, s81, 8')
    a(f's_add_u32 s81, s81, {hx(WS_QS)}')
    a('s_mov_b32 exec_lo, 0x00ff00ff')
    a('s_mov_b32 exec_hi, 0x00ff00ff')
    a('s_mov_b32 s80, 0')
    a.label('Lfix_poll')
    for s in range(5): a(f'buffer_load_dwordx4 {vr(FXF+4*s,4)}, v{R+1}, s[20:23], s79 offen offset:{512*s} sc0 sc1')
    a('s_add_u32 s80, s80, 1')
    for s in range(5):
        a(f's_waitcnt vmcnt({4-s})')
        r = FXF + 4 * s
        if s == 0: a(f'v_max_u32 v{R+9}, v{r}, v{r+1}')
        else: a(f'v_max3_u32 v{R+9}, v{r}, v{r+1}, v{R+9}')
        a(f'v_max3_u32 v{R+9}, v{r+2}, v{r+3}, v{R+9}')
    a(f'v_cmp_eq_u32 vcc, -1, v{R+9}')
    a('s_cbranch_vccz Lfix_go')
    a('s_sleep 2')
    a('s_cmp_lt_u32 s80, 0x40000')
    a('s_cbranch_scc1 Lfix_poll')
    a.label('Lfix_go')
    a('s_mov_b64 exec, -1')
    a('s_waitcnt lgkmcnt(0)')
    a('s_cmp_eq_u32 s78, 0')
    a('s_cbranch_scc1 Lfix_m')
    for i in range(20): a(f'v_mov_b32 v{WB_+i}, v{FXF+i}')
    a.label('Lfix_m')
    for s in range(5):
        a(f'v_mfma_f32_16x16x32_bf16 {vr(DA,4)}, {vr(WA+4*s,4)}, {vr(FXF+4*s,4)}, {"0" if s == 0 else vr(DA,4)}')
        a(f'v_mfma_f32_16x16x32_bf16 {vr(DB,4)}, {vr(WB_+4*s,4)}, {vr(FXF+4*s,4)}, {"0" if s == 0 else vr(DB,4)}')
    a(f'ds_write_b128 v{R+4}, {vr(DA,4)}')
    a(f'ds_write_b128 v{R+4}, {vr(DB,4)} offset:1024')
    a('s_waitcnt lgkmcnt(0)')
    a('s_barrier')
    a('s_cmp_gt_u32 s10, 2')
    a('s_cbranch_scc1 Lfix_done')
    for q in range(4):
        a(f'ds_read_b32 v{WA+q}, v{R+7} offset:{4096*q+3072+512}')
        a(f'ds_read_b32 v{WA+4+q}, v{R+6} offset:{4096*q+3072}')
    for q in range(4): a(f'ds_read_b128 {vr(FXF+4*q,4)}, v{R+5} offset:{4096*q}')
    a('s_waitcnt lgkmcnt(4)')
    for b in (WA, WA + 4):
        a(f'v_add_f32 v{b}, v{b}, v{b+1}')
        a(f'v_add_f32 v{b+2}, v{b+2}, v{b+3}')
        a(f'v_add_f32 v{b}, v{b}, v{b+2}')
    ln_scalars(a, WA, WA + 4, FM, FM + 1, R + 9)
    a(f'v_mul_f32 v{FM+1}, s82, v{FM+1}')
    a('s_waitcnt lgkmcnt(0)')
    for i in range(2):
        a(f'v_pk_add_f32 {vr(FXF+2*i,2)}, {vr(FXF+2*i,2)}, {vr(FXF+4+2*i,2)}')
        a(f'v_pk_add_f32 {vr(FXF+8+2*i,2)}, {vr(FXF+8+2*i,2)}, {vr(FXF+12+2*i,2)}')
    for i in range(2): a(f'v_pk_add_f32 {vr(FXF+2*i,2)}, {vr(FXF+2*i,2)}, {vr(FXF+8+2*i,2)}')
    for i in range(4): a(f'v_mov_b32_dpp v{FXF+4+i}, v{FXF+i} row_newbcast:8 row_mask:0xf bank_mask:0xf')
    for i in range(4): a(f'v_fma_f32 v{FXF+i}, -v{FM}, v{FXF+4+i}, v{FXF+i}')
    for i in range(4): a(f'v_mul_f32 v{FXF+i}, v{FXF+i}, v{FM+1}')
    a(f'v_cvt_pk_bf16_f32 v{FXF+4}, v{FXF}, v{FXF+1}')
    a(f'v_cvt_pk_bf16_f32 v{FXF+5}, v{FXF+2}, v{FXF+3}')
    for i in range(2): a(f'v_min_u32 v{FXF+4+i}, -2, v{FXF+4+i}')
    a('s_mov_b32 exec_lo, 0x00ff00ff')
    a('s_mov_b32 exec_hi, 0x00ff00ff')
    a(f'buffer_store_dwordx2 {vr(FXF+4,2)}, v{R+8}, s[20:23], s81 offen sc0 sc1')
    a('s_mov_b64 exec, -1')
    a('s_branch Lfix_done')
    a.label('Latt_exact')
    a('s_mov_b32 s62, 1')
    a('s_waitcnt vmcnt(0)')
    masks()
    for n, t in enumerate([0, 1, 2, 3, 4, 5, 6, 7, 8]):
        kread(t, 0)
        a('s_waitcnt lgkmcnt(0)')
        m1(0, SB, vr(ME, 16) if t == 0 else vr(MD, 16) if t == 8 else '0'); m2(0, SB)
        mxall(SB, n == 0)
    kread(0, 1); vread(8, 0)
    a('s_branch Latt_havemax')
    a.label('La_fin')
    phase_end(a, lambda a: (a('s_lshl3_add_u32 s11, s72, s74'), slot_to_off_s(a, 11)), 'La_fin2')
    mark(a, 'op')
    a('s_cmp_lg_u32 s3, 0')
    a('s_cbranch_scc1 Lf_start')
    a(f's_mov_b32 s3, {hx(WS_X1)}')
    a('s_branch Lq_start')
```

```python
from common import *
def xn_pair(a, lo, M, t):
    a(f'v_pk_add_f32 {vr(t+2,2)}, {vr(lo,2)}, {vr(M,2)} op_sel_hi:[1,0] neg_lo:[0,1] neg_hi:[0,1]')
    a(f'v_cvt_pk_bf16_f32 v{t}, v{t+2}, v{t+3}')
    unpack(a, t + 2, t)
    a(f'v_pk_mul_f32 {vr(t+2,2)}, {vr(t+2,2)}, {vr(M,2)} op_sel:[0,1] op_sel_hi:[1,1]')
    a(f'v_cvt_pk_bf16_f32 v{t}, v{t+2}, v{t+3}')

L_LIST = 0
L_SEL = 12288 + 128
L_CNT = 12288
L_GM = L_CNT + 64
L_RED = 0
L_W = 13312
FS_LDS = L_W + 147456
L_FX = L_W + 81920

S1 = os.environ.get('S1', 'sc1').replace('_', ' '); S2 = os.environ.get('S2', 'sc1').replace('_', ' ')
OSC = os.environ.get('OSC', 'sc1').replace('_', ' '); OSC2 = os.environ.get('OSC2', '').replace('_', ' ')
def gen_ffn(a):
    a.fin = 'Lfs_fin'
    a.label('Lf_start')
    ksrd(a, 20, KA_OUT, S * D * 2)
    a('s_cmp_ge_u32 s2, 128')
    a('s_cbranch_scc1 Lfs_bye')
    a('s_mov_b32 s13, s2')
    a('s_mov_b32 s53, 0')
    a(f's_mov_b32 s51, {CTL_SZ}')
    ST = 64; KEY = 28; T = 32; RK = 16
    a.label('Lfs')
    ksrd(a, 32, KA_WR, D * 2)
    a('s_cmp_eq_u32 s53, 0')
    a(f's_mov_b32 s50, {hx(WS_X1)}')
    a(f's_cselect_b32 s50, {hx(WS_X1 + X_SZ)}, s50')
    a('s_cmp_eq_u32 s10, 8')
    a('s_cbranch_scc1 Lfs_w8')
    a('s_lshl_b32 s11, s10, 6')
    a('v_add_u32 v15, s11, v0')
    a('v_lshlrev_b32 v2, 4, v15')
    a('v_mul_u32_u24 v3, 20, v0')
    a('v_lshlrev_b32 v1, 4, v0')
    a(f's_add_u32 s44, s51, {hx(WS_ST)}')
    for j in range(1, 4): a(f's_add_u32 s{44+j}, s44, {8192*j}')
    for i in range(4): a(f'v_mov_b32 v{T+8+i}, 0')
    a('v_mov_b32 v9, 0')
    a(f'ds_write_b128 v2, {vr(T+8,4)} offset:{L_LIST}')
    a(f'ds_write_b32 v9, v9 offset:{L_CNT}')
    a('s_cmp_ge_u32 s13, 48')
    a('s_cselect_b32 s54, 1, 0')
    a('s_cmp_ge_u32 s13, 62')
    a('s_cselect_b32 s54, 2, s54')
    a('s_mov_b32 s62, s13')
    a('s_mul_i32 s55, s13, 81920')
    a('s_mul_i32 s56, s10, 10240')
    a('s_add_u32 s55, s55, s56')
    a(f's_add_u32 s55, s55, {hx(WS_PG)}')
    a(f's_add_u32 s56, s56, {L_W}')
    a('s_sub_u32 s14, s13, 48')
    a('s_mul_i32 s14, s14, 3')
    a('s_min_u32 s14, s14, 37')
    a('s_mul_i32 s57, s14, 49152')
    a('s_mul_i32 s12, s10, 6144')
    a('s_add_u32 s57, s57, s12')
    a(f's_add_u32 s57, s57, {hx(WS_PD)}')
    a('s_mul_i32 s58, s10, 18432')
    a(f's_add_u32 s58, s58, {L_W}')
    a('s_waitcnt lgkmcnt(0)')
    stamp(a, 1)
    a(f'buffer_load_dwordx4 {vr(T,4)}, v3, s[32:35], 0 offen')
    a(f'buffer_load_dword v{T+4}, v3, s[32:35], 0 offen offset:16')
    def dn_dma(blocks):
        for n in blocks:
            a(f's_add_u32 m0, s58, {3072*n}')
            a(f's_add_u32 s12, s57, {49152*(n//2)+3072*(n%2)}')
            for i in range(3): a(f'buffer_load_dwordx4 v1, s[28:31], s12 offen offset:{1024*i} sc1 lds')
    def pace(tag, gu, dn, wait=False):
        if not gu and not dn and not wait: return
        a('s_cmp_eq_u32 s54, 1')
        a(f's_cbranch_scc1 Lfs_pd{tag}')
        a('s_cmp_eq_u32 s54, 2')
        a(f's_cbranch_scc1 Lfs_pn{tag}')
        for n in gu:
            a(f's_add_u32 m0, s56, {2048*n}')
            a(f's_add_u32 s12, s55, {2048*n}')
            for i in range(2): a(f'buffer_load_dwordx4 v1, s[28:31], s12 offen offset:{1024*i} sc1 lds')
        if wait: a(f's_waitcnt vmcnt({2*len(gu)})')
        a(f's_branch Lfs_px{tag}')
        a.label(f'Lfs_pd{tag}')
        dn_dma(dn)
        if wait:
            a(f's_waitcnt vmcnt({3*len(dn)})')
            a(f's_branch Lfs_px{tag}')
        a.label(f'Lfs_pn{tag}')
        if wait: a('s_waitcnt vmcnt(0)')
        a.label(f'Lfs_px{tag}')
    PG = {'a': ([0, 1], [2, 3], [4]), 'b': ([0, 1, 2], [3, 4], []), 'c': ([0, 1, 2, 3, 4], [], []), 'd': ([0], [1, 2], [3, 4])}[os.environ.get('PACE', 'a')]
    ND = 6
    pace(0, PG[0], range(ND), True)
    inv = hx(f2u(1.0 / D))
    for i in range(5): unpack(a, T + 8 + 2 * i, T + i)
    a(f'v_pk_add_f32 {vr(T+8,2)}, {vr(T+8,2)}, {vr(T+10,2)}')
    a(f'v_pk_add_f32 {vr(T+12,2)}, {vr(T+12,2)}, {vr(T+14,2)}')
    a(f'v_pk_add_f32 {vr(T+8,2)}, {vr(T+8,2)}, {vr(T+16,2)}')
    a(f'v_pk_add_f32 {vr(T+8,2)}, {vr(T+8,2)}, {vr(T+12,2)}')
    a(f'v_add_f32 v{T}, v{T+8}, v{T+9}')
    for r in (8, 4, 2, 1): a(f'v_add_f32_dpp v{T}, v{T}, v{T} row_ror:{r} row_mask:0xf bank_mask:0xf')
    for op in ('v_permlane16_swap_b32', 'v_permlane32_swap_b32'):
        a(f'v_mov_b32 v{T+1}, v{T}')
        a(f'{op} v{T}, v{T+1}')
        a(f'v_add_f32 v{T}, v{T}, v{T+1}')
    a(f'v_mov_b32 v{T+2}, {hx(f2u(1e-5))}')
    for j in range(4): a(f'v_sub_u32 v{T+4+j}, {2047-512*j}, v15')
    a(f's_mov_b32 s15, {inv}')
    a('s_mov_b32 s16, 0xfffff800')
    a('s_mov_b32 s12, 0')
    a('s_barrier')
    stamp(a, 11)
    mark(a, 'b')
    for j in range(4): a(f'buffer_load_dwordx4 {vr(ST+4*j,4)}, v2, s[28:31], s{44+j} offen {S1}')
    a.label('Lfs_sp')
    a('s_mov_b32 s18, 0')
    a('s_waitcnt vmcnt(0)')
    for j in range(4):
        a(f'v_cmp_neq_f32 vcc, 0x41000000, v{ST+4*j+3}')
        a(f's_cbranch_vccz Lfs_sp{j}')
        a(f'buffer_load_dwordx4 {vr(ST+4*j,4)}, v2, s[28:31], s{44+j} offen {S2}')
        a('s_mov_b32 s18, 1')
        a.label(f'Lfs_sp{j}')
    a('s_cmp_eq_u32 s18, 0')
    a('s_cbranch_scc1 Lfs_sq')
    a('s_add_u32 s12, s12, 1')
    a(f's_sleep {os.environ.get("SLPS", "1")}')
    a('s_cmp_lt_u32 s12, 0x40000')
    a('s_cbranch_scc1 Lfs_sp')
    a('s_waitcnt vmcnt(0)')
    a.label('Lfs_sq')
    stamp(a, 2)
    pace(1, PG[1], [])
    for j in range(4): a(f'v_mul_f32 v{ST+4*j}, {inv}, v{ST+4*j}')
    for j in range(4): a(f'v_fma_f32 v{ST+4*j+1}, v{ST+4*j+1}, s15, v{T+2}')
    for j in range(4): a(f'v_fma_f32 v{ST+4*j+1}, -v{ST+4*j}, v{ST+4*j}, v{ST+4*j+1}')
    for j in range(4): a(f'v_max_f32 v{ST+4*j+1}, v{T+2}, v{ST+4*j+1}')
    for j in range(4): a(f'v_rsq_f32 v{ST+4*j+1}, v{ST+4*j+1}')
    for j in range(4): a(f'v_fma_f32 v{KEY+j}, -v{ST+4*j}, v{T}, v{ST+4*j+2}')
    for j in range(4): a(f'v_mul_f32 v{KEY+j}, v{KEY+j}, v{ST+4*j+1}')
    for j in range(4): a(f'v_ashrrev_i32 v{ST+j}, 31, v{KEY+j}')
    for j in range(4): a(f'v_or_b32 v{ST+j}, 0x80000000, v{ST+j}')
    for j in range(4): a(f'v_xor_b32 v{KEY+j}, v{KEY+j}, v{ST+j}')
    for j in range(4): a(f'v_and_or_b32 v{KEY+j}, v{KEY+j}, s16, v{T+4+j}')
    a(f'v_max3_u32 v{T}, v{KEY}, v{KEY+1}, v{KEY+2}')
    a('s_lshl_b32 s11, s10, 2')
    a(f'v_max_u32 v{T}, v{T}, v{KEY+3}')
    a('v_mov_b32 v7, s11')
    for r in (8, 4, 2, 1):
        a(f'v_max_u32_dpp v{T}, v{T}, v{T} row_ror:{r} row_mask:0xf bank_mask:0xf')
    for op in ('v_permlane16_swap_b32', 'v_permlane32_swap_b32'):
        a(f'v_mov_b32 v{T+1}, v{T}')
        a(f'{op} v{T}, v{T+1}')
        a(f'v_max_u32 v{T}, v{T}, v{T+1}')
    a(f'ds_write_b32 v7, v{T} offset:{L_GM}')
    pace(2, PG[2], [])
    a('s_waitcnt lgkmcnt(0)')
    a('s_barrier')
    stamp(a, 3)
    a(f'ds_read_b128 {vr(T,4)}, v9 offset:{L_GM}')
    a(f'ds_read_b128 {vr(T+4,4)}, v9 offset:{L_GM+16}')
    a('s_waitcnt lgkmcnt(0)')
    a(f'v_min3_u32 v{T}, v{T}, v{T+1}, v{T+2}')
    a(f'v_min3_u32 v{T+3}, v{T+3}, v{T+4}, v{T+5}')
    a(f'v_min3_u32 v{T}, v{T}, v{T+6}, v{T+7}')
    a(f'v_min_u32 v{T}, v{T}, v{T+3}')
    for j in range(4): a(f'v_cmp_ge_u32 s[{64+2*j}:{65+2*j}], v{KEY+j}, v{T}')
    for j in range(4): a(f's_bcnt1_i32_b64 s{80+j}, s[{64+2*j}:{65+2*j}]')
    a('s_mov_b32 s88, 0')
    for j in range(4): a(f's_add_u32 s{89+j}, s{88+j}, s{80+j}')
    a(f'v_mov_b32 v{T+1}, s92')
    a('s_mov_b64 exec, 1')
    a(f'ds_add_rtn_u32 v{T+2}, v9, v{T+1} offset:{L_CNT}')
    a('s_mov_b64 exec, -1')
    for j in range(4):
        a(f'v_mbcnt_lo_u32_b32 v{ST+j}, s{64+2*j}, 0')
        a(f'v_mbcnt_hi_u32_b32 v{ST+j}, s{65+2*j}, v{ST+j}')
        a(f'v_add_lshl_u32 v{ST+j}, v{ST+j}, s{88+j}, 2')
    a('s_waitcnt lgkmcnt(0)')
    a(f'v_readfirstlane_b32 s95, v{T+2}')
    a('s_lshl_b32 s95, s95, 2')
    for j in range(4):
        a(f's_mov_b64 exec, s[{64+2*j}:{65+2*j}]')
        a(f'v_add_u32 v{ST+j}, s95, v{ST+j}')
        a(f'ds_write_b32 v{ST+j}, v{KEY+j} offset:{L_LIST}')
    a('s_mov_b64 exec, -1')
    a('v_and_b32 v7, 31, v0')
    a('v_lshlrev_b32 v7, 2, v7')
    a('v_and_b32 v6, 32, v0')
    a('v_lshlrev_b32 v6, 1, v6')
    a('s_lshl_b32 s17, s10, 5')
    a(f's_add_u32 s17, s17, {L_SEL}')
    a('s_mov_b32 s12, 0')
    a('s_waitcnt vmcnt(0) lgkmcnt(0)')
    a('s_barrier')
    stamp(a, 4)
    C = 32
    a(f'ds_read_b32 v14, v9 offset:{L_CNT}')
    a.label('Lfs_rank_outer')
    a(f'ds_read_b32 v{RK}, v7 offset:{L_LIST}')
    a(f'v_mov_b32 v{RK+2}, v6')
    a(f'v_mov_b32 v{RK+1}, 0')
    a(f'v_mov_b32 v{RK+3}, 0')
    a('s_mov_b32 s95, 0')
    a.label('Lfs_rank_inner')
    for i in range(4): a(f'ds_read_b128 {vr(C+4*i,4)}, v{RK+2} offset:{L_LIST+16*i}')
    a(f'v_add_u32 v{RK+2}, 128, v{RK+2}')
    for q in range(2):
        a(f's_waitcnt lgkmcnt({2-2*q})')
        for i in range(8): a(f'v_cmp_gt_u32 s[{64+2*i}:{65+2*i}], v{C+8*q+i}, v{RK}')
        for i in range(8): a(f'v_addc_co_u32 v{RK+1+2*(i%2)}, vcc, 0, v{RK+1+2*(i%2)}, s[{64+2*i}:{65+2*i}]')
    a('v_readfirstlane_b32 s94, v14')
    a('s_add_u32 s95, s95, 32')
    a('s_cmp_lt_u32 s95, s94')
    a('s_cbranch_scc1 Lfs_rank_inner')
    a(f'v_add_u32 v{RK+1}, v{RK+1}, v{RK+3}')
    a(f'v_mov_b32 v{RK+3}, v{RK+1}')
    a(f'v_permlane32_swap_b32 v{RK+1}, v{RK+3}')
    a(f'v_add_u32 v{RK+1}, v{RK+1}, v{RK+3}')
    a(f'v_cmp_gt_u32 vcc, 8, v{RK+1}')
    a(f'v_lshl_add_u32 v{RK+1}, v{RK+1}, 2, s17')
    a('s_and_saveexec_b64 s[18:19], vcc')
    a(f'ds_write_b32 v{RK+1}, v{RK}')
    a('s_mov_b64 exec, s[18:19]')
    a('v_add_u32 v7, 128, v7')
    a('s_add_u32 s12, s12, 32')
    a('s_cmp_lt_u32 s12, s94')
    a('s_cbranch_scc1 Lfs_rank_outer')
    a('v_and_b32 v10, 7, v0')
    a('v_lshl_add_u32 v7, v10, 2, s17')
    a('ds_read_b32 v11, v7')
    a('v_lshrrev_b32 v13, 4, v0')
    a('s_and_b32 s59, s10, 3')
    a('s_lshr_b32 s60, s10, 2')
    a('s_waitcnt lgkmcnt(0)')
    stamp(a, 5)
    mark(a, 's')
    a('v_and_b32 v12, 2047, v11')
    a('v_sub_u32 v12, 2047, v12')
    a('v_lshlrev_b32 v8, 4, v12')
    a('s_cmp_eq_u32 s54, 1')
    a('s_cbranch_scc1 Lfs_down')
    a('s_cmp_eq_u32 s54, 2')
    a('s_cbranch_scc1 Lfs_none')

    XF = 16; WFg = 40; WFu = 60; G = 80; U = 84; M = 4
    a('v_mul_u32_u24 v7, 1280, v12')
    a('v_lshl_add_u32 v7, v13, 4, v7')
    a('s_mul_i32 s11, s59, 320')
    a('s_add_u32 s11, s11, s50')
    a(f'buffer_load_dwordx2 v[2:3], v8, s[28:31], s44 offen {S1}')
    a('s_mov_b32 exec_lo, 0x00ff00ff')
    a('s_mov_b32 exec_hi, 0x00ff00ff')
    a(f'buffer_load_dwordx4 {vr(XF,4)}, v7, s[28:31], s11 offen sc1')
    a('s_cmp_eq_u32 s59, 3')
    a('s_cbranch_scc1 Lfs_gt')
    for s in range(1, 5): a(f'buffer_load_dwordx4 {vr(XF+4*s,4)}, v7, s[28:31], s11 offen offset:{64*s} sc1')
    a('s_branch Lfs_ge')
    a.label('Lfs_gt')
    a('v_lshrrev_b32 v7, 1, v13')
    a('v_lshlrev_b32 v7, 16, v7')
    a('v_lshl_add_u32 v7, v12, 5, v7')
    a('v_and_b32 v6, 1, v13')
    a('v_lshl_add_u32 v7, v6, 4, v7')
    for s in range(1, 5):
        a(f's_add_u32 s11, s50, {XT + (s-1)*131072}')
        a(f'buffer_load_dwordx4 {vr(XF+4*s,4)}, v7, s[28:31], s11 offen sc1')
    a.label('Lfs_ge')
    a('s_not_b64 exec, exec')
    for i in range(20): a(f'v_mov_b32 v{XF+i}, {hx(ONES2)}')
    a('s_mov_b64 exec, -1')
    a('v_lshrrev_b32 v6, 2, v0')
    a('v_lshlrev_b32 v6, 6, v6')
    a('v_and_b32 v7, 3, v0')
    a('v_lshl_add_u32 v6, v7, 3, v6')
    a('s_mul_i32 s11, s59, 10240')
    a('s_lshl_b32 s12, s60, 5')
    a('s_add_u32 s11, s11, s12')
    a(f's_add_u32 s11, s11, {L_W}')
    a('v_add_u32 v6, s11, v6')
    for s in range(5):
        for j in range(2):
            a(f'ds_read_b64_tr_b16 {vr(WFg+4*s+2*j,2)}, v6 offset:{2048*s+1024*j}')
            a(f'ds_read_b64_tr_b16 {vr(WFu+4*s+2*j,2)}, v6 offset:{40960+2048*s+1024*j}')
    a('v_lshlrev_b32 v7, 6, v10')
    a('v_lshrrev_b32 v9, 3, v0')
    a('v_lshl_add_u32 v8, v9, 3, v7')
    a('s_lshl_b32 s12, s60, 12')
    a(f's_add_u32 s12, s12, {L_FX}')
    a('v_add_u32 v8, s12, v8')
    a('v_lshl_add_u32 v7, v13, 4, v7')
    a('s_lshl_b32 s12, s10, 10')
    a(f's_add_u32 s12, s12, {L_FX}')
    a('v_add_u32 v7, s12, v7')
    a('s_waitcnt vmcnt(5)')
    ln_scalars(a, 2, 3, M, M + 1, 14)
    a('s_waitcnt vmcnt(0) lgkmcnt(0)')
    stamp(a, 6)
    for s in range(5):
        a(f'v_mfma_f32_16x16x32_bf16 {vr(G,4)}, {vr(WFg+4*s,4)}, {vr(XF+4*s,4)}, {"0" if s == 0 else vr(G,4)}')
        a(f'v_mfma_f32_16x16x32_bf16 {vr(U,4)}, {vr(WFu+4*s,4)}, {vr(XF+4*s,4)}, {"0" if s == 0 else vr(U,4)}')
    for i in range(8): a(f'v_mov_b32_dpp v{WFg+i}, v{G+i} row_newbcast:8 row_mask:0xf bank_mask:0xf')
    for i in range(8): a(f'v_fma_f32 v{G+i}, -v{M}, v{WFg+i}, v{G+i}')
    a('s_mov_b32 exec_lo, 0x00ff00ff')
    a('s_mov_b32 exec_hi, 0x00ff00ff')
    a(f'ds_write_b128 v7, {vr(G,4)} offset:{L_RED}')
    a(f'ds_write_b128 v7, {vr(U,4)} offset:{L_RED+512}')
    a('s_mov_b64 exec, -1')
    a('s_waitcnt lgkmcnt(0)')
    a('s_barrier')
    stamp(a, 7)
    a('s_cmp_lg_u32 s59, 0')
    a('s_cbranch_scc1 Lfs_gu2')
    for w in range(4):
        for m in range(2): a(f'ds_read_b64 {vr(XF+8*m+2*w,2)}, v8 offset:{L_RED+1024*w+512*m}')
    a('v_lshrrev_b32 v7, 2, v9')
    a('v_lshlrev_b32 v7, 7, v7')
    a('v_lshl_add_u32 v7, v10, 4, v7')
    a('v_and_b32 v9, 3, v9')
    a('v_lshl_add_u32 v7, v9, 2, v7')
    a('s_lshl1_add_u32 s11, s62, s60')
    a('s_lshl_b32 s11, s11, 8')
    a(f's_add_u32 s11, s11, {hx(WS_H)}')
    a('s_add_u32 s11, s11, s51')
    a('s_waitcnt lgkmcnt(0)')
    for m in range(2):
        a(f'v_pk_add_f32 {vr(XF+8*m,2)}, {vr(XF+8*m,2)}, {vr(XF+8*m+2,2)}')
        a(f'v_pk_add_f32 {vr(XF+8*m+4,2)}, {vr(XF+8*m+4,2)}, {vr(XF+8*m+6,2)}')
    for m, d in ((0, G), (1, U)): a(f'v_pk_add_f32 {vr(d,2)}, {vr(XF+8*m,2)}, {vr(XF+8*m+4,2)}')
    for d in (G, U): a(f'v_pk_mul_f32 {vr(d,2)}, {vr(d,2)}, {vr(M,2)} op_sel:[0,1] op_sel_hi:[1,1]')
    for d in (G, U): a(f'v_cvt_pk_bf16_f32 v{d+2}, v{d}, v{d+1}')
    for d in (G, U): unpack(a, d, d + 2)
    for i in range(2): a(f'v_mul_f32 v{G+2+i}, {NL2E}, v{G+i}')
    for i in range(2): a(f'v_exp_f32 v{G+2+i}, v{G+2+i}')
    for i in range(2): a(f'v_add_f32 v{G+2+i}, 1.0, v{G+2+i}')
    for i in range(2): a(f'v_rcp_f32 v{G+2+i}, v{G+2+i}')
    for i in range(2): a(f'v_mul_f32 v{G+i}, v{G+i}, v{G+2+i}')
    a(f'v_cvt_pk_bf16_f32 v{G+2}, v{G}, v{G+1}')
    unpack(a, G, G + 2)
    for i in range(2): a(f'v_mul_f32 v{G+i}, v{G+i}, v{U+i}')
    a(f'v_cvt_pk_bf16_f32 v{G+2}, v{G}, v{G+1}')
    a(f'v_min_u32 v{G+2}, -2, v{G+2}')
    a(f'buffer_store_dword v{G+2}, v7, s[28:31], s11 offen sc0 sc1')
    a.label('Lfs_gu2')
    stamp(a, 8)
    a('s_branch Lfs_fin')

    a.label('Lfs_down')
    WD = 16; HF = 88; Y = 112; X = 128; TT = 132; SG = 136; XN = 138
    a('s_min_u32 s61, s10, 2')
    a('s_add_u32 s61, s61, s14')
    a('s_lshl_b32 s11, s61, 5')
    a('s_mov_b32 s16, s11')
    a('s_add_u32 s11, s11, s50')
    a('v_mul_u32_u24 v14, 1280, v12')
    a('v_lshl_add_u32 v14, v13, 3, v14')
    a(f'buffer_load_dwordx2 v[2:3], v8, s[28:31], s44 offen {S1}')
    a('v_lshlrev_b32 v7, 5, v12')
    a('v_lshl_add_u32 v7, v13, 3, v7')
    a('s_lshl_b32 s12, s61, 16')
    a('s_add_u32 s12, s12, s50')
    a(f's_add_u32 s12, s12, {hx(XT - 32 * 65536)}')
    a('s_cmp_ge_u32 s61, 32')
    a('s_cselect_b32 s11, s12, s11')
    a('s_cselect_b64 vcc, -1, 0')
    a('v_cndmask_b32 v7, v14, v7, vcc')
    a(f'buffer_load_dwordx2 {vr(X,2)}, v7, s[28:31], s11 offen sc1')
    a('v_lshl_add_u32 v6, v0, 3, s58')
    a('s_barrier')
    dn_dma(range(ND, 6))
    a('v_and_b32 v8, 0xfffff800, v11')
    a('v_ashrrev_i32 v9, 31, v8')
    a('v_not_b32 v9, v9')
    a('v_or_b32 v9, 0x80000000, v9')
    a('v_xor_b32 v8, v8, v9')
    rbf16(a, 8, 8)
    a(f'v_mul_f32 v8, {NL2E}, v8')
    a('v_exp_f32 v8, v8')
    a('v_add_f32 v8, 1.0, v8')
    a('v_rcp_f32 v8, v8')
    rbf16(a, SG, 8)
    a(f's_waitcnt vmcnt({3*(6-ND)})')
    ln_scalars(a, 2, 3, M, M + 1, 7)
    for i in range(2):
        unpack(a, Y + 12 + 2 * i, X + i)
        xn_pair(a, Y + 12 + 2 * i, M, TT)
        a(f'v_mov_b32 v{XN+i}, v{TT}')
    a('s_waitcnt vmcnt(0)')
    for t in range(3):
        for s in range(6):
            for j in range(2): a(f'ds_read_b64_tr_b16 {vr(WD+24*t+4*s+2*j,2)}, v6 offset:{6144*t+1024*s+512*j}')
    stamp(a, 9)
    a('s_branch Lfs_down2')

    a.label('Lfs_none')
    a('s_cmp_eq_u32 s53, 0')
    a('s_cbranch_scc1 Lfs_none2')
    a('s_lshl3_add_u32 s11, s13, s10')
    a(f's_cmp_lg_u32 s11, {63*8}')
    a('s_cbranch_scc1 Lfs_fin')
    a('v_lshlrev_b32 v7, 2, v10')
    a(f's_mov_b32 s11, {hx(WS_SEL)}')
    a('s_mov_b64 exec, 0xff')
    a('buffer_store_dword v12, v7, s[28:31], s11 offen sc0 sc1')
    a('s_branch Lfs_fin')
    a.label('Lfs_none2')
    a('s_cmp_lt_u32 s13, 64')
    a('s_cbranch_scc1 Lfs_fin')

    a.label('Lfs_elem')
    E = 40; XD = 60
    a('s_and_b32 s11, s13, 63')
    a('s_mul_i32 s12, s11, 40960')
    a('s_mov_b32 s18, s12')
    a('s_add_u32 s12, s12, s50')
    a(f'v_lshrrev_b32 v{E}, 4, v15')
    a(f'v_mul_u32_u24 v{E+1}, 1280, v{E}')
    a(f'v_and_b32 v{E+2}, 15, v15')
    a(f'v_lshl_add_u32 v{E+1}, v{E+2}, 4, v{E+1}')
    for i in range(4): a(f'buffer_load_dwordx4 {vr(XD+4*i,4)}, v{E+1}, s[28:31], s12 offen offset:{256*i} sc1')
    a(f'v_lshrrev_b32 v{E+3}, 1, v{E+2}')
    a(f'v_lshlrev_b32 v{E+3}, 16, v{E+3}')
    a(f'v_lshl_add_u32 v{E+3}, v{E}, 5, v{E+3}')
    a(f'v_and_b32 v{E+2}, 1, v{E+2}')
    a(f'v_lshl_add_u32 v{E+3}, v{E+2}, 4, v{E+3}')
    a('s_lshl_b32 s12, s11, 10')
    a('s_add_u32 s12, s12, s50')
    a(f's_add_u32 s12, s12, {XT}')
    a(f'buffer_load_dwordx4 {vr(XD+16,4)}, v{E+3}, s[28:31], s12 offen sc1')
    a('s_lshl_b32 s19, s11, 5')
    a(f'v_add_u32 v{E}, s19, v{E}')
    a(f'v_lshlrev_b32 v{E+2}, 4, v{E}')
    a(f'buffer_load_dwordx2 {vr(E+4,2)}, v{E+2}, s[28:31], s44 offen {S1}')
    a(f'v_mov_b32 v{E+3}, s17')
    a(f'ds_read_b128 {vr(E+8,4)}, v{E+3}')
    a(f'ds_read_b128 {vr(E+12,4)}, v{E+3} offset:16')
    a(f'v_sub_u32 v{E}, 2047, v{E}')
    a('s_waitcnt vmcnt(0) lgkmcnt(0)')
    ln_scalars(a, E + 4, E + 5, E + 6, E + 7, E + 3)
    for i in range(8):
        a(f'v_and_b32 v{E+8+i}, 2047, v{E+8+i}')
        a(f'v_cmp_ne_u32 vcc, v{E+8+i}, v{E}')
        a('s_and_b64 exec, exec, vcc')
    a('s_cbranch_execz Lfs_eskip')
    MM = vr(E + 6, 2)
    for i in range(0, 20, 2):
        tt = [E + 8, E + 14]
        for k in range(2): unpack(a, tt[k] + 4, XD + i + k)
        for k in range(2): a(f'v_pk_add_f32 {vr(tt[k]+2,2)}, {vr(tt[k]+4,2)}, {MM} op_sel_hi:[1,0] neg_lo:[0,1] neg_hi:[0,1]')
        for k in range(2): a(f'v_cvt_pk_bf16_f32 v{tt[k]}, v{tt[k]+2}, v{tt[k]+3}')
        for k in range(2): unpack(a, tt[k] + 2, tt[k])
        for k in range(2): a(f'v_pk_mul_f32 {vr(tt[k]+2,2)}, {vr(tt[k]+2,2)}, {MM} op_sel:[0,1] op_sel_hi:[1,1]')
        for k in range(2): a(f'v_cvt_pk_bf16_f32 v{tt[k]}, v{tt[k]+2}, v{tt[k]+3}')
        for k in range(2): unpack(a, tt[k] + 2, tt[k])
        for k in range(2): a(f'v_pk_add_f32 {vr(tt[k]+2,2)}, {vr(tt[k]+2,2)}, {vr(tt[k]+4,2)}')
        for k in range(2): a(f'v_cvt_pk_bf16_f32 v{XD+i+k}, v{tt[k]+2}, v{tt[k]+3}')
        if i % 4 == 2: a(f'buffer_store_dwordx4 {vr(XD+i-2,4)}, v{E+1}, s[20:23], s18 offen offset:{256*(i//4)} {OSC}')
    a.label('Lfs_eskip')
    endpgm(a)

    a.label('Lfs_down2')
    a('v_lshlrev_b32 v7, 7, v13')
    a('v_lshl_add_u32 v7, v10, 4, v7')
    a('s_mul_i32 s11, s10, 3072')
    a(f's_add_u32 s11, s11, {hx(WS_H)}')
    a('s_add_u32 s11, s11, s51')
    def poll(tag, reg, n, masked):
        a('s_mov_b32 s15, 0')
        a.label(f'Lfs_poll{tag}')
        a('s_add_u32 s15, s15, 1')
        a('s_and_b32 s18, s15, 7')
        a(f's_cbranch_scc1 Lfs_pl{tag}')
        for s in range(n): a(f'buffer_load_dwordx4 {vr(reg+4*s,4)}, v7, s[28:31], s11 offen offset:{512*s} sc0 sc1')
        a(f's_branch Lfs_pm{tag}')
        a.label(f'Lfs_pl{tag}')
        for s in range(n): a(f'buffer_load_dwordx4 {vr(reg+4*s,4)}, v7, s[28:31], s11 offen offset:{512*s} {os.environ.get("PSC", "sc1")}')
        a.label(f'Lfs_pm{tag}')
        for s in range(n):
            a(f's_waitcnt vmcnt({n-1-s})')
            r = reg + 4 * s
            if s == 0: a(f'v_max_u32 v8, v{r}, v{r+1}')
            else: a(f'v_max3_u32 v8, v{r}, v{r+1}, v8')
            a(f'v_max3_u32 v8, v{r+2}, v{r+3}, v8')
        a('v_cmp_eq_u32 vcc, -1, v8')
        a('s_cmp_gt_u32 s15, 0x40000')
        a(f's_cbranch_scc1 Lfs_go{tag}')
        a(f's_cbranch_vccz Lfs_go{tag}')
        a(f's_sleep {os.environ.get("SLP", "2")}')
        a(f's_branch Lfs_poll{tag}')
        a.label(f'Lfs_go{tag}')
    poll('h', HF, 6, False)
    a('s_waitcnt lgkmcnt(0)')
    mark(a, 'h')
    stamp(a, 6)
    for s in range(6):
        for t in range(3):
            a(f'v_mfma_f32_16x16x32_bf16 {vr(Y+4*t,4)}, {vr(WD+24*t+4*s,4)}, {vr(HF+4*s,4)}, {"0" if s == 0 else vr(Y+4*t,4)}')
    a('s_mul_i32 s12, s10, 1536')
    a('v_add_u32 v8, s12, v7')
    for t in range(3): a(f'ds_write_b128 v8, {vr(Y+4*t,4)} offset:{L_RED+512*t}')
    a('s_lshl_b32 s12, s10, 9')
    a('v_add_u32 v8, s12, v7')
    a('s_waitcnt lgkmcnt(0)')
    a('s_barrier')
    stamp(a, 7)
    a('s_cmp_gt_u32 s10, 2')
    a('s_cbranch_scc1 Lfs_fin')
    for w in range(8): a(f'ds_read_b128 {vr(WD+4*w,4)}, v8 offset:{L_RED+1536*w}')
    a('v_lshrrev_b32 v7, 1, v13')
    a('v_lshlrev_b32 v7, 7, v7')
    a('v_lshl_add_u32 v7, v10, 4, v7')
    a('v_and_b32 v9, 1, v13')
    a('v_lshl_add_u32 v7, v9, 3, v7')
    a('s_lshl_b32 s11, s61, 8')
    a(f's_add_u32 s11, s11, {hx(WS_XS)}')
    a('s_add_u32 s11, s11, s51')
    a('s_waitcnt lgkmcnt(0)')
    for st_ in (4, 2, 1):
        for w in range(st_):
            for i in range(2): a(f'v_pk_add_f32 {vr(WD+4*w+2*i,2)}, {vr(WD+4*w+2*i,2)}, {vr(WD+4*(w+st_)+2*i,2)}')
    for i in range(2):
        y = WD + 2 * i
        a(f'v_cvt_pk_bf16_f32 v{TT}, v{y}, v{y+1}')
        unpack(a, y, TT)
        a(f'v_pk_mul_f32 {vr(y,2)}, {vr(y,2)}, {vr(SG,2)} op_sel_hi:[1,0]')
        a(f'v_cvt_pk_bf16_f32 v{TT}, v{y}, v{y+1}')
        unpack(a, y, TT)
        unpack(a, TT + 2, XN + i)
        a(f'v_pk_add_f32 {vr(y,2)}, {vr(y,2)}, {vr(TT+2,2)}')
        a(f'v_cvt_pk_bf16_f32 v{TT}, v{y}, v{y+1}')
        unpack(a, y, TT)
        a(f'v_pk_add_f32 {vr(y,2)}, {vr(y,2)}, {vr(Y+12+2*i,2)}')
        a(f'v_cvt_pk_bf16_f32 v{X+i}, v{y}, v{y+1}')
        a(f'v_min_u32 v{X+2+i}, -2, v{X+i}')
    a('s_mov_b32 exec_lo, 0x00ff00ff')
    a('s_mov_b32 exec_hi, 0x00ff00ff')
    a('s_cmp_eq_u32 s53, 0')
    a('s_cbranch_scc1 Lfs_out')
    a(f'buffer_store_dwordx2 {vr(X+2,2)}, v7, s[28:31], s11 offen sc0 sc1')
    endpgm(a)
    a.label('Lfs_out')
    a(f'buffer_store_dwordx2 {vr(X,2)}, v14, s[20:23], s16 offen {OSC2}')
    echo(a)
    endpgm(a)

    a.label('Lfs_fin')
    a('s_cmp_lg_u32 s53, 0')
    a('s_cbranch_scc1 Lq_fin')
    a.label('Lfs_bye')
    if PROF:
        a('s_mov_b64 exec, -1')
        stamp(a, 14)
        a('s_waitcnt vmcnt(0)')
        stamp(a, 15)
        prof_dump(a)
    a.label('Lend')
    a('s_endpgm')
    a.label('Lfs_w8')
    wait_all(a)
    a('s_barrier')
    a('s_cmp_lg_u32 s53, 0')
    a('s_cbranch_scc1 Lfs_w8a')
    a('s_cmp_lg_u32 s2, 0')
    a('s_cbranch_scc1 Lfs_bye')
    a('v_mov_b32 v2, s98')
    a(f'v_mov_b32 v3, {hx(WS_EP)}')
    a('s_mov_b64 exec, 1')
    a('buffer_store_dword v2, v3, s[28:31], 0 offen sc0 sc1')
    a('s_branch Lfs_bye')
    a.label('Lfs_w8a')
    a('s_cmp_lt_u32 s13, 62')
    a('s_cselect_b32 s11, 4, 2')
    a('s_cmp_lt_u32 s13, 48')
    a('s_cselect_b32 s11, 3, s11')
    a.label('Lfs_w8b')
    a('s_barrier')
    a('s_sub_u32 s11, s11, 1')
    a('s_cmp_lg_u32 s11, 0')
    a('s_cbranch_scc1 Lfs_w8b')
    a('s_branch Lq_fin')
    reg_kernel(KNAME, 256, 576, FS_LDS, 168, 102)
```

```python
from common import *
from k_ffn import FS_LDS, S2
X = os.environ.get('XQ', '')
NT = ' nt' if 'N' in X else ''
SLOT = 36864; NSLOT = 3
MR = NSLOT * SLOT; CS = MR + 1024
SK = CS + 1024
QKV_LDS = SK + 512

from common import _pd as common_pd

def epoch(a):
    a('s_cmp_lg_u32 s97, 0')
    common_pd[0] += 1; L = f'Lep{common_pd[0]}'
    a(f's_cbranch_scc1 {L}')
    a('s_load_dword s98, s[28:29], s44')
    a('s_waitcnt lgkmcnt(0)')
    a(f's_add_u32 s98, s98, {hx(EPK)}')
    a.label(L)

def gen_qkv(a):
    a.pv = 167
    a.fin = 'Lq_fin'
    kernel_start(a, KNAME)
    mark(a, 'start')
    ksrd(a, 28, KA_WS, WS_SIZE)
    ksrd(a, 20, KA_X, S * D * 2)
    a('s_cmp_ge_u32 s2, 256')
    a('s_cbranch_scc1 Lend')
    wave_lane(a)
    a('s_mov_b32 s96, 0')
    a('s_mov_b32 s97, 0')
    a('s_mov_b32 s3, 0')
    if os.environ.get('PRI', '1') == '1':
        a('s_cmp_lg_u32 s10, 8')
        a('s_cbranch_scc1 Lq_start')
        a('s_setprio 3')
    a.label('Lq_start')
    ksrd(a, 24, KA_WQKV, D * 3 * D * 2)
    a('s_and_b32 s11, s2, 7')
    a('s_lshr_b32 s12, s2, 3')
    a('s_sub_u32 s12, s12, 8')
    a('s_lshr_b32 s13, s11, 1')
    a('s_and_b32 s15, s12, 3')
    a('s_lshl2_add_u32 s13, s13, s15')
    a('s_and_b32 s14, s11, 1')
    a('s_mul_i32 s14, s14, 6')
    a('s_lshr_b32 s16, s12, 2')
    a('s_add_u32 s14, s14, s16')
    if 'q' in os.environ.get('MAP', 'o'):
        a('s_and_b32 s15, s12, 1')
        a('s_lshl1_add_u32 s13, s11, s15')
        a('s_lshr_b32 s14, s12, 1')
        a('s_mov_b32 s16, s14')
    a(f's_mov_b32 s40, {SLOT}')
    a(f's_mov_b32 s44, {hx(WS_EP)}')
    a('s_cmp_lt_u32 s2, 64')
    a('s_cbranch_scc1 Lqkv_side')
    a('s_cmp_lt_u32 s10, 4')
    a('s_cbranch_scc1 Lqkv_comp')
    a('s_cmp_eq_u32 s10, 8')
    a('s_cbranch_scc1 Lqkv_w8')

    VA = 2; VW = 6
    ROT = os.environ.get('ROT', '2')
    if ROT == 'f':
        a('s_mul_i32 s15, s15, 3')
        a('s_add_u32 s15, s15, s16')
        a('s_add_u32 s15, s15, s11')
        mod_small(a, 15, 10, 2)
    elif ROT == '0': a('s_mov_b32 s15, 0')
    elif ROT == '2':
        a('s_add_u32 s15, s15, s16'); a('s_and_b32 s15, s15, 1'); a('s_mul_i32 s15, s15, 5')
    elif ROT == '4':
        a('s_add_u32 s15, s15, s16'); a('s_and_b32 s15, s15, 3'); a('s_mul_i32 s15, s15, 5'); a('s_lshr_b32 s15, s15, 1')
    elif ROT == 'a':
        a('s_add_u32 s15, s15, s16'); a('s_and_b32 s15, s15, 3')
    elif ROT == 'n':
        a('s_mul_i32 s15, s15, 3'); a('s_add_u32 s15, s15, s16'); mod_small(a, 15, 10, 1)
    a('s_sub_u32 s16, s10, 4')
    a('v_lshrrev_b32 v12, 3, v0')
    a('v_lshrrev_b32 v13, 4, v0')
    a('v_and_b32 v14, 7, v0')
    a('v_xor_b32 v14, v14, v13')
    a('s_lshl_b32 s17, s16, 5')
    a('v_add_u32 v12, s17, v12')
    VT = 48
    a('v_lshrrev_b32 v15, 1, v14')
    a('v_lshlrev_b32 v15, 16, v15')
    a('v_lshl_add_u32 v15, v12, 5, v15')
    a(f'v_and_b32 v{VT}, 1, v14')
    a(f'v_lshl_add_u32 v15, v{VT}, 4, v15')
    a(f'v_add_u32 v{VT}, 4096, v15')
    a(f'v_xor_b32 v{VT+1}, 0x20000, v{VT}')
    a(f'v_subrev_u32 v{VT+1}, {1024-256}, v{VT+1}')
    a(f'v_subrev_u32 v{VT+2}, {2*(1024-256)}, v{VT}')
    a(f'v_subrev_u32 v{VT+3}, {2*(1024-256)}, v{VT+1}')
    a('v_mul_u32_u24 v12, 1280, v12')
    a(f'v_lshl_add_u32 v{VA}, v14, 4, v12')
    a('v_xor_b32 v14, 4, v14')
    a(f'v_lshl_add_u32 v{VA+1}, v14, 4, v12')
    a(f'v_add_u32 v{VA+1}, {10240-1024}, v{VA+1}')
    a(f'v_add_u32 v{VA+2}, {2*(10240-1024)}, v{VA}')
    a(f'v_add_u32 v{VA+3}, {2*(10240-1024)}, v{VA+1}')
    a(f's_mul_i32 s17, s16, {16*3840}')
    a('s_mul_i32 s18, s14, 320')
    a('s_add_u32 s41, s17, s18')
    a(f's_mov_b32 s42, {64*3840}')
    for i in range(5):
        a(f'v_add_u32 v12, {64*i}, v0')
        a('v_mul_u32_u24 v13, 3277, v12')
        a('v_lshrrev_b32 v13, 16, v13')
        a('v_mul_u32_u24 v14, 20, v13')
        a('v_sub_u32 v12, v12, v14')
        a('v_lshrrev_b32 v14, 2, v13')
        a('v_and_b32 v14, 2, v14')
        a('v_xor_b32 v12, v12, v14')
        a('v_mul_u32_u24 v13, 3840, v13')
        a(f'v_lshl_add_u32 v{VW+i}, v12, 4, v13')
        if 0 < i < 4: a(f'v_subrev_u32 v{VW+i}, {1024*i}, v{VW+i}')
    a('s_mul_i32 s18, s13, 163840')
    a('s_add_u32 s18, s18, s3')
    a('s_lshl_b32 s51, s13, 12')
    a(f's_add_u32 s51, s51, {hx(WS_X1 + XT - 4096 - 8 * 262144)}')
    a('s_cmp_eq_u32 s3, 0')
    a('s_cselect_b32 s52, 10, 8')
    a('s_mul_i32 s37, s15, s42')
    a('s_add_u32 s37, s37, s41')
    a('s_lshl_b32 s17, s16, 12')
    a('s_mov_b32 s38, s17')
    a('s_lshl_b32 s39, s16, 10')
    a('s_add_u32 s39, s39, 0x4000')
    a('s_waitcnt lgkmcnt(0)')
    stamp(a, 1)
    def adv():
        a('s_add_u32 s37, s37, s42')
        a('s_add_u32 s15, s15, 1')
        a('s_cmp_eq_u32 s15, 10')
        a('s_cselect_b32 s15, 0, s15')
        a('s_cselect_b32 s37, s41, s37')
    def dma_a(kc, base):
        common_pd[0] += 1; L = f'Lda{common_pd[0]}'
        a(f's_mov_b32 m0, {base}')
        a(f's_cmp_ge_u32 {kc}, s52')
        a(f's_cbranch_scc1 {L}t')
        a(f's_lshl_b32 s36, {kc}, 7')
        a('s_add_u32 s36, s36, s18')
        for i in range(4): a(f'buffer_load_dwordx4 v{VA+i}, s[20:23], s36 offen offset:{1024*i} sc1 lds')
        a(f's_branch {L}e')
        a.label(L + 't')
        a(f's_lshl_b32 s36, {kc}, 18')
        a('s_add_u32 s36, s36, s51')
        for i in range(4): a(f'buffer_load_dwordx4 v{VT+i}, s[20:23], s36 offen offset:{1024*i} sc1 lds')
        a.label(L + 'e')
    def dma_w(so, base):
        a(f's_add_u32 m0, {base}, s39')
        for i in range(4): a(f'buffer_load_dwordx4 v{VW+i}, s[24:27], {so} offen offset:{1024*i} lds')
        a('s_add_u32 m0, m0, 4096')
        a(f'buffer_load_dwordx4 v{VW+4}, s[24:27], {so} offen lds')
    a('s_mov_b32 s49, s15')
    a(f's_add_u32 s50, s38, {SLOT}')
    dma_w('s37', 's38')
    a('s_cmp_eq_u32 s3, 0')
    a('s_cbranch_scc1 Lqkv_p1')
    adv()
    dma_w('s37', 's50')
    a('s_barrier')
    dma_a('s49', 's38')
    dma_a('s15', 's50')
    a('s_waitcnt vmcnt(4)')
    a('s_branch Lqkv_p2')
    a.label('Lqkv_p1')
    dma_a('s15', 's38')
    adv()
    dma_a('s15', 's50')
    dma_w('s37', 's50')
    epoch(a)
    a.label('Lqkv_p2')
    adv()
    a(f's_add_u32 s38, s38, {2*SLOT}')
    a('s_mov_b32 s33, 0')
    a.label('Lqkv_lloop')
    a('s_waitcnt vmcnt(9)')
    a('s_barrier')
    dma_a('s15', 's38')
    dma_w('s37', 's38')
    adv()
    a(f's_add_u32 s38, s38, {SLOT}')
    a(f's_cmp_ge_u32 s38, {NSLOT*SLOT}')
    a('s_cselect_b32 s38, s17, s38')
    a('s_add_u32 s33, s33, 1')
    a('s_cmp_lt_u32 s33, 8')
    a('s_cbranch_scc1 Lqkv_lloop')
    a('v_and_b32 v12, 31, v0')
    a('v_lshlrev_b32 v2, 4, v12')
    a('v_min_u32 v3, 19, v12')
    a('v_lshlrev_b32 v3, 4, v3')
    a('v_lshrrev_b32 v13, 5, v0')
    a('v_mul_u32_u24 v13, 15360, v13')
    a('v_add_u32 v4, v3, v13')
    a('s_lshl2_add_u32 s19, s14, s16')
    a('s_mul_i32 s19, s19, 320')
    a(f's_add_u32 s19, s19, {hx(WS_CS)}')
    a('s_cmp_lt_u32 s14, 4')
    a(f's_cselect_b32 s47, {hx(QSCALE)}, 1.0')
    a('s_lshl_b32 s17, s16, 8')
    a(f's_add_u32 s17, s17, {MR}')
    a('v_lshl_add_u32 v5, v12, 3, s17')
    a('s_mul_i32 s17, s16, 160')
    a(f's_add_u32 s17, s17, {CS}')
    a('v_lshrrev_b32 v3, 1, v3')
    a('v_add_u32 v6, s17, v3')
    a('s_mov_b32 s33, 0')
    for i in range(4): a(f'v_mov_b32 v{44+i}, -1')
    a('s_and_b32 s49, s14, 12')
    a('s_add_u32 s49, s49, s16')
    a('s_min_u32 s49, s49, 9')
    a('s_and_b32 s50, s14, 3')
    a('s_mul_i32 s50, s50, 10')
    a('s_add_u32 s49, s49, s50')
    a('s_lshl_b32 s49, s49, 16')
    a('s_lshl_b32 s50, s13, 11')
    a('s_add_u32 s49, s49, s50')
    a(f's_add_u32 s49, s49, {hx(WS_O)}')
    a(f's_add_u32 s50, s49, {PLANE}')
    a('v_lshlrev_b32 v43, 4, v0')
    def fill():
        for i in range(4): a(f'buffer_store_dwordx4 v[44:47], v43, s[28:31], s{49+i//2} offen offset:{1024*(i%2)} sc1')
    a('s_cmp_lg_u32 s3, 0')
    a('s_cbranch_scc1 Lqkv_tail2')
    a('s_lshl2_add_u32 s18, s13, s16')
    a('s_lshl_b32 s18, s18, 9')
    a(f's_add_u32 s18, s18, {hx(WS_MR)}')
    def fetch():
        a('buffer_load_dwordx4 v[16:19], v2, s[28:31], s18 offen sc0 sc1')
        a('buffer_load_dwordx4 v[20:23], v4, s[28:31], s19 offen sc0 sc1')
    fetch()
    a('s_mov_b32 s45, s98')
    a('s_not_b32 s46, s45')
    a('s_waitcnt vmcnt(11)')
    a('s_barrier')
    fill()
    a('s_waitcnt vmcnt(6)')
    a('s_barrier')
    a('s_waitcnt vmcnt(4)')
    a.label('Lqkv_hpoll')
    a('v_xor_b32 v18, s45, v18')
    a('v_xor_b32 v19, s46, v19')
    a('v_xor_b32 v21, s45, v21')
    a('v_xor_b32 v23, s45, v23')
    a('v_or_b32 v21, v21, v23')
    a('v_or3_b32 v18, v18, v19, v21')
    a('v_cmp_ne_u32 vcc, 0, v18')
    a('s_cbranch_vccz Lqkv_hgo')
    a('s_add_u32 s33, s33, 1')
    a('s_cmp_gt_u32 s33, 0x40000')
    a('s_cbranch_scc1 Lqkv_hgo')
    fetch()
    a('s_waitcnt vmcnt(0)')
    a('s_branch Lqkv_hpoll')
    a.label('Lqkv_tail2')
    a('s_lshl2_add_u32 s17, s13, s16')
    a('s_lshl_b32 s17, s17, 9')
    a(f's_add_u32 s17, s17, {hx(WS_ST)}')
    a('buffer_load_dwordx4 v[32:35], v2, s[28:31], s17 offen sc1')
    a('buffer_load_dwordx4 v[20:23], v4, s[28:31], s19 offen sc1')
    a('s_waitcnt vmcnt(11)')
    a('s_barrier')
    fill()
    a('s_waitcnt vmcnt(6)')
    a('s_barrier')
    a('s_waitcnt vmcnt(4)')
    a.label('Lqkv_cnt')
    a('v_cmp_neq_f32 vcc, 0x41000000, v35')
    a('s_cbranch_vccz Lqkv_cnt2')
    a('buffer_load_dwordx4 v[32:35], v2, s[28:31], s17 offen sc0 sc1')
    a('s_add_u32 s33, s33, 1')
    a('s_waitcnt vmcnt(0)')
    a('s_cmp_lt_u32 s33, 0x40000')
    a('s_cbranch_scc1 Lqkv_cnt')
    a.label('Lqkv_cnt2')
    inv = hx(f2u(1.0 / D))
    ln_scalars(a, 32, 33, 27, 28, 29)
    a(f'v_mul_f32 v25, {inv}, v32')
    a(f'v_mul_f32 v26, {inv}, v33')
    a('v_fma_f32 v26, -v25, v25, v26')
    a('v_max_f32 v26, 0, v26')
    a('v_add_f32 v29, 1.0, v28')
    a('v_sub_f32 v30, v25, v27')
    a('v_fma_f32 v25, v30, v28, v25')
    a('v_mul_f32 v26, v26, v29')
    a('v_mul_f32 v26, v26, v29')
    rbf16(a, 25, 25)
    rbf16(a, 26, 26)
    a(f'v_add_f32 v26, {hx(f2u(1e-5))}, v26')
    rbf16(a, 26, 26)
    a('v_sqrt_f32 v26, v26')
    a('v_rcp_f32 v30, v29')
    rbf16(a, 26, 26)
    a('v_rcp_f32 v26, v26')
    a('v_fma_f32 v16, v27, v28, v25')
    a('v_mul_f32 v16, v16, v30')
    a('v_mul_f32 v17, v29, v26')
    a.label('Lqkv_hgo')
    a('v_mul_f32 v17, s47, v17')
    a('v_mov_b32 v21, v20')
    a('v_mov_b32 v23, v22')
    a('ds_write_b64 v5, v[16:17]')
    a('v_permlane32_swap_b32 v20, v21')
    a('v_permlane32_swap_b32 v22, v23')
    a('v_add_f32 v20, v20, v21')
    a('v_add_f32 v21, v22, v23')
    a('ds_write_b64 v6, v[20:21]')
    a('s_waitcnt lgkmcnt(0)')
    a('s_barrier')
    endpgm(a)
    a.label('Lqkv_w8')
    a('s_waitcnt lgkmcnt(0)')
    epoch(a)
    a('s_cmp_eq_u32 s3, 0')
    a('s_cbranch_scc1 Lqkv_w8a')
    a('v_and_b32 v2, 15, v0')
    a('s_lshl_b32 s16, s13, 4')
    a('v_add_u32 v2, s16, v2')
    slot_to_off_v(a, 2, 3)
    a('s_mov_b64 exec, 0xffff')
    flag_wait(a, [2])
    a('s_barrier')
    a('s_branch Lqkv_w8b')
    a.label('Lqkv_w8a')
    a('s_sub_u32 s47, s2, 64')
    a('s_sub_u32 s46, s47, 67')
    a('s_min_u32 s46, s46, s47')
    a('s_cmp_lt_u32 s46, 32')
    a('s_cselect_b32 s46, 0, -1')
    for i in range(4): a(f'v_mov_b32 v{4+i}, s46')
    a('s_lshl_b32 s46, s47, 10')
    a(f's_add_u32 s46, s46, {hx(WS_CTL)}')
    a('v_lshlrev_b32 v1, 4, v0')
    for i in range(9): a('s_barrier')
    a(f's_cmp_ge_u32 s47, {NCLR}')
    a('s_cbranch_scc1 Lqkv_w8d')
    a('buffer_store_dwordx4 v[4:7], v1, s[28:31], s46 offen sc1')
    a.label('Lqkv_w8d')
    a('s_branch Lqkv_w8c')
    a.label('Lqkv_w8b')
    for i in range(9): a('s_barrier')
    a.label('Lqkv_w8c')
    for i in range(2): a('s_barrier')
    endpgm(a)
    side1(a)
    comp(a)

def comp(a):
    a.label('Lqkv_comp')
    ACC = 8; BUF = 88; AX = 2; AW = 4
    CSR = 88; MRR = 108; T = 116
    a('s_and_b32 s16, s10, 1')
    a('s_lshr_b32 s17, s10, 1')
    a('v_and_b32 v160, 15, v0')
    a('v_lshrrev_b32 v161, 4, v0')
    a('v_bfe_u32 v162, v0, 1, 3')
    a('v_xor_b32 v162, v162, v161')
    a('v_lshlrev_b32 v162, 4, v162')
    a('v_lshl_add_u32 v162, v160, 7, v162')
    a('s_lshl_b32 s18, s17, 13')
    a(f'v_add_u32 v{AX}, s18, v162')
    a(f'v_xor_b32 v{AX+1}, 64, v{AX}')
    a('v_bfe_u32 v162, v0, 2, 2')
    a('v_lshl_add_u32 v162, v161, 3, v162')
    a('v_mul_u32_u24 v162, 320, v162')
    a('v_and_b32 v163, 3, v0')
    a('v_lshl_add_u32 v162, v163, 3, v162')
    a('s_mul_i32 s18, s16, 160')
    a('s_add_u32 s18, s18, 0x4000')
    a('v_add_u32 v162, s18, v162')
    a('v_and_b32 v163, 16, v0')
    a('v_lshlrev_b32 v163, 1, v163')
    a(f'v_add_u32 v{AW}, v162, v163')
    a(f'v_sub_u32 v{AW+1}, v162, v163')
    a('s_cmp_eq_u32 s16, 0')
    a('s_cbranch_scc1 Lqkv_nosw')
    a(f'v_swap_b32 v{AW}, v{AW+1}')
    a.label('Lqkv_nosw')
    a('s_waitcnt lgkmcnt(0)')
    epoch(a)
    for i in range(80): a(f'v_mov_b32 v{ACC+i}, 0')
    a('s_lshl1_add_u32 s19, s14, s16')
    a(f's_mul_i32 s19, s19, {10*PLANE}')
    a('s_lshl1_add_u32 s41, s13, s17')
    a('s_lshl_b32 s41, s41, 10')
    a('s_add_u32 s41, s41, s19')
    a('s_cmp_eq_u32 s3, 0')
    a('s_cbranch_scc1 Lqkv_c1')
    a(f's_add_u32 s41, s41, {QKV_SZ}')
    a('s_barrier')
    a.label('Lqkv_c1')
    NR = 14
    def rd(b, s):
        base = BUF + 36 * b
        xs = [f'ds_read_b128 {vr(base+4*tt,4)}, v{AX+s} offset:{2048*tt}' for tt in range(4)]
        ws = [[f'ds_read_b64_tr_b16 {vr(base+16+4*ct+2*j,2)}, v{AW+ct%2} offset:{(32*s+4*j)*320+32*ct}' for j in range(2)] for ct in range(5)]
        return ws[0] + xs + sum(ws[1:], [])
    def mf(b):
        base = BUF + 36 * b
        L = []
        for ct in range(5):
            wneed = 2 if ct == 0 else 6 + 2 * ct
            for tt in range(4):
                acc = vr(ACC + (ct * 4 + tt) * 4, 4)
                L.append((f'v_mfma_f32_16x16x32_bf16 {acc}, {vr(base+16+4*ct,4)}, {vr(base+4*tt,4)}, {acc}', max(wneed, 3 + tt)))
        return L
    def kstep(b, R, start, extra={}, full=False):
        M = mf(b); R = list(R); issued = 0; have = 0
        if full:
            a('s_waitcnt lgkmcnt(0)'); have = NR
        for i, (m, need) in enumerate(M):
            if need > have:
                a(f's_waitcnt lgkmcnt({min(15, NR - need + issued)})'); have = need
            a(m)
            for x in extra.get(i, []): a(x)
            if i >= start and R:
                a(R.pop(0)); issued += 1
        assert not R
    a('s_mov_b32 s33, 0')
    a('s_mov_b32 s34, 0')
    a('s_waitcnt lgkmcnt(0)')
    stamp(a, 2)
    a('s_barrier')
    stamp(a, 3)
    cstamp(a, 12)
    for x in rd(0, 0): a(x)
    a.label('Lqkv_cloop')
    ex = {0: ['s_add_u32 s34, s34, 1'], 1: [f's_cmp_eq_u32 s34, {NSLOT}'], 2: [f's_cselect_b32 s35, {hx(-(NSLOT-1)*SLOT)}, s40'], 3: ['s_cselect_b32 s34, 0, s34'],
          4: ['s_add_u32 s33, s33, 1'], 5: ['s_cmp_eq_u32 s33, 10']}
    for i in range(4): ex[14 + i] = [f'v_add_u32 v{AX+i}, s35, v{AX+i}']
    kstep(0, rd(1, 1), 0, extra=ex)
    a('s_cbranch_scc1 Lqkv_cdone')
    kstep(1, rd(0, 0), 2, extra={1: ['s_barrier']}, full=True)
    a('s_branch Lqkv_cloop')
    a.label('Lqkv_cdone')
    stamp(a, 4)
    cstamp(a, 13)
    a('s_waitcnt lgkmcnt(0)')
    for m, _ in mf(1): a(m)
    a('s_mul_i32 s18, s16, 320')
    a(f's_add_u32 s18, s18, {CS}')
    a(f'v_lshl_add_u32 v{AX}, v161, 4, s18')
    a('s_lshl_b32 s18, s17, 9')
    a(f's_add_u32 s18, s18, {MR}')
    a(f'v_lshl_add_u32 v{AX+2}, v160, 3, s18')
    a('v_and_b32 v1, 31, v0')
    a('v_lshlrev_b32 v1, 4, v1')
    a('v_lshrrev_b32 v162, 5, v0')
    a('v_lshl_add_u32 v1, v162, 15, v1')
    a('s_barrier')
    stamp(a, 5)
    for tt in range(4): a(f'ds_read_b64 {vr(MRR+2*tt,2)}, v{AX+2} offset:{128*tt}')
    for c in range(5): a(f'ds_read_b128 {vr(CSR+4*c,4)}, v{AX} offset:{64*c}')
    n = 0
    for ct in range(5):
        cs = CSR + 4 * ct
        a(f's_waitcnt lgkmcnt({4-ct})')
        for tp in range(2):
            R = T + 4 * (n % 4); n += 1
            for k in range(2):
                tt = 2 * tp + k
                acc = ACC + (ct * 4 + tt) * 4
                for p in range(2):
                    a(f'v_pk_fma_f32 {vr(acc+2*p,2)}, {vr(cs+2*p,2)}, {vr(MRR+2*tt,2)}, {vr(acc+2*p,2)} op_sel_hi:[1,0,1] neg_lo:[0,1,0] neg_hi:[0,1,0]')
                for p in range(2):
                    a(f'v_pk_mul_f32 {vr(acc+2*p,2)}, {vr(acc+2*p,2)}, {vr(MRR+2*tt,2)} op_sel:[0,1] op_sel_hi:[1,1]')
                a(f'v_cvt_pk_bf16_f32 v{R+2*k}, v{acc}, v{acc+1}')
                a(f'v_cvt_pk_bf16_f32 v{R+2*k+1}, v{acc+2}, v{acc+3}')
            a(f'v_permlane16_swap_b32 v{R}, v{R+2}')
            a(f'v_permlane16_swap_b32 v{R+1}, v{R+3}')
            a(f'buffer_store_dwordx4 {vr(R,4)}, v1, s[28:31], s41 offen offset:{512*tp} sc1')
        if ct < 4: a(f's_add_u32 s41, s41, {2*PLANE}')

def side1(a):
    a.label('Lqkv_side')
    a('s_mov_b32 s13, s2')
    a('s_mov_b32 s53, 1')
    a('s_mov_b32 s51, 0')
    a('s_cmp_lg_u32 s3, 0')
    a('s_cbranch_scc1 Lfs')
    a('v_lshrrev_b32 v5, 3, v0')
    a('v_and_b32 v6, 7, v0')
    a('v_lshlrev_b32 v7, 2, v0')
    a('v_mov_b32 v8, 0')
    a('ds_write_b32 v7, v8 offset:1024')
    a('s_waitcnt lgkmcnt(0)')
    a('s_barrier')
    epoch(a)
    a('s_cmp_eq_u32 s10, 8')
    a('s_cbranch_scc1 Lq_fin')
    a('s_cmp_ge_u32 s10, 4')
    a('s_cbranch_scc1 Lside_pack')
    a('s_lshl2_add_u32 s14, s13, s10')
    a('v_mul_u32_u24 v4, 1280, v5')
    a('v_lshl_add_u32 v4, v6, 4, v4')
    a('s_mul_i32 s15, s14, 10240')
    for i in range(10): a(f'buffer_load_dwordx4 {vr(20+4*i,4)}, v4, s[20:23], s15 offen offset:{128*i}')
    a('s_cmp_ge_u32 s13, 60')
    a('s_cselect_b32 s53, 1, 0')
    a('s_cmp_eq_u32 s53, 1')
    a('s_cbranch_scc1 Lside_nob')
    a('v_mul_u32_u24 v7, 3840, v5')
    a('v_lshl_add_u32 v7, v6, 4, v7')
    a('s_and_b32 s16, s13, 1')
    a('s_mul_i32 s16, s16, 40')
    a('s_add_u32 s16, s16, s10')
    a(f's_mul_i32 s17, s16, {8*3840}')
    a('s_lshr_b32 s18, s13, 1')
    a('s_lshl_b32 s19, s18, 7')
    a('s_add_u32 s17, s17, s19')
    for n in range(10):
        a(f'buffer_load_dwordx4 {vr(60+4*n,4)}, v7, s[24:27], s17 offen')
        if n < 9: a(f's_add_u32 s17, s17, {32*3840}')
    a('s_waitcnt vmcnt(10)')
    a('s_branch Lside_a')
    a.label('Lside_nob')
    a('s_waitcnt vmcnt(0)')
    a.label('Lside_a')
    stamp(a, 1)
    for i in range(40):
        u = 100 + 2 * (i % 2)
        unpack(a, u, 20 + i)
        if i == 0:
            a(f'v_pk_mul_f32 v[106:107], {vr(u,2)}, {vr(u,2)}')
            a(f'v_pk_add_f32 v[104:105], {vr(u,2)}, 0')
        else:
            a(f'v_pk_fma_f32 v[106:107], {vr(u,2)}, {vr(u,2)}, v[106:107]')
            a(f'v_pk_add_f32 v[104:105], {vr(u,2)}, v[104:105]')
    a('v_add_f32 v104, v104, v105')
    a('v_add_f32 v106, v106, v107')
    for m in ('quad_perm:[1,0,3,2]', 'quad_perm:[2,3,0,1]', 'row_half_mirror'):
        for v in (104, 106): a(f'v_add_f32_dpp v{v}, v{v}, v{v} {m} row_mask:0xf bank_mask:0xf')
    ln_scalars(a, 104, 106, 108, 109, 100)
    a('s_mov_b32 s54, s98')
    a('v_mov_b32 v110, s54')
    a('v_not_b32 v111, v110')
    a('v_lshlrev_b32 v11, 4, v5')
    a('s_lshl_b32 s15, s14, 7')
    a(f's_add_u32 s15, s15, {hx(WS_MR)}')
    a('s_mov_b32 exec_lo, 0x01010101')
    a('s_mov_b32 exec_hi, 0x01010101')
    a('buffer_store_dwordx4 v[108:111], v11, s[28:31], s15 offen sc0 sc1')
    a('s_mov_b64 exec, -1')
    stamp(a, 2)
    a('s_cmp_eq_u32 s53, 1')
    a('s_cbranch_scc1 Lside_nob2')
    a('s_waitcnt vmcnt(1)')
    for n in range(10):
        for q in range(4):
            u = 100 + 2 * (q % 2)
            unpack(a, u, 60 + 4 * n + q)
            if n == 0: a(f'v_pk_add_f32 {vr(112+2*q,2)}, {vr(u,2)}, 0')
            else: a(f'v_pk_add_f32 {vr(112+2*q,2)}, {vr(u,2)}, {vr(112+2*q,2)}')
    for q in range(8): a(f'v_add_f32_dpp v{112+q}, v{112+q}, v{112+q} row_ror:8 row_mask:0xf bank_mask:0xf')
    for op in ('v_permlane16_swap_b32', 'v_permlane32_swap_b32'):
        for q in range(8): a(f'v_mov_b32 v{120+q}, v{112+q}')
        for q in range(8): a(f'{op} v{112+q}, v{120+q}')
        for q in range(8): a(f'v_add_f32 v{112+q}, v{112+q}, v{120+q}')
    a('s_lshl_b32 s19, s10, 8')
    a('v_lshl_add_u32 v13, v6, 5, s19')
    a('ds_write_b128 v13, v[112:115]')
    a('ds_write_b128 v13, v[116:119] offset:16')
    a.label('Lside_nob2')
    a('s_lshl_b32 s19, s10, 2')
    a('v_mov_b32 v13, s19')
    a('s_waitcnt lgkmcnt(0)')
    a('v_mov_b32 v14, 1')
    a('ds_write_b32 v13, v14 offset:1024')
    a('s_cmp_lg_u32 s10, 0')
    a('s_cbranch_scc1 Lq_fin')
    a.label('Lside_meet')
    a('ds_read_b128 v[20:23], v13 offset:1024')
    a('s_waitcnt lgkmcnt(0)')
    a('v_and_b32 v20, v20, v21')
    a('v_and_b32 v22, v22, v23')
    a('v_and_b32 v20, v20, v22')
    a('v_cmp_eq_u32 vcc, 0, v20')
    a('s_cbranch_vccnz Lside_meet')
    a('s_cmp_eq_u32 s53, 1')
    a('s_cbranch_scc1 Lside_bump')
    a('v_lshlrev_b32 v13, 2, v0')
    for w in range(4): a(f'ds_read_b32 v{72+w}, v13 offset:{256*w}')
    a('s_and_b32 s16, s13, 1')
    a('s_mul_i32 s16, s16, 15360')
    a('s_lshl_b32 s17, s18, 9')
    a('s_add_u32 s16, s16, s17')
    a(f's_add_u32 s16, s16, {hx(WS_CS)}')
    a('v_lshlrev_b32 v13, 3, v0')
    a('s_waitcnt lgkmcnt(0)')
    for w in range(1, 4): a(f'v_add_f32 v72, v72, v{72+w}')
    a('v_mov_b32 v73, s54')
    a('buffer_store_dwordx2 v[72:73], v13, s[28:31], s16 offen sc0 sc1')
    a.label('Lside_bump')
    a('s_waitcnt vmcnt(0)')
    a('v_mov_b32 v13, 0')
    a('ds_write_b32 v13, v14 offset:1040')
    stamp(a, 3)
    endpgm(a)

    a.label('Lside_pack')
    ksrd(a, 32, KA_WO, D * D * 2)
    ksrd(a, 36, KA_WG, D * F * 2)
    ksrd(a, 40, KA_WU, D * F * 2)
    ksrd(a, 48, KA_WD, D * F * 2)
    a('s_lshl2_add_u32 s14, s13, s10')
    a('s_sub_u32 s14, s14, 4')
    a('s_lshr_b32 s16, s13, 3')
    a('s_lshl2_add_u32 s16, s16, s10')
    a('s_sub_u32 s16, s16, 4')
    a('s_lshl_b32 s16, s16, 10')
    a('s_cmp_ge_u32 s16, Lcode_end-Lcode_start-1024')
    a('s_cbranch_scc1 Lside_nopf')
    a('s_getpc_b64 s[56:57]')
    a.label('Lside_pc')
    a('s_sub_u32 s56, s56, Lside_pc-Lcode_start')
    a('s_subb_u32 s57, s57, 0')
    a('v_lshl_add_u32 v2, v0, 4, s16')
    if 'I' not in X: a('global_load_dwordx4 v[36:39], v2, s[56:57]')
    a.label('Lside_nopf')
    a('s_waitcnt lgkmcnt(0)')
    a('s_cmp_lt_u32 s14, 56')
    a('s_cbranch_scc1 Lside_nowo')
    a('s_sub_u32 s16, s14, 56')
    a('s_mul_i32 s17, s16, 41')
    a('s_lshr_b32 s17, s17, 10')
    a('s_mul_i32 s18, s17, 25')
    a('s_sub_u32 s18, s16, s18')
    a('s_lshl_b32 s18, s18, 8')
    a('s_lshl_b32 s19, s17, 7')
    a('s_lshl_b32 s52, s17, 5')
    a(f's_add_u32 s52, s52, {1024-128}')
    a('s_mov_b32 s53, 52429')
    for i in range(4):
        a(f'v_add_u32 v10, {64*i}, v0')
        a('v_add_u32 v10, s18, v10')
        a('v_mul_lo_u32 v11, v10, s53')
        a('v_lshrrev_b32 v11, 19, v11')
        a('v_mul_u32_u24 v12, 10, v11')
        a('v_sub_u32 v10, v10, v12')
        a('v_and_b32 v12, 0xffffffe3, v11')
        a('v_bfe_u32 v13, v11, 2, 2')
        a('v_lshl_or_b32 v12, v13, 3, v12')
        a('v_bfe_u32 v13, v11, 4, 1')
        a('v_lshl_or_b32 v12, v13, 2, v12')
        a('v_mul_u32_u24 v12, 1280, v12')
        a('v_lshl_add_u32 v12, v10, 4, v12')
        a('v_mov_b32 v11, s19')
        a('v_mov_b32 v13, s52')
        a('v_cmp_gt_u32 vcc, 8, v10')
        a('v_cndmask_b32 v11, v13, v11, vcc')
        a('v_add_u32 v12, v12, v11')
        a(f'buffer_load_dwordx4 {vr(140+4*i,4)}, v12, s[32:35], 0 offen')
    a.label('Lside_nowo')
    a('s_cmp_ge_u32 s14, 240')
    a('s_cbranch_scc1 Lside_wo')
    a('v_mul_u32_u24 v19, 1280, v5')
    a('v_lshl_add_u32 v19, v6, 4, v19')
    a('v_lshrrev_b32 v10, 2, v5')
    a('v_lshlrev_b32 v10, 9, v10')
    a('v_and_b32 v11, 3, v5')
    a('v_lshl_add_u32 v10, v11, 5, v10')
    a('v_and_b32 v11, 1, v6')
    a('v_lshl_add_u32 v10, v11, 4, v10')
    a('v_lshrrev_b32 v11, 1, v6')
    a('s_mov_b32 s18, 49152')
    a('v_mad_u32_u24 v13, v11, s18, v10')
    for n in range(8):
        a(f's_lshl3_add_u32 s52, s14, {n}')
        a('s_mul_i32 s53, s52, 6554')
        a('s_lshr_b32 s53, s53, 16')
        a('s_mul_i32 s18, s53, 10')
        a('s_sub_u32 s18, s52, s18')
        a(f's_mul_i32 s19, s53, {8*1280}')
        a('s_lshl_b32 s55, s18, 7')
        a('s_add_u32 s19, s19, s55')
        a(f'buffer_load_dwordx4 {vr(40+4*n,4)}, v19, s[48:51], s19 offen nt')
        d = 60 + n
        a(f's_mul_i32 s{d}, s18, {4*49152}')
        a('s_and_b32 s55, s53, 3')
        a('s_lshl_b32 s55, s55, 7')
        a(f's_add_u32 s{d}, s{d}, s55')
        a('s_lshr_b32 s55, s53, 2')
        a('s_lshl_b32 s55, s55, 10')
        a(f's_add_u32 s{d}, s{d}, s55')
        a(f's_add_u32 s{d}, s{d}, {hx(WS_PD)}')
    a('v_mul_u32_u24 v18, 3072, v5')
    a('v_lshl_add_u32 v18, v6, 4, v18')
    a('v_lshrrev_b32 v10, 2, v5')
    a('v_lshlrev_b32 v10, 10, v10')
    a('v_and_b32 v11, 3, v5')
    a('v_lshl_add_u32 v10, v11, 6, v10')
    a('v_and_b32 v11, 3, v6')
    a('v_lshl_add_u32 v10, v11, 4, v10')
    a('v_lshrrev_b32 v11, 2, v6')
    a('s_mov_b32 s18, 81920')
    a('v_mad_u32_u24 v14, v11, s18, v10')
    a('v_add_u32 v15, 40960, v14')
    for n in range(8):
        a(f's_lshl3_add_u32 s52, s14, {n}')
        a('s_mul_i32 s53, s52, 2731')
        a('s_lshr_b32 s53, s53, 16')
        a('s_mul_i32 s18, s53, 24')
        a('s_sub_u32 s18, s52, s18')
        a(f's_mul_i32 s19, s53, {8*3072}')
        a('s_lshl_b32 s55, s18, 7')
        a('s_add_u32 s19, s19, s55')
        a(f'buffer_load_dwordx4 {vr(72+8*n,4)}, v18, s[36:39], s19 offen nt')
        a(f'buffer_load_dwordx4 {vr(76+8*n,4)}, v18, s[40:43], s19 offen nt')
        d = 68 + n
        a(f's_mul_i32 s{d}, s18, {2*81920}')
        a('s_and_b32 s55, s53, 3')
        a('s_lshl_b32 s55, s55, 8')
        a(f's_add_u32 s{d}, s{d}, s55')
        a('s_lshr_b32 s55, s53, 2')
        a('s_lshl_b32 s55, s55, 11')
        a(f's_add_u32 s{d}, s{d}, s55')
        a(f's_add_u32 s{d}, s{d}, {hx(WS_PG)}')
    a('v_mov_b32 v19, 0')
    a.label('Lside_hold')
    a('ds_read_b32 v21, v19 offset:1040')
    a('s_sleep 4')
    a('s_waitcnt lgkmcnt(0)')
    a('v_cmp_eq_u32 vcc, 0, v21')
    if 'H' not in X: a('s_cbranch_vccnz Lside_hold')
    a('s_waitcnt vmcnt(0)')
    for n in range(8): a(f'buffer_store_dwordx4 {vr(40+4*n,4)}, v13, s[28:31], s{60+n} offen sc1')
    for n in range(8):
        a(f'buffer_store_dwordx4 {vr(72+8*n,4)}, v14, s[28:31], s{68+n} offen sc1')
        a(f'buffer_store_dwordx4 {vr(76+8*n,4)}, v15, s[28:31], s{68+n} offen sc1')
    a.label('Lside_wo')
    a('s_cmp_lt_u32 s14, 56')
    a('s_cbranch_scc1 Lq_fin')
    a('s_lshl_b32 s16, s14, 12')
    a(f's_add_u32 s16, s16, {hx(WS_PWO - 56 * 4096)}')
    a('v_lshlrev_b32 v18, 4, v0')
    a('s_waitcnt vmcnt(24)')
    a('s_cmp_lt_u32 s14, 240')
    a('s_cbranch_scc1 Lside_wo2')
    a('s_waitcnt vmcnt(0)')
    a.label('Lside_wo2')
    for i in range(4): a(f'buffer_store_dwordx4 {vr(140+4*i,4)}, v18, s[28:31], s16 offen offset:{1024*i} sc1')
    endpgm(a)
```

```python
import sys, struct, math, os
sys.path.insert(0, os.path.dirname(os.path.abspath(__file__)))
from asmlib import *

S, D, H, DH, F = 2048, 640, 32, 20, 1536
KA_X, KA_WQKV, KA_WO, KA_BX, KA_WR, KA_WG, KA_WU, KA_WD, KA_OUT, KA_DBG, KA_WS = [8 * i for i in range(11)]
PLANE = 2048 * 16
WS_QKV = 0
QKV_SZ = 240 * PLANE
WS_O = WS_QKV + 2 * QKV_SZ
WS_X1 = WS_O + 80 * PLANE
XT = S * D * 2
X_SZ = XT + 8 * 65536
WS_PD = WS_X1 + 2 * X_SZ
WS_PG = WS_PD + 40 * 49152
WS_PWO = WS_PG + 48 * 81920
WS_CTL = WS_PWO + D * D * 2
WS_ST = WS_CTL
WS_H = WS_ST + 32768
WS_XS = WS_H + 24576
WS_SEL = WS_XS + 10240
CTL_SZ = 67 * 1024
WS_QS = WS_CTL + 2 * CTL_SZ
NCLR = 134 + 30
WS_MR = WS_QS + 30720
WS_CS = WS_MR + 32768
WS_FLG = WS_CS + 2 * 1920 * 8
WS_HF = WS_FLG + 4 * 32768
WS_EP = WS_HF + 2 * 262144
WS_END = WS_EP + 128
EPK = 0x9E3779B9
WS_PROF = 0x2000000
WS_SIZE = 0x4000000
assert WS_END <= WS_PROF

def f2u(x): return struct.unpack('<I', struct.pack('<f', x))[0]
def hx(x): return hex(x & 0xFFFFFFFF)
QSCALE = f2u(DH ** -0.5 * math.log2(math.e))
ONES2 = 0x3F803F80
NEGBIG = f2u(-1e30)
NL2E = hx(f2u(-math.log2(math.e)))

kernels = []
LAUNCH = {}
PROF = bool(os.environ.get('PROF'))
PV = 160
def stamp(a, i):
    if not PROF: return
    a('s_memrealtime s[100:101]')
    a('s_waitcnt lgkmcnt(0)')
    a(f'v_writelane_b32 v{a.pv}, s100, {i}')
def cstamp(a, i):
    if not PROF: return
    a('s_memtime s[100:101]')
    a('s_waitcnt lgkmcnt(0)')
    a(f'v_writelane_b32 v{a.pv}, s100, {i}')
def lstamp(a, sreg): pass
KNAME = 'interleave_layers__sliding_block__moe_arch_mod__prompt_kernel'
_pd = [0]
def prof_dump(a):
    if not PROF: return
    _pd[0] += 1
    a(f's_load_dwordx2 s[4:5], s[0:1], {KA_WS}')
    a('s_lshl_b32 s8, s96, 9')
    a('s_add_u32 s8, s8, s2')
    a('s_lshl_b32 s8, s8, 4')
    a('s_add_u32 s8, s8, s10')
    a('s_lshl_b32 s8, s8, 8')
    a(f's_add_u32 s8, s8, {hx(WS_PROF)}')
    a(f's_mov_b32 s6, {hx(WS_SIZE)}'); a('s_mov_b32 s7, 0x20000')
    a('v_lshlrev_b32 v1, 2, v0')
    a('s_waitcnt lgkmcnt(0)')
    a(f'buffer_store_dword v{a.pv}, v1, s[4:7], s8 offen')
    a('s_add_u32 s96, s96, 1')
    a('s_nop 1')
    a(f'v_mov_b32 v{a.pv}, 0')
    stamp(a, 0)
def endpgm(a): a('s_branch ' + a.fin)
def gen_prof(a): pass

def phase_end(a, slot_expr, nodrain=None):
    a('s_mov_b64 exec, -1')
    stamp(a, 14)
    a('s_waitcnt vmcnt(0) lgkmcnt(0)')
    if nodrain: a.label(nodrain)
    stamp(a, 15)
    a('s_barrier')
    _pd[0] += 1; L = f'Lsig{_pd[0]}'
    a('s_cmp_lg_u32 s10, 8')
    a(f's_cbranch_scc1 {L}')
    slot_expr(a)
    a('s_lshl_b32 s12, s97, 15')
    a('s_add_u32 s11, s11, s12')
    a(f's_add_u32 s11, s11, {hx(WS_FLG)}')
    a('v_mov_b32 v2, s98')
    a('v_mov_b32 v3, 0')
    a('s_mov_b64 exec, 1')
    a('buffer_store_dword v2, v3, s[28:31], s11 offen sc0 sc1')
    a('s_mov_b64 exec, -1')
    a.label(L)
    a('s_add_u32 s97, s97, 1')
    prof_dump(a)

def flag_wait(a, vregs, idle=None, base=None):
    _pd[0] += 1; L = f'Lfw{_pd[0]}'
    n = len(vregs)
    if base: a(f's_mov_b32 s11, {base}')
    else:
        a('s_lshl_b32 s11, s97, 15')
        a(f's_add_u32 s11, s11, {hx(WS_FLG - 32768)}')
    a('s_mov_b32 s12, 0')
    for i in range(n): a(f's_mov_b64 s[{88+2*i}:{89+2*i}], exec')
    a.label(L)
    a('s_add_u32 s12, s12, 1')
    a(f's_and_b32 s99, s12, {os.environ.get("PMASK", "7")}')
    a(f's_cbranch_scc1 {L}a')
    for sc, nxt in (('sc0 sc1', True), ('sc1', False)):
        for i, v in enumerate(vregs):
            a(f's_mov_b64 exec, s[{88+2*i}:{89+2*i}]')
            a(f'buffer_load_dword v{20+i}, v{v}, s[28:31], s11 offen {sc}')
        if nxt:
            a(f's_branch {L}b')
            a.label(L + 'a')
    a.label(L + 'b')
    a('s_waitcnt vmcnt(0)')
    for i in range(n):
        a(f's_mov_b64 exec, s[{88+2*i}:{89+2*i}]')
        a(f'v_cmp_ne_u32 s[{88+2*i}:{89+2*i}], s98, v{20+i}')
    a('s_mov_b64 vcc, s[88:89]')
    for i in range(1, n): a(f's_or_b64 vcc, vcc, s[{88+2*i}:{89+2*i}]')
    a(f's_cbranch_vccz {L}c')
    if idle: idle()
    else: a(f's_sleep {os.environ.get("SLPF", "1")}')
    a('s_cmp_lt_u32 s12, 0x40000')
    a(f's_cbranch_scc1 {L}')
    a.label(L + 'c')
    a('s_mov_b64 exec, -1')

def ksrd(a, d, ka, size):
    a(f's_load_dwordx2 s[{d}:{d+1}], s[0:1], {ka}')
    a(f's_mov_b32 s{d+2}, {hx(size)}')
    a(f's_mov_b32 s{d+3}, 0x20000')

def add64(a, d, s, off):
    o = off if isinstance(off, str) else hx(off)
    a(f's_add_u32 s{d}, s{s}, {o}')
    a(f's_addc_u32 s{d+1}, s{s+1}, 0')

def rbf16(a, d, s):
    a(f'v_cvt_pk_bf16_f32 v{d}, v{s}, v{s}')
    a(f'v_and_b32 v{d}, 0xffff0000, v{d}')

def unpack(a, lo, src):
    a(f'v_lshlrev_b32 v{lo}, 16, v{src}')
    a(f'v_and_b32 v{lo+1}, 0xffff0000, v{src}')

def ln_scalars(a, s1, s2, m, rs, t):
    inv = hx(f2u(1.0 / D))
    a(f'v_mul_f32 v{m}, {inv}, v{s1}')
    a(f'v_mul_f32 v{t}, {inv}, v{s2}')
    a(f'v_fma_f32 v{t}, -v{m}, v{m}, v{t}')
    a(f'v_max_f32 v{t}, 0, v{t}')
    rbf16(a, t, t)
    a(f'v_add_f32 v{t}, {hx(f2u(1e-5))}, v{t}')
    rbf16(a, t, t)
    a(f'v_sqrt_f32 v{t}, v{t}')
    rbf16(a, t, t)
    a(f'v_rcp_f32 v{rs}, v{t}')
    rbf16(a, m, m)

def kernel_start(a, label):
    a.raw('.p2align 8')
    a.raw(f'.globl {label}')
    a.raw(f'.type {label},@function')
    a.label(label)
    if PROF:
        a(f'v_mov_b32 v{a.pv}, 0')
        stamp(a, 0)

def reg_kernel(label, grid, block, lds, vgpr, sgpr):
    kernels.append((label, vgpr, 102 if PROF else sgpr))
    LAUNCH[label] = (grid, block, lds)

def wave_lane(a):
    a('v_lshrrev_b32 v1, 6, v0')
    a('v_and_b32 v0, 63, v0')
    a('v_readfirstlane_b32 s10, v1')

def mod_small(a, s, n, times):
    for _ in range(times):
        a(f's_sub_u32 s99, s{s}, {n}')
        a(f's_cmp_ge_u32 s{s}, {n}')
        a(f's_cselect_b32 s{s}, s99, s{s}')

def slot_to_off_s(a, sreg): a(f's_lshl_b32 s{sreg}, s{sreg}, 7')
def slot_to_off_v(a, v, t): a(f'v_lshlrev_b32 v{v}, 7, v{v}')
def wait_all(a):
    a('v_lshlrev_b32 v2, 7, v0')
    for i in range(1, 4): a(f'v_add_u32 v{2+i}, {8192*i}, v2')
    flag_wait(a, [2, 3, 4, 5])

ECHO = os.environ.get('ECHO')
def mark(a, name):
    if ECHO is None: return
    if name == 'start':
        a('s_memrealtime s[100:101]'); a('s_waitcnt lgkmcnt(0)'); return
    if name == ECHO[:-1]:
        _pd[0] += 1
        a(f's_cmp_lg_u32 s97, {ECHO[-1]}')
        a(f's_cbranch_scc1 Lmk{_pd[0]}')
        a('s_memrealtime vcc'); a('s_waitcnt lgkmcnt(0)')
        a('s_sub_u32 s101, vcc_lo, s100')
        a.label(f'Lmk{_pd[0]}')
def echo(a):
    if ECHO is None: return
    a('s_waitcnt vmcnt(0)')
    a('s_memrealtime s[4:5]'); a('s_waitcnt lgkmcnt(0)')
    if ECHO == 'end0': a('s_sub_u32 s101, s4, s100')
    a.label('Lecho')
    a('s_memrealtime s[6:7]'); a('s_waitcnt lgkmcnt(0)')
    a('s_sub_u32 s6, s6, s4')
    a('s_cmp_lt_u32 s6, s101')
    a('s_cbranch_scc1 Lecho')
```

```python
from common import *
XA = os.environ.get('XA', '') + ('' if os.environ.get('HINT') else 'H')
ASC = os.environ.get('ASC', 'sc1').replace('_', ' ')
def gen_ao(a):
    a.pv = 167
    PS = 8192 + 64
    Q = 2; KA = 8; KB = 9; VA = 10; MX = 12
    ME = 16; MD = 32; SB = 48; KF = 80; NM = 96; OA = 112; P = 128; VF = 136; T = 152; PK = 160
    WOB = 7 * PS
    QP = WOB + 102400
    a.label('Lq_fin')
    def qslot(a):
        a('s_mul_i32 s11, s13, 12')
        a('s_add_u32 s11, s11, s14')
        a('s_add_u32 s11, s11, 64')
        a('s_cmp_lt_u32 s2, 64')
        a('s_cselect_b32 s11, s2, s11')
        slot_to_off_s(a, 11)
    phase_end(a, qslot)
    a.fin = 'La_fin'
    a('s_cmp_eq_u32 s3, 0')
    a(f's_cselect_b32 s63, 0, {CTL_SZ}')
    a(f's_cselect_b32 s4, {KA_X}, {KA_WS}')
    a(f's_cselect_b32 s5, 0, {QKV_SZ}')
    a(f's_mov_b32 s66, {hx(WS_SIZE)}')
    a(f's_cselect_b32 s66, {S*D*2}, s66')
    a('s_load_dwordx2 s[64:65], s[0:1], s4')
    a('s_mov_b32 s67, 0x20000')
    for i in range(4): a(f's_mov_b32 s{20+i}, s{28+i}')
    ksrd(a, 68, KA_WR, D * 2)
    a('s_and_b32 s11, s2, 7')
    a('s_lshr_b32 s12, s2, 3')
    a('s_lshr_b32 s72, s11, 1')
    a('s_and_b32 s73, s12, 7')
    a('s_lshl3_add_u32 s72, s72, s73')
    a('s_and_b32 s74, s11, 1')
    a('s_lshr_b32 s75, s12, 3')
    a('s_lshl2_add_u32 s74, s74, s75')
    if 'o' in os.environ.get('MAP', 'o'):
        a('s_and_b32 s73, s12, 3')
        a('s_lshl2_add_u32 s72, s11, s73')
        a('s_lshr_b32 s74, s12, 2')
        a('s_mov_b32 s75, s74')
    a('s_add_u32 s73, s73, s75')
    mod_small(a, 73, 5, 2)
    a('s_lshr_b32 s13, s12, 3')
    a('s_lshl2_add_u32 s13, s11, s13')
    a('s_and_b32 s14, s12, 7')
    if 'a' in os.environ.get('MAP', 'o'):
        a('s_mov_b32 s13, s12')
        a('s_mov_b32 s14, s11')
    a('s_cmp_lt_u32 s2, 40')
    a('s_cselect_b32 s9, s3, 0')
    a('s_min_u32 s9, s9, 1')
    a('s_cmp_eq_u32 s10, 8')
    a('s_cbranch_scc1 Lao_loader')
    a('s_lshr_b32 s15, s13, 1')
    a('s_mul_i32 s15, s15, 5')
    a('s_and_b32 s16, s13, 1')
    a('s_mul_i32 s17, s16, 3')
    a('s_add_u32 s17, s17, s15')
    a('s_lshl_b32 s17, s17, 15')
    a('s_add_u32 s18, s15, 2')
    a('s_lshl_b32 s18, s18, 15')
    a('s_lshl2_add_u32 s19, s14, s10')
    a('s_sub_u32 s24, s19, 4')
    a('s_cmp_lt_u32 s19, 4')
    a('s_cselect_b32 s19, s19, s24')
    a('s_cselect_b32 s46, 1, 0')
    a('s_lshl_b32 s19, s19, 10')
    a(f's_add_u32 s19, s19, {80*PLANE}')
    a('s_add_u32 s19, s19, s5')
    a('s_add_u32 s24, s17, s19')
    a('s_add_u32 s25, s18, s19')
    a('s_lshl3_add_u32 s26, s14, s10')
    a('s_lshl_b32 s26, s26, 9')
    a('s_add_u32 s27, s17, s26')
    a('s_lshl3_add_u32 s44, s16, s18')
    a('s_add_u32 s44, s44, s26')
    a('s_lshl_b32 s45, s10, 10')
    a('v_lshlrev_b32 v1, 4, v0')
    a('v_and_b32 v14, 31, v0')
    a('v_lshrrev_b32 v15, 5, v0')
    a('v_lshlrev_b32 v11, 4, v14')
    a(f'v_lshl_add_u32 v{T}, v15, 15, v11')
    a(f'v_mov_b32 v{Q+4}, {hx(ONES2)}')
    a(f'v_mov_b32 v{Q+5}, {hx(ONES2)}')
    a('s_cmp_eq_u32 s46, 1')
    a(f's_cselect_b32 s47, {hx(NEGBIG >> 16)}, 0')
    a(f'v_mov_b32 v{SB}, s47')
    a(f'v_mov_b32 v{SB+1}, 0')
    a(f'v_mov_b32 v{SB+2}, {hx(ONES2)}')
    a(f'v_mov_b32 v{SB+3}, {hx(ONES2)}')
    a('v_add_u32 v12, s45, v1')
    a(f'ds_write_b128 v12, {vr(SB,4)} offset:{6*PS}')
    a('s_lshl_b32 s48, s10, 9')
    a(f'v_mul_u32_u24 v12, {PS}, v15')
    a(f'v_add3_u32 v{KA}, v12, v11, s48')
    a('s_lshl3_add_u32 s51, s16, s48')
    a(f's_add_u32 s51, s51, {2*PS}')
    a(f's_add_u32 s52, s48, {6*PS}')
    a(f'v_mov_b32 v12, s51')
    a(f'v_mov_b32 v13, s52')
    a('v_cmp_eq_u32 vcc, 0, v15')
    a('v_cndmask_b32 v12, v13, v12, vcc')
    a(f'v_add_u32 v{KB}, v12, v11')
    a('v_and_b32 v12, 1, v0')
    a('v_lshlrev_b32 v12, 3, v12')
    a('v_bfe_u32 v13, v0, 1, 1')
    a(f'v_mul_u32_u24 v13, {PS}, v13')
    a(f'v_add3_u32 v12, v12, v13, s48')
    a(f'v_add_u32 v12, {3*PS}, v12')
    a(f's_add_u32 s51, s51, {3*PS}')
    a('s_add_u32 s52, s52, 8')
    a(f'v_mov_b32 v13, s51')
    a(f'v_mov_b32 v{VA}, s52')
    a(f'v_and_b32 v{VA+1}, 3, v0')
    a(f'v_cmp_eq_u32 vcc, 0, v{VA+1}')
    a(f'v_cndmask_b32 v13, v{VA}, v13, vcc')
    a(f'v_and_b32 v{VA+1}, 16, v0')
    a(f'v_cmp_eq_u32 vcc, 0, v{VA+1}')
    a('v_cndmask_b32 v12, v13, v12, vcc')
    a('v_bfe_u32 v13, v0, 2, 2')
    a('v_lshl_add_u32 v13, v15, 2, v13')
    a(f'v_lshl_add_u32 v{VA}, v13, 4, v12')
    def masks():
        a('v_lshlrev_b32 v12, 2, v15')
        a('v_sub_u32 v12, v14, v12')
        a(f'v_mov_b32 v13, {hx(NEGBIG)}')
        for v in range(16):
            kk = 8 * (v // 4) + v % 4
            sp = 54 + 2 * (v % 4)
            a(f'v_cmp_le_i32 s[{sp}:{sp+1}], {kk}, v12')
            if v % 4 == 3:
                for u in range(v - 3, v + 1):
                    sp = 54 + 2 * (u % 4)
                    a(f'v_cndmask_b32 v{MD+u}, v13, 0, s[{sp}:{sp+1}]')
                    a(f'v_cndmask_b32 v{ME+u}, 0, v13, s[{sp}:{sp+1}]')
    masks()
    a('s_add_u32 s6, s27, s5')
    a('s_add_u32 s7, s44, s5')
    a(f's_add_u32 s27, s27, {hx(WS_O)}')
    a(f's_add_u32 s44, s44, {hx(WS_O)}')
    a('v_lshlrev_b32 v11, 4, v14')
    a(f'v_mov_b32 v{T+7}, {hx(f2u(2.0**100))}')
    a('s_mov_b32 s62, 0')
    a('s_lshl_b32 s8, s26, 3')
    a('s_lshl_b32 s50, s13, 7')
    a('s_add_u32 s8, s8, s50')
    a('s_lshl_b32 s50, s97, 17')
    a('s_add_u32 s8, s8, s50')
    a(f's_add_u32 s8, s8, {hx(WS_HF - 131072)}')
    a('s_mul_i32 s50, s10, 2560')
    a('s_mul_i32 s53, s74, 102400')
    a('s_add_u32 s53, s53, s50')
    a(f's_add_u32 s53, s53, {hx(WS_PWO)}')
    stamp(a, 1)
    a('s_cmp_eq_u32 s9, 1')
    a('s_cbranch_scc1 Lfix')
    a.label('Lfix_done')
    a('s_waitcnt lgkmcnt(0)')
    a('s_barrier')
    stamp(a, 2)
    for kv in range(2):
        for pl in range(3):
            a(f's_add_u32 m0, s45, {(3*kv+pl)*PS}')
            src = 's25' if pl == 2 else 's24'
            off = kv * 80 * PLANE + (PLANE if pl == 1 else 0)
            if off:
                a(f's_add_u32 s47, {src}, {off}'); src = 's47'
            a(f'buffer_load_dwordx4 v1, s[20:23], {src} offen sc1 lds')
        if kv == 0:
            a(f'buffer_load_dwordx4 {vr(Q,4)}, v{T}, s[20:23], s6 offen sc1')
            a('s_mov_b32 exec_hi, 0')
            a(f'buffer_load_dwordx2 {vr(Q+4,2)}, v11, s[20:23], s7 offen sc1')
            a('s_mov_b32 exec_hi, -1')
    NW = int(os.environ.get('NW', '0'))
    for c in range(5 - NW, 5):
        a(f's_add_u32 s47, s73, {c}')
        mod_small(a, 47, 5, 1)
        a('s_mul_i32 s47, s47, 20480')
        a('s_add_u32 s47, s47, s53')
        a(f's_add_u32 m0, s50, {WOB + 20480*c}')
        for i in range(3):
            if i == 2: a('s_mov_b32 exec_hi, 0')
            a(f'buffer_load_dwordx4 v1, s[20:23], s47 offen offset:{1024*i} sc1 lds')
        a('s_mov_b32 exec_hi, -1')
    a(f's_waitcnt vmcnt({3*NW}) lgkmcnt(0)')
    stamp(a, 3)
    a('s_barrier')
    a('s_cmp_eq_u32 s3, 0')
    a('s_cbranch_scc1 Lao_nosel')
    a(f'v_mov_b32 v12, {QP}')
    a('s_lshr_b32 s47, s26, 4')
    a('v_add_u32 v13, s47, v14')
    a('s_barrier')
    a(f'ds_read_b128 {vr(SB,4)}, v12')
    a(f'ds_read_b128 {vr(SB+4,4)}, v12 offset:16')
    a(f'v_mov_b32 v{SB+8}, -1')
    a('s_waitcnt lgkmcnt(0)')
    for i in range(8): a(f'v_readfirstlane_b32 s{80+i}, v{SB+i}')
    for i in range(8):
        a(f'v_cmp_eq_u32 vcc, v{SB+i}, v13')
        a(f'v_cndmask_b32 v{SB+8}, v{SB+8}, {i}, vcc')
    a(f'v_cmp_le_i32 vcc, 0, v{SB+8}')
    a('s_and_saveexec_b64 s[48:49], vcc')
    a('s_cbranch_execz Lao_noq')
    a(f'v_lshl_add_u32 v12, v{SB+8}, 4, v12')
    a('v_lshl_add_u32 v13, v15, 7, v12')
    a(f'ds_read_b128 {vr(Q,4)}, v13 offset:32')
    a('s_lshl_b32 s47, s16, 3')
    a('v_add_u32 v12, s47, v12')
    a('s_mov_b32 exec_hi, 0')
    a(f'ds_read_b64 {vr(Q+4,2)}, v12 offset:{32+256}')
    a('s_waitcnt lgkmcnt(0)')
    a.label('Lao_noq')
    a('s_mov_b64 exec, s[48:49]')
    a.label('Lao_nosel')
    stamp(a, 4)
    mark(a, 'kv')
    cstamp(a, 12)
    def kread(t, b):
        a(f'ds_read_b128 {vr(KF+8*b,4)}, v{KA} offset:{512*t}')
        a(f'ds_read_b64 {vr(KF+8*b+4,2)}, v{KB} offset:{512*t}')
    def vread(t, b):
        for i in range(2):
            for j in range(2):
                a(f'ds_read_b64_tr_b16 {vr(VF+8*b+4*i+2*j,2)}, v{VA} offset:{512*t+(16*i+8*j)*16}')
    def m1(b, sb, c): a(f'v_mfma_f32_32x32x16_bf16 {vr(sb,16)}, {vr(KF+8*b,4)}, {vr(Q,4)}, {c}')
    def m2(b, sb): a(f'v_mfma_f32_32x32x8_bf16 {vr(sb,16)}, {vr(KF+8*b+4,2)}, {vr(Q+4,2)}, {vr(sb,16)}')
    def mxall(sb, first):
        for i in range(8):
            r = sb + 2 * i
            if first and i < 2: a(f'v_max_f32 v{MX+i}, v{r}, v{r+1}')
            else: a(f'v_max3_f32 v{MX+i%2}, v{r}, v{r+1}, v{MX+i%2}')
    XR = 16; WR = 22; U = 28; XF = 28+12-4
    def early():
        a('s_and_b32 s75, s10, 3')
        a('s_lshr_b32 s76, s10, 2')
        a('s_lshl2_add_u32 s77, s72, s75')
        a('s_lshl1_add_u32 s78, s74, s76')
        a('s_lshl_b32 s78, s78, 6')
        a('s_lshl_b32 s79, s74, 5')
        a('s_add_u32 s79, s79, 1024')
        a(f'v_and_b32 v{U}, 15, v0')
        a(f'v_lshrrev_b32 v{U+1}, 4, v0')
        a(f'v_bfrev_b32 v{U+2}, v{U+1}')
        a(f'v_lshrrev_b32 v{U+2}, 26, v{U+2}')
        a(f'v_add_u32 v{U+2}, s78, v{U+2}')
        a(f'v_lshl_add_u32 v{U+3}, v{U+1}, 3, s79')
        a(f'v_mul_u32_u24 v161, 1280, v{U}')
        a(f'v_add_u32 v160, v161, v{U+2}')
        a(f'v_add_u32 v161, v161, v{U+3}')
        a(f'v_lshlrev_b32 v{U+6}, 4, v{U}')
        a('s_mul_i32 s92, s77, 20480')
        a('s_add_u32 s93, s92, s3')
        a(f's_add_u32 s92, s92, {hx(WS_X1)}')
        a('s_cmp_eq_u32 s3, 0')
        a(f's_cselect_b32 s95, 0, {X_SZ}')
        a('s_add_u32 s92, s92, s95')
        a('s_lshl_b32 s89, s74, 16')
        a('s_lshl_b32 s88, s77, 9')
        a('s_add_u32 s89, s89, s88')
        a(f's_add_u32 s89, s89, {hx(WS_X1 + XT)}')
        a('s_add_u32 s88, s89, s95')
        a(f'v_lshlrev_b32 v163, 5, v{U}')
        a(f'v_lshl_add_u32 v163, v{U+1}, 3, v163')
        a('s_lshl_b32 s95, s77, 8')
        a(f's_add_u32 s95, s95, {hx(WS_ST)}')
        a('s_cmp_eq_u32 s3, 0')
        a('s_cbranch_scc1 Lao_nost')
        a(f'buffer_load_dwordx2 {vr(U+10,2)}, v{U+6}, s[20:23], s95 offen sc0 sc1')
        a(f'buffer_load_dwordx2 {vr(XR+4,2)}, v163, s[20:23], s89 offen sc1')
        a('s_branch Lao_nost2')
        a.label('Lao_nost')
        a(f'buffer_load_dwordx2 {vr(XR+4,2)}, v161, s[64:67], s93 offen')
        a.label('Lao_nost2')
        a(f'buffer_load_dwordx4 {vr(XR,4)}, v160, s[64:67], s93 offen sc1')
        a(f'v_cmp_eq_u32 vcc, 0, v{U}')
        a(f'v_mov_b32 v162, {hx(ONES2)}')
        for i in range(6): a(f'v_cndmask_b32 v{WR+i}, 0, v162, vcc')
        a('s_mov_b32 exec_lo, 0x01000100')
        a('s_mov_b32 exec_hi, 0x01000100')
        a(f'buffer_load_dwordx4 {vr(WR,4)}, v{U+2}, s[68:71], 0 offen')
        a(f'buffer_load_dwordx2 {vr(WR+4,2)}, v{U+3}, s[68:71], 0 offen')
        a('s_mov_b64 exec, -1')
    order = [8, 0, 1, 2, 3, 4, 5, 6, 7]
    kread(8, 0); kread(0, 1); vread(8, 0)
    a('s_waitcnt lgkmcnt(6)')
    m1(0, SB, vr(MD, 16)); m2(0, SB)
    mxall(SB, True)
    a.label('Latt_havemax')
    a(f'v_max_f32 v{MX}, v{MX}, v{MX+1}')
    a(f'v_mov_b32 v{MX+1}, v{MX}')
    a(f'v_permlane32_swap_b32 v{MX}, v{MX+1}')
    a(f'v_max_f32 v{MX}, v{MX}, v{MX+1}')
    for v in range(16): a(f'v_sub_f32 v{ME+v}, v{ME+v}, v{MX}')
    for v in range(16): a(f'v_sub_f32 v{SB+v}, v{SB+v}, v{MX}')
    stamp(a, 5)
    def pv(b, i, first):
        c = '0' if first else vr(OA, 16)
        a(f'v_mfma_f32_32x32x16_bf16 {vr(OA,16)}, {vr(VF+8*b+4*i,4)}, {vr(P+4*i,4)}, {c}')
    for n in range(9):
        sb = SB + 16 * (n % 2); sn = SB + 16 * ((n + 1) % 2)
        nx = n + 1 < 9
        for i in range(2): a(f'v_exp_f32 v{sb+i}, v{sb+i}')
        if n > 0: pv((n - 1) % 2, 1, False)
        if nx: vread(order[n + 1], (n + 1) % 2)
        for i in range(2, 5): a(f'v_exp_f32 v{sb+i}, v{sb+i}')
        if nx:
            a('s_waitcnt lgkmcnt(4)')
            m1((n + 1) % 2, sn, vr(ME, 16) if n == 0 else vr(NM, 16))
        else: a('s_waitcnt lgkmcnt(0)')
        if n + 2 < 9: kread(order[n + 2], n % 2)
        for i in range(5, 8): a(f'v_exp_f32 v{sb+i}, v{sb+i}')
        for i in range(4): a(f'v_cvt_pk_bf16_f32 v{P+i}, v{sb+2*i}, v{sb+2*i+1}')
        if nx: m2((n + 1) % 2, sn)
        for i in range(8, 12): a(f'v_exp_f32 v{sb+i}, v{sb+i}')
        pv(n % 2, 0, n == 0)
        if n == 4: early()
        if n == 0:
            for v in range(16): a(f'v_sub_f32 v{NM+v}, 0, v{MX}')
        for i in range(12, 16): a(f'v_exp_f32 v{sb+i}, v{sb+i}')
        for i in range(4, 8): a(f'v_cvt_pk_bf16_f32 v{P+i}, v{sb+2*i}, v{sb+2*i+1}')
    pv(0, 1, False)
    stamp(a, 6)
    cstamp(a, 13)
    a(f'v_add_f32 v{T+1}, |v{OA}|, v{OA+12}')
    a(f'v_add_f32 v{T+6}, |v{OA+1}|, |v{OA+2}|')
    for v in range(3, 12): a(f'v_add_f32 v{T+1+5*(v%2)}, |v{OA+v}|, v{T+1+5*(v%2)}')
    a(f'v_add_f32 v{T+1}, v{T+1}, v{T+6}')
    a(f'v_cmp_nlt_f32 vcc, v{T+1}, v{T+7}')
    a('s_cmp_eq_u32 s62, 1')
    a('s_cbranch_scc1 Latt_out')
    a('s_cbranch_vccnz Latt_exact')
    a.label('Latt_out')
    a(f'v_rcp_f32 v{T+1}, v{OA+12}')
    for v in range(12): a(f'v_mul_f32 v{OA+v}, v{OA+v}, v{T+1}')
    for v in range(6): a(f'v_cvt_pk_bf16_f32 v{P+v}, v{OA+2*v}, v{OA+2*v+1}')
    for v in range(6): a(f'v_min_u32 v{P+v}, -2, v{P+v}')
    a(f'v_permlane32_swap_b32 v{P}, v{P+2}')
    a(f'v_permlane32_swap_b32 v{P+1}, v{P+3}')
    a(f'buffer_store_dwordx4 {vr(P,4)}, v{T}, s[20:23], s27 offen sc1')
    a('s_mov_b32 exec_hi, 0')
    a(f'buffer_store_dwordx2 {vr(P+4,2)}, v11, s[20:23], s44 offen sc1')
    if 'H' not in XA:
        a('s_mov_b32 exec_lo, 1')
        a(f'v_mov_b32 v{P+6}, s98')
        a(f'buffer_store_dword v{P+6}, v11, s[20:23], s8 offen sc1')
    a('s_mov_b64 exec, -1')
    stamp(a, 7)
    RA = 12; AF = 48; WF = 100; NB = 3
    AC = lambda t: 28 + 4 * t if t < 2 else 88 + 4 * (t - 2)
    OP_RED = 0; SA = 4; OP_ST = 24576
    a('s_lshl_b32 s78, s77, 8')
    a('s_lshl_b32 s79, s76, 18')
    a('s_add_u32 s78, s78, s79')
    a(f's_add_u32 s78, s78, {hx(WS_O)}')
    for p in range(5):
        a(f's_lshl_b32 s{SA+p}, s73, 19')
        a(f's_add_u32 s{SA+p}, s{SA+p}, s78')
        if p < 4:
            a('s_add_u32 s73, s73, 1')
            a('s_cmp_eq_u32 s73, 5')
            a('s_cselect_b32 s73, 0, s73')
    a(f'v_lshrrev_b32 v{RA}, 2, v0')
    a(f'v_mul_u32_u24 v{RA}, 160, v{RA}')
    a('v_and_b32 v3, 3, v0')
    a(f'v_lshl_add_u32 v{RA}, v3, 3, v{RA}')
    a('s_mul_i32 s36, s76, 10240')
    a(f's_add_u32 s36, s36, {WOB}')
    a('s_lshl_b32 s37, s76, 6')
    a('s_xor_b32 s38, s37, 64')
    a('s_add_u32 s37, s37, s36')
    a('s_add_u32 s38, s38, s36')
    a(f'v_add_u32 v{RA+2}, s38, v{RA}')
    a(f'v_add_u32 v4, s36, v{RA}')
    a(f'v_add_u32 v{RA}, s37, v{RA}')
    a(f'v_add_u32 v{RA+1}, {3*20480}, v{RA}')
    a(f'v_add_u32 v{RA+3}, {3*20480}, v{RA+2}')
    a(f'v_add_u32 v5, {3*20480}, v4')
    a(f'v_lshlrev_b32 v2, 15, v{U+1}')
    a(f'v_add_u32 v2, v2, v{U+6}')
    a(f'v_add_u32 v7, {4*PLANE}, v2')
    a(f'v_and_b32 v3, 3, v0')
    for i in range(1, 4): a(f'v_cmp_eq_u32 s[{50+2*i}:{51+2*i}], {i}, v3')
    a('s_lshl_b32 s39, s10, 8')
    a(f'v_add_u32 v11, s39, v{U+6}')
    a(f'v_lshl_add_u32 v8, v{U+1}, 2, v11')
    a('s_lshl_b32 s38, s77, 4')
    a(f'v_add_u32 v10, s38, v{U}')
    aload = lambda s, sc: f'buffer_load_dwordx4 {vr(AF+4*s,4)}, v{7 if s % 2 else 2}, s[20:23], s{SA+s//2} offen {sc}'
    a(f's_waitcnt vmcnt({2 if "H" in XA else 3})')
    if 'E' in XA:
        for s in range(10): a(aload(s, ASC))
    stamp(a, 8)
    MM = vr(U + 8, 2)
    a('s_cmp_eq_u32 s3, 0')
    a('s_cbranch_scc1 Lop_res')
    ln_scalars(a, U + 10, U + 11, U + 8, U + 9, 3)
    for i in range(0, 6, 2):
        tt = [88, 94]
        for k in range(2): unpack(a, tt[k] + 4, XR + i + k)
        for k in range(2): a(f'v_pk_add_f32 {vr(tt[k]+2,2)}, {vr(tt[k]+4,2)}, {MM} op_sel_hi:[1,0] neg_lo:[0,1] neg_hi:[0,1]')
        for k in range(2): a(f'v_cvt_pk_bf16_f32 v{tt[k]}, v{tt[k]+2}, v{tt[k]+3}')
        for k in range(2): unpack(a, tt[k] + 2, tt[k])
        for k in range(2): a(f'v_pk_mul_f32 {vr(tt[k]+2,2)}, {vr(tt[k]+2,2)}, {MM} op_sel:[0,1] op_sel_hi:[1,1]')
        for k in range(2): a(f'v_cvt_pk_bf16_f32 v{tt[k]}, v{tt[k]+2}, v{tt[k]+3}')
        for k in range(2): unpack(a, tt[k] + 2, tt[k])
        for k in range(2): a(f'v_pk_add_f32 {vr(tt[k]+2,2)}, {vr(tt[k]+2,2)}, {vr(tt[k]+4,2)}')
        for k in range(2): a(f'v_cvt_pk_bf16_f32 v{XR+i+k}, v{tt[k]+2}, v{tt[k]+3}')
    a('v_mov_b32 v3, -1')
    for i in range(8):
        a(f'v_cmp_eq_u32 vcc, s{80+i}, v10')
        a(f'v_cndmask_b32 v3, v3, {i}, vcc')
    a('v_cmp_le_i32 vcc, 0, v3')
    a('s_and_saveexec_b64 s[48:49], vcc')
    a('s_cbranch_execz Lop_res2')
    a('v_lshlrev_b32 v3, 4, v3')
    a(f'v_lshl_add_u32 v6, v{U+2}, 3, v3')
    a(f'v_and_b32 v10, 0xfffffff0, v{U+3}')
    a('v_lshl_add_u32 v3, v10, 3, v3')
    a(f'v_and_or_b32 v3, v{U+3}, 8, v3')
    a(f's_mov_b32 s94, {hx(WS_XS)}')
    a(f'buffer_load_dwordx4 {vr(XR,4)}, v6, s[20:23], s94 offen sc1')
    a(f'buffer_load_dwordx2 {vr(XR+4,2)}, v3, s[20:23], s94 offen sc1')
    a('s_waitcnt vmcnt(0)')
    a.label('Lop_res2')
    a('s_mov_b64 exec, s[48:49]')
    a.label('Lop_res')
    for i in range(6): unpack(a, XF + 2 * i, XR + i)
    if 'F' in XA:
        for s in range(10): a(aload(s, ASC))
    a('s_barrier')
    stamp(a, 9)
    WB = lambda s: WF + 20 * (s % NB)
    def wread(s, t):
        p, k = s // 2, s % 2
        reg = (RA if t < 2 else RA + 2 if t < 4 else 4) + (1 if p >= 3 else 0)
        off = (p % 3) * 20480 + k * 5120 + (32 * (t % 2) if t < 4 else 128)
        for j in range(2):
            a(f'ds_read_b64_tr_b16 {vr(WB(s)+4*t+2*j,2)}, v{reg} offset:{off+j*2560}')
    def mm(s, t):
        c = '0' if s == 0 else vr(AC(t), 4)
        a(f'v_mfma_f32_16x16x32_bf16 {vr(AC(t),4)}, {vr(WB(s)+4*t,4)}, {vr(AF+4*s,4)}, {c}')
    a('s_mov_b32 s43, 0')
    aload = lambda s, sc: f'buffer_load_dwordx4 {vr(AF+4*s,4)}, v{7 if s % 2 else 2}, s[20:23], s{SA+s//2} offen {sc}'
    if os.environ.get('DLY'): a(f's_sleep {os.environ["DLY"]}')
    SPL = [int(c) for c in os.environ.get('SPL', '433')]
    nl = 0
    for s in range(NB):
        for _ in range(SPL[s]):
            a(aload(nl, ASC)); nl += 1
        for t in range(5): wread(s, t)
    while nl < 10:
        a(aload(nl, ASC)); nl += 1
    for s in range(10):
        r = AF + 4 * s
        a(f's_waitcnt vmcnt({9-s})')
        a(f'v_max3_u32 v6, v{r}, v{r+1}, v{r+2}')
        a(f'v_max_u32 v6, v6, v{r+3}')
        a('v_cmp_eq_u32 vcc, -1, v6')
        a(f's_cbranch_vccnz Lop_retry{s+1}')
        a.label(f'Lop_ok{s+1}')
        if s == 0: stamp(a, 10)
        a(f's_waitcnt lgkmcnt({min(15, 10 * (min(s + NB - 1, 9) - s))})')
        for t in range(5):
            mm(s, t)
            if s + NB < 10 and t > 0: wread(s + NB, t - 1)
        if s + NB < 10: wread(s + NB, 4)
    stamp(a, 11)
    a('s_mul_i32 s36, s10, 3072')
    a('v_add_u32 v12, s36, v1')
    a('s_xor_b32 s36, s10, 4')
    a('s_mul_i32 s36, s36, 3072')
    a('v_add_u32 v13, s36, v1')
    for t in range(3): a(f'ds_write_b128 v12, {vr(AC(2+t),4)} offset:{OP_RED+1024*t}')
    a('s_waitcnt lgkmcnt(0)')
    a('s_barrier')
    for t in range(3): a(f'ds_read_b128 {vr(WF+4*t,4)}, v13 offset:{OP_RED+1024*t}')
    a('s_cmp_eq_u32 s76, 0')
    def fin(idx):
        acc = lambda i: AC(0) + 2 * i if i < 4 else AC(4) + 2 * (i - 4)
        for i in idx: a(f'v_pk_add_f32 {vr(acc(i),2)}, {vr(acc(i),2)}, {vr(WF+2*i,2)}')
        for i in idx: a(f'v_cvt_pk_bf16_f32 v{XR+i}, v{acc(i)}, v{acc(i)+1}')
        if idx[0] == 0:
            for i in range(2): a(f'v_permlane16_swap_b32 v{XR+i}, v{XR+2+i}')
        for i in idx: unpack(a, acc(i), XR + i)
        for i in idx: a(f'v_pk_add_f32 {vr(acc(i),2)}, {vr(acc(i),2)}, {vr(XF+2*i,2)}')
        for i in idx: a(f'v_cvt_pk_bf16_f32 v{XR+i}, v{acc(i)}, v{acc(i)+1}')
    a('s_waitcnt lgkmcnt(1)')
    fin(range(4))
    a(f'buffer_store_dwordx4 {vr(XR,4)}, v160, s[20:23], s92 offen sc1')
    D1, D2 = AF, AF + 4
    a(f'v_mfma_f32_16x16x32_bf16 {vr(D1,4)}, {vr(WR,4)}, {vr(XR,4)}, 0')
    a(f'v_mfma_f32_16x16x32_bf16 {vr(D2,4)}, {vr(XR,4)}, {vr(XR,4)}, 0')
    a('s_cbranch_scc0 Lop_notail')
    a('s_waitcnt lgkmcnt(0)')
    fin((4, 5))
    a(f'buffer_store_dwordx2 {vr(XR+4,2)}, v163, s[20:23], s88 offen sc1')
    a(f'v_mfma_f32_16x16x16_bf16 {vr(D1,4)}, {vr(WR+4,2)}, {vr(XR+4,2)}, {vr(D1,4)}')
    a(f'v_mfma_f32_16x16x16_bf16 {vr(D2,4)}, {vr(XR+4,2)}, {vr(XR+4,2)}, {vr(D2,4)}')
    a.label('Lop_notail')
    a('s_mov_b32 exec_lo, 0xffff')
    a('s_mov_b32 exec_hi, 0xffff')
    a(f'ds_write_b32 v8, v{D1} offset:{OP_ST}')
    a('s_mov_b32 exec_lo, 0x00f0000f')
    a('s_mov_b32 exec_hi, 0xf0000f00')
    for i in range(1, 4): a(f'v_cndmask_b32 v{D2}, v{D2}, v{D2+i}, s[{50+2*i}:{51+2*i}]')
    a(f'ds_write_b32 v11, v{D2} offset:{OP_ST+4}')
    a('s_waitcnt lgkmcnt(0)')
    a('s_barrier')
    endpgm(a)
    for s in range(1, 11):
        a.label(f'Lop_retry{s}')
        a('s_call_b64 s[44:45], Lop_refresh')
        a(f's_branch Lop_ok{s}')
    a.label('Lop_refresh')
    a('s_mov_b32 s46, 0')
    a('s_waitcnt vmcnt(0)')
    if os.environ.get('SLP2'): a(f's_sleep {os.environ["SLP2"]}')
    for s in range(10):
        r = AF + 4 * s
        a(f'v_max3_u32 v6, v{r}, v{r+1}, v{r+2}')
        a(f'v_max_u32 v6, v6, v{r+3}')
        a('v_cmp_eq_u32 vcc, -1, v6')
        a(f's_cbranch_vccz Lop_rf{s}')
        a(aload(s, os.environ.get('RSC', 'sc0 sc1').replace('_', ' ')))
        a('s_mov_b32 s46, 1')
        a.label(f'Lop_rf{s}')
    a('s_add_u32 s43, s43, 1')
    a('s_cmp_gt_u32 s43, 0x40000')
    a('s_cselect_b32 s46, 0, s46')
    a('s_cmp_eq_u32 s46, 1')
    a('s_cbranch_scc1 Lop_refresh')
    a('s_waitcnt vmcnt(0)')
    a('s_setpc_b64 s[44:45]')
    a.label('Lao_loader')
    a('v_lshlrev_b32 v1, 4, v0')
    a('s_mul_i32 s79, s74, 102400')
    a(f's_add_u32 s79, s79, {hx(WS_PWO)}')
    a('s_mul_i32 s80, s73, 20480')
    a('s_add_u32 s80, s80, s79')
    a('s_add_u32 s81, s79, 102400')
    a(f's_mov_b32 s82, {WOB}')
    a('s_cmp_eq_u32 s3, 0')
    a(f's_mov_b32 s83, {WOB+20480*(5-NW)}')
    a('s_cselect_b32 s83, 0, s83')
    def wo_block():
        a('s_mov_b32 m0, s82')
        for i in range(4): a(f'buffer_load_dwordx4 v1, s[20:23], s80 offen offset:{1024*i} sc1 lds')
        a('s_add_u32 s80, s80, 4096')
        a('s_cmp_eq_u32 s80, s81')
        a('s_cselect_b32 s80, s79, s80')
        a('s_add_u32 s82, s82, 4096')
    def idle():
        a('s_mov_b64 exec, -1')
        for _ in range(int(os.environ.get('IB', '3'))):
            a('s_cmp_ge_u32 s82, s83')
            a('s_cbranch_scc1 Lao_idle')
            wo_block()
        a.label('Lao_idle')
        a('s_sleep 1')
    a('s_waitcnt lgkmcnt(0)')
    a('v_add_u32 v3, 2, v0')
    a('v_and_b32 v4, 3, v3')
    a('s_lshl_b32 s16, s14, 1')
    a('s_sub_u32 s16, s16, 2')
    a('v_add_u32 v4, s16, v4')
    a('v_max_i32 v4, 0, v4')
    a('v_mul_u32_u24 v4, 12, v4')
    a('v_and_b32 v3, 12, v3')
    a('s_lshr_b32 s16, s13, 3')
    a('s_add_u32 s16, s16, 64')
    a('v_add3_u32 v2, v4, v3, s16')
    a('s_lshr_b32 s16, s72, 1')
    a('s_mul_i32 s16, s16, 12')
    a('s_add_u32 s16, s16, 54')
    a('v_add_u32 v3, s16, v0')
    a('v_cmp_gt_u32 vcc, 10, v0')
    a('v_cndmask_b32 v2, v3, v2, vcc')
    a('s_mul_i32 s16, s74, 25')
    a('s_add_u32 s16, s16, 56')
    a('s_lshr_b32 s16, s16, 2')
    a('s_sub_u32 s16, s16, 22')
    a('v_add_u32 v3, s16, v0')
    a('v_cmp_gt_u32 vcc, 22, v0')
    a('v_cndmask_b32 v2, v3, v2, vcc')
    slot_to_off_v(a, 2, 3)
    a('s_mov_b32 s85, s11')
    a('s_mov_b32 s86, s12')
    a('s_cmp_eq_u32 s9, 0')
    a('s_cbranch_scc1 Lao_nf')
    a('s_barrier')
    a.label('Lao_f8')
    wo_block()
    a(f's_cmp_lt_u32 s82, {WOB+40960}')
    a('s_cbranch_scc1 Lao_f8')
    a('s_barrier')
    a.label('Lao_nf')
    a('s_cmp_eq_u32 s3, 0')
    a('s_mov_b32 exec_lo, 0x3fffff')
    a('s_cselect_b32 exec_lo, 0x1fffffff, exec_lo')
    a('s_mov_b32 exec_hi, 0')
    flag_wait(a, [2], idle)
    a('s_barrier')
    stamp(a, 2)
    a('s_cmp_eq_u32 s3, 0')
    a('s_cbranch_scc1 Lao_nopatch')
    a('v_lshrrev_b32 v2, 3, v0')
    a('v_and_b32 v3, 7, v0')
    a('v_min_u32 v2, 5, v2')
    a('v_cmp_lt_u32 vcc, 2, v2')
    a('v_cndmask_b32 v4, 0, 3, vcc')
    a('v_sub_u32 v4, v2, v4')
    a('v_mov_b32 v5, 80')
    a('v_mov_b32 v6, 160')
    a('v_cndmask_b32 v5, v5, v6, vcc')
    a('s_lshr_b32 s16, s13, 1')
    a('s_mul_i32 s16, s16, 5')
    a('s_and_b32 s17, s13, 1')
    a('s_mul_i32 s17, s17, 3')
    a('v_add_u32 v6, s17, v4')
    a('v_cmp_eq_u32 vcc, 2, v4')
    a('v_cndmask_b32 v6, v6, v4, vcc')
    a('v_add_u32 v6, s16, v6')
    a('v_lshlrev_b32 v7, 4, v3')
    a('v_lshl_add_u32 v8, v6, 7, v7')
    a('v_lshl_add_u32 v9, v5, 7, v8')
    a('v_lshlrev_b32 v15, 2, v3')
    a(f's_mov_b32 s16, {hx(WS_QS)}')
    a(f's_mov_b32 s17, {hx(WS_SEL)}')
    a('s_mov_b32 s12, 0')
    a.label('Lao_qs')
    a('buffer_load_dword v16, v15, s[20:23], s17 offen sc0 sc1')
    a('buffer_load_dwordx4 v[20:23], v9, s[20:23], s16 offen sc0 sc1')
    a('buffer_load_dwordx4 v[24:27], v8, s[20:23], s16 offen sc0 sc1')
    a('s_add_u32 s12, s12, 1')
    a('s_waitcnt vmcnt(0)')
    a('v_max3_u32 v17, v20, v21, v22')
    a('v_max3_u32 v18, v23, v24, v25')
    a('v_max3_u32 v17, v17, v26, v27')
    a('v_max3_u32 v17, v17, v18, v16')
    a('v_cmp_eq_u32 vcc, -1, v17')
    a('s_cbranch_vccz Lao_qs2')
    a('s_sleep 2')
    a('s_cmp_lt_u32 s12, 0x40000')
    a('s_cbranch_scc1 Lao_qs')
    a.label('Lao_qs2')
    stamp(a, 3)
    a(f'v_add_u32 v15, {QP}, v15')
    a('ds_write_b32 v15, v16')
    a('v_lshl_add_u32 v7, v4, 7, v7')
    a(f'v_add_u32 v7, {QP}, v7')
    a('ds_write_b128 v7, v[24:27] offset:32')
    a('s_lshl_b32 s16, s14, 8')
    a('s_sub_u32 s16, s16, 256')
    a('v_subrev_u32 v16, s16, v16')
    a(f'v_mul_u32_u24 v2, {PS}, v2')
    a('v_lshl_add_u32 v2, v16, 4, v2')
    a('v_cmp_gt_u32 vcc, 0x200, v16')
    a('s_barrier')
    a('s_mov_b64 exec, vcc')
    a('ds_write_b128 v2, v[20:23]')
    a('s_mov_b64 exec, -1')
    a('s_waitcnt lgkmcnt(0)')
    a.label('Lao_nopatch')
    a('s_barrier')
    a.label('Lao_lloop')
    a(f's_cmp_ge_u32 s82, {WOB+20480*(5-NW)}')
    a('s_cbranch_scc1 Lao_ldone')
    wo_block()
    a(f's_waitcnt vmcnt({os.environ.get("WTH", "24")})')
    a('s_branch Lao_lloop')
    a.label('Lao_ldone')
    stamp(a, 1)
    wait_all(a)
    stamp(a, 4)
    if 'T' in XA:
        ksrd(a, 36, KA_OUT, S * D * 2)
        a('v_mul_u32_u24 v2, 40960, v0')
        a('s_waitcnt lgkmcnt(0)')
        a('buffer_load_dword v30, v2, s[36:39], 0 offen')
    if 'G' not in XA:
        a('v_lshlrev_b32 v2, 7, v0')
        a('s_min_u32 s32, s86, 29')
        a('s_mul_i32 s33, s32, 52')
        a('s_lshr_b32 s33, s33, 8')
        a('s_mul_i32 s34, s33, 5')
        a('s_sub_u32 s32, s32, s34')
        a('s_lshl_b32 s32, s32, 14')
        a('s_lshl3_add_u32 s33, s33, s85')
        a('s_mul_i32 s33, s33, 81920')
        a('s_add_u32 s32, s32, s33')
        a(f's_add_u32 s32, s32, {hx(WS_PG)}')
        a('buffer_load_dword v30, v2, s[20:23], s32 offen sc1')
        a('s_add_u32 s32, s32, 8192')
        a('buffer_load_dword v30, v2, s[20:23], s32 offen sc1')
    if 'H' not in XA:
        a('v_lshlrev_b32 v2, 7, v0')
        a('s_lshl_b32 s16, s72, 13')
        a('s_lshl_b32 s17, s97, 17')
        a('s_add_u32 s16, s16, s17')
        a(f's_add_u32 s16, s16, {hx(WS_HF - 131072)}')
        flag_wait(a, [2], base='s16')
    a('s_barrier')
    a('v_lshlrev_b32 v3, 2, v0')
    a('s_lshl_b32 s16, s72, 10')
    a('s_add_u32 s16, s16, s63')
    a(f's_add_u32 s16, s16, {hx(WS_ST)}')
    a('v_and_b32 v2, 3, v0')
    a('v_cmp_eq_u32 vcc, 3, v2')
    a('s_barrier')
    a('s_barrier')
    for k in range(8): a(f'ds_read_b32 v{8+k}, v3 offset:{OP_ST+256*k}')
    a('s_waitcnt lgkmcnt(0)')
    for k in range(4):
        a(f'v_add_f32 v{8+k}, v{8+k}, v{12+k}')
        a(f'v_cndmask_b32 v{8+k}, v{8+k}, 1.0, vcc')
        a(f'buffer_atomic_add_f32 v{8+k}, v3, s[20:23], s16 offen offset:{256*k}')
    a('s_branch La_fin2')
    L_FX = WOB + 40960
    FXF = 48; WA = 68; WB_ = 88; DA = 108; DB = 112; R = 116; FM = 126
    a.label('Lfix')
    ksrd(a, 40, KA_WQKV, D * 3 * D * 2)
    a('s_and_b32 s76, s2, 1')
    a('s_mul_i32 s76, s76, 20')
    a('s_lshr_b32 s77, s2, 1')
    a('s_add_u32 s76, s76, s77')
    a('s_and_b32 s77, s10, 3')
    a('s_lshr_b32 s78, s10, 2')
    for i in range(3):
        a(f'v_add_u32 v{R}, {64*i}, v0')
        a(f'v_mul_u32_u24 v{R+1}, 10923, v{R}')
        a(f'v_lshrrev_b32 v{R+1}, 16, v{R+1}')
        a(f'v_mul_u32_u24 v{R+2}, 6, v{R+1}')
        a(f'v_sub_u32 v{R}, v{R}, v{R+2}')
        a(f'v_and_b32 v{R+2}, 12, v{R+1}')
        a(f'v_and_b32 v{R+3}, 3, v{R+1}')
        a(f'v_lshl_or_b32 v{R+2}, v{R+2}, 1, v{R+3}')
        a(f'v_lshrrev_b32 v{R+1}, 4, v{R+1}')
        a(f'v_lshl_or_b32 v{R+2}, v{R+1}, 2, v{R+2}')
        a(f'v_mul_u32_u24 v{R+1}, 3840, v{R+2}')
        a(f'v_lshl_add_u32 v{R+4+i}, v{R}, 4, v{R+1}')
    a(f's_mul_i32 s79, s10, {32*3840}')
    a('s_mul_i32 s80, s76, 96')
    a('s_add_u32 s79, s79, s80')
    a('s_mul_i32 s80, s10, 3072')
    a(f's_add_u32 s80, s80, {L_FX}')
    a('s_waitcnt lgkmcnt(0)')
    for n in range(3):
        if n == 2:
            a('s_cmp_ge_u32 s10, 4')
            a('s_cbranch_scc1 Lfix_w')
        for i in range(3):
            a(f's_add_u32 m0, s80, {24576*n+1024*i}')
            a(f'buffer_load_dwordx4 v{R+4+i}, s[40:43], s79 offen lds')
        if n < 2: a(f's_add_u32 s79, s79, {256*3840}')
    a.label('Lfix_w')
    a(f'v_lshrrev_b32 v{R}, 2, v0')
    a(f'v_mul_u32_u24 v{R}, 96, v{R}')
    a(f'v_and_b32 v{R+1}, 3, v0')
    a(f'v_lshl_add_u32 v{R}, v{R+1}, 3, v{R}')
    a('s_mul_i32 s79, s77, 15360')
    a('s_lshl_b32 s80, s78, 6')
    a('s_add_u32 s79, s79, s80')
    a(f's_add_u32 s79, s79, {L_FX}')
    a(f'v_add_u32 v{R}, s79, v{R}')
    a(f'v_and_b32 v{R+2}, 7, v0')
    a(f'v_lshrrev_b32 v{R+3}, 4, v0')
    a('s_waitcnt vmcnt(0)')
    a('s_barrier')
    for s in range(5):
        for j in range(2):
            a(f'ds_read_b64_tr_b16 {vr(WA+4*s+2*j,2)}, v{R} offset:{3072*s+1536*j}')
            a(f'ds_read_b64_tr_b16 {vr(WB_+4*s+2*j,2)}, v{R} offset:{3072*s+1536*j+32}')
    a(f'v_lshlrev_b32 v{R+1}, 7, v{R+3}')
    a(f'v_lshl_add_u32 v{R+1}, v{R+2}, 4, v{R+1}')
    a('s_mul_i32 s79, s77, 2560')
    a(f's_add_u32 s79, s79, {hx(WS_XS)}')
    for i in range(20): a(f'v_mov_b32 v{FXF+i}, {hx(ONES2)}')
    a('s_lshl_b32 s80, s77, 12')
    a('s_lshl_b32 s81, s78, 11')
    a('s_add_u32 s80, s80, s81')
    a(f'v_add_u32 v{R+4}, s80, v1')
    a('s_lshl_b32 s80, s10, 10')
    a(f'v_add_u32 v{R+5}, s80, v1')
    a(f'v_lshrrev_b32 v{R+6}, 2, v{R+2}')
    a(f'v_lshlrev_b32 v{R+6}, 8, v{R+6}')
    a(f'v_lshl_add_u32 v{R+6}, v{R+2}, 4, v{R+6}')
    a(f'v_and_b32 v{R+7}, 3, v{R+2}')
    a(f'v_lshl_add_u32 v{R+6}, v{R+7}, 2, v{R+6}')
    a(f'v_lshlrev_b32 v{R+7}, 4, v{R+2}')
    a(f'v_lshrrev_b32 v{R+8}, 1, v{R+3}')
    a(f'v_lshl_add_u32 v{R+8}, v{R+8}, 7, v{R+7}')
    a(f'v_and_b32 v{R+9}, 1, v{R+3}')
    a(f'v_lshl_add_u32 v{R+8}, v{R+9}, 3, v{R+8}')
    a('s_mul_i32 s81, s76, 3')
    a('s_add_u32 s81, s81, s10')
    a('s_cmp_lt_u32 s81, 40')
    a(f's_cselect_b32 s82, {hx(QSCALE)}, 1.0')
    a('s_lshl_b32 s81, s81, 8')
    a(f's_add_u32 s81, s81, {hx(WS_QS)}')
    a('s_mov_b32 exec_lo, 0x00ff00ff')
    a('s_mov_b32 exec_hi, 0x00ff00ff')
    a('s_mov_b32 s80, 0')
    a.label('Lfix_poll')
    for s in range(5): a(f'buffer_load_dwordx4 {vr(FXF+4*s,4)}, v{R+1}, s[20:23], s79 offen offset:{512*s} sc0 sc1')
    a('s_add_u32 s80, s80, 1')
    for s in range(5):
        a(f's_waitcnt vmcnt({4-s})')
        r = FXF + 4 * s
        if s == 0: a(f'v_max_u32 v{R+9}, v{r}, v{r+1}')
        else: a(f'v_max3_u32 v{R+9}, v{r}, v{r+1}, v{R+9}')
        a(f'v_max3_u32 v{R+9}, v{r+2}, v{r+3}, v{R+9}')
    a(f'v_cmp_eq_u32 vcc, -1, v{R+9}')
    a('s_cbranch_vccz Lfix_go')
    a('s_sleep 2')
    a('s_cmp_lt_u32 s80, 0x40000')
    a('s_cbranch_scc1 Lfix_poll')
    a.label('Lfix_go')
    a('s_mov_b64 exec, -1')
    a('s_waitcnt lgkmcnt(0)')
    a('s_cmp_eq_u32 s78, 0')
    a('s_cbranch_scc1 Lfix_m')
    for i in range(20): a(f'v_mov_b32 v{WB_+i}, v{FXF+i}')
    a.label('Lfix_m')
    for s in range(5):
        a(f'v_mfma_f32_16x16x32_bf16 {vr(DA,4)}, {vr(WA+4*s,4)}, {vr(FXF+4*s,4)}, {"0" if s == 0 else vr(DA,4)}')
        a(f'v_mfma_f32_16x16x32_bf16 {vr(DB,4)}, {vr(WB_+4*s,4)}, {vr(FXF+4*s,4)}, {"0" if s == 0 else vr(DB,4)}')
    a(f'ds_write_b128 v{R+4}, {vr(DA,4)}')
    a(f'ds_write_b128 v{R+4}, {vr(DB,4)} offset:1024')
    a('s_waitcnt lgkmcnt(0)')
    a('s_barrier')
    a('s_cmp_gt_u32 s10, 2')
    a('s_cbranch_scc1 Lfix_done')
    for q in range(4):
        a(f'ds_read_b32 v{WA+q}, v{R+7} offset:{4096*q+3072+512}')
        a(f'ds_read_b32 v{WA+4+q}, v{R+6} offset:{4096*q+3072}')
    for q in range(4): a(f'ds_read_b128 {vr(FXF+4*q,4)}, v{R+5} offset:{4096*q}')
    a('s_waitcnt lgkmcnt(4)')
    for b in (WA, WA + 4):
        a(f'v_add_f32 v{b}, v{b}, v{b+1}')
        a(f'v_add_f32 v{b+2}, v{b+2}, v{b+3}')
        a(f'v_add_f32 v{b}, v{b}, v{b+2}')
    ln_scalars(a, WA, WA + 4, FM, FM + 1, R + 9)
    a(f'v_mul_f32 v{FM+1}, s82, v{FM+1}')
    a('s_waitcnt lgkmcnt(0)')
    for i in range(2):
        a(f'v_pk_add_f32 {vr(FXF+2*i,2)}, {vr(FXF+2*i,2)}, {vr(FXF+4+2*i,2)}')
        a(f'v_pk_add_f32 {vr(FXF+8+2*i,2)}, {vr(FXF+8+2*i,2)}, {vr(FXF+12+2*i,2)}')
    for i in range(2): a(f'v_pk_add_f32 {vr(FXF+2*i,2)}, {vr(FXF+2*i,2)}, {vr(FXF+8+2*i,2)}')
    for i in range(4): a(f'v_mov_b32_dpp v{FXF+4+i}, v{FXF+i} row_newbcast:8 row_mask:0xf bank_mask:0xf')
    for i in range(4): a(f'v_fma_f32 v{FXF+i}, -v{FM}, v{FXF+4+i}, v{FXF+i}')
    for i in range(4): a(f'v_mul_f32 v{FXF+i}, v{FXF+i}, v{FM+1}')
    a(f'v_cvt_pk_bf16_f32 v{FXF+4}, v{FXF}, v{FXF+1}')
    a(f'v_cvt_pk_bf16_f32 v{FXF+5}, v{FXF+2}, v{FXF+3}')
    for i in range(2): a(f'v_min_u32 v{FXF+4+i}, -2, v{FXF+4+i}')
    a('s_mov_b32 exec_lo, 0x00ff00ff')
    a('s_mov_b32 exec_hi, 0x00ff00ff')
    a(f'buffer_store_dwordx2 {vr(FXF+4,2)}, v{R+8}, s[20:23], s81 offen sc0 sc1')
    a('s_mov_b64 exec, -1')
    a('s_branch Lfix_done')
    a.label('Latt_exact')
    a('s_mov_b32 s62, 1')
    a('s_waitcnt vmcnt(0)')
    masks()
    for n, t in enumerate([0, 1, 2, 3, 4, 5, 6, 7, 8]):
        kread(t, 0)
        a('s_waitcnt lgkmcnt(0)')
        m1(0, SB, vr(ME, 16) if t == 0 else vr(MD, 16) if t == 8 else '0'); m2(0, SB)
        mxall(SB, n == 0)
    kread(0, 1); vread(8, 0)
    a('s_branch Latt_havemax')
    a.label('La_fin')
    phase_end(a, lambda a: (a('s_lshl3_add_u32 s11, s72, s74'), slot_to_off_s(a, 11)), 'La_fin2')
    mark(a, 'op')
    a('s_cmp_lg_u32 s3, 0')
    a('s_cbranch_scc1 Lf_start')
    a(f's_mov_b32 s3, {hx(WS_X1)}')
    a('s_branch Lq_start')
```

```python
from common import *
from k_ffn import FS_LDS, S2
X = os.environ.get('XQ', '')
NT = ' nt' if 'N' in X else ''
SLOT = 36864; NSLOT = 3
MR = NSLOT * SLOT; CS = MR + 1024
SK = CS + 1024
QKV_LDS = SK + 512

from common import _pd as common_pd

def epoch(a):
    a('s_cmp_lg_u32 s97, 0')
    common_pd[0] += 1; L = f'Lep{common_pd[0]}'
    a(f's_cbranch_scc1 {L}')
    a('s_load_dword s98, s[28:29], s44')
    a('s_waitcnt lgkmcnt(0)')
    a(f's_add_u32 s98, s98, {hx(EPK)}')
    a.label(L)

def gen_qkv(a):
    a.pv = 167
    a.fin = 'Lq_fin'
    kernel_start(a, KNAME)
    mark(a, 'start')
    ksrd(a, 28, KA_WS, WS_SIZE)
    ksrd(a, 20, KA_X, S * D * 2)
    a('s_cmp_ge_u32 s2, 256')
    a('s_cbranch_scc1 Lend')
    wave_lane(a)
    a('s_mov_b32 s96, 0')
    a('s_mov_b32 s97, 0')
    a('s_mov_b32 s3, 0')
    if os.environ.get('PRI', '1') == '1':
        a('s_cmp_lg_u32 s10, 8')
        a('s_cbranch_scc1 Lq_start')
        a('s_setprio 3')
    a.label('Lq_start')
    ksrd(a, 24, KA_WQKV, D * 3 * D * 2)
    a('s_and_b32 s11, s2, 7')
    a('s_lshr_b32 s12, s2, 3')
    a('s_sub_u32 s12, s12, 8')
    a('s_lshr_b32 s13, s11, 1')
    a('s_and_b32 s15, s12, 3')
    a('s_lshl2_add_u32 s13, s13, s15')
    a('s_and_b32 s14, s11, 1')
    a('s_mul_i32 s14, s14, 6')
    a('s_lshr_b32 s16, s12, 2')
    a('s_add_u32 s14, s14, s16')
    if 'q' in os.environ.get('MAP', 'o'):
        a('s_and_b32 s15, s12, 1')
        a('s_lshl1_add_u32 s13, s11, s15')
        a('s_lshr_b32 s14, s12, 1')
        a('s_mov_b32 s16, s14')
    a(f's_mov_b32 s40, {SLOT}')
    a(f's_mov_b32 s44, {hx(WS_EP)}')
    a('s_cmp_lt_u32 s2, 64')
    a('s_cbranch_scc1 Lqkv_side')
    a('s_cmp_lt_u32 s10, 4')
    a('s_cbranch_scc1 Lqkv_comp')
    a('s_cmp_eq_u32 s10, 8')
    a('s_cbranch_scc1 Lqkv_w8')

    VA = 2; VW = 6
    ROT = os.environ.get('ROT', '2')
    if ROT == 'f':
        a('s_mul_i32 s15, s15, 3')
        a('s_add_u32 s15, s15, s16')
        a('s_add_u32 s15, s15, s11')
        mod_small(a, 15, 10, 2)
    elif ROT == '0': a('s_mov_b32 s15, 0')
    elif ROT == '2':
        a('s_add_u32 s15, s15, s16'); a('s_and_b32 s15, s15, 1'); a('s_mul_i32 s15, s15, 5')
    elif ROT == '4':
        a('s_add_u32 s15, s15, s16'); a('s_and_b32 s15, s15, 3'); a('s_mul_i32 s15, s15, 5'); a('s_lshr_b32 s15, s15, 1')
    elif ROT == 'a':
        a('s_add_u32 s15, s15, s16'); a('s_and_b32 s15, s15, 3')
    elif ROT == 'n':
        a('s_mul_i32 s15, s15, 3'); a('s_add_u32 s15, s15, s16'); mod_small(a, 15, 10, 1)
    a('s_sub_u32 s16, s10, 4')
    a('v_lshrrev_b32 v12, 3, v0')
    a('v_lshrrev_b32 v13, 4, v0')
    a('v_and_b32 v14, 7, v0')
    a('v_xor_b32 v14, v14, v13')
    a('s_lshl_b32 s17, s16, 5')
    a('v_add_u32 v12, s17, v12')
    VT = 48
    a('v_lshrrev_b32 v15, 1, v14')
    a('v_lshlrev_b32 v15, 16, v15')
    a('v_lshl_add_u32 v15, v12, 5, v15')
    a(f'v_and_b32 v{VT}, 1, v14')
    a(f'v_lshl_add_u32 v15, v{VT}, 4, v15')
    a(f'v_add_u32 v{VT}, 4096, v15')
    a(f'v_xor_b32 v{VT+1}, 0x20000, v{VT}')
    a(f'v_subrev_u32 v{VT+1}, {1024-256}, v{VT+1}')
    a(f'v_subrev_u32 v{VT+2}, {2*(1024-256)}, v{VT}')
    a(f'v_subrev_u32 v{VT+3}, {2*(1024-256)}, v{VT+1}')
    a('v_mul_u32_u24 v12, 1280, v12')
    a(f'v_lshl_add_u32 v{VA}, v14, 4, v12')
    a('v_xor_b32 v14, 4, v14')
    a(f'v_lshl_add_u32 v{VA+1}, v14, 4, v12')
    a(f'v_add_u32 v{VA+1}, {10240-1024}, v{VA+1}')
    a(f'v_add_u32 v{VA+2}, {2*(10240-1024)}, v{VA}')
    a(f'v_add_u32 v{VA+3}, {2*(10240-1024)}, v{VA+1}')
    a(f's_mul_i32 s17, s16, {16*3840}')
    a('s_mul_i32 s18, s14, 320')
    a('s_add_u32 s41, s17, s18')
    a(f's_mov_b32 s42, {64*3840}')
    for i in range(5):
        a(f'v_add_u32 v12, {64*i}, v0')
        a('v_mul_u32_u24 v13, 3277, v12')
        a('v_lshrrev_b32 v13, 16, v13')
        a('v_mul_u32_u24 v14, 20, v13')
        a('v_sub_u32 v12, v12, v14')
        a('v_lshrrev_b32 v14, 2, v13')
        a('v_and_b32 v14, 2, v14')
        a('v_xor_b32 v12, v12, v14')
        a('v_mul_u32_u24 v13, 3840, v13')
        a(f'v_lshl_add_u32 v{VW+i}, v12, 4, v13')
        if 0 < i < 4: a(f'v_subrev_u32 v{VW+i}, {1024*i}, v{VW+i}')
    a('s_mul_i32 s18, s13, 163840')
    a('s_add_u32 s18, s18, s3')
    a('s_lshl_b32 s51, s13, 12')
    a(f's_add_u32 s51, s51, {hx(WS_X1 + XT - 4096 - 8 * 262144)}')
    a('s_cmp_eq_u32 s3, 0')
    a('s_cselect_b32 s52, 10, 8')
    a('s_mul_i32 s37, s15, s42')
    a('s_add_u32 s37, s37, s41')
    a('s_lshl_b32 s17, s16, 12')
    a('s_mov_b32 s38, s17')
    a('s_lshl_b32 s39, s16, 10')
    a('s_add_u32 s39, s39, 0x4000')
    a('s_waitcnt lgkmcnt(0)')
    stamp(a, 1)
    def adv():
        a('s_add_u32 s37, s37, s42')
        a('s_add_u32 s15, s15, 1')
        a('s_cmp_eq_u32 s15, 10')
        a('s_cselect_b32 s15, 0, s15')
        a('s_cselect_b32 s37, s41, s37')
    def dma_a(kc, base):
        common_pd[0] += 1; L = f'Lda{common_pd[0]}'
        a(f's_mov_b32 m0, {base}')
        a(f's_cmp_ge_u32 {kc}, s52')
        a(f's_cbranch_scc1 {L}t')
        a(f's_lshl_b32 s36, {kc}, 7')
        a('s_add_u32 s36, s36, s18')
        for i in range(4): a(f'buffer_load_dwordx4 v{VA+i}, s[20:23], s36 offen offset:{1024*i} sc1 lds')
        a(f's_branch {L}e')
        a.label(L + 't')
        a(f's_lshl_b32 s36, {kc}, 18')
        a('s_add_u32 s36, s36, s51')
        for i in range(4): a(f'buffer_load_dwordx4 v{VT+i}, s[20:23], s36 offen offset:{1024*i} sc1 lds')
        a.label(L + 'e')
    def dma_w(so, base):
        a(f's_add_u32 m0, {base}, s39')
        for i in range(4): a(f'buffer_load_dwordx4 v{VW+i}, s[24:27], {so} offen offset:{1024*i} lds')
        a('s_add_u32 m0, m0, 4096')
        a(f'buffer_load_dwordx4 v{VW+4}, s[24:27], {so} offen lds')
    a('s_mov_b32 s49, s15')
    a(f's_add_u32 s50, s38, {SLOT}')
    dma_w('s37', 's38')
    a('s_cmp_eq_u32 s3, 0')
    a('s_cbranch_scc1 Lqkv_p1')
    adv()
    dma_w('s37', 's50')
    a('s_barrier')
    dma_a('s49', 's38')
    dma_a('s15', 's50')
    a('s_waitcnt vmcnt(4)')
    a('s_branch Lqkv_p2')
    a.label('Lqkv_p1')
    dma_a('s15', 's38')
    adv()
    dma_a('s15', 's50')
    dma_w('s37', 's50')
    epoch(a)
    a.label('Lqkv_p2')
    adv()
    a(f's_add_u32 s38, s38, {2*SLOT}')
    a('s_mov_b32 s33, 0')
    a.label('Lqkv_lloop')
    a('s_waitcnt vmcnt(9)')
    a('s_barrier')
    dma_a('s15', 's38')
    dma_w('s37', 's38')
    adv()
    a(f's_add_u32 s38, s38, {SLOT}')
    a(f's_cmp_ge_u32 s38, {NSLOT*SLOT}')
    a('s_cselect_b32 s38, s17, s38')
    a('s_add_u32 s33, s33, 1')
    a('s_cmp_lt_u32 s33, 8')
    a('s_cbranch_scc1 Lqkv_lloop')
    a('v_and_b32 v12, 31, v0')
    a('v_lshlrev_b32 v2, 4, v12')
    a('v_min_u32 v3, 19, v12')
    a('v_lshlrev_b32 v3, 4, v3')
    a('v_lshrrev_b32 v13, 5, v0')
    a('v_mul_u32_u24 v13, 15360, v13')
    a('v_add_u32 v4, v3, v13')
    a('s_lshl2_add_u32 s19, s14, s16')
    a('s_mul_i32 s19, s19, 320')
    a(f's_add_u32 s19, s19, {hx(WS_CS)}')
    a('s_cmp_lt_u32 s14, 4')
    a(f's_cselect_b32 s47, {hx(QSCALE)}, 1.0')
    a('s_lshl_b32 s17, s16, 8')
    a(f's_add_u32 s17, s17, {MR}')
    a('v_lshl_add_u32 v5, v12, 3, s17')
    a('s_mul_i32 s17, s16, 160')
    a(f's_add_u32 s17, s17, {CS}')
    a('v_lshrrev_b32 v3, 1, v3')
    a('v_add_u32 v6, s17, v3')
    a('s_mov_b32 s33, 0')
    for i in range(4): a(f'v_mov_b32 v{44+i}, -1')
    a('s_and_b32 s49, s14, 12')
    a('s_add_u32 s49, s49, s16')
    a('s_min_u32 s49, s49, 9')
    a('s_and_b32 s50, s14, 3')
    a('s_mul_i32 s50, s50, 10')
    a('s_add_u32 s49, s49, s50')
    a('s_lshl_b32 s49, s49, 16')
    a('s_lshl_b32 s50, s13, 11')
    a('s_add_u32 s49, s49, s50')
    a(f's_add_u32 s49, s49, {hx(WS_O)}')
    a(f's_add_u32 s50, s49, {PLANE}')
    a('v_lshlrev_b32 v43, 4, v0')
    def fill():
        for i in range(4): a(f'buffer_store_dwordx4 v[44:47], v43, s[28:31], s{49+i//2} offen offset:{1024*(i%2)} sc1')
    a('s_cmp_lg_u32 s3, 0')
    a('s_cbranch_scc1 Lqkv_tail2')
    a('s_lshl2_add_u32 s18, s13, s16')
    a('s_lshl_b32 s18, s18, 9')
    a(f's_add_u32 s18, s18, {hx(WS_MR)}')
    def fetch():
        a('buffer_load_dwordx4 v[16:19], v2, s[28:31], s18 offen sc0 sc1')
        a('buffer_load_dwordx4 v[20:23], v4, s[28:31], s19 offen sc0 sc1')
    fetch()
    a('s_mov_b32 s45, s98')
    a('s_not_b32 s46, s45')
    a('s_waitcnt vmcnt(11)')
    a('s_barrier')
    fill()
    a('s_waitcnt vmcnt(6)')
    a('s_barrier')
    a('s_waitcnt vmcnt(4)')
    a.label('Lqkv_hpoll')
    a('v_xor_b32 v18, s45, v18')
    a('v_xor_b32 v19, s46, v19')
    a('v_xor_b32 v21, s45, v21')
    a('v_xor_b32 v23, s45, v23')
    a('v_or_b32 v21, v21, v23')
    a('v_or3_b32 v18, v18, v19, v21')
    a('v_cmp_ne_u32 vcc, 0, v18')
    a('s_cbranch_vccz Lqkv_hgo')
    a('s_add_u32 s33, s33, 1')
    a('s_cmp_gt_u32 s33, 0x40000')
    a('s_cbranch_scc1 Lqkv_hgo')
    fetch()
    a('s_waitcnt vmcnt(0)')
    a('s_branch Lqkv_hpoll')
    a.label('Lqkv_tail2')
    a('s_lshl2_add_u32 s17, s13, s16')
    a('s_lshl_b32 s17, s17, 9')
    a(f's_add_u32 s17, s17, {hx(WS_ST)}')
    a('buffer_load_dwordx4 v[32:35], v2, s[28:31], s17 offen sc1')
    a('buffer_load_dwordx4 v[20:23], v4, s[28:31], s19 offen sc1')
    a('s_waitcnt vmcnt(11)')
    a('s_barrier')
    fill()
    a('s_waitcnt vmcnt(6)')
    a('s_barrier')
    a('s_waitcnt vmcnt(4)')
    a.label('Lqkv_cnt')
    a('v_cmp_neq_f32 vcc, 0x41000000, v35')
    a('s_cbranch_vccz Lqkv_cnt2')
    a('buffer_load_dwordx4 v[32:35], v2, s[28:31], s17 offen sc0 sc1')
    a('s_add_u32 s33, s33, 1')
    a('s_waitcnt vmcnt(0)')
    a('s_cmp_lt_u32 s33, 0x40000')
    a('s_cbranch_scc1 Lqkv_cnt')
    a.label('Lqkv_cnt2')
    inv = hx(f2u(1.0 / D))
    ln_scalars(a, 32, 33, 27, 28, 29)
    a(f'v_mul_f32 v25, {inv}, v32')
    a(f'v_mul_f32 v26, {inv}, v33')
    a('v_fma_f32 v26, -v25, v25, v26')
    a('v_max_f32 v26, 0, v26')
    a('v_add_f32 v29, 1.0, v28')
    a('v_sub_f32 v30, v25, v27')
    a('v_fma_f32 v25, v30, v28, v25')
    a('v_mul_f32 v26, v26, v29')
    a('v_mul_f32 v26, v26, v29')
    rbf16(a, 25, 25)
    rbf16(a, 26, 26)
    a(f'v_add_f32 v26, {hx(f2u(1e-5))}, v26')
    rbf16(a, 26, 26)
    a('v_sqrt_f32 v26, v26')
    a('v_rcp_f32 v30, v29')
    rbf16(a, 26, 26)
    a('v_rcp_f32 v26, v26')
    a('v_fma_f32 v16, v27, v28, v25')
    a('v_mul_f32 v16, v16, v30')
    a('v_mul_f32 v17, v29, v26')
    a.label('Lqkv_hgo')
    a('v_mul_f32 v17, s47, v17')
    a('v_mov_b32 v21, v20')
    a('v_mov_b32 v23, v22')
    a('ds_write_b64 v5, v[16:17]')
    a('v_permlane32_swap_b32 v20, v21')
    a('v_permlane32_swap_b32 v22, v23')
    a('v_add_f32 v20, v20, v21')
    a('v_add_f32 v21, v22, v23')
    a('ds_write_b64 v6, v[20:21]')
    a('s_waitcnt lgkmcnt(0)')
    a('s_barrier')
    endpgm(a)
    a.label('Lqkv_w8')
    a('s_waitcnt lgkmcnt(0)')
    epoch(a)
    a('s_cmp_eq_u32 s3, 0')
    a('s_cbranch_scc1 Lqkv_w8a')
    a('v_and_b32 v2, 15, v0')
    a('s_lshl_b32 s16, s13, 4')
    a('v_add_u32 v2, s16, v2')
    slot_to_off_v(a, 2, 3)
    a('s_mov_b64 exec, 0xffff')
    flag_wait(a, [2])
    a('s_barrier')
    a('s_branch Lqkv_w8b')
    a.label('Lqkv_w8a')
    a('s_sub_u32 s47, s2, 64')
    a('s_sub_u32 s46, s47, 67')
    a('s_min_u32 s46, s46, s47')
    a('s_cmp_lt_u32 s46, 32')
    a('s_cselect_b32 s46, 0, -1')
    for i in range(4): a(f'v_mov_b32 v{4+i}, s46')
    a('s_lshl_b32 s46, s47, 10')
    a(f's_add_u32 s46, s46, {hx(WS_CTL)}')
    a('v_lshlrev_b32 v1, 4, v0')
    for i in range(9): a('s_barrier')
    a(f's_cmp_ge_u32 s47, {NCLR}')
    a('s_cbranch_scc1 Lqkv_w8d')
    a('buffer_store_dwordx4 v[4:7], v1, s[28:31], s46 offen sc1')
    a.label('Lqkv_w8d')
    a('s_branch Lqkv_w8c')
    a.label('Lqkv_w8b')
    for i in range(9): a('s_barrier')
    a.label('Lqkv_w8c')
    for i in range(2): a('s_barrier')
    endpgm(a)
    side1(a)
    comp(a)

def comp(a):
    a.label('Lqkv_comp')
    ACC = 8; BUF = 88; AX = 2; AW = 4
    CSR = 88; MRR = 108; T = 116
    a('s_and_b32 s16, s10, 1')
    a('s_lshr_b32 s17, s10, 1')
    a('v_and_b32 v160, 15, v0')
    a('v_lshrrev_b32 v161, 4, v0')
    a('v_bfe_u32 v162, v0, 1, 3')
    a('v_xor_b32 v162, v162, v161')
    a('v_lshlrev_b32 v162, 4, v162')
    a('v_lshl_add_u32 v162, v160, 7, v162')
    a('s_lshl_b32 s18, s17, 13')
    a(f'v_add_u32 v{AX}, s18, v162')
    a(f'v_xor_b32 v{AX+1}, 64, v{AX}')
    a('v_bfe_u32 v162, v0, 2, 2')
    a('v_lshl_add_u32 v162, v161, 3, v162')
    a('v_mul_u32_u24 v162, 320, v162')
    a('v_and_b32 v163, 3, v0')
    a('v_lshl_add_u32 v162, v163, 3, v162')
    a('s_mul_i32 s18, s16, 160')
    a('s_add_u32 s18, s18, 0x4000')
    a('v_add_u32 v162, s18, v162')
    a('v_and_b32 v163, 16, v0')
    a('v_lshlrev_b32 v163, 1, v163')
    a(f'v_add_u32 v{AW}, v162, v163')
    a(f'v_sub_u32 v{AW+1}, v162, v163')
    a('s_cmp_eq_u32 s16, 0')
    a('s_cbranch_scc1 Lqkv_nosw')
    a(f'v_swap_b32 v{AW}, v{AW+1}')
    a.label('Lqkv_nosw')
    a('s_waitcnt lgkmcnt(0)')
    epoch(a)
    for i in range(80): a(f'v_mov_b32 v{ACC+i}, 0')
    a('s_lshl1_add_u32 s19, s14, s16')
    a(f's_mul_i32 s19, s19, {10*PLANE}')
    a('s_lshl1_add_u32 s41, s13, s17')
    a('s_lshl_b32 s41, s41, 10')
    a('s_add_u32 s41, s41, s19')
    a('s_cmp_eq_u32 s3, 0')
    a('s_cbranch_scc1 Lqkv_c1')
    a(f's_add_u32 s41, s41, {QKV_SZ}')
    a('s_barrier')
    a.label('Lqkv_c1')
    NR = 14
    def rd(b, s):
        base = BUF + 36 * b
        xs = [f'ds_read_b128 {vr(base+4*tt,4)}, v{AX+s} offset:{2048*tt}' for tt in range(4)]
        ws = [[f'ds_read_b64_tr_b16 {vr(base+16+4*ct+2*j,2)}, v{AW+ct%2} offset:{(32*s+4*j)*320+32*ct}' for j in range(2)] for ct in range(5)]
        return ws[0] + xs + sum(ws[1:], [])
    def mf(b):
        base = BUF + 36 * b
        L = []
        for ct in range(5):
            wneed = 2 if ct == 0 else 6 + 2 * ct
            for tt in range(4):
                acc = vr(ACC + (ct * 4 + tt) * 4, 4)
                L.append((f'v_mfma_f32_16x16x32_bf16 {acc}, {vr(base+16+4*ct,4)}, {vr(base+4*tt,4)}, {acc}', max(wneed, 3 + tt)))
        return L
    def kstep(b, R, start, extra={}, full=False):
        M = mf(b); R = list(R); issued = 0; have = 0
        if full:
            a('s_waitcnt lgkmcnt(0)'); have = NR
        for i, (m, need) in enumerate(M):
            if need > have:
                a(f's_waitcnt lgkmcnt({min(15, NR - need + issued)})'); have = need
            a(m)
            for x in extra.get(i, []): a(x)
            if i >= start and R:
                a(R.pop(0)); issued += 1
        assert not R
    a('s_mov_b32 s33, 0')
    a('s_mov_b32 s34, 0')
    a('s_waitcnt lgkmcnt(0)')
    stamp(a, 2)
    a('s_barrier')
    stamp(a, 3)
    cstamp(a, 12)
    for x in rd(0, 0): a(x)
    a.label('Lqkv_cloop')
    ex = {0: ['s_add_u32 s34, s34, 1'], 1: [f's_cmp_eq_u32 s34, {NSLOT}'], 2: [f's_cselect_b32 s35, {hx(-(NSLOT-1)*SLOT)}, s40'], 3: ['s_cselect_b32 s34, 0, s34'],
          4: ['s_add_u32 s33, s33, 1'], 5: ['s_cmp_eq_u32 s33, 10']}
    for i in range(4): ex[14 + i] = [f'v_add_u32 v{AX+i}, s35, v{AX+i}']
    kstep(0, rd(1, 1), 0, extra=ex)
    a('s_cbranch_scc1 Lqkv_cdone')
    kstep(1, rd(0, 0), 2, extra={1: ['s_barrier']}, full=True)
    a('s_branch Lqkv_cloop')
    a.label('Lqkv_cdone')
    stamp(a, 4)
    cstamp(a, 13)
    a('s_waitcnt lgkmcnt(0)')
    for m, _ in mf(1): a(m)
    a('s_mul_i32 s18, s16, 320')
    a(f's_add_u32 s18, s18, {CS}')
    a(f'v_lshl_add_u32 v{AX}, v161, 4, s18')
    a('s_lshl_b32 s18, s17, 9')
    a(f's_add_u32 s18, s18, {MR}')
    a(f'v_lshl_add_u32 v{AX+2}, v160, 3, s18')
    a('v_and_b32 v1, 31, v0')
    a('v_lshlrev_b32 v1, 4, v1')
    a('v_lshrrev_b32 v162, 5, v0')
    a('v_lshl_add_u32 v1, v162, 15, v1')
    a('s_barrier')
    stamp(a, 5)
    for tt in range(4): a(f'ds_read_b64 {vr(MRR+2*tt,2)}, v{AX+2} offset:{128*tt}')
    for c in range(5): a(f'ds_read_b128 {vr(CSR+4*c,4)}, v{AX} offset:{64*c}')
    n = 0
    for ct in range(5):
        cs = CSR + 4 * ct
        a(f's_waitcnt lgkmcnt({4-ct})')
        for tp in range(2):
            R = T + 4 * (n % 4); n += 1
            for k in range(2):
                tt = 2 * tp + k
                acc = ACC + (ct * 4 + tt) * 4
                for p in range(2):
                    a(f'v_pk_fma_f32 {vr(acc+2*p,2)}, {vr(cs+2*p,2)}, {vr(MRR+2*tt,2)}, {vr(acc+2*p,2)} op_sel_hi:[1,0,1] neg_lo:[0,1,0] neg_hi:[0,1,0]')
                for p in range(2):
                    a(f'v_pk_mul_f32 {vr(acc+2*p,2)}, {vr(acc+2*p,2)}, {vr(MRR+2*tt,2)} op_sel:[0,1] op_sel_hi:[1,1]')
                a(f'v_cvt_pk_bf16_f32 v{R+2*k}, v{acc}, v{acc+1}')
                a(f'v_cvt_pk_bf16_f32 v{R+2*k+1}, v{acc+2}, v{acc+3}')
            a(f'v_permlane16_swap_b32 v{R}, v{R+2}')
            a(f'v_permlane16_swap_b32 v{R+1}, v{R+3}')
            a(f'buffer_store_dwordx4 {vr(R,4)}, v1, s[28:31], s41 offen offset:{512*tp} sc1')
        if ct < 4: a(f's_add_u32 s41, s41, {2*PLANE}')

def side1(a):
    a.label('Lqkv_side')
    a('s_mov_b32 s13, s2')
    a('s_mov_b32 s53, 1')
    a('s_mov_b32 s51, 0')
    a('s_cmp_lg_u32 s3, 0')
    a('s_cbranch_scc1 Lfs')
    a('v_lshrrev_b32 v5, 3, v0')
    a('v_and_b32 v6, 7, v0')
    a('v_lshlrev_b32 v7, 2, v0')
    a('v_mov_b32 v8, 0')
    a('ds_write_b32 v7, v8 offset:1024')
    a('s_waitcnt lgkmcnt(0)')
    a('s_barrier')
    epoch(a)
    a('s_cmp_eq_u32 s10, 8')
    a('s_cbranch_scc1 Lq_fin')
    a('s_cmp_ge_u32 s10, 4')
    a('s_cbranch_scc1 Lside_pack')
    a('s_lshl2_add_u32 s14, s13, s10')
    a('v_mul_u32_u24 v4, 1280, v5')
    a('v_lshl_add_u32 v4, v6, 4, v4')
    a('s_mul_i32 s15, s14, 10240')
    for i in range(10): a(f'buffer_load_dwordx4 {vr(20+4*i,4)}, v4, s[20:23], s15 offen offset:{128*i}')
    a('s_cmp_ge_u32 s13, 60')
    a('s_cselect_b32 s53, 1, 0')
    a('s_cmp_eq_u32 s53, 1')
    a('s_cbranch_scc1 Lside_nob')
    a('v_mul_u32_u24 v7, 3840, v5')
    a('v_lshl_add_u32 v7, v6, 4, v7')
    a('s_and_b32 s16, s13, 1')
    a('s_mul_i32 s16, s16, 40')
    a('s_add_u32 s16, s16, s10')
    a(f's_mul_i32 s17, s16, {8*3840}')
    a('s_lshr_b32 s18, s13, 1')
    a('s_lshl_b32 s19, s18, 7')
    a('s_add_u32 s17, s17, s19')
    for n in range(10):
        a(f'buffer_load_dwordx4 {vr(60+4*n,4)}, v7, s[24:27], s17 offen')
        if n < 9: a(f's_add_u32 s17, s17, {32*3840}')
    a('s_waitcnt vmcnt(10)')
    a('s_branch Lside_a')
    a.label('Lside_nob')
    a('s_waitcnt vmcnt(0)')
    a.label('Lside_a')
    stamp(a, 1)
    for i in range(40):
        u = 100 + 2 * (i % 2)
        unpack(a, u, 20 + i)
        if i == 0:
            a(f'v_pk_mul_f32 v[106:107], {vr(u,2)}, {vr(u,2)}')
            a(f'v_pk_add_f32 v[104:105], {vr(u,2)}, 0')
        else:
            a(f'v_pk_fma_f32 v[106:107], {vr(u,2)}, {vr(u,2)}, v[106:107]')
            a(f'v_pk_add_f32 v[104:105], {vr(u,2)}, v[104:105]')
    a('v_add_f32 v104, v104, v105')
    a('v_add_f32 v106, v106, v107')
    for m in ('quad_perm:[1,0,3,2]', 'quad_perm:[2,3,0,1]', 'row_half_mirror'):
        for v in (104, 106): a(f'v_add_f32_dpp v{v}, v{v}, v{v} {m} row_mask:0xf bank_mask:0xf')
    ln_scalars(a, 104, 106, 108, 109, 100)
    a('s_mov_b32 s54, s98')
    a('v_mov_b32 v110, s54')
    a('v_not_b32 v111, v110')
    a('v_lshlrev_b32 v11, 4, v5')
    a('s_lshl_b32 s15, s14, 7')
    a(f's_add_u32 s15, s15, {hx(WS_MR)}')
    a('s_mov_b32 exec_lo, 0x01010101')
    a('s_mov_b32 exec_hi, 0x01010101')
    a('buffer_store_dwordx4 v[108:111], v11, s[28:31], s15 offen sc0 sc1')
    a('s_mov_b64 exec, -1')
    stamp(a, 2)
    a('s_cmp_eq_u32 s53, 1')
    a('s_cbranch_scc1 Lside_nob2')
    a('s_waitcnt vmcnt(1)')
    for n in range(10):
        for q in range(4):
            u = 100 + 2 * (q % 2)
            unpack(a, u, 60 + 4 * n + q)
            if n == 0: a(f'v_pk_add_f32 {vr(112+2*q,2)}, {vr(u,2)}, 0')
            else: a(f'v_pk_add_f32 {vr(112+2*q,2)}, {vr(u,2)}, {vr(112+2*q,2)}')
    for q in range(8): a(f'v_add_f32_dpp v{112+q}, v{112+q}, v{112+q} row_ror:8 row_mask:0xf bank_mask:0xf')
    for op in ('v_permlane16_swap_b32', 'v_permlane32_swap_b32'):
        for q in range(8): a(f'v_mov_b32 v{120+q}, v{112+q}')
        for q in range(8): a(f'{op} v{112+q}, v{120+q}')
        for q in range(8): a(f'v_add_f32 v{112+q}, v{112+q}, v{120+q}')
    a('s_lshl_b32 s19, s10, 8')
    a('v_lshl_add_u32 v13, v6, 5, s19')
    a('ds_write_b128 v13, v[112:115]')
    a('ds_write_b128 v13, v[116:119] offset:16')
    a.label('Lside_nob2')
    a('s_lshl_b32 s19, s10, 2')
    a('v_mov_b32 v13, s19')
    a('s_waitcnt lgkmcnt(0)')
    a('v_mov_b32 v14, 1')
    a('ds_write_b32 v13, v14 offset:1024')
    a('s_cmp_lg_u32 s10, 0')
    a('s_cbranch_scc1 ' + ('Lside_pre' if 'W' in X else 'Lq_fin'))
    a.label('Lside_meet')
    a('ds_read_b128 v[20:23], v13 offset:1024')
    a('s_waitcnt lgkmcnt(0)')
    a('v_and_b32 v20, v20, v21')
    a('v_and_b32 v22, v22, v23')
    a('v_and_b32 v20, v20, v22')
    a('v_cmp_eq_u32 vcc, 0, v20')
    a('s_cbranch_vccnz Lside_meet')
    a('s_cmp_eq_u32 s53, 1')
    a('s_cbranch_scc1 Lside_bump')
    a('v_lshlrev_b32 v13, 2, v0')
    for w in range(4): a(f'ds_read_b32 v{72+w}, v13 offset:{256*w}')
    a('s_and_b32 s16, s13, 1')
    a('s_mul_i32 s16, s16, 15360')
    a('s_lshl_b32 s17, s18, 9')
    a('s_add_u32 s16, s16, s17')
    a(f's_add_u32 s16, s16, {hx(WS_CS)}')
    a('v_lshlrev_b32 v13, 3, v0')
    a('s_waitcnt lgkmcnt(0)')
    for w in range(1, 4): a(f'v_add_f32 v72, v72, v{72+w}')
    a('v_mov_b32 v73, s54')
    a('buffer_store_dwordx2 v[72:73], v13, s[28:31], s16 offen sc0 sc1')
    a.label('Lside_bump')
    a('s_waitcnt vmcnt(0)')
    a('v_mov_b32 v13, 0')
    a('ds_write_b32 v13, v14 offset:1040')
    stamp(a, 3)
    endpgm(a)

    if 'W' in X:
        a.label('Lside_pre')
        ksrd(a, 32, KA_OUT, S * D * 2)
        a('s_mul_i32 s16, s13, 3')
        a('s_add_u32 s16, s16, s10')
        a('s_sub_u32 s16, s16, 1')
        a('s_mul_i32 s16, s16, 14336')
        a('v_lshlrev_b32 v18, 4, v0')
        a('s_waitcnt lgkmcnt(0)')
        for n in range(14):
            a(f'buffer_store_dwordx4 v[20:23], v18, s[32:35], s16 offen offset:{(1024*n)%4096} sc1')
            if n % 4 == 3: a('s_add_u32 s16, s16, 4096')
        endpgm(a)

    a.label('Lside_pack')
    ksrd(a, 32, KA_WO, D * D * 2)
    ksrd(a, 36, KA_WG, D * F * 2)
    ksrd(a, 40, KA_WU, D * F * 2)
    ksrd(a, 48, KA_WD, D * F * 2)
    a('s_lshl2_add_u32 s14, s13, s10')
    a('s_sub_u32 s14, s14, 4')
    a('s_lshr_b32 s16, s13, 3')
    a('s_lshl2_add_u32 s16, s16, s10')
    a('s_sub_u32 s16, s16, 4')
    a('s_lshl_b32 s16, s16, 10')
    a('s_cmp_ge_u32 s16, Lcode_end-Lcode_start-1024')
    a('s_cbranch_scc1 Lside_nopf')
    a('s_getpc_b64 s[56:57]')
    a.label('Lside_pc')
    a('s_sub_u32 s56, s56, Lside_pc-Lcode_start')
    a('s_subb_u32 s57, s57, 0')
    a('v_lshl_add_u32 v2, v0, 4, s16')
    if 'I' not in X: a('global_load_dwordx4 v[36:39], v2, s[56:57]')
    a.label('Lside_nopf')
    a('s_waitcnt lgkmcnt(0)')
    a('s_cmp_lt_u32 s14, 56')
    a('s_cbranch_scc1 Lside_nowo')
    a('s_sub_u32 s16, s14, 56')
    a('s_mul_i32 s17, s16, 41')
    a('s_lshr_b32 s17, s17, 10')
    a('s_mul_i32 s18, s17, 25')
    a('s_sub_u32 s18, s16, s18')
    a('s_lshl_b32 s18, s18, 8')
    a('s_lshl_b32 s19, s17, 7')
    a('s_lshl_b32 s52, s17, 5')
    a(f's_add_u32 s52, s52, {1024-128}')
    a('s_mov_b32 s53, 52429')
    for i in range(4):
        a(f'v_add_u32 v10, {64*i}, v0')
        a('v_add_u32 v10, s18, v10')
        a('v_mul_lo_u32 v11, v10, s53')
        a('v_lshrrev_b32 v11, 19, v11')
        a('v_mul_u32_u24 v12, 10, v11')
        a('v_sub_u32 v10, v10, v12')
        a('v_and_b32 v12, 0xffffffe3, v11')
        a('v_bfe_u32 v13, v11, 2, 2')
        a('v_lshl_or_b32 v12, v13, 3, v12')
        a('v_bfe_u32 v13, v11, 4, 1')
        a('v_lshl_or_b32 v12, v13, 2, v12')
        a('v_mul_u32_u24 v12, 1280, v12')
        a('v_lshl_add_u32 v12, v10, 4, v12')
        a('v_mov_b32 v11, s19')
        a('v_mov_b32 v13, s52')
        a('v_cmp_gt_u32 vcc, 8, v10')
        a('v_cndmask_b32 v11, v13, v11, vcc')
        a('v_add_u32 v12, v12, v11')
        a(f'buffer_load_dwordx4 {vr(140+4*i,4)}, v12, s[32:35], 0 offen')
    a.label('Lside_nowo')
    a('s_cmp_ge_u32 s14, 240')
    a('s_cbranch_scc1 Lside_wo')
    a('v_mul_u32_u24 v19, 1280, v5')
    a('v_lshl_add_u32 v19, v6, 4, v19')
    a('v_lshrrev_b32 v10, 2, v5')
    a('v_lshlrev_b32 v10, 9, v10')
    a('v_and_b32 v11, 3, v5')
    a('v_lshl_add_u32 v10, v11, 5, v10')
    a('v_and_b32 v11, 1, v6')
    a('v_lshl_add_u32 v10, v11, 4, v10')
    a('v_lshrrev_b32 v11, 1, v6')
    a('s_mov_b32 s18, 49152')
    a('v_mad_u32_u24 v13, v11, s18, v10')
    for n in range(8):
        a(f's_lshl3_add_u32 s52, s14, {n}')
        a('s_mul_i32 s53, s52, 6554')
        a('s_lshr_b32 s53, s53, 16')
        a('s_mul_i32 s18, s53, 10')
        a('s_sub_u32 s18, s52, s18')
        a(f's_mul_i32 s19, s53, {8*1280}')
        a('s_lshl_b32 s55, s18, 7')
        a('s_add_u32 s19, s19, s55')
        a(f'buffer_load_dwordx4 {vr(40+4*n,4)}, v19, s[48:51], s19 offen nt')
        d = 60 + n
        a(f's_mul_i32 s{d}, s18, {4*49152}')
        a('s_and_b32 s55, s53, 3')
        a('s_lshl_b32 s55, s55, 7')
        a(f's_add_u32 s{d}, s{d}, s55')
        a('s_lshr_b32 s55, s53, 2')
        a('s_lshl_b32 s55, s55, 10')
        a(f's_add_u32 s{d}, s{d}, s55')
        a(f's_add_u32 s{d}, s{d}, {hx(WS_PD)}')
    a('v_mul_u32_u24 v18, 3072, v5')
    a('v_lshl_add_u32 v18, v6, 4, v18')
    a('v_lshrrev_b32 v10, 2, v5')
    a('v_lshlrev_b32 v10, 10, v10')
    a('v_and_b32 v11, 3, v5')
    a('v_lshl_add_u32 v10, v11, 6, v10')
    a('v_and_b32 v11, 3, v6')
    a('v_lshl_add_u32 v10, v11, 4, v10')
    a('v_lshrrev_b32 v11, 2, v6')
    a('s_mov_b32 s18, 81920')
    a('v_mad_u32_u24 v14, v11, s18, v10')
    a('v_add_u32 v15, 40960, v14')
    for n in range(8):
        a(f's_lshl3_add_u32 s52, s14, {n}')
        a('s_mul_i32 s53, s52, 2731')
        a('s_lshr_b32 s53, s53, 16')
        a('s_mul_i32 s18, s53, 24')
        a('s_sub_u32 s18, s52, s18')
        a(f's_mul_i32 s19, s53, {8*3072}')
        a('s_lshl_b32 s55, s18, 7')
        a('s_add_u32 s19, s19, s55')
        a(f'buffer_load_dwordx4 {vr(72+8*n,4)}, v18, s[36:39], s19 offen nt')
        a(f'buffer_load_dwordx4 {vr(76+8*n,4)}, v18, s[40:43], s19 offen nt')
        d = 68 + n
        a(f's_mul_i32 s{d}, s18, {2*81920}')
        a('s_and_b32 s55, s53, 3')
        a('s_lshl_b32 s55, s55, 8')
        a(f's_add_u32 s{d}, s{d}, s55')
        a('s_lshr_b32 s55, s53, 2')
        a('s_lshl_b32 s55, s55, 11')
        a(f's_add_u32 s{d}, s{d}, s55')
        a(f's_add_u32 s{d}, s{d}, {hx(WS_PG)}')
    a('v_mov_b32 v19, 0')
    a.label('Lside_hold')
    a('ds_read_b32 v21, v19 offset:1040')
    a('s_sleep 4')
    a('s_waitcnt lgkmcnt(0)')
    a('v_cmp_eq_u32 vcc, 0, v21')
    if 'H' not in X: a('s_cbranch_vccnz Lside_hold')
    a('s_waitcnt vmcnt(0)')
    for n in range(8): a(f'buffer_store_dwordx4 {vr(40+4*n,4)}, v13, s[28:31], s{60+n} offen sc1')
    for n in range(8):
        a(f'buffer_store_dwordx4 {vr(72+8*n,4)}, v14, s[28:31], s{68+n} offen sc1')
        a(f'buffer_store_dwordx4 {vr(76+8*n,4)}, v15, s[28:31], s{68+n} offen sc1')
    a.label('Lside_wo')
    a('s_cmp_lt_u32 s14, 56')
    a('s_cbranch_scc1 Lq_fin')
    a('s_lshl_b32 s16, s14, 12')
    a(f's_add_u32 s16, s16, {hx(WS_PWO - 56 * 4096)}')
    a('v_lshlrev_b32 v18, 4, v0')
    a('s_waitcnt vmcnt(24)')
    a('s_cmp_lt_u32 s14, 240')
    a('s_cbranch_scc1 Lside_wo2')
    a('s_waitcnt vmcnt(0)')
    a.label('Lside_wo2')
    for i in range(4): a(f'buffer_store_dwordx4 {vr(140+4*i,4)}, v18, s[28:31], s16 offen offset:{1024*i} sc1')
    endpgm(a)
```

```python
from common import *
from k_ffn import FS_LDS, S2
X = os.environ.get('XQ', '')
NT = ' nt' if 'N' in X else ''
SLOT = 36864; NSLOT = 3
MR = NSLOT * SLOT; CS = MR + 1024
SK = CS + 1024
QKV_LDS = SK + 512

from common import _pd as common_pd

def epoch(a):
    a('s_cmp_lg_u32 s97, 0')
    common_pd[0] += 1; L = f'Lep{common_pd[0]}'
    a(f's_cbranch_scc1 {L}')
    a('s_load_dword s98, s[28:29], s44')
    a('s_waitcnt lgkmcnt(0)')
    a(f's_add_u32 s98, s98, {hx(EPK)}')
    a.label(L)

def gen_qkv(a):
    a.pv = 167
    a.fin = 'Lq_fin'
    kernel_start(a, KNAME)
    mark(a, 'start')
    ksrd(a, 28, KA_WS, WS_SIZE)
    ksrd(a, 20, KA_X, S * D * 2)
    a('s_cmp_ge_u32 s2, 256')
    a('s_cbranch_scc1 Lend')
    wave_lane(a)
    a('s_mov_b32 s96, 0')
    a('s_mov_b32 s97, 0')
    a('s_mov_b32 s3, 0')
    if os.environ.get('PRI', '1') == '1':
        a('s_cmp_lg_u32 s10, 8')
        a('s_cbranch_scc1 Lq_start')
        a('s_setprio 3')
    a.label('Lq_start')
    ksrd(a, 24, KA_WQKV, D * 3 * D * 2)
    a('s_and_b32 s11, s2, 7')
    a('s_lshr_b32 s12, s2, 3')
    a('s_sub_u32 s12, s12, 8')
    a('s_lshr_b32 s13, s11, 1')
    a('s_and_b32 s15, s12, 3')
    a('s_lshl2_add_u32 s13, s13, s15')
    a('s_and_b32 s14, s11, 1')
    a('s_mul_i32 s14, s14, 6')
    a('s_lshr_b32 s16, s12, 2')
    a('s_add_u32 s14, s14, s16')
    if 'q' in os.environ.get('MAP', 'o'):
        a('s_and_b32 s15, s12, 1')
        a('s_lshl1_add_u32 s13, s11, s15')
        a('s_lshr_b32 s14, s12, 1')
        a('s_mov_b32 s16, s14')
    a(f's_mov_b32 s40, {SLOT}')
    a(f's_mov_b32 s44, {hx(WS_EP)}')
    a('s_cmp_lt_u32 s2, 64')
    a('s_cbranch_scc1 Lqkv_side')
    a('s_cmp_lt_u32 s10, 4')
    a('s_cbranch_scc1 Lqkv_comp')
    a('s_cmp_eq_u32 s10, 8')
    a('s_cbranch_scc1 Lqkv_w8')

    VA = 2; VW = 6
    ROT = os.environ.get('ROT', '2')
    if ROT == 'f':
        a('s_mul_i32 s15, s15, 3')
        a('s_add_u32 s15, s15, s16')
        a('s_add_u32 s15, s15, s11')
        mod_small(a, 15, 10, 2)
    elif ROT == '0': a('s_mov_b32 s15, 0')
    elif ROT == '2':
        a('s_add_u32 s15, s15, s16'); a('s_and_b32 s15, s15, 1'); a('s_mul_i32 s15, s15, 5')
    elif ROT == '4':
        a('s_add_u32 s15, s15, s16'); a('s_and_b32 s15, s15, 3'); a('s_mul_i32 s15, s15, 5'); a('s_lshr_b32 s15, s15, 1')
    elif ROT == 'a':
        a('s_add_u32 s15, s15, s16'); a('s_and_b32 s15, s15, 3')
    elif ROT == 'n':
        a('s_mul_i32 s15, s15, 3'); a('s_add_u32 s15, s15, s16'); mod_small(a, 15, 10, 1)
    a('s_sub_u32 s16, s10, 4')
    a('v_lshrrev_b32 v12, 3, v0')
    a('v_lshrrev_b32 v13, 4, v0')
    a('v_and_b32 v14, 7, v0')
    a('v_xor_b32 v14, v14, v13')
    a('s_lshl_b32 s17, s16, 5')
    a('v_add_u32 v12, s17, v12')
    VT = 48
    a('v_lshrrev_b32 v15, 1, v14')
    a('v_lshlrev_b32 v15, 16, v15')
    a('v_lshl_add_u32 v15, v12, 5, v15')
    a(f'v_and_b32 v{VT}, 1, v14')
    a(f'v_lshl_add_u32 v15, v{VT}, 4, v15')
    a(f'v_add_u32 v{VT}, 4096, v15')
    a(f'v_xor_b32 v{VT+1}, 0x20000, v{VT}')
    a(f'v_subrev_u32 v{VT+1}, {1024-256}, v{VT+1}')
    a(f'v_subrev_u32 v{VT+2}, {2*(1024-256)}, v{VT}')
    a(f'v_subrev_u32 v{VT+3}, {2*(1024-256)}, v{VT+1}')
    a('v_mul_u32_u24 v12, 1280, v12')
    a(f'v_lshl_add_u32 v{VA}, v14, 4, v12')
    a('v_xor_b32 v14, 4, v14')
    a(f'v_lshl_add_u32 v{VA+1}, v14, 4, v12')
    a(f'v_add_u32 v{VA+1}, {10240-1024}, v{VA+1}')
    a(f'v_add_u32 v{VA+2}, {2*(10240-1024)}, v{VA}')
    a(f'v_add_u32 v{VA+3}, {2*(10240-1024)}, v{VA+1}')
    a(f's_mul_i32 s17, s16, {16*3840}')
    a('s_mul_i32 s18, s14, 320')
    a('s_add_u32 s41, s17, s18')
    a(f's_mov_b32 s42, {64*3840}')
    for i in range(5):
        a(f'v_add_u32 v12, {64*i}, v0')
        a('v_mul_u32_u24 v13, 3277, v12')
        a('v_lshrrev_b32 v13, 16, v13')
        a('v_mul_u32_u24 v14, 20, v13')
        a('v_sub_u32 v12, v12, v14')
        a('v_lshrrev_b32 v14, 2, v13')
        a('v_and_b32 v14, 2, v14')
        a('v_xor_b32 v12, v12, v14')
        a('v_mul_u32_u24 v13, 3840, v13')
        a(f'v_lshl_add_u32 v{VW+i}, v12, 4, v13')
        if 0 < i < 4: a(f'v_subrev_u32 v{VW+i}, {1024*i}, v{VW+i}')
    a('s_mul_i32 s18, s13, 163840')
    a('s_add_u32 s18, s18, s3')
    a('s_lshl_b32 s51, s13, 12')
    a(f's_add_u32 s51, s51, {hx(WS_X1 + XT - 4096 - 8 * 262144)}')
    a('s_cmp_eq_u32 s3, 0')
    a('s_cselect_b32 s52, 10, 8')
    a('s_mul_i32 s37, s15, s42')
    a('s_add_u32 s37, s37, s41')
    a('s_lshl_b32 s17, s16, 12')
    a('s_mov_b32 s38, s17')
    a('s_lshl_b32 s39, s16, 10')
    a('s_add_u32 s39, s39, 0x4000')
    a('s_waitcnt lgkmcnt(0)')
    stamp(a, 1)
    def adv():
        a('s_add_u32 s37, s37, s42')
        a('s_add_u32 s15, s15, 1')
        a('s_cmp_eq_u32 s15, 10')
        a('s_cselect_b32 s15, 0, s15')
        a('s_cselect_b32 s37, s41, s37')
    def dma_a(kc, base):
        common_pd[0] += 1; L = f'Lda{common_pd[0]}'
        a(f's_mov_b32 m0, {base}')
        a(f's_cmp_ge_u32 {kc}, s52')
        a(f's_cbranch_scc1 {L}t')
        a(f's_lshl_b32 s36, {kc}, 7')
        a('s_add_u32 s36, s36, s18')
        for i in range(4): a(f'buffer_load_dwordx4 v{VA+i}, s[20:23], s36 offen offset:{1024*i} sc1 lds')
        a(f's_branch {L}e')
        a.label(L + 't')
        a(f's_lshl_b32 s36, {kc}, 18')
        a('s_add_u32 s36, s36, s51')
        for i in range(4): a(f'buffer_load_dwordx4 v{VT+i}, s[20:23], s36 offen offset:{1024*i} sc1 lds')
        a.label(L + 'e')
    def dma_w(so, base):
        a(f's_add_u32 m0, {base}, s39')
        for i in range(4): a(f'buffer_load_dwordx4 v{VW+i}, s[24:27], {so} offen offset:{1024*i} lds')
        a('s_add_u32 m0, m0, 4096')
        a(f'buffer_load_dwordx4 v{VW+4}, s[24:27], {so} offen lds')
    a('s_mov_b32 s49, s15')
    a(f's_add_u32 s50, s38, {SLOT}')
    dma_w('s37', 's38')
    a('s_cmp_eq_u32 s3, 0')
    a('s_cbranch_scc1 Lqkv_p1')
    adv()
    dma_w('s37', 's50')
    a('s_barrier')
    dma_a('s49', 's38')
    dma_a('s15', 's50')
    a('s_waitcnt vmcnt(4)')
    a('s_branch Lqkv_p2')
    a.label('Lqkv_p1')
    dma_a('s15', 's38')
    adv()
    dma_a('s15', 's50')
    dma_w('s37', 's50')
    epoch(a)
    a.label('Lqkv_p2')
    adv()
    a(f's_add_u32 s38, s38, {2*SLOT}')
    a('s_mov_b32 s33, 0')
    a.label('Lqkv_lloop')
    a('s_waitcnt vmcnt(9)')
    a('s_barrier')
    dma_a('s15', 's38')
    dma_w('s37', 's38')
    adv()
    a(f's_add_u32 s38, s38, {SLOT}')
    a(f's_cmp_ge_u32 s38, {NSLOT*SLOT}')
    a('s_cselect_b32 s38, s17, s38')
    a('s_add_u32 s33, s33, 1')
    a('s_cmp_lt_u32 s33, 8')
    a('s_cbranch_scc1 Lqkv_lloop')
    a('v_and_b32 v12, 31, v0')
    a('v_lshlrev_b32 v2, 4, v12')
    a('v_min_u32 v3, 19, v12')
    a('v_lshlrev_b32 v3, 4, v3')
    a('v_lshrrev_b32 v13, 5, v0')
    a('v_mul_u32_u24 v13, 15360, v13')
    a('v_add_u32 v4, v3, v13')
    a('s_lshl2_add_u32 s19, s14, s16')
    a('s_mul_i32 s19, s19, 320')
    a(f's_add_u32 s19, s19, {hx(WS_CS)}')
    a('s_cmp_lt_u32 s14, 4')
    a(f's_cselect_b32 s47, {hx(QSCALE)}, 1.0')
    a('s_lshl_b32 s17, s16, 8')
    a(f's_add_u32 s17, s17, {MR}')
    a('v_lshl_add_u32 v5, v12, 3, s17')
    a('s_mul_i32 s17, s16, 160')
    a(f's_add_u32 s17, s17, {CS}')
    a('v_lshrrev_b32 v3, 1, v3')
    a('v_add_u32 v6, s17, v3')
    a('s_mov_b32 s33, 0')
    for i in range(4): a(f'v_mov_b32 v{44+i}, -1')
    a('s_and_b32 s49, s14, 12')
    a('s_add_u32 s49, s49, s16')
    a('s_min_u32 s49, s49, 9')
    a('s_and_b32 s50, s14, 3')
    a('s_mul_i32 s50, s50, 10')
    a('s_add_u32 s49, s49, s50')
    a('s_lshl_b32 s49, s49, 16')
    a('s_lshl_b32 s50, s13, 11')
    a('s_add_u32 s49, s49, s50')
    a(f's_add_u32 s49, s49, {hx(WS_O)}')
    a(f's_add_u32 s50, s49, {PLANE}')
    a('v_lshlrev_b32 v43, 4, v0')
    def fill():
        for i in range(4): a(f'buffer_store_dwordx4 v[44:47], v43, s[28:31], s{49+i//2} offen offset:{1024*(i%2)} sc1')
    a('s_cmp_lg_u32 s3, 0')
    a('s_cbranch_scc1 Lqkv_tail2')
    a('s_lshl2_add_u32 s18, s13, s16')
    a('s_lshl_b32 s18, s18, 9')
    a(f's_add_u32 s18, s18, {hx(WS_MR)}')
    def fetch():
        a('buffer_load_dwordx4 v[16:19], v2, s[28:31], s18 offen sc0 sc1')
        a('buffer_load_dwordx4 v[20:23], v4, s[28:31], s19 offen sc0 sc1')
    fetch()
    a('s_mov_b32 s45, s98')
    a('s_not_b32 s46, s45')
    a('s_waitcnt vmcnt(11)')
    a('s_barrier')
    fill()
    a('s_waitcnt vmcnt(6)')
    a('s_barrier')
    a('s_waitcnt vmcnt(4)')
    a.label('Lqkv_hpoll')
    a('v_xor_b32 v18, s45, v18')
    a('v_xor_b32 v19, s46, v19')
    a('v_xor_b32 v21, s45, v21')
    a('v_xor_b32 v23, s45, v23')
    a('v_or_b32 v21, v21, v23')
    a('v_or3_b32 v18, v18, v19, v21')
    a('v_cmp_ne_u32 vcc, 0, v18')
    a('s_cbranch_vccz Lqkv_hgo')
    a('s_add_u32 s33, s33, 1')
    a('s_cmp_gt_u32 s33, 0x40000')
    a('s_cbranch_scc1 Lqkv_hgo')
    fetch()
    a('s_waitcnt vmcnt(0)')
    a('s_branch Lqkv_hpoll')
    a.label('Lqkv_tail2')
    a('s_lshl2_add_u32 s17, s13, s16')
    a('s_lshl_b32 s17, s17, 9')
    a(f's_add_u32 s17, s17, {hx(WS_ST)}')
    a('buffer_load_dwordx4 v[32:35], v2, s[28:31], s17 offen sc1')
    a('buffer_load_dwordx4 v[20:23], v4, s[28:31], s19 offen sc1')
    a('s_waitcnt vmcnt(11)')
    a('s_barrier')
    fill()
    a('s_waitcnt vmcnt(6)')
    a('s_barrier')
    a('s_waitcnt vmcnt(4)')
    a.label('Lqkv_cnt')
    a('v_cmp_neq_f32 vcc, 0x41000000, v35')
    a('s_cbranch_vccz Lqkv_cnt2')
    a('buffer_load_dwordx4 v[32:35], v2, s[28:31], s17 offen sc0 sc1')
    a('s_add_u32 s33, s33, 1')
    a('s_waitcnt vmcnt(0)')
    a('s_cmp_lt_u32 s33, 0x40000')
    a('s_cbranch_scc1 Lqkv_cnt')
    a.label('Lqkv_cnt2')
    inv = hx(f2u(1.0 / D))
    ln_scalars(a, 32, 33, 27, 28, 29)
    a(f'v_mul_f32 v25, {inv}, v32')
    a(f'v_mul_f32 v26, {inv}, v33')
    a('v_fma_f32 v26, -v25, v25, v26')
    a('v_max_f32 v26, 0, v26')
    a('v_add_f32 v29, 1.0, v28')
    a('v_sub_f32 v30, v25, v27')
    a('v_fma_f32 v25, v30, v28, v25')
    a('v_mul_f32 v26, v26, v29')
    a('v_mul_f32 v26, v26, v29')
    rbf16(a, 25, 25)
    rbf16(a, 26, 26)
    a(f'v_add_f32 v26, {hx(f2u(1e-5))}, v26')
    rbf16(a, 26, 26)
    a('v_sqrt_f32 v26, v26')
    a('v_rcp_f32 v30, v29')
    rbf16(a, 26, 26)
    a('v_rcp_f32 v26, v26')
    a('v_fma_f32 v16, v27, v28, v25')
    a('v_mul_f32 v16, v16, v30')
    a('v_mul_f32 v17, v29, v26')
    a.label('Lqkv_hgo')
    a('v_mul_f32 v17, s47, v17')
    a('v_mov_b32 v21, v20')
    a('v_mov_b32 v23, v22')
    a('ds_write_b64 v5, v[16:17]')
    a('v_permlane32_swap_b32 v20, v21')
    a('v_permlane32_swap_b32 v22, v23')
    a('v_add_f32 v20, v20, v21')
    a('v_add_f32 v21, v22, v23')
    a('ds_write_b64 v6, v[20:21]')
    a('s_waitcnt lgkmcnt(0)')
    a('s_barrier')
    endpgm(a)
    a.label('Lqkv_w8')
    a('s_waitcnt lgkmcnt(0)')
    epoch(a)
    a('s_cmp_eq_u32 s3, 0')
    a('s_cbranch_scc1 Lqkv_w8a')
    a('v_and_b32 v2, 15, v0')
    a('s_lshl_b32 s16, s13, 4')
    a('v_add_u32 v2, s16, v2')
    slot_to_off_v(a, 2, 3)
    a('s_mov_b64 exec, 0xffff')
    flag_wait(a, [2])
    a('s_barrier')
    a('s_branch Lqkv_w8b')
    a.label('Lqkv_w8a')
    a('s_sub_u32 s47, s2, 64')
    a('s_sub_u32 s46, s47, 67')
    a('s_min_u32 s46, s46, s47')
    a('s_cmp_lt_u32 s46, 32')
    a('s_cselect_b32 s46, 0, -1')
    for i in range(4): a(f'v_mov_b32 v{4+i}, s46')
    a('s_lshl_b32 s46, s47, 10')
    a(f's_add_u32 s46, s46, {hx(WS_CTL)}')
    a('v_lshlrev_b32 v1, 4, v0')
    for i in range(9): a('s_barrier')
    a(f's_cmp_ge_u32 s47, {NCLR}')
    a('s_cbranch_scc1 Lqkv_w8d')
    a('buffer_store_dwordx4 v[4:7], v1, s[28:31], s46 offen sc1')
    a.label('Lqkv_w8d')
    a('s_branch Lqkv_w8c')
    a.label('Lqkv_w8b')
    for i in range(9): a('s_barrier')
    a.label('Lqkv_w8c')
    for i in range(2): a('s_barrier')
    endpgm(a)
    side1(a)
    comp(a)

def comp(a):
    a.label('Lqkv_comp')
    ACC = 8; BUF = 88; AX = 2; AW = 4
    CSR = 88; MRR = 108; T = 116
    a('s_and_b32 s16, s10, 1')
    a('s_lshr_b32 s17, s10, 1')
    a('v_and_b32 v160, 15, v0')
    a('v_lshrrev_b32 v161, 4, v0')
    a('v_bfe_u32 v162, v0, 1, 3')
    a('v_xor_b32 v162, v162, v161')
    a('v_lshlrev_b32 v162, 4, v162')
    a('v_lshl_add_u32 v162, v160, 7, v162')
    a('s_lshl_b32 s18, s17, 13')
    a(f'v_add_u32 v{AX}, s18, v162')
    a(f'v_xor_b32 v{AX+1}, 64, v{AX}')
    a('v_bfe_u32 v162, v0, 2, 2')
    a('v_lshl_add_u32 v162, v161, 3, v162')
    a('v_mul_u32_u24 v162, 320, v162')
    a('v_and_b32 v163, 3, v0')
    a('v_lshl_add_u32 v162, v163, 3, v162')
    a('s_mul_i32 s18, s16, 160')
    a('s_add_u32 s18, s18, 0x4000')
    a('v_add_u32 v162, s18, v162')
    a('v_and_b32 v163, 16, v0')
    a('v_lshlrev_b32 v163, 1, v163')
    a(f'v_add_u32 v{AW}, v162, v163')
    a(f'v_sub_u32 v{AW+1}, v162, v163')
    a('s_cmp_eq_u32 s16, 0')
    a('s_cbranch_scc1 Lqkv_nosw')
    a(f'v_swap_b32 v{AW}, v{AW+1}')
    a.label('Lqkv_nosw')
    a('s_waitcnt lgkmcnt(0)')
    epoch(a)
    for i in range(80): a(f'v_mov_b32 v{ACC+i}, 0')
    a('s_lshl1_add_u32 s19, s14, s16')
    a(f's_mul_i32 s19, s19, {10*PLANE}')
    a('s_lshl1_add_u32 s41, s13, s17')
    a('s_lshl_b32 s41, s41, 10')
    a('s_add_u32 s41, s41, s19')
    a('s_cmp_eq_u32 s3, 0')
    a('s_cbranch_scc1 Lqkv_c1')
    a(f's_add_u32 s41, s41, {QKV_SZ}')
    a('s_barrier')
    a.label('Lqkv_c1')
    NR = 14
    def rd(b, s):
        base = BUF + 36 * b
        xs = [f'ds_read_b128 {vr(base+4*tt,4)}, v{AX+s} offset:{2048*tt}' for tt in range(4)]
        ws = [[f'ds_read_b64_tr_b16 {vr(base+16+4*ct+2*j,2)}, v{AW+ct%2} offset:{(32*s+4*j)*320+32*ct}' for j in range(2)] for ct in range(5)]
        return ws[0] + xs + sum(ws[1:], [])
    def mf(b):
        base = BUF + 36 * b
        L = []
        for ct in range(5):
            wneed = 2 if ct == 0 else 6 + 2 * ct
            for tt in range(4):
                acc = vr(ACC + (ct * 4 + tt) * 4, 4)
                L.append((f'v_mfma_f32_16x16x32_bf16 {acc}, {vr(base+16+4*ct,4)}, {vr(base+4*tt,4)}, {acc}', max(wneed, 3 + tt)))
        return L
    def kstep(b, R, start, extra={}, full=False):
        M = mf(b); R = list(R); issued = 0; have = 0
        if full:
            a('s_waitcnt lgkmcnt(0)'); have = NR
        for i, (m, need) in enumerate(M):
            if need > have:
                a(f's_waitcnt lgkmcnt({min(15, NR - need + issued)})'); have = need
            a(m)
            for x in extra.get(i, []): a(x)
            if i >= start and R:
                a(R.pop(0)); issued += 1
        assert not R
    a('s_mov_b32 s33, 0')
    a('s_mov_b32 s34, 0')
    a('s_waitcnt lgkmcnt(0)')
    stamp(a, 2)
    a('s_barrier')
    stamp(a, 3)
    cstamp(a, 12)
    for x in rd(0, 0): a(x)
    a.label('Lqkv_cloop')
    ex = {0: ['s_add_u32 s34, s34, 1'], 1: [f's_cmp_eq_u32 s34, {NSLOT}'], 2: [f's_cselect_b32 s35, {hx(-(NSLOT-1)*SLOT)}, s40'], 3: ['s_cselect_b32 s34, 0, s34'],
          4: ['s_add_u32 s33, s33, 1'], 5: ['s_cmp_eq_u32 s33, 10']}
    for i in range(4): ex[14 + i] = [f'v_add_u32 v{AX+i}, s35, v{AX+i}']
    kstep(0, rd(1, 1), 0, extra=ex)
    a('s_cbranch_scc1 Lqkv_cdone')
    kstep(1, rd(0, 0), 2, extra={1: ['s_barrier']}, full=True)
    a('s_branch Lqkv_cloop')
    a.label('Lqkv_cdone')
    stamp(a, 4)
    cstamp(a, 13)
    a('s_waitcnt lgkmcnt(0)')
    for m, _ in mf(1): a(m)
    a('s_mul_i32 s18, s16, 320')
    a(f's_add_u32 s18, s18, {CS}')
    a(f'v_lshl_add_u32 v{AX}, v161, 4, s18')
    a('s_lshl_b32 s18, s17, 9')
    a(f's_add_u32 s18, s18, {MR}')
    a(f'v_lshl_add_u32 v{AX+2}, v160, 3, s18')
    a('v_and_b32 v1, 31, v0')
    a('v_lshlrev_b32 v1, 4, v1')
    a('v_lshrrev_b32 v162, 5, v0')
    a('v_lshl_add_u32 v1, v162, 15, v1')
    a('s_barrier')
    stamp(a, 5)
    for tt in range(4): a(f'ds_read_b64 {vr(MRR+2*tt,2)}, v{AX+2} offset:{128*tt}')
    for c in range(5): a(f'ds_read_b128 {vr(CSR+4*c,4)}, v{AX} offset:{64*c}')
    n = 0
    for ct in range(5):
        cs = CSR + 4 * ct
        a(f's_waitcnt lgkmcnt({4-ct})')
        for tp in range(2):
            R = T + 4 * (n % 4); n += 1
            for k in range(2):
                tt = 2 * tp + k
                acc = ACC + (ct * 4 + tt) * 4
                for p in range(2):
                    a(f'v_pk_fma_f32 {vr(acc+2*p,2)}, {vr(cs+2*p,2)}, {vr(MRR+2*tt,2)}, {vr(acc+2*p,2)} op_sel_hi:[1,0,1] neg_lo:[0,1,0] neg_hi:[0,1,0]')
                for p in range(2):
                    a(f'v_pk_mul_f32 {vr(acc+2*p,2)}, {vr(acc+2*p,2)}, {vr(MRR+2*tt,2)} op_sel:[0,1] op_sel_hi:[1,1]')
                a(f'v_cvt_pk_bf16_f32 v{R+2*k}, v{acc}, v{acc+1}')
                a(f'v_cvt_pk_bf16_f32 v{R+2*k+1}, v{acc+2}, v{acc+3}')
            a(f'v_permlane16_swap_b32 v{R}, v{R+2}')
            a(f'v_permlane16_swap_b32 v{R+1}, v{R+3}')
            a(f'buffer_store_dwordx4 {vr(R,4)}, v1, s[28:31], s41 offen offset:{512*tp} sc1')
        if ct < 4: a(f's_add_u32 s41, s41, {2*PLANE}')

def side1(a):
    a.label('Lqkv_side')
    a('s_mov_b32 s13, s2')
    a('s_mov_b32 s53, 1')
    a('s_mov_b32 s51, 0')
    a('s_cmp_lg_u32 s3, 0')
    a('s_cbranch_scc1 Lfs')
    a('v_lshrrev_b32 v5, 3, v0')
    a('v_and_b32 v6, 7, v0')
    a('v_lshlrev_b32 v7, 2, v0')
    a('v_mov_b32 v8, 0')
    a('ds_write_b32 v7, v8 offset:1024')
    a('s_waitcnt lgkmcnt(0)')
    a('s_barrier')
    epoch(a)
    a('s_cmp_eq_u32 s10, 8')
    a('s_cbranch_scc1 Lside_tlb')
    a('s_cmp_ge_u32 s10, 4')
    a('s_cbranch_scc1 Lside_pack')
    a('s_lshl2_add_u32 s14, s13, s10')
    a('v_mul_u32_u24 v4, 1280, v5')
    a('v_lshl_add_u32 v4, v6, 4, v4')
    a('s_mul_i32 s15, s14, 10240')
    for i in range(10): a(f'buffer_load_dwordx4 {vr(20+4*i,4)}, v4, s[20:23], s15 offen offset:{128*i}')
    a('s_cmp_ge_u32 s13, 60')
    a('s_cselect_b32 s53, 1, 0')
    a('s_cmp_eq_u32 s53, 1')
    a('s_cbranch_scc1 Lside_nob')
    a('v_mul_u32_u24 v7, 3840, v5')
    a('v_lshl_add_u32 v7, v6, 4, v7')
    a('s_and_b32 s16, s13, 1')
    a('s_mul_i32 s16, s16, 40')
    a('s_add_u32 s16, s16, s10')
    a(f's_mul_i32 s17, s16, {8*3840}')
    a('s_lshr_b32 s18, s13, 1')
    a('s_lshl_b32 s19, s18, 7')
    a('s_add_u32 s17, s17, s19')
    for n in range(10):
        a(f'buffer_load_dwordx4 {vr(60+4*n,4)}, v7, s[24:27], s17 offen')
        if n < 9: a(f's_add_u32 s17, s17, {32*3840}')
    a('s_waitcnt vmcnt(10)')
    a('s_branch Lside_a')
    a.label('Lside_nob')
    a('s_waitcnt vmcnt(0)')
    a.label('Lside_a')
    stamp(a, 1)
    for i in range(40):
        u = 100 + 2 * (i % 2)
        unpack(a, u, 20 + i)
        if i == 0:
            a(f'v_pk_mul_f32 v[106:107], {vr(u,2)}, {vr(u,2)}')
            a(f'v_pk_add_f32 v[104:105], {vr(u,2)}, 0')
        else:
            a(f'v_pk_fma_f32 v[106:107], {vr(u,2)}, {vr(u,2)}, v[106:107]')
            a(f'v_pk_add_f32 v[104:105], {vr(u,2)}, v[104:105]')
    a('v_add_f32 v104, v104, v105')
    a('v_add_f32 v106, v106, v107')
    for m in ('quad_perm:[1,0,3,2]', 'quad_perm:[2,3,0,1]', 'row_half_mirror'):
        for v in (104, 106): a(f'v_add_f32_dpp v{v}, v{v}, v{v} {m} row_mask:0xf bank_mask:0xf')
    ln_scalars(a, 104, 106, 108, 109, 100)
    a('s_mov_b32 s54, s98')
    a('v_mov_b32 v110, s54')
    a('v_not_b32 v111, v110')
    a('v_lshlrev_b32 v11, 4, v5')
    a('s_lshl_b32 s15, s14, 7')
    a(f's_add_u32 s15, s15, {hx(WS_MR)}')
    a('s_mov_b32 exec_lo, 0x01010101')
    a('s_mov_b32 exec_hi, 0x01010101')
    a('buffer_store_dwordx4 v[108:111], v11, s[28:31], s15 offen sc0 sc1')
    a('s_mov_b64 exec, -1')
    stamp(a, 2)
    a('s_cmp_eq_u32 s53, 1')
    a('s_cbranch_scc1 Lside_nob2')
    a('s_waitcnt vmcnt(1)')
    for n in range(10):
        for q in range(4):
            u = 100 + 2 * (q % 2)
            unpack(a, u, 60 + 4 * n + q)
            if n == 0: a(f'v_pk_add_f32 {vr(112+2*q,2)}, {vr(u,2)}, 0')
            else: a(f'v_pk_add_f32 {vr(112+2*q,2)}, {vr(u,2)}, {vr(112+2*q,2)}')
    for q in range(8): a(f'v_add_f32_dpp v{112+q}, v{112+q}, v{112+q} row_ror:8 row_mask:0xf bank_mask:0xf')
    for op in ('v_permlane16_swap_b32', 'v_permlane32_swap_b32'):
        for q in range(8): a(f'v_mov_b32 v{120+q}, v{112+q}')
        for q in range(8): a(f'{op} v{112+q}, v{120+q}')
        for q in range(8): a(f'v_add_f32 v{112+q}, v{112+q}, v{120+q}')
    a('s_lshl_b32 s19, s10, 8')
    a('v_lshl_add_u32 v13, v6, 5, s19')
    a('ds_write_b128 v13, v[112:115]')
    a('ds_write_b128 v13, v[116:119] offset:16')
    a.label('Lside_nob2')
    a('s_lshl_b32 s19, s10, 2')
    a('v_mov_b32 v13, s19')
    a('s_waitcnt lgkmcnt(0)')
    a('v_mov_b32 v14, 1')
    a('ds_write_b32 v13, v14 offset:1024')
    a('s_cmp_lg_u32 s10, 0')
    a('s_cbranch_scc1 ' + ('Lside_pre' if 'W' in X else 'Lq_fin'))
    a.label('Lside_meet')
    a('ds_read_b128 v[20:23], v13 offset:1024')
    a('s_waitcnt lgkmcnt(0)')
    a('v_and_b32 v20, v20, v21')
    a('v_and_b32 v22, v22, v23')
    a('v_and_b32 v20, v20, v22')
    a('v_cmp_eq_u32 vcc, 0, v20')
    a('s_cbranch_vccnz Lside_meet')
    a('s_cmp_eq_u32 s53, 1')
    a('s_cbranch_scc1 Lside_bump')
    a('v_lshlrev_b32 v13, 2, v0')
    for w in range(4): a(f'ds_read_b32 v{72+w}, v13 offset:{256*w}')
    a('s_and_b32 s16, s13, 1')
    a('s_mul_i32 s16, s16, 15360')
    a('s_lshl_b32 s17, s18, 9')
    a('s_add_u32 s16, s16, s17')
    a(f's_add_u32 s16, s16, {hx(WS_CS)}')
    a('v_lshlrev_b32 v13, 3, v0')
    a('s_waitcnt lgkmcnt(0)')
    for w in range(1, 4): a(f'v_add_f32 v72, v72, v{72+w}')
    a('v_mov_b32 v73, s54')
    a('buffer_store_dwordx2 v[72:73], v13, s[28:31], s16 offen sc0 sc1')
    a.label('Lside_bump')
    a('s_waitcnt vmcnt(0)')
    a('v_mov_b32 v13, 0')
    a('ds_write_b32 v13, v14 offset:1040')
    stamp(a, 3)
    endpgm(a)

    if 'W' in X:
        a.label('Lside_pre')
        ksrd(a, 32, KA_OUT, S * D * 2)
        a('s_mul_i32 s16, s13, 3')
        a('s_add_u32 s16, s16, s10')
        a('s_sub_u32 s16, s16, 1')
        a('s_mul_i32 s16, s16, 14336')
        a('v_lshlrev_b32 v18, 4, v0')
        a('s_waitcnt lgkmcnt(0)')
        for n in range(14):
            a(f'buffer_store_dwordx4 v[20:23], v18, s[32:35], s16 offen offset:{(1024*n)%4096} sc1')
            if n % 4 == 3: a('s_add_u32 s16, s16, 4096')
        endpgm(a)

    a.label('Lside_tlb')
    TS = int(os.environ.get('TS', '20'))
    if TS:
        a(f's_load_dwordx16 s[48:63], s[0:1], 0')
        a(f's_load_dwordx2 s[64:65], s[0:1], {KA_OUT}')
        a('s_lshr_b32 s45, s13, 3')
        a(f's_lshl_b32 s45, s45, {TS}')
        a('s_waitcnt lgkmcnt(0)')
        def touch(base, size):
            common_pd[0] += 1; L = f'Ltch{common_pd[0]}'
            a('s_mov_b32 s46, s45')
            a.label(L)
            a(f's_min_u32 s43, s46, {size-4}')
            a(f's_load_dword s47, s[{base}:{base+1}], s43')
            a(f's_add_u32 s46, s46, {8 << TS}')
            a(f's_cmp_lt_u32 s46, {size + (1 << TS)}')
            a(f's_cbranch_scc1 {L}')
        touch(28, WS_END)
        touch(64, S * D * 2)
        for b, sz in ((56, D * 2), (52, D * D * 2), (48, S * D * 2), (50, 3 * D * D * 2)): touch(b, sz)
    endpgm(a)

    a.label('Lside_pack')
    ksrd(a, 32, KA_WO, D * D * 2)
    ksrd(a, 36, KA_WG, D * F * 2)
    ksrd(a, 40, KA_WU, D * F * 2)
    ksrd(a, 48, KA_WD, D * F * 2)
    a('s_lshl2_add_u32 s14, s13, s10')
    a('s_sub_u32 s14, s14, 4')
    a('s_lshr_b32 s16, s13, 3')
    a('s_lshl2_add_u32 s16, s16, s10')
    a('s_sub_u32 s16, s16, 4')
    a('s_lshl_b32 s16, s16, 10')
    a('s_cmp_ge_u32 s16, Lcode_end-Lcode_start-1024')
    a('s_cbranch_scc1 Lside_nopf')
    a('s_getpc_b64 s[56:57]')
    a.label('Lside_pc')
    a('s_sub_u32 s56, s56, Lside_pc-Lcode_start')
    a('s_subb_u32 s57, s57, 0')
    a('v_lshl_add_u32 v2, v0, 4, s16')
    if 'I' not in X: a('global_load_dwordx4 v[36:39], v2, s[56:57]')
    a.label('Lside_nopf')
    a('s_waitcnt lgkmcnt(0)')
    a('s_cmp_lt_u32 s14, 56')
    a('s_cbranch_scc1 Lside_nowo')
    a('s_sub_u32 s16, s14, 56')
    a('s_mul_i32 s17, s16, 41')
    a('s_lshr_b32 s17, s17, 10')
    a('s_mul_i32 s18, s17, 25')
    a('s_sub_u32 s18, s16, s18')
    a('s_lshl_b32 s18, s18, 8')
    a('s_lshl_b32 s19, s17, 7')
    a('s_lshl_b32 s52, s17, 5')
    a(f's_add_u32 s52, s52, {1024-128}')
    a('s_mov_b32 s53, 52429')
    for i in range(4):
        a(f'v_add_u32 v10, {64*i}, v0')
        a('v_add_u32 v10, s18, v10')
        a('v_mul_lo_u32 v11, v10, s53')
        a('v_lshrrev_b32 v11, 19, v11')
        a('v_mul_u32_u24 v12, 10, v11')
        a('v_sub_u32 v10, v10, v12')
        a('v_and_b32 v12, 0xffffffe3, v11')
        a('v_bfe_u32 v13, v11, 2, 2')
        a('v_lshl_or_b32 v12, v13, 3, v12')
        a('v_bfe_u32 v13, v11, 4, 1')
        a('v_lshl_or_b32 v12, v13, 2, v12')
        a('v_mul_u32_u24 v12, 1280, v12')
        a('v_lshl_add_u32 v12, v10, 4, v12')
        a('v_mov_b32 v11, s19')
        a('v_mov_b32 v13, s52')
        a('v_cmp_gt_u32 vcc, 8, v10')
        a('v_cndmask_b32 v11, v13, v11, vcc')
        a('v_add_u32 v12, v12, v11')
        a(f'buffer_load_dwordx4 {vr(140+4*i,4)}, v12, s[32:35], 0 offen')
    a.label('Lside_nowo')
    a('s_cmp_ge_u32 s14, 240')
    a('s_cbranch_scc1 Lside_wo')
    a('v_mul_u32_u24 v19, 1280, v5')
    a('v_lshl_add_u32 v19, v6, 4, v19')
    a('v_lshrrev_b32 v10, 2, v5')
    a('v_lshlrev_b32 v10, 9, v10')
    a('v_and_b32 v11, 3, v5')
    a('v_lshl_add_u32 v10, v11, 5, v10')
    a('v_and_b32 v11, 1, v6')
    a('v_lshl_add_u32 v10, v11, 4, v10')
    a('v_lshrrev_b32 v11, 1, v6')
    a('s_mov_b32 s18, 49152')
    a('v_mad_u32_u24 v13, v11, s18, v10')
    for n in range(8):
        a(f's_lshl3_add_u32 s52, s14, {n}')
        a('s_mul_i32 s53, s52, 6554')
        a('s_lshr_b32 s53, s53, 16')
        a('s_mul_i32 s18, s53, 10')
        a('s_sub_u32 s18, s52, s18')
        a(f's_mul_i32 s19, s53, {8*1280}')
        a('s_lshl_b32 s55, s18, 7')
        a('s_add_u32 s19, s19, s55')
        a(f'buffer_load_dwordx4 {vr(40+4*n,4)}, v19, s[48:51], s19 offen nt')
        d = 60 + n
        a(f's_mul_i32 s{d}, s18, {4*49152}')
        a('s_and_b32 s55, s53, 3')
        a('s_lshl_b32 s55, s55, 7')
        a(f's_add_u32 s{d}, s{d}, s55')
        a('s_lshr_b32 s55, s53, 2')
        a('s_lshl_b32 s55, s55, 10')
        a(f's_add_u32 s{d}, s{d}, s55')
        a(f's_add_u32 s{d}, s{d}, {hx(WS_PD)}')
    a('v_mul_u32_u24 v18, 3072, v5')
    a('v_lshl_add_u32 v18, v6, 4, v18')
    a('v_lshrrev_b32 v10, 2, v5')
    a('v_lshlrev_b32 v10, 10, v10')
    a('v_and_b32 v11, 3, v5')
    a('v_lshl_add_u32 v10, v11, 6, v10')
    a('v_and_b32 v11, 3, v6')
    a('v_lshl_add_u32 v10, v11, 4, v10')
    a('v_lshrrev_b32 v11, 2, v6')
    a('s_mov_b32 s18, 81920')
    a('v_mad_u32_u24 v14, v11, s18, v10')
    a('v_add_u32 v15, 40960, v14')
    for n in range(8):
        a(f's_lshl3_add_u32 s52, s14, {n}')
        a('s_mul_i32 s53, s52, 2731')
        a('s_lshr_b32 s53, s53, 16')
        a('s_mul_i32 s18, s53, 24')
        a('s_sub_u32 s18, s52, s18')
        a(f's_mul_i32 s19, s53, {8*3072}')
        a('s_lshl_b32 s55, s18, 7')
        a('s_add_u32 s19, s19, s55')
        a(f'buffer_load_dwordx4 {vr(72+8*n,4)}, v18, s[36:39], s19 offen nt')
        a(f'buffer_load_dwordx4 {vr(76+8*n,4)}, v18, s[40:43], s19 offen nt')
        d = 68 + n
        a(f's_mul_i32 s{d}, s18, {2*81920}')
        a('s_and_b32 s55, s53, 3')
        a('s_lshl_b32 s55, s55, 8')
        a(f's_add_u32 s{d}, s{d}, s55')
        a('s_lshr_b32 s55, s53, 2')
        a('s_lshl_b32 s55, s55, 11')
        a(f's_add_u32 s{d}, s{d}, s55')
        a(f's_add_u32 s{d}, s{d}, {hx(WS_PG)}')
    a('v_mov_b32 v19, 0')
    a.label('Lside_hold')
    a('ds_read_b32 v21, v19 offset:1040')
    a('s_sleep 4')
    a('s_waitcnt lgkmcnt(0)')
    a('v_cmp_eq_u32 vcc, 0, v21')
    if 'H' not in X: a('s_cbranch_vccnz Lside_hold')
    a('s_waitcnt vmcnt(0)')
    for n in range(8): a(f'buffer_store_dwordx4 {vr(40+4*n,4)}, v13, s[28:31], s{60+n} offen sc1')
    for n in range(8):
        a(f'buffer_store_dwordx4 {vr(72+8*n,4)}, v14, s[28:31], s{68+n} offen sc1')
        a(f'buffer_store_dwordx4 {vr(76+8*n,4)}, v15, s[28:31], s{68+n} offen sc1')
    a.label('Lside_wo')
    a('s_cmp_lt_u32 s14, 56')
    a('s_cbranch_scc1 Lq_fin')
    a('s_lshl_b32 s16, s14, 12')
    a(f's_add_u32 s16, s16, {hx(WS_PWO - 56 * 4096)}')
    a('v_lshlrev_b32 v18, 4, v0')
    a('s_waitcnt vmcnt(24)')
    a('s_cmp_lt_u32 s14, 240')
    a('s_cbranch_scc1 Lside_wo2')
    a('s_waitcnt vmcnt(0)')
    a.label('Lside_wo2')
    for i in range(4): a(f'buffer_store_dwordx4 {vr(140+4*i,4)}, v18, s[28:31], s16 offen offset:{1024*i} sc1')
    endpgm(a)
```
